```python
import torch

def _softmax(x, axis=-1):
    return torch.softmax(x, dim=axis)
def _gelu(x):
    return torch.nn.functional.gelu(x, approximate="tanh")
def _silu(x):
    return torch.nn.functional.silu(x)
def _sigmoid(x):
    return torch.sigmoid(x)
def _layernorm(x, axis=-1, eps=1e-5):
    m = x.mean(dim=axis, keepdim=True)
    v = x.var(dim=axis, keepdim=True, unbiased=False)
    return (x - m) / torch.sqrt(v + eps)
def _scatter_add(tgt, idx, src, axis=0):
    return tgt.clone().index_add_(axis, idx, src)
def _segment_sum(src, seg, n):
    out = torch.zeros((n,) + src.shape[1:], dtype=src.dtype)
    return out.index_add_(0, seg, src)
def _pad(x, pw):
    flat = tuple(v for pair in reversed(pw) for v in pair)
    return torch.nn.functional.pad(x, flat)

kernel_name = 'gated_mix__linear_attn_block__geglu_ffn__prompt'

def setup_inputs():

    _w = (lambda a: (lambda t: t.to(torch.bfloat16) if t.is_floating_point() else t)(torch.as_tensor(a)))
    def _A_setup():
        B, S, D = 1, 2048, 512
        return {
            "x": _w((lambda *s: torch.randn(*s, dtype=torch.bfloat16) * 0.05)(B, S, D)),
            "wqkv": _w((lambda *s: torch.randn(*s, dtype=torch.bfloat16) * 0.8)(D, 3 * D)),
            "wo": _w((lambda *s: torch.randn(*s, dtype=torch.bfloat16) * 0.05)(D, D)),
        }
    _A_in = _A_setup()

    def _B_setup():
        B, S, D, F = 1, 2048, 512, 1792
        return {
            "x": _w((lambda *s: torch.randn(*s, dtype=torch.bfloat16) * 0.05)(B, S, D)),
            "w_gate": _w((lambda *s: torch.randn(*s, dtype=torch.bfloat16) * 0.05)(D, F)),
            "w_up": _w((lambda *s: torch.randn(*s, dtype=torch.bfloat16) * 0.05)(D, F)),
            "w_down": _w((lambda *s: torch.randn(*s, dtype=torch.bfloat16) * 0.05)(F, D)),
        }
    _B_in = _B_setup()

    return {
        "A_x": _A_in["x"],
        "A_wqkv": _A_in["wqkv"],
        "A_wo": _A_in["wo"],
        "B_x": _B_in["x"],
        "B_w_gate": _B_in["w_gate"],
        "B_w_up": _B_in["w_up"],
        "B_w_down": _B_in["w_down"],
        "gate_w": _w((lambda *s: torch.randn(*s, dtype=torch.bfloat16) * 0.05)(512) * 16.0),
    }

def reference(A_x, A_wqkv, A_wo, B_x, B_w_gate, B_w_up, B_w_down, gate_w):
    def _A_ref(x, wqkv, wo):
        B, S, D = x.shape
        H = 32; Dh = D // H
        qkv = (lambda x, *d: x.permute(*d))((x @ wqkv).reshape(B, S, 3, H, Dh), 2, 0, 3, 1, 4)
        q, k, v = qkv[0], qkv[1], qkv[2]
        phi = lambda t: torch.where(t > 0, t + 1, torch.exp(t)) + 1e-6
        pq, pk = phi(q), phi(k)
        kv = torch.einsum("bhsd,bhse->bhde", pk, v)
        z = torch.einsum("bhsd->bhd", pk)
        num = torch.einsum("bhqd,bhde->bhqe", pq, kv)
        den = torch.einsum("bhqd,bhd->bhq", pq, z)[..., None] + 1e-6
        o = num / den
        return (lambda x, *d: x.permute(*d))(o, 0, 2, 1, 3).reshape(B, S, D) @ wo

    def _B_ref(x, w_gate, w_up, w_down):
        return (_gelu(x @ w_gate) * (x @ w_up)) @ w_down

    x = A_x
    g = _sigmoid((x * gate_w).sum(-1, keepdims=True))
    a = _A_ref(x, A_wqkv, A_wo)
    b = _B_ref(x, B_w_gate, B_w_up, B_w_down)
    return g * a + (1 - g) * b
```

```python
import re

REG_RE = re.compile(r"^(-|\|)?(abs\()?([vas])(\d+)\)?\|?$")
RNG_RE = re.compile(r"^(-)?([vas])\[(\d+):(\d+)\]$")
TRANS = ("v_exp_f32", "v_log_f32", "v_rcp_f32", "v_rsq_f32", "v_sqrt_f32", "v_sin_f32", "v_cos_f32")


def regs_of(tok):
    tok = tok.strip()
    m = RNG_RE.match(tok)
    if m:
        return [(m.group(2), i) for i in range(int(m.group(3)), int(m.group(4)) + 1)]
    m = REG_RE.match(tok)
    if m:
        return [(m.group(3), int(m.group(4)))]
    if tok == "vcc":
        return [("s", "vcc")]
    if tok == "exec":
        return [("s", "exec")]
    if tok == "m0":
        return [("s", "m0")]
    return []


class I:
    __slots__ = ("text", "op", "kind", "rd", "wr", "tag", "srcC", "srcAB", "passes", "lds", "data")

    def __init__(self, text, tag=None):
        self.text = text
        self.tag = tag
        self.rd, self.wr, self.srcC, self.srcAB, self.data = [], [], [], [], []
        self.passes = 0
        self.lds = False
        t = text.strip()
        if t.startswith("@") or t.endswith(":") or t.startswith(";") or t.startswith("."):
            self.op, self.kind = t, ("pseudo" if t.startswith("@") else "label")
            return
        parts = t.split(None, 1)
        op = parts[0]
        self.op = op
        rest = parts[1] if len(parts) > 1 else ""
        ops, depth, cur = [], 0, ""
        for ch in rest:
            if ch in "[(":
                depth += 1
            if ch in "])":
                depth -= 1
            if ch == "," and depth == 0:
                ops.append(cur.strip()); cur = ""
            else:
                cur += ch
        if cur.strip():
            ops.append(cur.strip())
        mods = ""
        if ops:
            last = ops[-1].split(None, 1)
            ops[-1] = last[0]
            mods = last[1] if len(last) > 1 else ""
        R = [regs_of(o) for o in ops]
        flat = lambda l: [x for y in l for x in y]
        if op.startswith("v_mfma"):
            self.kind = "mfma"
            self.wr = R[0]; self.srcAB = R[1] + R[2]; self.srcC = R[3]; self.rd = self.srcAB + self.srcC
            self.passes = 8 if "32x32x16" in op else 4
        elif op.startswith("v_"):
            self.kind = "valu"
            if op.startswith("v_permlane") and "swap" in op:
                self.wr = R[0] + R[1]; self.rd = R[0] + R[1]
            elif op.startswith(("v_fmac", "v_dot2c", "v_writelane")):
                self.wr = R[0]; self.rd = flat(R)
            elif op.startswith(("v_add_co", "v_sub_co", "v_addc_co")):
                self.wr = R[0] + R[1]; self.rd = flat(R[2:])
            elif op == "v_nop":
                pass
            else:
                self.wr = R[0]; self.rd = flat(R[1:])
            if "dpp" in op:
                self.rd = self.rd + R[0]
        elif op.startswith("ds_"):
            self.kind = "ds"
            if op.startswith("ds_read") or op.startswith("ds_bpermute"):
                self.wr = R[0]; self.rd = flat(R[1:])
            else:
                self.rd = flat(R)
        elif op.startswith(("buffer_", "global_")):
            self.kind = "vmem"
            if re.search(r"\blds\b", mods):
                self.lds = True
                self.rd = flat(R) + [("s", "m0")]
            elif "_load" in op:
                self.wr = R[0]; self.rd = flat(R[1:])
            else:
                self.rd = flat(R)
                if "x4" in op or "x3" in op:
                    self.data = R[0] if op.startswith("buffer_") else R[1]
        elif op.startswith(("s_load", "s_memtime", "s_memrealtime")):
            self.kind = "smem"
            self.wr = R[0]; self.rd = flat(R[1:])
        elif op.startswith("s_"):
            self.kind = "salu"
            if op.startswith(("s_cmp", "s_bitcmp")):
                self.rd = flat(R)
            elif op.startswith(("s_waitcnt", "s_barrier", "s_nop", "s_branch", "s_cbranch", "s_sleep", "s_endpgm", "s_setprio")):
                pass
            elif "saveexec" in op:
                self.wr = R[0] + [("s", "exec")]; self.rd = flat(R[1:])
            else:
                self.wr = R[0]; self.rd = flat(R[1:])
        else:
            raise ValueError(text)

    def states(self):
        if self.kind in ("pseudo", "label"):
            return 0
        if self.op == "s_nop":
            return int(self.text.split()[1]) + 1
        return 1


def L(text, tag=None):
    out = [I(l.strip()) for l in text.split("\n") if l.strip()]
    if tag is not None:
        out[-1].tag = tag
    return out


def resolve_waits(ins):
    out = []
    vm_n = 0
    vm_done = 0
    lg_n = 0
    lg_done = 0
    smem_out = False
    pend = {}
    tags = {}

    def wait(vm=None, lg=None):
        nonlocal vm_done, lg_done, smem_out
        s = []
        if vm is not None and vm > vm_done:
            n = vm_n - vm
            if n < 63:
                s.append(f"vmcnt({n})")
            vm_done = vm
        if lg is not None:
            if lg == "all":
                if smem_out or lg_done < lg_n:
                    s.append("lgkmcnt(0)")
                lg_done = lg_n; smem_out = False
                for r in [r for r, v in pend.items() if v[0] == "sm"]: del pend[r]
            elif lg > lg_done:
                n = lg_n - lg
                if smem_out:
                    n = 0; lg = lg_n; smem_out = False
                    for r in [r for r, v in pend.items() if v[0] == "sm"]: del pend[r]
                if n < 15:
                    s.append(f"lgkmcnt({n})")
                lg_done = lg
        if s:
            out.append(I("s_waitcnt " + " ".join(s)))

    for x in ins:
        if x.kind == "pseudo":
            p = x.text.split()
            if p[0] == "@vm":
                wait(vm=max(tags[t] for t in p[1:]))
            elif p[0] == "@sync":
                wait(vm=max([tags[t] for t in p[1:]], default=None), lg="all")
            elif p[0] == "@lgkm0":
                wait(lg="all")
            elif p[0] == "@vm0":
                wait(vm=vm_n)
            elif p[0] == "@raw":
                out.append(I(x.text[5:]))
            else:
                raise ValueError(x.text)
            continue
        needvm, needlg = None, None
        for r in x.rd + x.wr:
            if r in pend:
                k, i = pend[r]
                if k == "vm":
                    if i > vm_done: needvm = max(needvm or 0, i)
                elif k == "lg":
                    if i > lg_done and needlg != "all": needlg = max(needlg or 0, i)
                elif smem_out:
                    needlg = "all"
                del pend[r]
        if needvm is not None or needlg is not None:
            wait(vm=needvm, lg=needlg)
        out.append(x)
        if x.kind == "vmem":
            vm_n += 1
            for r in x.wr: pend[r] = ("vm", vm_n)
            if x.tag: tags[x.tag] = vm_n
        elif x.kind == "ds":
            lg_n += 1
            for r in x.wr: pend[r] = ("lg", lg_n)
        elif x.kind == "smem":
            smem_out = True
            for r in x.wr: pend[r] = ("sm", 0)
    return out


def need_states(p, c):
    n = 0
    pw, cr, cw = set(p.wr), set(c.rd), set(c.wr)
    vec = lambda s: {r for r in s if r[0] in "va"}
    sca = lambda s: {r for r in s if r[0] == "s"}
    if p.kind == "valu":
        if c.kind == "mfma" and vec(pw) & cr: n = max(n, 2)
        if c.kind == "vmem" and sca(pw) & cr: n = max(n, 5)
        if c.kind == "valu":
            if sca(pw) & cr: n = max(n, 4 if c.op.startswith(("v_readlane", "v_writelane")) else 2)
            if vec(pw) & cr:
                if c.op.startswith(("v_readlane", "v_readfirstlane")): n = max(n, 1)
                if c.op.startswith("v_permlane") or "dpp" in c.op: n = max(n, 2)
                if p.op.startswith(TRANS) and not c.op.startswith(TRANS): n = max(n, 1)
    elif p.kind == "mfma":
        big = p.passes == 8
        if c.kind == "mfma":
            if pw & set(c.srcAB): n = max(n, 12 if big else 8)
            if pw & set(c.srcC):
                if not (p.wr == c.srcC and p.passes == c.passes): n = max(n, 10 if big else 6)
            elif pw & cw:
                n = max(n, 10 if big else 6)
        elif c.kind in ("valu", "vmem", "ds"):
            if pw & (cr | cw): n = max(n, 12 if big else 8)
            if c.kind == "valu" and set(p.srcC) & cw: n = max(n, 7 if big else 3)
    elif p.kind == "salu":
        if ("s", "m0") in pw and c.kind == "vmem" and c.lds: n = max(n, 1)
    elif p.kind == "vmem":
        if p.data and set(p.data) & cw: n = max(n, 2)
    return n


def pad_hazards(ins):
    out = []
    added = 0
    for c in ins:
        if c.kind not in ("pseudo", "label"):
            dist, need = 0, 0
            for p in reversed(out):
                if dist >= 20: break
                if p.kind not in ("pseudo", "label"):
                    k = need_states(p, c) - dist
                    if k > need: need = k
                dist += p.states()
            if need > 0:
                out.append(I(f"s_nop {need-1}")); added += need
        out.append(c)
    return out, added


def finalize(ins):
    a = resolve_waits(ins)
    b, added = pad_hazards(a)
    return b, added


def text_of(ins):
    return "\n".join((x.text if x.kind == "label" else "    " + x.text) for x in ins) + "\n"


def weave(slots, side, lo=0, hi=None):
    hi = len(slots) if hi is None else hi
    n = hi - lo
    tot = sum(len(g) for g in side)
    acc = 0
    for g in side:
        k = lo + min(n - 1, (acc * n) // max(tot, 1))
        slots[k].extend(g)
        acc += len(g)
```

```python
import sys, struct
from prog import *

KNAME = "gated_mix__linear_attn_block__geglu_ffn__prompt_kernel"

WS_EPOCH = 0
WS_FL = 0x1000
WS_KF = 0x12000
WS_G = 0x14000
WS_ZP = 0x18000
WS_KP = 0x28000
WS_H = 0x100000
WS_STAMP = 0x8000000
RG_BYTES = 144 * 1024
WS_BYTES = 268435456

def f32(x): return "0x%08x" % struct.unpack("<I", struct.pack("<f", x))[0]
LOG2E = 1.4426950408889634
K0 = -2.0 * 0.7978845608028654 * LOG2E
K1 = K0 * 0.044715

SX, SQ, SG, SU, SD, SO, SW, SOUT, SGW = 8, 12, 16, 20, 24, 28, 32, 36, 40
srd = lambda b: f"s[{b}:{b+3}]"
(sW, sRH, sJ, sR, sT, sTag, sR2, sC2, sT0, sT1, sT2, sRot, sKx, sKw, sKq, sL4, sL2, sL1, sCE, sCH, sCL,
 sE, sEh, sL, sO, sFP, sKFP, sKPP, sZPP, sA0, sA1, sSpin, sGrow, sOff) = [f"s{i}" for i in range(44, 78)]
sMH = "s[78:79]"
sMR = "s[80:81]"
sPC = "s[4:5]"
STAMP0 = 82

ACC = lambda t, rg: 96 + (t * 2 + rg) * 16
vr = lambda b, n=4: f"v[{b}:{b+n-1}]"
ar = lambda b, n=4: f"a[{b}:{b+n-1}]"
LDS_MISC = 19 * 8192


class Gen:
    def __init__(self, typ, opt):
        self.typ = typ
        self.opt = opt
        self.nv = 1
        self.names = {}
        self.setup = []
        self.hi_next = 192
        self.nstamp = 0
        self.nlab = 0

    def v(self, name, n=1, p1only=False):
        if name not in self.names:
            if p1only:
                if n > 1: self.hi_next = (self.hi_next + 1) // 2 * 2
                self.names[name] = self.hi_next; self.hi_next += n
                assert self.hi_next <= 256
            else:
                if n > 1: self.nv = (self.nv + 1) // 2 * 2
                self.names[name] = self.nv; self.nv += n
                assert self.nv <= 64, name
        return self.names[name]

    def V(self, name, p1only=False): return f"v{self.v(name, 1, p1only)}"

    def lab(self, s):
        self.nlab += 1
        return f"L_{self.typ}_{s}_{self.nlab}"

    def stamp(self):
        if not self.opt.get("stamps"): return []
        i = STAMP0 + 2 * self.nstamp
        self.nstamp += 1
        assert i + 1 <= 101
        return L(f"s_memtime s[{i}:{i+1}]")

    def lds(self, pat, off, p1only=False):
        win, imm = off >> 16, off & 0xFFFF
        if win == 0:
            return self.V(pat, p1only), imm
        name = f"{pat}@{win}"
        if name not in self.names:
            self.setup += L(f"v_add_u32 {self.V(name, p1only)}, {win << 16}, {self.V(pat, p1only)}")
        return self.V(name), imm

    def prologue(self):
        A = self.typ == "A"
        V = self.V
        o = []
        t = [self.V(f"t{i}") for i in range(8)]
        l = V("lane")
        o += L(f"""
        v_and_b32 {l}, 63, v0
        v_lshrrev_b32 {t[0]}, 6, v0
        s_and_b32 {sT0}, s2, 7
        v_readfirstlane_b32 {sW}, {t[0]}
        s_lshr_b32 {sT1}, s2, 3
        s_and_b32 {sR}, {sT0}, 1
        s_lshl_b32 {sR}, {sR}, 3
        s_and_b32 {sT2}, {sT1}, 7
        s_add_u32 {sR}, {sR}, {sT2}
        s_lshr_b32 {sT}, {sT0}, 1
        s_lshl_b32 {sT}, {sT}, 1
        s_lshr_b32 {sOff}, {sT1}, 4
        s_add_u32 {sT}, {sT}, {sOff}
        s_lshr_b32 {sRH}, {sW}, 1
        s_and_b32 {sJ}, {sW}, 1
        """)
        rot = self.opt.get("rot", 0)
        if rot == 0:
            o += L(f"s_mov_b32 {sRot}, 0")
        else:
            o += L(f"""
            s_lshr_b32 {sRot}, {sT1}, 3
            s_add_u32 {sRot}, {sRot}, {sT2}
            s_and_b32 {sRot}, {sRot}, {rot-1}
            s_mul_i32 {sRot}, {sRot}, {8//rot}
            """)
        if self.opt.get("map2", "8x4") == "8x4":
            o += L(f"""
            s_lshr_b32 {sR2}, {sT0}, 1
            s_lshl_b32 {sR2}, {sR2}, 3
            s_add_u32 {sR2}, {sR2}, {sT2}
            s_and_b32 {sC2}, {sT0}, 1
            s_lshl_b32 {sC2}, {sC2}, 2
            s_lshr_b32 {sOff}, {sT1}, 3
            s_add_u32 {sC2}, {sC2}, {sOff}
            """)
        else:
            o += L(f"""
            s_lshl_b32 {sR2}, {sT0}, 2
            s_and_b32 {sOff}, {sT1}, 3
            s_add_u32 {sR2}, {sR2}, {sOff}
            s_lshr_b32 {sC2}, {sT1}, 2
            """)
        l3, l7, l4, hi, nh, r4, c3, l31 = [self.V(n, True) for n in ("l3", "l7", "l4", "hi", "nh", "r4", "c3", "l31")]
        wsw = self.V("wsw", True)
        o += L(f"""
        v_lshrrev_b32 {l3}, 3, {l}
        v_and_b32 {l7}, 7, {l}
        v_lshrrev_b32 {l4}, 4, {l}
        v_lshrrev_b32 {hi}, 5, {l}
        v_and_b32 {nh}, 1, {l4}
        v_bfe_u32 {r4}, {l}, 2, 2
        v_and_b32 {c3}, 3, {l}
        v_and_b32 {l31}, 31, {l}
        s_lshl_b32 {sT0}, {sR}, 17
        s_lshl_b32 {sT1}, {sW}, 15
        s_add_u32 {sT0}, {sT0}, {sT1}
        v_xor_b32 {t[0]}, {l7}, {l4}
        v_lshlrev_b32 {t[0]}, 4, {t[0]}
        v_lshl_add_u32 {t[0]}, {l3}, 10, {t[0]}
        v_add_u32 {V('X0', True)}, {sT0}, {t[0]}
        v_xor_b32 {t[1]}, 64, {V('X0')}
        v_add_u32 {V('X1', True)}, 0x2000, {t[1]}
        v_lshlrev_b32 {t[0]}, 2, {nh}
        v_xor_b32 {t[0]}, {t[0]}, {l7}
        v_lshlrev_b32 {wsw}, 4, {t[0]}
        s_lshl_b32 {sT0}, {sW}, 4
        v_add_u32 {t[0]}, {sT0}, {l3}
        v_mul_u32_u24 {t[1]}, 3584, {t[0]}
        v_add_u32 {V('Wg')}, {t[1]}, {wsw}
        v_xor_b32 {V('Wu')}, 32, {V('Wg')}
        s_lshl_b32 {sL4}, {sW}, 12
        s_lshl_b32 {sL2}, {sW}, 11
        s_lshl_b32 {sL1}, {sW}, 10
        """)
        if A:
            o += L(f"""
            v_mul_u32_u24 {t[1]}, 3072, {t[0]}
            v_add_u32 {V('Wq', True)}, {t[1]}, {wsw}
            s_lshl_b32 {sCE}, {sT}, 7
            s_add_u32 {sCL}, {sCE}, 2560
            """)
        else:
            o += L(f"""
            v_lshrrev_b32 {t[0]}, 2, {l}
            v_add_u32 {t[0]}, {sT0}, {t[0]}
            v_mul_u32_u24 {t[1]}, 3584, {t[0]}
            v_lshl_add_u32 {V('Hg', True)}, {c3}, 4, {t[1]}
            v_xor_b32 {V('Hu', True)}, 32, {V('Hg')}
            s_lshl_b32 {sCE}, {sT}, 7
            s_add_u32 {sCL}, {sCE}, 1536
            s_lshl_b32 {sCH}, {sT}, 6
            s_add_u32 {sCH}, {sCH}, 1024
            """)
        o += L(f"""
        s_lshl_b32 {sGrow}, {sR}, 4
        s_add_u32 {sGrow}, {sGrow}, {sT}
        s_add_u32 {sGrow}, {sGrow}, {0 if A else 8}
        s_lshl_b32 {sGrow}, {sGrow}, 2
        s_add_u32 {sGrow}, {sGrow}, {sW}
        s_lshl_b32 {sGrow}, {sGrow}, 1
        v_lshlrev_b32 {V('l16')}, 4, {l}
        """)
        self.first = o
        o = []
        o += L(f"""
        v_bfe_u32 {t[0]}, {l}, 1, 3
        v_xor_b32 {t[0]}, {t[0]}, {hi}
        v_lshlrev_b32 {t[0]}, 4, {t[0]}
        v_lshl_add_u32 {t[0]}, {l31}, 7, {t[0]}
        s_lshl_b32 {sT0}, {sRH}, 13
        v_add_u32 {V('XR0', True)}, {sT0}, {t[0]}
        v_xor_b32 {V('XR1', True)}, 32, {V('XR0')}
        v_xor_b32 {V('XR2', True)}, 64, {V('XR0')}
        v_xor_b32 {V('XR3', True)}, 0x60, {V('XR0')}
        v_and_b32 {t[0]}, 2, {r4}
        v_xor_b32 {t[0]}, {t[0]}, {nh}
        s_lshl_b32 {sT0}, {sJ}, 1
        v_xor_b32 {t[0]}, {sT0}, {t[0]}
        v_lshlrev_b32 {t[0]}, 5, {t[0]}
        v_lshl_add_u32 {t[0]}, {c3}, 3, {t[0]}
        v_lshl_add_u32 {t[1]}, {hi}, 3, {r4}
        v_lshl_add_u32 {t[2]}, {t[1]}, 7, {t[0]}
        v_lshl_add_u32 {V('M0')}, {nh}, 13, {t[2]}
        v_xor_b32 {V('M1')}, 32, {V('M0')}
        v_lshl_add_u32 {t[3]}, {hi}, 2, {r4}
        v_lshl_add_u32 {t[3]}, {t[3]}, 7, {t[0]}
        v_add_u32 {V('VR0')}, {sL2}, {t[3]}
        v_xor_b32 {V('VR1')}, 64, {V('VR0')}
        """)
        if A:
            o += L(f"v_mov_b32 {V('Pl', True)}, {t[2]}")
        else:
            o += L(f"""
            v_xor_b32 {t[0]}, {sJ}, {nh}
            v_lshlrev_b32 {t[0]}, 5, {t[0]}
            v_lshl_add_u32 {t[0]}, {c3}, 3, {t[0]}
            v_lshl_add_u32 {t[0]}, {t[1]}, 6, {t[0]}
            v_lshl_add_u32 {V('Hf', True)}, {nh}, 12, {t[0]}
            """)
        o += L(f"""
        v_lshl_add_u32 {t[0]}, {l3}, 10, {wsw}
        s_lshl_b32 {sT0}, {sC2}, 7
        s_lshl_b32 {sT1}, {sW}, 16
        s_add_u32 {sT0}, {sT0}, {sT1}
        v_add_u32 {V('V4')}, {sT0}, {t[0]}
        v_add_u32 {V('V8')}, {sT1}, {V('V4')}
        s_mul_i32 {sT0}, {sR2}, {2*RG_BYTES}
        s_add_u32 {sT0}, {sT0}, {WS_H}
        s_add_u32 {sT0}, {sT0}, {sL4}
        v_add_u32 {V('A4')}, {sT0}, {V('l16')}
        v_add_u32 {V('A8')}, {sL4}, {V('A4')}
        s_mul_i32 {sA0}, {sRH}, {RG_BYTES}
        s_sub_u32 {sA1}, {RG_BYTES}, {sA0}
        s_lshl_b32 {sT0}, {sR}, 1
        s_add_u32 {sT0}, {sT0}, {sRH}
        s_mul_i32 {sT1}, {sT0}, {2*RG_BYTES}
        s_add_u32 {sT1}, {sT1}, {WS_H}
        v_add_u32 {V('HS0')}, {sT1}, {V('l16')}
        v_add_u32 {V('HS1')}, {RG_BYTES}, {V('HS0')}
        s_lshl_b32 {sT1}, {sT0}, 9
        s_add_u32 {sT1}, {sT1}, {WS_G}
        v_lshlrev_b32 {t[0]}, 3, {l31}
        v_add_u32 {V('G', True)}, {sT1}, {t[0]}
        s_lshl_b32 {sT0}, {sT0}, 2
        s_lshr_b32 {sT1}, {sT}, 1
        s_add_u32 {sT0}, {sT0}, {sT1}
        s_lshl_b32 {sT0}, {sT0}, 9
        s_and_b32 {sT1}, {sT}, 1
        s_lshl_b32 {sT1}, {sT1}, 1
        s_add_u32 {sT1}, {sT1}, {sJ}
        s_lshl_b32 {sT1}, {sT1}, 2
        s_add_u32 {sT0}, {sT0}, {sT1}
        s_add_u32 {sFP}, {sT0}, {WS_FL}
        s_lshl_b32 {sT0}, {sR2}, 2
        s_add_u32 {sT0}, {sT0}, {sW}
        s_lshl_b32 {sT0}, {sT0}, 9
        s_add_u32 {sT0}, {sT0}, {WS_FL}
        v_lshlrev_b32 {t[0]}, 2, {c3}
        v_add_u32 {V('F')}, {sT0}, {t[0]}
        v_and_b32 {t[0]}, 1, {r4}
        v_lshl_add_u32 {V('FL')}, {t[0]}, 7, {V('F')}
        s_lshl_b32 {sT0}, {sT}, 2
        s_lshl_b32 {sT1}, {sJ}, 1
        s_add_u32 {sT0}, {sT0}, {sT1}
        s_lshl_b32 {sE}, {sT0}, 10
        s_add_u32 {sL}, {sE}, {(80 if A else 48)*1024}
        v_mov_b32 {V('K1')}, {f32(K1)}
        """)
        if A:
            o += L(f"""
            s_add_u32 {sO}, {sE}, {112*1024}
            s_add_u32 {sT0}, {sT0}, {sRH}
            s_lshl_b32 {sT1}, {sT0}, 7
            s_add_u32 {sT1}, {sT1}, {WS_KF}
            s_lshl_b32 {sT2}, {sR}, 2
            s_add_u32 {sKFP}, {sT1}, {sT2}
            v_and_b32 {t[0]}, 15, {l}
            v_lshlrev_b32 {t[0]}, 2, {t[0]}
            v_add_u32 {V('KF')}, {sT1}, {t[0]}
            s_lshl_b32 {sT1}, {sT0}, 14
            s_add_u32 {sT1}, {sT1}, {WS_KP}
            v_add_u32 {V('KG')}, {sT1}, {V('l16')}
            s_lshl_b32 {sKPP}, {sR}, 10
            s_lshl_b32 {sT1}, {sT0}, 11
            s_add_u32 {sT1}, {sT1}, {WS_ZP}
            v_lshlrev_b32 {t[0]}, 2, {l}
            v_add_u32 {V('ZG')}, {sT1}, {t[0]}
            s_lshl_b32 {sZPP}, {sR}, 7
            s_mov_b32 s78, 0xffff0000
            s_mov_b32 s79, 0xffff0000
            s_sub_u32 s80, 0, {sRH}
            s_mov_b32 s81, s80
            v_lshlrev_b32 {t[0]}, 4, {hi}
            v_xor_b32 {t[1]}, 1, {nh}
            v_lshl_add_u32 {t[0]}, {t[1]}, 5, {t[0]}
            s_lshl_b32 {sT1}, {sW}, 6
            s_add_u32 {sT1}, {sT1}, {LDS_MISC + 7168}
            v_add_u32 {V('ZR')}, {sT1}, {t[0]}
            v_bfe_u32 {t[0]}, {l}, 3, 1
            v_lshl_add_u32 {t[0]}, {t[0]}, 2, {c3}
            v_lshlrev_b32 {t[0]}, 1, {t[0]}
            v_and_b32 {t[1]}, 1, {r4}
            v_lshl_add_u32 {t[0]}, {t[1]}, 4, {t[0]}
            v_lshl_add_u32 {t[0]}, {nh}, 5, {t[0]}
            v_add_u32 {V('ZW')}, {sT1}, {t[0]}
            s_add_u32 {sT1}, {sL1}, {LDS_MISC}
            v_add_u32 {V('XW')}, {sT1}, {V('l16')}
            v_xor_b32 {V('XRd')}, 0x800, {V('XW')}
            """)
        else:
            o += L(f"""
            s_lshl_b32 {sT0}, {sT}, 1
            s_add_u32 {sT0}, {sT0}, {sJ}
            s_add_u32 {sT0}, {sT0}, 32
            s_lshl_b32 {sEh}, {sT0}, 10
            """)
        o += L(f"""
        s_lshl_b32 {sT0}, {sR2}, 1
        s_add_u32 {sT0}, {sT0}, {sRH}
        s_lshl_b32 {sT0}, {sT0}, 15
        s_lshl_b32 {sT1}, {sC2}, 1
        s_add_u32 {sT1}, {sT1}, {sJ}
        s_lshl_b32 {sT1}, {sT1}, 6
        s_add_u32 {sT0}, {sT0}, {sT1}
        v_lshlrev_b32 {t[0]}, 4, {hi}
        v_lshl_add_u32 {t[0]}, {l31}, 10, {t[0]}
        v_add_u32 {V('OUT')}, {sT0}, {t[0]}
        v_add_u32 {V('RW')}, {sL2}, {V('l16')}
        s_mov_b32 {sSpin}, 0
        """)
        self.second = o

    def dma(self, s, vreg, soff_code, m0base, ldsoff, tag=None, flags=""):
        return L(f"""
        s_add_u32 m0, {m0base}, {ldsoff}
        {soff_code}
        buffer_load_dwordx4 {vreg}, {srd(s)}, {sOff} offen {flags} lds
        """, tag)

    def kb_setup(self, i, p1):
        A = self.typ == "A"
        o = L(f"""
        s_add_u32 {sT0}, {sRot}, {i}
        s_and_b32 {sT0}, {sT0}, 7
        """)
        if p1:
            o += L(f"s_lshl_b32 {sKx}, {sT0}, 7")
            if A:
                o += L(f"s_mul_i32 {sKq}, {sT0}, {64*3072}\ns_add_u32 {sKq}, {sKq}, {sCE}")
            else:
                o += L(f"s_mul_i32 {sKw}, {sT0}, {64*3584}\ns_add_u32 {sKq}, {sKw}, {sCH}\ns_add_u32 {sKw}, {sKw}, {sCE}")
        else:
            o += L(f"s_mul_i32 {sKw}, {sT0}, {64*3584}\ns_add_u32 {sKw}, {sKw}, {sCL}")
        return o

    def p1_loads(self, s):
        A = self.typ == "A"
        V = self.V
        base = (s % 3) * 40960
        wf = self.opt.get("wflags", ""); xf = self.opt.get("xflags", "")
        g = []
        for jj in range(4):
            g.append(self.dma(SX, V(f"X{jj&1}"), f"s_add_u32 {sOff}, {sKx}, {(jj>>1)*16384}", sL4, base + jj * 1024, flags=xf))
        for ii in range(2):
            if A:
                for reg, col in ((2, 1024), (3, 2048), (4, 0)):
                    g.append(self.dma(SQ, V("Wq"), f"s_add_u32 {sOff}, {sKq}, {ii*8*3072 + col}", sL2, base + reg * 8192 + ii * 1024, flags=wf))
            else:
                g.append(self.dma(SG, V("Wg"), f"s_add_u32 {sOff}, {sKw}, {ii*8*3584}", sL2, base + 2 * 8192 + ii * 1024, flags=wf))
                g.append(self.dma(SU, V("Wu"), f"s_add_u32 {sOff}, {sKw}, {ii*8*3584}", sL2, base + 3 * 8192 + ii * 1024, flags=wf))
                g.append(self.dma(SU if ii else SG, V("Hu" if ii else "Hg"), f"s_mov_b32 {sOff}, {sKq}", sL1, base + 4 * 8192 + ii * 4096, flags=wf))
        g[0] = self.kb_setup(s, True) + g[0]
        g[-1][-1].tag = f"S{s}"
        return g

    P_BLK = [15, 17, 10, 12, 0, 2, 5, 7]
    V_BLK = [14, 4, 9, 15, 16, 17, 18, 10, 11, 12, 13, 0, 1, 2, 3, 5, 6, 7, 8]

    def p2_loads(self, t):
        V = self.V
        base = self.P_BLK[t] * 8192
        wf = self.opt.get("wflags", "")
        g = []
        for ii in range(2):
            g.append(self.dma(SG, V("Wg"), f"s_add_u32 {sOff}, {sKw}, {ii*8*3584}", sL2, base + ii * 1024, flags=wf))
            g.append(self.dma(SU, V("Wu"), f"s_add_u32 {sOff}, {sKw}, {ii*8*3584}", sL2, base + 8192 + ii * 1024, flags=wf))
        g[0] = self.kb_setup(t, False) + g[0]
        g[-1][-1].tag = f"P{t}"
        return g

    @staticmethod
    def step(n):
        if n < 8: return n, 8
        if n < 12: return 32 + (n - 8), 4
        if n < 20: return 48 + (n - 12), 8
        if n < 28: return 80 + (n - 20), 8
        return 112 + (n - 28), 8

    def v_loads(self, n):
        ks, mul = self.step(n)
        s, k = (SD, ks) if ks < 112 else (SO, ks - 112)
        base = self.V_BLK[n % 19] * 8192
        vf = self.opt.get("vflags", "")
        g = [self.dma(s, self.V(f"V{mul}"), f"s_mov_b32 {sOff}, {k*16384 + ii*8192}", sL2, base + ii * 1024, flags=vf) for ii in range(2)]
        g[-1][-1].tag = f"V{n}"
        return g

    def areg(self, n, sr): return 160 + (n % 12) * 8 + sr * 4

    def a_loads(self, n):
        ks, mul = self.step(n)
        return [L(f"""
        s_add_u32 {sOff}, {sA1 if sr else sA0}, {ks*1024}
        buffer_load_dwordx4 {ar(self.areg(n, sr))}, {self.V(f'A{mul}')}, {srd(SW)}, {sOff} offen sc1
        """) for sr in range(2)]

    def vfrag(self, n, sn):
        if n < self.opt.get("park", 0): return "a", n * 8 + sn * 4
        return "v", (64 if n % 2 == 0 else 80) + sn * 4

    def v_reads(self, n):
        base = self.V_BLK[n % 19] * 8192
        o = []
        for sn in range(2):
            k, b = self.vfrag(n, sn)
            for i in range(2):
                a, imm = self.lds(f"VR{sn}", base + i * 1024)
                o.append(L(f"ds_read_b64_tr_b16 {k}[{b+2*i}:{b+2*i+1}], {a} offset:{imm}"))
        return o

    def poll_issue(self, reg, addr, off, wide=False):
        if wide:
            return L(f"buffer_load_dwordx2 {vr(reg, 2)}, {addr}, {srd(SW)}, 0 offen offset:{off} sc1")
        return L(f"buffer_load_dword v{reg}, {addr}, {srd(SW)}, 0 offen offset:{off} sc1")

    def poll_check(self, reg, addr, off, wide=False):
        ok, again = self.lab("ok"), self.lab("again")
        tr = reg + 1 if wide else reg
        ld = self.poll_issue(reg, addr, off, wide)[0].text
        return L(f"""
        v_cmp_ne_u32 vcc, {sTag}, v{tr}
        s_cbranch_vccz {ok}
        {again}:
        @raw s_sleep 1
        @raw {ld}
        @raw s_add_u32 {sSpin}, {sSpin}, 1
        @raw s_waitcnt vmcnt(0)
        @raw v_cmp_ne_u32 vcc, {sTag}, v{tr}
        @raw s_cmp_lt_u32 {sSpin}, 0x8000
        @raw s_cbranch_scc0 {ok}
        @raw s_cbranch_vccnz {again}
        {ok}:
        """)

    def flag_store(self, soff, off, tags):
        return L(f"""
        @vm {' '.join(tags)}
        s_mov_b64 exec, 1
        buffer_store_dword {self.V('tag')}, off, {srd(SW)}, {soff} offset:{off} sc1
        s_mov_b64 exec, -1
        """)

    def gate_loads(self):
        x0, x1, gw = self.v("gx0", 4, True), self.v("gx1", 4, True), self.v("ggw", 4, True)
        return [L(f"""
        s_lshl_b32 {sOff}, {sGrow}, 10
        buffer_load_dwordx4 {vr(x0)}, {self.V('l16')}, {srd(SX)}, {sOff} offen
        buffer_load_dwordx4 {vr(x1)}, {self.V('l16')}, {srd(SX)}, {sOff} offen offset:1024
        buffer_load_dwordx4 {vr(gw)}, {self.V('l16')}, {srd(SGW)}, 0 offen
        """)]

    def gate_compute(self):
        x = [self.v("gx0", 4, True), self.v("gx1", 4, True)]; gw = self.v("ggw", 4, True)
        t = [self.V(f"t{i}") for i in range(8)]
        s = [self.v("gs", 2, True), self.v("gs") + 1]
        one = self.V("gone", True)
        o = L(f"v_mov_b32 {one}, 0x3f803f80\nv_mov_b32 v{s[0]}, 0\nv_mov_b32 v{s[1]}, 0")
        for d in range(4):
            o += L(f"v_lshlrev_b32 {t[0]}, 16, v{gw+d}\nv_and_b32 {t[1]}, 0xffff0000, v{gw+d}")
            for r in range(2):
                o += L(f"""
                v_lshlrev_b32 {t[2+2*r]}, 16, v{x[r]+d}
                v_and_b32 {t[3+2*r]}, 0xffff0000, v{x[r]+d}
                v_mul_f32 {t[2+2*r]}, {t[2+2*r]}, {t[0]}
                v_mul_f32 {t[3+2*r]}, {t[3+2*r]}, {t[1]}
                v_cvt_pk_bf16_f32 {t[2+2*r]}, {t[2+2*r]}, {t[3+2*r]}
                v_lshlrev_b32 {t[6]}, 16, {t[2+2*r]}
                v_and_b32 {t[7]}, 0xffff0000, {t[2+2*r]}
                v_add_f32 v{s[r]}, v{s[r]}, {t[6]}
                v_add_f32 v{s[r]}, v{s[r]}, {t[7]}
                """)
        dpp = "row_mask:0xf bank_mask:0xf"
        o += L(f"""
        v_permlane32_swap_b32 v{s[0]}, v{s[1]}
        v_add_f32 v{s[0]}, v{s[0]}, v{s[1]}
        v_add_f32_dpp v{s[0]}, v{s[0]}, v{s[0]} quad_perm:[1,0,3,2] {dpp}
        v_add_f32_dpp v{s[0]}, v{s[0]}, v{s[0]} quad_perm:[2,3,0,1] {dpp}
        v_add_f32_dpp v{s[0]}, v{s[0]}, v{s[0]} row_half_mirror {dpp}
        v_add_f32_dpp v{s[0]}, v{s[0]}, v{s[0]} row_mirror {dpp}
        v_mov_b32 v{s[1]}, v{s[0]}
        v_permlane16_swap_b32 v{s[0]}, v{s[1]}
        v_add_f32 v{s[0]}, v{s[0]}, v{s[1]}
        v_cvt_pk_bf16_f32 v{s[0]}, v{s[0]}, v{s[0]}
        v_and_b32 v{s[0]}, 0xffff0000, v{s[0]}
        v_mul_f32 v{s[0]}, {f32(-LOG2E)}, v{s[0]}
        v_exp_f32 v{s[0]}, v{s[0]}
        v_add_f32 v{s[0]}, 1.0, v{s[0]}
        v_rcp_f32 v{s[0]}, v{s[0]}
        v_cvt_pk_bf16_f32 v{s[0]}, v{s[0]}, v{s[0]}
        v_and_b32 v{s[0]}, 0xffff0000, v{s[0]}
        v_mov_b32 v{s[1]}, {sTag}
        v_lshlrev_b32 {t[0]}, 3, {self.V('hi')}
        s_lshl_b32 {sOff}, {sGrow}, 3
        s_add_u32 {sOff}, {sOff}, {WS_G}
        """)
        groups = [[i] for i in o]
        groups.append(L(f"""
        s_mov_b32 exec_lo, 1
        s_mov_b32 exec_hi, 1
        buffer_store_dwordx2 {vr(s[0], 2)}, {t[0]}, {srd(SW)}, {sOff} offen sc1
        s_mov_b64 exec, -1
        """))
        groups = groups[:-4] + [sum(groups[-4:], [])]
        return groups

    def gate_fetch(self):
        g0, g1 = self.v("g0", 2), self.v("g1", 2)
        return [self.poll_issue(g0, self.V("G"), 0, True), self.poll_issue(g1, self.V("G"), 256, True)]

    def gate_check(self):
        o = []
        for i, nm in enumerate(("g0", "g1")):
            g = self.v(nm)
            o.append(self.poll_check(g, self.V("G"), 256 * i, True))
            o += [[x] for x in L(f"""
            v_sub_f32 v{g+1}, 1.0, v{g}
            v_cvt_pk_bf16_f32 v{g+1}, v{g+1}, v{g+1}
            v_and_b32 v{g+1}, 0xffff0000, v{g+1}
            v_max_f32 v{g+1}, {f32(1e-30)}, v{g+1}
            v_rcp_f32 v{g+1}, v{g+1}
            """)]
        return o

    def gelu_tile(self, t, rg, soff, off, tag=None):
        a = ACC(t, rg)
        io = f"v{self.v('g%d' % rg) + 1}"
        T = [self.V(f"t{i}") for i in range(8)]
        o = []
        for h in range(2):
            js = range(4 * h, 4 * h + 4)
            for stage in (
                lambda j, x: f"v_mul_f32 {x}, v{a+j}, v{a+j}",
                lambda j, x: f"v_fmaak_f32 {x}, {x}, {self.V('K1')}, {f32(K0)}",
                lambda j, x: f"v_mul_f32 {x}, {x}, v{a+j}",
                lambda j, x: f"v_exp_f32 {x}, {x}",
                lambda j, x: f"v_mul_f32 v{a+8+j}, v{a+8+j}, v{a+j}",
                lambda j, x: f"v_fma_f32 {x}, {x}, {io}, {io}",
                lambda j, x: f"v_rcp_f32 {x}, {x}",
                lambda j, x: f"v_mul_f32 v{a+8+j}, v{a+8+j}, {x}",
            ):
                o += [L(stage(j, T[j & 3])) for j in js]
            o += [L(f"v_cvt_pk_bf16_f32 v{a+d}, v{a+8+2*d}, v{a+9+2*d}") for d in (2 * h, 2 * h + 1)]
        o.append(L(f"buffer_store_dwordx4 {vr(a)}, {self.V('HS%d' % rg)}, {srd(SW)}, {soff} offen offset:{off} sc1", tag))
        return o

    def phi_pack(self, src, dst):
        T = [self.V(f"t{i}") for i in range(8)]
        o = []
        for q in range(4):
            js = range(4 * q, 4 * q + 4)
            for stage in (
                lambda j, x: f"v_mul_f32 {x}, {f32(LOG2E)}, v{src+j}",
                lambda j, x: f"v_exp_f32_e64 {x}, {x} clamp",
                lambda j, x: f"v_max_f32 v{src+j}, {f32(1e-6)}, v{src+j}",
                lambda j, x: f"v_add_f32 {x}, {x}, v{src+j}",
            ):
                o += [L(stage(j, T[j & 3])) for j in js]
            o += [L(f"v_cvt_pk_bf16_f32 v{dst+2*q+d}, {T[2*d]}, {T[2*d+1]}") for d in range(2)]
        return o

    def plain_pack(self, src, dst):
        return [L(f"v_cvt_pk_bf16_f32 v{dst+d}, v{src+2*d}, v{src+2*d+1}") for d in range(8)]

    def build(self):
        A = self.typ == "A"
        opt = self.opt
        V = self.V
        self.prologue()
        body = []

        units = []
        for n in range(32):
            s, k4 = n >> 2, n & 3
            base = (s % 3) * 40960
            wb = 64 if n % 2 == 0 else 80
            rd = []
            def trs(pat, off, dst, istep):
                r = []
                for i in range(2):
                    a, imm = self.lds(pat, off + i * istep, pat in ("Pl", "Hf"))
                    r.append(L(f"ds_read_b64_tr_b16 v[{dst+2*i}:{dst+2*i+1}], {a} offset:{imm}"))
                return r
            xr = []
            for rg in range(2):
                a, imm = self.lds(f"XR{k4}", base + rg * 4096, True)
                xr.append(L(f"ds_read_b128 {ar((n*2+rg)*4)}, {a} offset:{imm}"))
            if A:
                w = [trs("Pl", base + (2 + t) * 8192 + k4 * 2048, wb + 4 * t, 512) for t in range(3)]
            else:
                w = [trs("M0", base + 16384 + k4 * 2048, wb, 512), trs("M1", base + 16384 + k4 * 2048, wb + 4, 512),
                     trs("Hf", base + 32768 + k4 * 1024, wb + 8, 256)]
            rd = [xr[0]] + w[0] + [xr[1]] + w[1] + w[2]
            mf = []
            for t in range(3):
                for rg in range(2):
                    acc = vr(ACC(t, rg), 16)
                    wfr, xfr = vr(wb + 4 * t), ar((n * 2 + rg) * 4)
                    a, b = (xfr, wfr) if (A and t < 2) else (wfr, xfr)
                    mf.append(L(f"v_mfma_f32_32x32x16_bf16 {acc}, {a}, {b}, {acc if n else 0}"))
            units.append(([f"S{s}"] if k4 == 0 else None, rd, mf))
        for m in range(16):
            t2, half = m >> 1, m & 1
            base = self.P_BLK[t2] * 8192
            wb = 64 if m % 2 == 0 else 80
            rd, mf = [], []
            for kk in range(2):
                k4 = half * 2 + kk
                n = t2 * 4 + k4
                for t in range(2):
                    for i in range(2):
                        a, imm = self.lds(f"M{t}", base + k4 * 2048 + i * 512)
                        d = wb + kk * 8 + t * 4 + 2 * i
                        rd.append(L(f"ds_read_b64_tr_b16 v[{d}:{d+1}], {a} offset:{imm}"))
                    for rg in range(2):
                        acc = vr(ACC(3 + t, rg), 16)
                        mf.append(L(f"v_mfma_f32_32x32x16_bf16 {acc}, {vr(wb + kk*8 + t*4)}, {ar((n*2+rg)*4)}, {acc if n else 0}"))
            units.append(([f"P{t2}"] if half == 0 else None, rd, mf))

        gaps, heads, ustart, syncgap = [], [], [], {}
        for u, (sy, rd, mf) in enumerate(units):
            ustart.append(len(gaps))
            for i, m in enumerate(mf):
                heads.append((L("@lgkm0") if i == 0 else []) + m)
                gaps.append([])
            g0 = ustart[u]
            if u + 1 < len(units):
                nsy, nrd, _ = units[u + 1]
                if nsy:
                    gaps[g0] += L(f"@sync {' '.join(nsy)}\ns_barrier")
                    syncgap[nsy[0]] = g0
                for i, r in enumerate(nrd):
                    gaps[g0 + i // 2] += r
            else:
                gaps[g0] += L("@sync\ns_barrier")
                syncgap["END"] = g0
        ustart.append(len(gaps))

        order = [f"S{s}" for s in range(1, 8)] + [f"P{t}" for t in range(8)] + ["END"]
        sched = {k: [] for k in order}
        for s in range(3, 8): sched[f"S{s-2}"] += self.p1_loads(s)
        p = [self.p2_loads(t) for t in range(8)]
        sched["S6"] += p[0] + p[1] + p[2][:2]
        sched["S7"] += p[2][2:] + p[3] + p[4]
        sched["P0"] += p[5] + p[6][:2]
        sched["P1"] += p[6][2:] + p[7]
        sched["P2"] += self.v_loads(0) + self.v_loads(1) + self.v_loads(2)
        vq = {"P3": [3, 4, 5], "P4": [6, 7, 8], "P5": [9, 10, 11], "P6": [12, 13, 14], "P7": [15, 16]}
        for k, ns in vq.items():
            for n in ns: sched[k] += self.v_loads(n)
        for i, k in enumerate(order[:-1]):
            weave(gaps, sched[k], syncgap[k], syncgap[order[i + 1]])

        weave(gaps, self.gate_compute(), 0, ustart[3])
        weave(gaps, self.gate_fetch(), ustart[25], ustart[26])
        weave(gaps, self.gate_check(), ustart[29], ustart[31])

        P2 = ustart[32]
        if not A:
            ep = []
            for t, so, off in ((0, sE, 0), (1, sE, 1024), (2, sEh, 0)):
                for rg in range(2):
                    ep += self.gelu_tile(t, rg, so, off, tag="Est")
            weave(gaps, ep, P2 + 1, ustart[32 + opt.get("e_end", 15)])
        else:
            ones = self.v("ones", 4)
            T = [self.v(f"t{i}") for i in range(8)]
            ep = [L(f"v_mov_b32 v{ones+i}, 0x3f803f80") for i in range(4)]
            ep += self.phi_pack(ACC(0, 0), 96) + self.plain_pack(ACC(1, 0), 128)
            ep += self.phi_pack(ACC(0, 1), 104) + self.plain_pack(ACC(1, 1), 136)
            for f in range(4):
                ep.append(L(f"v_mfma_f32_32x32x16_bf16 v[112:127], {vr(96+4*f)}, {vr(128+4*f)}, {'v[112:127]' if f else 0}"))
                ep.append(L(f"v_mfma_f32_32x32x16_bf16 v[144:159], {vr(ones)}, {vr(96+4*f)}, {'v[144:159]' if f else 0}"))
            ep += self.phi_pack(ACC(2, 0), 160)[:18]
            ep += [L(f"v_cndmask_b32 v{112+i}, v{112+i}, v{120+i}, {sMH}") for i in range(8)]
            ep += [L(f"v_cndmask_b32 v{120+i}, v{112+i}, v{116+i}, {sMR}") for i in range(4)]
            ep += [L(f"v_cndmask_b32 v{124+i}, v{116+i}, v{112+i}, {sMR}") for i in range(4)]
            ep.append(L(f"ds_write_b128 {V('XW')}, v[124:127]"))
            ep.append(L(f"v_lshrrev_b32 v{T[4]}, 2, {V('XW')}\nv_add_u32 v{T[4]}, {LDS_MISC + 4096 - LDS_MISC//4}, v{T[4]}"))
            ep.append(L(f"ds_write_b32 v{T[4]}, v144"))
            kv1 = opt.get("kv1", 6)
            weave(gaps, ep, P2 + 1, ustart[32 + kv1 - 1])
            ep = [L(f"ds_read_b128 v[124:127], {V('XRd')}"),
                  L(f"v_xor_b32 v{T[4]}, 0x200, v{T[4]}\nds_read_b32 v145, v{T[4]}")]
            ep += self.phi_pack(ACC(2, 0), 160)[18:36]
            ep += [L(f"v_add_f32 v{120+i}, v{120+i}, v{124+i}") for i in range(4)]
            ep.append(L(f"v_add_f32 v144, v144, v145"))
            ep.append(L(f"buffer_store_dwordx4 v[120:123], {V('KG')}, {srd(SW)}, {sKPP} offen sc1"))
            ep.append(L(f"""
            s_mov_b32 exec_hi, 0
            buffer_store_dword v144, {V('ZG')}, {srd(SW)}, {sZPP} offen sc1
            s_mov_b32 exec_hi, -1
            """))
            ep[-1][1].tag = "KVst"
            ep += self.phi_pack(ACC(2, 0), 160)[36:] + self.phi_pack(ACC(2, 1), 168)
            weave(gaps, ep, ustart[32 + kv1 - 1] + 1, ustart[32 + kv1 + 5])
            gaps[ustart[32 + kv1 + 5]] += self.flag_store(sKFP, 0, ["KVst"])
            gaps[ustart[32 + 14]] += self.poll_issue(self.v("pk"), V("KF"), 0)

        body += self.stamp()
        pro = self.p1_loads(0) + self.gate_loads() + self.p1_loads(1) + self.p1_loads(2)
        self.pro_loads = pro
        ph1 = L(f"@sync S0\ns_barrier") + self.stamp()
        for r in units[0][1]: ph1 += r
        for u in range(len(units)):
            if u in (32,): ph1 += self.stamp()
            for g in range(ustart[u], ustart[u + 1]):
                ph1 += heads[g] + gaps[g]
        ph1 += self.stamp()

        mid_main = []
        for t in range(2):
            for rg in range(2):
                mid_main += self.gelu_tile(3 + t, rg, sL, t * 1024, tag="Lst")
        slots = [list(g) for g in mid_main]
        pe, pl, po = self.v("pe"), self.v("pl"), self.v("po")
        mid = []
        if not A:
            weave(slots, self.v_loads(17) + self.v_loads(18), 0, len(slots) // 4)
            slots[len(slots) // 3] += self.flag_store(sFP, 0, ["Est"])
            slots[-1] += self.poll_issue(pe, V("F"), 0)
            mid += sum(slots, [])
        else:
            mid += self.poll_check(self.v("pk"), V("KF"), 0)
            gl = []
            for r in range(16):
                gl.append(L(f"s_movk_i32 {sOff}, {(r >> 2) * 4096}\nbuffer_load_dwordx4 {vr(96+4*r)}, {V('KG')}, {srd(SW)}, {sOff} offen offset:{(r & 3)*1024} sc1"))
            for i in range(8):
                gl.append(L(f"buffer_load_dword v{176+i}, {V('ZG')}, {srd(SW)}, 0 offen offset:{i*256} sc1"))
            weave(slots, gl + self.v_loads(17) + self.v_loads(18), 0, len(slots) * 3 // 4)
            slots[-1] += self.poll_issue(pe, V("F"), 0)
            mid += sum(slots, [])
            for st in (32, 16, 8, 4):
                for i in range(st): mid += L(f"v_add_f32 v{96+i}, v{96+i}, v{96+st+i}")
            for st in (4, 2, 1):
                for i in range(st): mid += L(f"v_add_f32 v{176+i}, v{176+i}, v{176+st+i}")
            T = [self.v(f"t{i}") for i in range(8)]
            mid += L(f"""
            v_mov_b32 v177, v176
            v_cvt_pk_bf16_f32 v100, v96, v97
            v_cvt_pk_bf16_f32 v101, v98, v99
            v_permlane32_swap_b32 v176, v177
            v_add_f32 v176, v176, v177
            v_lshrrev_b32 v{T[4]}, 1, {V('XW')}
            v_add_u32 v{T[4]}, {LDS_MISC - LDS_MISC//2}, v{T[4]}
            ds_write_b64 v{T[4]}, v[100:101]
            v_cvt_pk_bf16_f32 v176, v176, v176
            v_xor_b32 v{T[4]}, 0x400, v{T[4]}
            ds_write_b16 {V('ZW')}, v176
            @lgkm0
            s_barrier
            ds_read_b64 v[102:103], v{T[4]}
            ds_read_b128 v[184:187], {V('ZR')}
            """)
            mid += self.flag_store(sFP, 256, ["Lst"])
            mid += L(f"""
            v_cndmask_b32 v104, v100, v102, {sMR}
            v_cndmask_b32 v105, v101, v103, {sMR}
            v_cndmask_b32 v106, v102, v100, {sMR}
            v_cndmask_b32 v107, v103, v101, {sMR}
            """)
            for i in range(4):
                mid += L(f"v_cndmask_b32 v{176+i}, v{104+i}, v{184+i}, {sMH}\nv_cndmask_b32 v{180+i}, v{184+i}, v{104+i}, {sMH}")
            for rg in range(2):
                for hh in range(2):
                    mid += L(f"v_mfma_f32_32x32x16_bf16 {vr(96 + (rg*2+hh)*16, 16)}, {vr(176+4*hh)}, {vr(160 + rg*8 + hh*4)}, 0")
            for rg in range(2):
                for hh in range(2):
                    b = 96 + (rg * 2 + hh) * 16
                    num, den = (b, b + 8) if hh == 0 else (b + 8, b)
                    mid += L(f"""
                    v_add_f32 v{den}, {f32(1e-6)}, v{den}
                    v_rcp_f32 v{den}, v{den}
                    v_mul_f32 v{den}, v{den}, v{self.v('g%d' % rg)}
                    """)
                    for j in range(8): mid += L(f"v_mul_f32 v{num+j}, v{num+j}, v{den}")
                    d = 192 + (rg * 2 + hh) * 4
                    for j in range(4): mid += L(f"v_cvt_pk_bf16_f32 v{d+j}, v{num+2*j}, v{num+2*j+1}")
                    mid += L(f"buffer_store_dwordx4 {vr(d)}, {V('HS%d' % rg)}, {srd(SW)}, {sO} offen offset:{hh*1024} sc1", "Ost")
        mid += self.stamp()
        mid += self.poll_check(pe, V("F"), 0)
        for n in range(12):
            for g in self.a_loads(n): mid += g
        mid += L("@vm V0")
        for r in self.v_reads(0): mid += r
        mid += self.stamp()

        DA = opt.get("da", 4)
        ph2 = []
        for n in range(36):
            mf = []
            for sr in range(2):
                for sn in range(2):
                    k, b = self.vfrag(n, sn)
                    acc = vr(96 + (sr * 2 + sn) * 16, 16)
                    mf.append(L(f"v_mfma_f32_32x32x16_bf16 {acc}, {k}[{b}:{b+3}], {ar(self.areg(n, sr))}, {acc if n else 0}"))
            g = [[] for _ in range(4)]
            if n + 1 < 36:
                g[0] += L(f"@vm V{n+1}")
                rd = self.v_reads(n + 1)
                g[0] += rd[0] + rd[1]; g[1] += rd[2] + rd[3]
            if n + 19 < 36:
                vl = self.v_loads(n + 19)
                g[1] += vl[0]; g[2] += vl[1]
            if n == opt.get("lflag_at", 1):
                g[3] += self.flag_store(sFP, 384, ["Ost"]) if A else self.flag_store(sFP, 128, ["Lst"])
            m = n + DA
            if m == 12 - 2: g[3] += self.poll_issue(pl, V("FL"), 128)
            if m == 28 - 2: g[3] += self.poll_issue(po, V("F"), 384)
            if m == 12: g[2] += self.poll_check(pl, V("FL"), 128)
            if m == 28: g[2] += self.poll_check(po, V("F"), 384)
            if 12 <= m < 36:
                al = self.a_loads(m)
                g[3] += al[0] + al[1]
            if n in (12, 28): ph2 += self.stamp()
            ph2 += L("@lgkm0")
            for i in range(4): ph2 += mf[i] + g[i]
        ph2 += self.stamp()

        fin = []
        T = [self.v(f"t{i}") for i in range(8)]
        for sg in range(1, 4):
            fin += L(f"v_xor_b32 v{T[sg]}, {sg*2048}, {V('RW')}")
        for sg in range(1, 4):
            for q in range(4):
                fin += L(f"ds_write_b128 {V('RW')}, {vr(96 + sg*16 + q*4)} offset:{((sg-1)*2 + (q >> 1))*8192 + (q & 1)*1024}")
        fin += L("@lgkm0\ns_barrier")
        for q in range(4):
            for sg in range(1, 4):
                fin += L(f"ds_read_b128 {vr(96 + sg*16 + q*4)}, v{T[sg]} offset:{((sg-1)*2 + (q >> 1))*8192 + (q & 1)*1024}")
        of = opt.get("oflags", "")
        for pr in range(2):
            for q in (2 * pr, 2 * pr + 1):
                for h in range(2):
                    r = 96 + q * 4 + 2 * h
                    fin += L(f"""
                    v_pk_add_f32 v[{r}:{r+1}], v[{r}:{r+1}], v[{r+16}:{r+17}]
                    v_pk_add_f32 v[{r+32}:{r+33}], v[{r+32}:{r+33}], v[{r+48}:{r+49}]
                    v_pk_add_f32 v[{r}:{r+1}], v[{r}:{r+1}], v[{r+32}:{r+33}]
                    """)
            d = 160 + pr * 4
            for i in range(4):
                r = 96 + pr * 8 + 2 * i
                fin += L(f"v_cvt_pk_bf16_f32 v{d+i}, v{r}, v{r+1}")
            fin += L(f"""
            v_permlane32_swap_b32 v{d}, v{d+2}
            v_permlane32_swap_b32 v{d+1}, v{d+3}
            buffer_store_dwordx4 {vr(d)}, {V('OUT')}, {srd(SOUT)}, 0 offen offset:{pr*32} {of}
            """)
        skip = self.lab("noep")
        fin += L(f"""
        s_or_b32 {sT0}, s2, {sW}
        s_cmp_lg_u32 {sT0}, 0
        s_cbranch_scc1 {skip}
        s_mov_b64 exec, 1
        @raw buffer_store_dword {V('tag')}, off, {srd(SW)}, 0 offset:{WS_EPOCH} sc1
        {skip}:
        """)
        if opt.get("stamps"):
            fin += L("s_mov_b64 exec, -1\n@vm0") + self.stamp()
            fin += L(f"@lgkm0\ns_lshl_b32 {sT0}, s2, 2\ns_add_u32 {sT0}, {sT0}, {sW}\ns_lshl_b32 {sT0}, {sT0}, 6\ns_add_u32 {sT0}, {sT0}, {WS_STAMP}")
            for i in range(10): fin += L(f"v_mov_b32 v{96+i}, s{STAMP0+2*i}")
            fin += L(f"v_mov_b32 v106, s6\nv_mov_b32 v107, {sSpin}\ns_memrealtime s[82:83]\n@lgkm0\nv_mov_b32 v108, s3\nv_mov_b32 v109, s82\nv_mov_b32 v110, 0\nv_mov_b32 v111, 0\ns_mov_b64 exec, 1")
            for i in range(4): fin += L(f"buffer_store_dwordx4 {vr(96+4*i)}, off, {srd(SW)}, {sT0} offset:{16*i}")
        fin += L("s_endpgm")

        pf = []
        if opt.get("codepf", 1):
            pf = L(f"""
            s_getpc_b64 {sPC}
            L_pc{self.typ}:
            v_lshlrev_b32 v1, 7, v0
            v_min_u32 v1, L_end{self.typ}-L_pc{self.typ}-4, v1
            global_load_dword v255, v1, {sPC}
            """)
        fin += L(f"L_end{self.typ}:")
        head = pf + self.first + L("@lgkm0") + L(f"s_load_dword {sTag}, s[{SW}:{SW+1}], {WS_EPOCH}")
        n0 = len(self.p1_loads(0))
        loads = self.pro_loads
        head += body
        head += sum(loads[:n0 + 1], [])
        rest = [[i] for i in self.second + self.setup]
        slots = [list(g) for g in loads[n0 + 1:]]
        head += sum(rest, []) + sum(slots, [])
        head += L(f"s_add_u32 {sTag}, {sTag}, 0x9e3779b9\nv_mov_b32 {V('tag')}, {sTag}")
        return head + ph1 + mid + ph2 + fin


def common_head(opt):
    o = L("""
    s_cmp_ge_u32 s2, 0x100
    s_cbranch_scc1 L_end
    """)
    for b, slot in ((SX, 0), (SG, 4), (SU, 5), (SQ, 1), (SGW, 7), (SW, 10), (SD, 6), (SO, 2), (SOUT, 8)):
        o += L(f"s_load_dwordx2 s[{b}:{b+1}], s[0:1], {slot*8}")
    if opt.get("stamps"):
        o += L("s_memtime s[6:7]\ns_memrealtime s[4:5]\ns_waitcnt lgkmcnt(0)\ns_mov_b32 s3, s4")
    for b, n in ((SX, 2048 * 1024), (SQ, 512 * 3072), (SG, 512 * 3584), (SU, 512 * 3584), (SD, 1792 * 1024),
                 (SO, 512 * 1024), (SW, WS_BYTES), (SOUT, 2048 * 1024), (SGW, 1024)):
        o += L(f"s_mov_b32 s{b+2}, {n}\ns_mov_b32 s{b+3}, 0x20000")
    o += L("""
    s_bitcmp1_b32 s2, 6
    s_cbranch_scc1 L_pathB
    """)
    return o


def generate(opt):
    head = common_head(opt)
    parts = []
    info = []
    for typ in "AB":
        g = Gen(typ, opt)
        ins, added = finalize(head + g.build())
        k = next(i for i, x in enumerate(ins) if x.text.startswith("s_cbranch_scc1 L_pathB"))
        parts.append((ins[:k + 1], ins[k + 1:]))
        info.append((typ, len(ins), added, g.nv, g.hi_next))
    assert text_of(parts[0][0]) == text_of(parts[1][0])
    txt = text_of(parts[0][0]) + text_of(parts[0][1]) + "L_pathB:\n" + text_of(parts[1][1]) + "L_end:\n    s_endpgm\n"
    ref = open("gated_mix__linear_attn_block__geglu_ffn__prompt.s.ref").read()
    hdr = "".join(l + "\n" for l in ref.split("\n") if l.startswith(";") and "@launch" not in l and "Override" not in l and "grid=ceil" not in l)
    out = f"""{hdr}; @launch grid=(256,1,1) block=(256,1,1) lds=163840
.amdgcn_target "amdgcn-amd-amdhsa--gfx950"
.text
.globl {KNAME}
.p2align 8
.type {KNAME},@function
{KNAME}:
{txt}.section .rodata,"a"
.p2align 6
.amdhsa_kernel {KNAME}
  .amdhsa_next_free_vgpr 512
  .amdhsa_next_free_sgpr 102
  .amdhsa_accum_offset 256
  .amdhsa_group_segment_fixed_size 0
  .amdhsa_kernarg_size 88
  .amdhsa_user_sgpr_count 2
  .amdhsa_user_sgpr_kernarg_segment_ptr 1
  .amdhsa_system_sgpr_workgroup_id_x 1
  .amdhsa_float_denorm_mode_32 3
.end_amdhsa_kernel
"""
    return out, info


def parse_opts(args):
    opt = {}
    for a in args:
        k, v = a.split("=", 1)
        try: v = int(v)
        except ValueError: v = v.replace("+", " ")
        opt[k] = v
    return opt


if __name__ == "__main__":
    out, info = generate(parse_opts(sys.argv[2:]))
    open(sys.argv[1], "w").write(out)
    print(info)
```

```python
import sys, struct
from prog import *

KNAME = "gated_mix__linear_attn_block__geglu_ffn__prompt_kernel"

WS_EPOCH = 0
WS_FL = 0x1000
WS_KF = 0x12000
WS_G = 0x14000
WS_ZP = 0x18000
WS_KP = 0x28000
WS_H = 0x100000
WS_STAMP = 0x8000000
RG_BYTES = 144 * 1024
WS_BYTES = 268435456

def f32(x): return "0x%08x" % struct.unpack("<I", struct.pack("<f", x))[0]
LOG2E = 1.4426950408889634
K0 = -2.0 * 0.7978845608028654 * LOG2E
K1 = K0 * 0.044715

SX, SQ, SG, SU, SD, SO, SW, SOUT, SGW = 8, 12, 16, 20, 24, 28, 32, 36, 40
srd = lambda b: f"s[{b}:{b+3}]"
(sW, sRH, sJ, sR, sT, sTag, sR2, sC2, sT0, sT1, sT2, sRot, sKx, sKw, sKq, sL4, sL2, sL1, sCE, sCH, sCL,
 sE, sEh, sL, sO, sFP, sKFP, sKPP, sZPP, sA0, sA1, sSpin, sGrow, sOff) = [f"s{i}" for i in range(44, 78)]
sMH = "s[78:79]"
sMR = "s[80:81]"
sPC = "s[4:5]"
STAMP0 = 82

ACC = lambda t, rg: 96 + (t * 2 + rg) * 16
vr = lambda b, n=4: f"v[{b}:{b+n-1}]"
ar = lambda b, n=4: f"a[{b}:{b+n-1}]"
LDS_MISC = 19 * 8192


class Gen:
    def __init__(self, typ, opt):
        self.typ = typ
        self.opt = opt
        self.nv = 1
        self.names = {}
        self.setup = []
        self.hi_next = 192
        self.nstamp = 0
        self.nlab = 0

    def v(self, name, n=1, p1only=False):
        if name not in self.names:
            if p1only:
                if n > 1: self.hi_next = (self.hi_next + 1) // 2 * 2
                self.names[name] = self.hi_next; self.hi_next += n
                assert self.hi_next <= 256
            else:
                if n > 1: self.nv = (self.nv + 1) // 2 * 2
                self.names[name] = self.nv; self.nv += n
                assert self.nv <= 64, name
        return self.names[name]

    def V(self, name, p1only=False): return f"v{self.v(name, 1, p1only)}"

    def lab(self, s):
        self.nlab += 1
        return f"L_{self.typ}_{s}_{self.nlab}"

    def stamp(self):
        if not self.opt.get("stamps"): return []
        i = STAMP0 + 2 * self.nstamp
        self.nstamp += 1
        assert i + 1 <= 101
        return L(f"s_memtime s[{i}:{i+1}]")

    def lds(self, pat, off, p1only=False):
        win, imm = off >> 16, off & 0xFFFF
        if win == 0:
            return self.V(pat, p1only), imm
        name = f"{pat}@{win}"
        if name not in self.names:
            self.setup += L(f"v_add_u32 {self.V(name, p1only)}, {win << 16}, {self.V(pat, p1only)}")
        return self.V(name), imm

    def prologue(self):
        A = self.typ == "A"
        V = self.V
        o = []
        t = [self.V(f"t{i}") for i in range(8)]
        l = V("lane")
        o += L(f"""
        v_and_b32 {l}, 63, v0
        v_lshrrev_b32 {t[0]}, 6, v0
        s_and_b32 {sT0}, s2, 7
        v_readfirstlane_b32 {sW}, {t[0]}
        s_lshr_b32 {sT1}, s2, 3
        s_and_b32 {sR}, {sT0}, 1
        s_lshl_b32 {sR}, {sR}, 3
        s_and_b32 {sT2}, {sT1}, 7
        s_add_u32 {sR}, {sR}, {sT2}
        s_lshr_b32 {sT}, {sT0}, 1
        s_lshl_b32 {sT}, {sT}, 1
        s_lshr_b32 {sOff}, {sT1}, 4
        s_add_u32 {sT}, {sT}, {sOff}
        s_lshr_b32 {sRH}, {sW}, 1
        s_and_b32 {sJ}, {sW}, 1
        """)
        rot = self.opt.get("rot", 0)
        if rot == 0:
            o += L(f"s_mov_b32 {sRot}, 0")
        else:
            o += L(f"""
            s_lshr_b32 {sRot}, {sT1}, 3
            s_add_u32 {sRot}, {sRot}, {sT2}
            s_and_b32 {sRot}, {sRot}, {rot-1}
            s_mul_i32 {sRot}, {sRot}, {8//rot}
            """)
        if self.opt.get("map2", "8x4") == "8x4":
            o += L(f"""
            s_lshr_b32 {sR2}, {sT0}, 1
            s_lshl_b32 {sR2}, {sR2}, 3
            s_add_u32 {sR2}, {sR2}, {sT2}
            s_and_b32 {sC2}, {sT0}, 1
            s_lshl_b32 {sC2}, {sC2}, 2
            s_lshr_b32 {sOff}, {sT1}, 3
            s_add_u32 {sC2}, {sC2}, {sOff}
            """)
        else:
            o += L(f"""
            s_lshl_b32 {sR2}, {sT0}, 2
            s_and_b32 {sOff}, {sT1}, 3
            s_add_u32 {sR2}, {sR2}, {sOff}
            s_lshr_b32 {sC2}, {sT1}, 2
            """)
        l3, l7, l4, hi, nh, r4, c3, l31 = [self.V(n, True) for n in ("l3", "l7", "l4", "hi", "nh", "r4", "c3", "l31")]
        wsw = self.V("wsw", True)
        o += L(f"""
        v_lshrrev_b32 {l3}, 3, {l}
        v_and_b32 {l7}, 7, {l}
        v_lshrrev_b32 {l4}, 4, {l}
        v_lshrrev_b32 {hi}, 5, {l}
        v_and_b32 {nh}, 1, {l4}
        v_bfe_u32 {r4}, {l}, 2, 2
        v_and_b32 {c3}, 3, {l}
        v_and_b32 {l31}, 31, {l}
        s_lshl_b32 {sT0}, {sR}, 17
        s_lshl_b32 {sT1}, {sW}, 15
        s_add_u32 {sT0}, {sT0}, {sT1}
        v_xor_b32 {t[0]}, {l7}, {l4}
        v_lshlrev_b32 {t[0]}, 4, {t[0]}
        v_lshl_add_u32 {t[0]}, {l3}, 10, {t[0]}
        v_add_u32 {V('X0', True)}, {sT0}, {t[0]}
        v_xor_b32 {t[1]}, 64, {V('X0')}
        v_add_u32 {V('X1', True)}, 0x2000, {t[1]}
        v_lshlrev_b32 {t[0]}, 2, {nh}
        v_xor_b32 {t[0]}, {t[0]}, {l7}
        v_lshlrev_b32 {wsw}, 4, {t[0]}
        s_lshl_b32 {sT0}, {sW}, 4
        v_add_u32 {t[0]}, {sT0}, {l3}
        v_mul_u32_u24 {t[1]}, 3584, {t[0]}
        v_add_u32 {V('Wg')}, {t[1]}, {wsw}
        v_xor_b32 {V('Wu')}, 32, {V('Wg')}
        s_lshl_b32 {sL4}, {sW}, 12
        s_lshl_b32 {sL2}, {sW}, 11
        s_lshl_b32 {sL1}, {sW}, 10
        """)
        if A:
            o += L(f"""
            v_mul_u32_u24 {t[1]}, 3072, {t[0]}
            v_add_u32 {V('Wq', True)}, {t[1]}, {wsw}
            s_lshl_b32 {sCE}, {sT}, 7
            s_add_u32 {sCL}, {sCE}, 2560
            """)
        else:
            o += L(f"""
            v_lshrrev_b32 {t[0]}, 2, {l}
            v_add_u32 {t[0]}, {sT0}, {t[0]}
            v_mul_u32_u24 {t[1]}, 3584, {t[0]}
            v_lshl_add_u32 {V('Hg', True)}, {c3}, 4, {t[1]}
            v_xor_b32 {V('Hu', True)}, 32, {V('Hg')}
            s_lshl_b32 {sCE}, {sT}, 7
            s_add_u32 {sCL}, {sCE}, 1536
            s_lshl_b32 {sCH}, {sT}, 6
            s_add_u32 {sCH}, {sCH}, 1024
            """)
        o += L(f"""
        s_lshl_b32 {sGrow}, {sR}, 4
        s_add_u32 {sGrow}, {sGrow}, {sT}
        s_add_u32 {sGrow}, {sGrow}, {0 if A else 8}
        s_lshl_b32 {sGrow}, {sGrow}, 2
        s_add_u32 {sGrow}, {sGrow}, {sW}
        s_lshl_b32 {sGrow}, {sGrow}, 1
        v_lshlrev_b32 {V('l16')}, 4, {l}
        """)
        self.first = o
        o = []
        o += L(f"""
        v_bfe_u32 {t[0]}, {l}, 1, 3
        v_xor_b32 {t[0]}, {t[0]}, {hi}
        v_lshlrev_b32 {t[0]}, 4, {t[0]}
        v_lshl_add_u32 {t[0]}, {l31}, 7, {t[0]}
        s_lshl_b32 {sT0}, {sRH}, 13
        v_add_u32 {V('XR0', True)}, {sT0}, {t[0]}
        v_xor_b32 {V('XR1', True)}, 32, {V('XR0')}
        v_xor_b32 {V('XR2', True)}, 64, {V('XR0')}
        v_xor_b32 {V('XR3', True)}, 0x60, {V('XR0')}
        v_and_b32 {t[0]}, 2, {r4}
        v_xor_b32 {t[0]}, {t[0]}, {nh}
        s_lshl_b32 {sT0}, {sJ}, 1
        v_xor_b32 {t[0]}, {sT0}, {t[0]}
        v_lshlrev_b32 {t[0]}, 5, {t[0]}
        v_lshl_add_u32 {t[0]}, {c3}, 3, {t[0]}
        v_lshl_add_u32 {t[1]}, {hi}, 3, {r4}
        v_lshl_add_u32 {t[2]}, {t[1]}, 7, {t[0]}
        v_lshl_add_u32 {V('M0')}, {nh}, 13, {t[2]}
        v_xor_b32 {V('M1')}, 32, {V('M0')}
        v_lshl_add_u32 {t[3]}, {hi}, 2, {r4}
        v_lshl_add_u32 {t[3]}, {t[3]}, 7, {t[0]}
        v_add_u32 {V('VR0')}, {sL2}, {t[3]}
        v_xor_b32 {V('VR1')}, 64, {V('VR0')}
        """)
        if A:
            o += L(f"v_mov_b32 {V('Pl', True)}, {t[2]}")
        else:
            o += L(f"""
            v_xor_b32 {t[0]}, {sJ}, {nh}
            v_lshlrev_b32 {t[0]}, 5, {t[0]}
            v_lshl_add_u32 {t[0]}, {c3}, 3, {t[0]}
            v_lshl_add_u32 {t[0]}, {t[1]}, 6, {t[0]}
            v_lshl_add_u32 {V('Hf', True)}, {nh}, 12, {t[0]}
            """)
        o += L(f"""
        v_lshl_add_u32 {t[0]}, {l3}, 10, {wsw}
        s_lshl_b32 {sT0}, {sC2}, 7
        s_lshl_b32 {sT1}, {sW}, 16
        s_add_u32 {sT0}, {sT0}, {sT1}
        v_add_u32 {V('V4')}, {sT0}, {t[0]}
        v_add_u32 {V('V8')}, {sT1}, {V('V4')}
        s_mul_i32 {sT0}, {sR2}, {2*RG_BYTES}
        s_add_u32 {sT0}, {sT0}, {WS_H}
        s_add_u32 {sT0}, {sT0}, {sL4}
        v_add_u32 {V('A4')}, {sT0}, {V('l16')}
        v_add_u32 {V('A8')}, {sL4}, {V('A4')}
        s_mul_i32 {sA0}, {sRH}, {RG_BYTES}
        s_sub_u32 {sA1}, {RG_BYTES}, {sA0}
        s_lshl_b32 {sT0}, {sR}, 1
        s_add_u32 {sT0}, {sT0}, {sRH}
        s_mul_i32 {sT1}, {sT0}, {2*RG_BYTES}
        s_add_u32 {sT1}, {sT1}, {WS_H}
        v_add_u32 {V('HS0')}, {sT1}, {V('l16')}
        v_add_u32 {V('HS1')}, {RG_BYTES}, {V('HS0')}
        s_lshl_b32 {sT1}, {sT0}, 9
        s_add_u32 {sT1}, {sT1}, {WS_G}
        v_lshlrev_b32 {t[0]}, 3, {l31}
        v_add_u32 {V('G', True)}, {sT1}, {t[0]}
        s_lshl_b32 {sT0}, {sT0}, 2
        s_lshr_b32 {sT1}, {sT}, 1
        s_add_u32 {sT0}, {sT0}, {sT1}
        s_lshl_b32 {sT0}, {sT0}, 9
        s_and_b32 {sT1}, {sT}, 1
        s_lshl_b32 {sT1}, {sT1}, 1
        s_add_u32 {sT1}, {sT1}, {sJ}
        s_lshl_b32 {sT1}, {sT1}, 2
        s_add_u32 {sT0}, {sT0}, {sT1}
        s_add_u32 {sFP}, {sT0}, {WS_FL}
        s_lshl_b32 {sT0}, {sR2}, 2
        s_add_u32 {sT0}, {sT0}, {sW}
        s_lshl_b32 {sT0}, {sT0}, 9
        s_add_u32 {sT0}, {sT0}, {WS_FL}
        v_lshlrev_b32 {t[0]}, 2, {c3}
        v_add_u32 {V('F')}, {sT0}, {t[0]}
        v_and_b32 {t[0]}, 1, {r4}
        v_lshl_add_u32 {V('FL')}, {t[0]}, 7, {V('F')}
        s_lshl_b32 {sT0}, {sT}, 2
        s_lshl_b32 {sT1}, {sJ}, 1
        s_add_u32 {sT0}, {sT0}, {sT1}
        s_lshl_b32 {sE}, {sT0}, 10
        s_add_u32 {sL}, {sE}, {(80 if A else 48)*1024}
        v_mov_b32 {V('K1')}, {f32(K1)}
        """)
        if A:
            o += L(f"""
            s_add_u32 {sO}, {sE}, {112*1024}
            s_add_u32 {sT0}, {sT0}, {sRH}
            s_lshl_b32 {sT1}, {sT0}, 7
            s_add_u32 {sT1}, {sT1}, {WS_KF}
            s_lshl_b32 {sT2}, {sR}, 2
            s_add_u32 {sKFP}, {sT1}, {sT2}
            v_and_b32 {t[0]}, 15, {l}
            v_lshlrev_b32 {t[0]}, 2, {t[0]}
            v_add_u32 {V('KF')}, {sT1}, {t[0]}
            s_lshl_b32 {sT1}, {sT0}, 14
            s_add_u32 {sT1}, {sT1}, {WS_KP}
            v_add_u32 {V('KG')}, {sT1}, {V('l16')}
            s_lshl_b32 {sKPP}, {sR}, 10
            s_lshl_b32 {sT1}, {sT0}, 11
            s_add_u32 {sT1}, {sT1}, {WS_ZP}
            v_lshlrev_b32 {t[0]}, 2, {l}
            v_add_u32 {V('ZG')}, {sT1}, {t[0]}
            s_lshl_b32 {sZPP}, {sR}, 7
            s_mov_b32 s78, 0xffff0000
            s_mov_b32 s79, 0xffff0000
            s_sub_u32 s80, 0, {sRH}
            s_mov_b32 s81, s80
            v_lshlrev_b32 {t[0]}, 4, {hi}
            v_xor_b32 {t[1]}, 1, {nh}
            v_lshl_add_u32 {t[0]}, {t[1]}, 5, {t[0]}
            s_lshl_b32 {sT1}, {sW}, 6
            s_add_u32 {sT1}, {sT1}, {LDS_MISC + 7168}
            v_add_u32 {V('ZR')}, {sT1}, {t[0]}
            v_bfe_u32 {t[0]}, {l}, 3, 1
            v_lshl_add_u32 {t[0]}, {t[0]}, 2, {c3}
            v_lshlrev_b32 {t[0]}, 1, {t[0]}
            v_and_b32 {t[1]}, 1, {r4}
            v_lshl_add_u32 {t[0]}, {t[1]}, 4, {t[0]}
            v_lshl_add_u32 {t[0]}, {nh}, 5, {t[0]}
            v_add_u32 {V('ZW')}, {sT1}, {t[0]}
            s_add_u32 {sT1}, {sL1}, {LDS_MISC}
            v_add_u32 {V('XW')}, {sT1}, {V('l16')}
            v_xor_b32 {V('XRd')}, 0x800, {V('XW')}
            """)
        else:
            o += L(f"""
            s_lshl_b32 {sT0}, {sT}, 1
            s_add_u32 {sT0}, {sT0}, {sJ}
            s_add_u32 {sT0}, {sT0}, 32
            s_lshl_b32 {sEh}, {sT0}, 10
            """)
        o += L(f"""
        s_lshl_b32 {sT0}, {sR2}, 1
        s_add_u32 {sT0}, {sT0}, {sRH}
        s_lshl_b32 {sT0}, {sT0}, 15
        s_lshl_b32 {sT1}, {sC2}, 1
        s_add_u32 {sT1}, {sT1}, {sJ}
        s_lshl_b32 {sT1}, {sT1}, 6
        s_add_u32 {sT0}, {sT0}, {sT1}
        v_lshlrev_b32 {t[0]}, 4, {hi}
        v_lshl_add_u32 {t[0]}, {l31}, 10, {t[0]}
        v_add_u32 {V('OUT')}, {sT0}, {t[0]}
        v_add_u32 {V('RW')}, {sL2}, {V('l16')}
        s_mov_b32 {sSpin}, 0
        """)
        self.second = o

    def dma(self, s, vreg, soff_code, m0base, ldsoff, tag=None, flags=""):
        return L(f"""
        s_add_u32 m0, {m0base}, {ldsoff}
        {soff_code}
        buffer_load_dwordx4 {vreg}, {srd(s)}, {sOff} offen {flags} lds
        """, tag)

    def kb_setup(self, i, p1):
        A = self.typ == "A"
        o = L(f"""
        s_add_u32 {sT0}, {sRot}, {i}
        s_and_b32 {sT0}, {sT0}, 7
        """)
        if p1:
            o += L(f"s_lshl_b32 {sKx}, {sT0}, 7")
            if A:
                o += L(f"s_mul_i32 {sKq}, {sT0}, {64*3072}\ns_add_u32 {sKq}, {sKq}, {sCE}")
            else:
                o += L(f"s_mul_i32 {sKw}, {sT0}, {64*3584}\ns_add_u32 {sKq}, {sKw}, {sCH}\ns_add_u32 {sKw}, {sKw}, {sCE}")
        else:
            o += L(f"s_mul_i32 {sKw}, {sT0}, {64*3584}\ns_add_u32 {sKw}, {sKw}, {sCL}")
        return o

    def p1_loads(self, s):
        A = self.typ == "A"
        V = self.V
        base = (s % 3) * 40960
        wf = self.opt.get("wflags", ""); xf = self.opt.get("xflags", "")
        g = []
        for jj in range(4):
            g.append(self.dma(SX, V(f"X{jj&1}"), f"s_add_u32 {sOff}, {sKx}, {(jj>>1)*16384}", sL4, base + jj * 1024, flags=xf))
        for ii in range(2):
            if A:
                for reg, col in ((2, 1024), (3, 2048), (4, 0)):
                    g.append(self.dma(SQ, V("Wq"), f"s_add_u32 {sOff}, {sKq}, {ii*8*3072 + col}", sL2, base + reg * 8192 + ii * 1024, flags=wf))
            else:
                g.append(self.dma(SG, V("Wg"), f"s_add_u32 {sOff}, {sKw}, {ii*8*3584}", sL2, base + 2 * 8192 + ii * 1024, flags=wf))
                g.append(self.dma(SU, V("Wu"), f"s_add_u32 {sOff}, {sKw}, {ii*8*3584}", sL2, base + 3 * 8192 + ii * 1024, flags=wf))
                g.append(self.dma(SU if ii else SG, V("Hu" if ii else "Hg"), f"s_mov_b32 {sOff}, {sKq}", sL1, base + 4 * 8192 + ii * 4096, flags=wf))
        g[0] = self.kb_setup(s, True) + g[0]
        g[-1][-1].tag = f"S{s}"
        return g

    P_BLK = [15, 17, 10, 12, 0, 2, 5, 7]
    V_BLK = [14, 4, 9, 15, 16, 17, 18, 10, 11, 12, 13, 0, 1, 2, 3, 5, 6, 7, 8]

    def p2_loads(self, t):
        V = self.V
        base = self.P_BLK[t] * 8192
        wf = self.opt.get("wflags", "")
        g = []
        for ii in range(2):
            g.append(self.dma(SG, V("Wg"), f"s_add_u32 {sOff}, {sKw}, {ii*8*3584}", sL2, base + ii * 1024, flags=wf))
            g.append(self.dma(SU, V("Wu"), f"s_add_u32 {sOff}, {sKw}, {ii*8*3584}", sL2, base + 8192 + ii * 1024, flags=wf))
        g[0] = self.kb_setup(t, False) + g[0]
        g[-1][-1].tag = f"P{t}"
        return g

    @staticmethod
    def step(n):
        if n < 8: return n, 8
        if n < 12: return 32 + (n - 8), 4
        if n < 20: return 48 + (n - 12), 8
        if n < 28: return 80 + (n - 20), 8
        return 112 + (n - 28), 8

    def v_loads(self, n):
        ks, mul = self.step(n)
        s, k = (SD, ks) if ks < 112 else (SO, ks - 112)
        base = self.V_BLK[n % 19] * 8192
        vf = self.opt.get("vflags", "")
        g = [self.dma(s, self.V(f"V{mul}"), f"s_mov_b32 {sOff}, {k*16384 + ii*8192}", sL2, base + ii * 1024, flags=vf) for ii in range(2)]
        g[-1][-1].tag = f"V{n}"
        return g

    def areg(self, n, sr): return 160 + (n % 12) * 8 + sr * 4

    def a_loads(self, n):
        ks, mul = self.step(n)
        return [L(f"""
        s_add_u32 {sOff}, {sA1 if sr else sA0}, {ks*1024}
        buffer_load_dwordx4 {ar(self.areg(n, sr))}, {self.V(f'A{mul}')}, {srd(SW)}, {sOff} offen sc1
        """) for sr in range(2)]

    def vfrag(self, n, sn):
        if n < self.opt.get("park", 0): return "a", n * 8 + sn * 4
        return "v", (64 if n % 2 == 0 else 80) + sn * 4

    def v_reads(self, n):
        base = self.V_BLK[n % 19] * 8192
        o = []
        for sn in range(2):
            k, b = self.vfrag(n, sn)
            for i in range(2):
                a, imm = self.lds(f"VR{sn}", base + i * 1024)
                o.append(L(f"ds_read_b64_tr_b16 {k}[{b+2*i}:{b+2*i+1}], {a} offset:{imm}"))
        return o

    def poll_issue(self, reg, addr, off, wide=False):
        if wide:
            return L(f"buffer_load_dwordx2 {vr(reg, 2)}, {addr}, {srd(SW)}, 0 offen offset:{off} sc1")
        return L(f"buffer_load_dword v{reg}, {addr}, {srd(SW)}, 0 offen offset:{off} sc1")

    def poll_check(self, reg, addr, off, wide=False):
        ok, again = self.lab("ok"), self.lab("again")
        tr = reg + 1 if wide else reg
        ld = self.poll_issue(reg, addr, off, wide)[0].text
        return L(f"""
        v_cmp_ne_u32 vcc, {sTag}, v{tr}
        s_cbranch_vccz {ok}
        {again}:
        @raw s_sleep 1
        @raw {ld}
        @raw s_add_u32 {sSpin}, {sSpin}, 1
        @raw s_waitcnt vmcnt(0)
        @raw v_cmp_ne_u32 vcc, {sTag}, v{tr}
        @raw s_cmp_lt_u32 {sSpin}, 0x8000
        @raw s_cbranch_scc0 {ok}
        @raw s_cbranch_vccnz {again}
        {ok}:
        """)

    def flag_store(self, soff, off, tags):
        return L(f"""
        @vm {' '.join(tags)}
        s_mov_b64 exec, 1
        buffer_store_dword {self.V('tag')}, off, {srd(SW)}, {soff} offset:{off} sc1
        s_mov_b64 exec, -1
        """)

    def gate_loads(self):
        x0, x1, gw = self.v("gx0", 4, True), self.v("gx1", 4, True), self.v("ggw", 4, True)
        return [L(f"""
        s_lshl_b32 {sOff}, {sGrow}, 10
        buffer_load_dwordx4 {vr(x0)}, {self.V('l16')}, {srd(SX)}, {sOff} offen
        buffer_load_dwordx4 {vr(x1)}, {self.V('l16')}, {srd(SX)}, {sOff} offen offset:1024
        buffer_load_dwordx4 {vr(gw)}, {self.V('l16')}, {srd(SGW)}, 0 offen
        """)]

    def gate_compute(self):
        x = [self.v("gx0", 4, True), self.v("gx1", 4, True)]; gw = self.v("ggw", 4, True)
        t = [self.V(f"t{i}") for i in range(8)]
        s = [self.v("gs", 2, True), self.v("gs") + 1]
        one = self.V("gone", True)
        o = L(f"v_mov_b32 {one}, 0x3f803f80\nv_mov_b32 v{s[0]}, 0\nv_mov_b32 v{s[1]}, 0")
        for d in range(4):
            o += L(f"v_lshlrev_b32 {t[0]}, 16, v{gw+d}\nv_and_b32 {t[1]}, 0xffff0000, v{gw+d}")
            for r in range(2):
                o += L(f"""
                v_lshlrev_b32 {t[2+2*r]}, 16, v{x[r]+d}
                v_and_b32 {t[3+2*r]}, 0xffff0000, v{x[r]+d}
                v_mul_f32 {t[2+2*r]}, {t[2+2*r]}, {t[0]}
                v_mul_f32 {t[3+2*r]}, {t[3+2*r]}, {t[1]}
                v_cvt_pk_bf16_f32 {t[2+2*r]}, {t[2+2*r]}, {t[3+2*r]}
                v_lshlrev_b32 {t[6]}, 16, {t[2+2*r]}
                v_and_b32 {t[7]}, 0xffff0000, {t[2+2*r]}
                v_add_f32 v{s[r]}, v{s[r]}, {t[6]}
                v_add_f32 v{s[r]}, v{s[r]}, {t[7]}
                """)
        dpp = "row_mask:0xf bank_mask:0xf"
        o += L(f"""
        v_permlane32_swap_b32 v{s[0]}, v{s[1]}
        v_add_f32 v{s[0]}, v{s[0]}, v{s[1]}
        v_add_f32_dpp v{s[0]}, v{s[0]}, v{s[0]} quad_perm:[1,0,3,2] {dpp}
        v_add_f32_dpp v{s[0]}, v{s[0]}, v{s[0]} quad_perm:[2,3,0,1] {dpp}
        v_add_f32_dpp v{s[0]}, v{s[0]}, v{s[0]} row_half_mirror {dpp}
        v_add_f32_dpp v{s[0]}, v{s[0]}, v{s[0]} row_mirror {dpp}
        v_mov_b32 v{s[1]}, v{s[0]}
        v_permlane16_swap_b32 v{s[0]}, v{s[1]}
        v_add_f32 v{s[0]}, v{s[0]}, v{s[1]}
        v_cvt_pk_bf16_f32 v{s[0]}, v{s[0]}, v{s[0]}
        v_and_b32 v{s[0]}, 0xffff0000, v{s[0]}
        v_mul_f32 v{s[0]}, {f32(-LOG2E)}, v{s[0]}
        v_exp_f32 v{s[0]}, v{s[0]}
        v_add_f32 v{s[0]}, 1.0, v{s[0]}
        v_rcp_f32 v{s[0]}, v{s[0]}
        v_cvt_pk_bf16_f32 v{s[0]}, v{s[0]}, v{s[0]}
        v_and_b32 v{s[0]}, 0xffff0000, v{s[0]}
        v_mov_b32 v{s[1]}, {sTag}
        v_lshlrev_b32 {t[0]}, 3, {self.V('hi')}
        s_lshl_b32 {sOff}, {sGrow}, 3
        s_add_u32 {sOff}, {sOff}, {WS_G}
        """)
        groups = [[i] for i in o]
        groups.append(L(f"""
        s_mov_b32 exec_lo, 1
        s_mov_b32 exec_hi, 1
        buffer_store_dwordx2 {vr(s[0], 2)}, {t[0]}, {srd(SW)}, {sOff} offen sc1
        s_mov_b64 exec, -1
        """))
        groups = groups[:-4] + [sum(groups[-4:], [])]
        return groups

    def gate_fetch(self):
        g0, g1 = self.v("g0", 2), self.v("g1", 2)
        return [self.poll_issue(g0, self.V("G"), 0, True), self.poll_issue(g1, self.V("G"), 256, True)]

    def gate_check(self):
        o = []
        for i, nm in enumerate(("g0", "g1")):
            g = self.v(nm)
            o.append(self.poll_check(g, self.V("G"), 256 * i, True))
            o += [[x] for x in L(f"""
            v_sub_f32 v{g+1}, 1.0, v{g}
            v_cvt_pk_bf16_f32 v{g+1}, v{g+1}, v{g+1}
            v_and_b32 v{g+1}, 0xffff0000, v{g+1}
            v_max_f32 v{g+1}, {f32(1e-30)}, v{g+1}
            v_rcp_f32 v{g+1}, v{g+1}
            """)]
        return o

    def gelu_tile(self, t, rg, soff, off, tag=None):
        a = ACC(t, rg)
        io = f"v{self.v('g%d' % rg) + 1}"
        T = [self.V(f"t{i}") for i in range(8)]
        o = []
        for h in range(2):
            js = range(4 * h, 4 * h + 4)
            for stage in (
                lambda j, x: f"v_mul_f32 {x}, v{a+j}, v{a+j}",
                lambda j, x: f"v_fmaak_f32 {x}, {x}, {self.V('K1')}, {f32(K0)}",
                lambda j, x: f"v_mul_f32 {x}, {x}, v{a+j}",
                lambda j, x: f"v_exp_f32 {x}, {x}",
                lambda j, x: f"v_mul_f32 v{a+8+j}, v{a+8+j}, v{a+j}",
                lambda j, x: f"v_fma_f32 {x}, {x}, {io}, {io}",
                lambda j, x: f"v_rcp_f32 {x}, {x}",
                lambda j, x: f"v_mul_f32 v{a+8+j}, v{a+8+j}, {x}",
            ):
                o += [L(stage(j, T[j & 3])) for j in js]
            o += [L(f"v_cvt_pk_bf16_f32 v{a+d}, v{a+8+2*d}, v{a+9+2*d}") for d in (2 * h, 2 * h + 1)]
        o.append(L(f"buffer_store_dwordx4 {vr(a)}, {self.V('HS%d' % rg)}, {srd(SW)}, {soff} offen offset:{off} sc1", tag))
        return o

    def phi_pack(self, src, dst):
        T = [self.V(f"t{i}") for i in range(8)]
        o = []
        for q in range(4):
            js = range(4 * q, 4 * q + 4)
            for stage in (
                lambda j, x: f"v_mul_f32 {x}, {f32(LOG2E)}, v{src+j}",
                lambda j, x: f"v_exp_f32_e64 {x}, {x} clamp",
                lambda j, x: f"v_max_f32 v{src+j}, {f32(1e-6)}, v{src+j}",
                lambda j, x: f"v_add_f32 {x}, {x}, v{src+j}",
            ):
                o += [L(stage(j, T[j & 3])) for j in js]
            o += [L(f"v_cvt_pk_bf16_f32 v{dst+2*q+d}, {T[2*d]}, {T[2*d+1]}") for d in range(2)]
        return o

    def plain_pack(self, src, dst):
        return [L(f"v_cvt_pk_bf16_f32 v{dst+d}, v{src+2*d}, v{src+2*d+1}") for d in range(8)]

    def build(self):
        A = self.typ == "A"
        opt = self.opt
        V = self.V
        self.prologue()
        body = []

        units = []
        for n in range(32):
            s, k4 = n >> 2, n & 3
            base = (s % 3) * 40960
            wb = 64 if n % 2 == 0 else 80
            rd = []
            def trs(pat, off, dst, istep):
                r = []
                for i in range(2):
                    a, imm = self.lds(pat, off + i * istep, pat in ("Pl", "Hf"))
                    r.append(L(f"ds_read_b64_tr_b16 v[{dst+2*i}:{dst+2*i+1}], {a} offset:{imm}"))
                return r
            xr = []
            for rg in range(2):
                a, imm = self.lds(f"XR{k4}", base + rg * 4096, True)
                xr.append(L(f"ds_read_b128 {ar((n*2+rg)*4)}, {a} offset:{imm}"))
            if A:
                w = [trs("Pl", base + (2 + t) * 8192 + k4 * 2048, wb + 4 * t, 512) for t in range(3)]
            else:
                w = [trs("M0", base + 16384 + k4 * 2048, wb, 512), trs("M1", base + 16384 + k4 * 2048, wb + 4, 512),
                     trs("Hf", base + 32768 + k4 * 1024, wb + 8, 256)]
            rd = [xr[0]] + w[0] + [xr[1]] + w[1] + w[2]
            mf = []
            for t in range(3):
                for rg in range(2):
                    acc = vr(ACC(t, rg), 16)
                    wfr, xfr = vr(wb + 4 * t), ar((n * 2 + rg) * 4)
                    a, b = (xfr, wfr) if (A and t < 2) else (wfr, xfr)
                    mf.append(L(f"v_mfma_f32_32x32x16_bf16 {acc}, {a}, {b}, {acc if n else 0}"))
            units.append(([f"S{s}"] if k4 == 0 else None, rd, mf))
        for m in range(16):
            t2, half = m >> 1, m & 1
            base = self.P_BLK[t2] * 8192
            wb = 64 if m % 2 == 0 else 80
            rd, mf = [], []
            for kk in range(2):
                k4 = half * 2 + kk
                n = t2 * 4 + k4
                for t in range(2):
                    for i in range(2):
                        a, imm = self.lds(f"M{t}", base + k4 * 2048 + i * 512)
                        d = wb + kk * 8 + t * 4 + 2 * i
                        rd.append(L(f"ds_read_b64_tr_b16 v[{d}:{d+1}], {a} offset:{imm}"))
                    for rg in range(2):
                        acc = vr(ACC(3 + t, rg), 16)
                        mf.append(L(f"v_mfma_f32_32x32x16_bf16 {acc}, {vr(wb + kk*8 + t*4)}, {ar((n*2+rg)*4)}, {acc if n else 0}"))
            units.append(([f"P{t2}"] if half == 0 else None, rd, mf))

        gaps, heads, ustart, syncgap = [], [], [], {}
        for u, (sy, rd, mf) in enumerate(units):
            ustart.append(len(gaps))
            for i, m in enumerate(mf):
                heads.append((L("@lgkm0") if i == 0 else []) + m)
                gaps.append([])
            g0 = ustart[u]
            if u + 1 < len(units):
                nsy, nrd, _ = units[u + 1]
                if nsy:
                    gaps[g0] += L(f"@sync {' '.join(nsy)}\ns_barrier")
                    syncgap[nsy[0]] = g0
                for i, r in enumerate(nrd):
                    gaps[g0 + i // 2] += r
            else:
                gaps[g0] += L("@sync\ns_barrier")
                syncgap["END"] = g0
        ustart.append(len(gaps))

        order = [f"S{s}" for s in range(1, 8)] + [f"P{t}" for t in range(8)] + ["END"]
        sched = {k: [] for k in order}
        for s in range(3, 8): sched[f"S{s-2}"] += self.p1_loads(s)
        p = [self.p2_loads(t) for t in range(8)]
        sched["S6"] += p[0] + p[1] + p[2][:2]
        sched["S7"] += p[2][2:] + p[3] + p[4]
        sched["P0"] += p[5] + p[6][:2]
        sched["P1"] += p[6][2:] + p[7]
        sched["P2"] += self.v_loads(0) + self.v_loads(1) + self.v_loads(2)
        vq = {"P3": [3, 4, 5], "P4": [6, 7, 8], "P5": [9, 10, 11], "P6": [12, 13, 14], "P7": [15, 16]}
        for k, ns in vq.items():
            for n in ns: sched[k] += self.v_loads(n)
        for i, k in enumerate(order[:-1]):
            weave(gaps, sched[k], syncgap[k], syncgap[order[i + 1]])

        weave(gaps, self.gate_compute(), 0, ustart[3])
        weave(gaps, self.gate_fetch(), ustart[25], ustart[26])
        weave(gaps, self.gate_check(), ustart[29], ustart[31])

        P2 = ustart[32]
        if not A:
            ep = []
            for t, so, off in ((0, sE, 0), (1, sE, 1024), (2, sEh, 0)):
                for rg in range(2):
                    ep += self.gelu_tile(t, rg, so, off, tag="Est")
            weave(gaps, ep, P2 + 1, ustart[32 + opt.get("e_end", 15)])
        else:
            ones = self.v("ones", 4)
            T = [self.v(f"t{i}") for i in range(8)]
            ep = [L(f"v_mov_b32 v{ones+i}, 0x3f803f80") for i in range(4)]
            ep += self.phi_pack(ACC(0, 0), 96) + self.plain_pack(ACC(1, 0), 128)
            ep += self.phi_pack(ACC(0, 1), 104) + self.plain_pack(ACC(1, 1), 136)
            for f in range(4):
                ep.append(L(f"v_mfma_f32_32x32x16_bf16 v[112:127], {vr(96+4*f)}, {vr(128+4*f)}, {'v[112:127]' if f else 0}"))
                ep.append(L(f"v_mfma_f32_32x32x16_bf16 v[144:159], {vr(ones)}, {vr(96+4*f)}, {'v[144:159]' if f else 0}"))
            ep += self.phi_pack(ACC(2, 0), 160)[:18]
            ep += [L(f"v_cndmask_b32 v{112+i}, v{112+i}, v{120+i}, {sMH}") for i in range(8)]
            ep += [L(f"v_cndmask_b32 v{120+i}, v{112+i}, v{116+i}, {sMR}") for i in range(4)]
            ep += [L(f"v_cndmask_b32 v{124+i}, v{116+i}, v{112+i}, {sMR}") for i in range(4)]
            ep.append(L(f"ds_write_b128 {V('XW')}, v[124:127]"))
            ep.append(L(f"v_lshrrev_b32 v{T[4]}, 2, {V('XW')}\nv_add_u32 v{T[4]}, {LDS_MISC + 4096 - LDS_MISC//4}, v{T[4]}"))
            ep.append(L(f"ds_write_b32 v{T[4]}, v144"))
            kv1 = opt.get("kv1", 6)
            weave(gaps, ep, P2 + 1, ustart[32 + kv1 - 1])
            ep = [L(f"ds_read_b128 v[124:127], {V('XRd')}"),
                  L(f"v_xor_b32 v{T[4]}, 0x200, v{T[4]}\nds_read_b32 v145, v{T[4]}")]
            ep += self.phi_pack(ACC(2, 0), 160)[18:36]
            ep += [L(f"v_add_f32 v{120+i}, v{120+i}, v{124+i}") for i in range(4)]
            ep.append(L(f"v_add_f32 v144, v144, v145"))
            ep.append(L(f"buffer_store_dwordx4 v[120:123], {V('KG')}, {srd(SW)}, {sKPP} offen sc1"))
            ep.append(L(f"""
            s_mov_b32 exec_hi, 0
            buffer_store_dword v144, {V('ZG')}, {srd(SW)}, {sZPP} offen sc1
            s_mov_b32 exec_hi, -1
            """))
            ep[-1][1].tag = "KVst"
            ep += self.phi_pack(ACC(2, 0), 160)[36:] + self.phi_pack(ACC(2, 1), 168)
            weave(gaps, ep, ustart[32 + kv1 - 1] + 1, ustart[32 + kv1 + 5])
            gaps[ustart[32 + kv1 + 5]] += self.flag_store(sKFP, 0, ["KVst"])
            gaps[ustart[32 + 14]] += self.poll_issue(self.v("pk"), V("KF"), 0)

        body += self.stamp()
        pro = self.p1_loads(0) + self.gate_loads() + self.p1_loads(1) + self.p1_loads(2)
        self.pro_loads = pro
        ph1 = L(f"@sync S0\ns_barrier") + self.stamp()
        for r in units[0][1]: ph1 += r
        for u in range(len(units)):
            if u in (32,): ph1 += self.stamp()
            for g in range(ustart[u], ustart[u + 1]):
                ph1 += heads[g] + gaps[g]
        ph1 += self.stamp()

        mid_main = []
        for t in range(2):
            for rg in range(2):
                mid_main += self.gelu_tile(3 + t, rg, sL, t * 1024, tag="Lst")
        slots = [list(g) for g in mid_main]
        pe, pl, po = self.v("pe"), self.v("pl"), self.v("po")
        mid = []
        if not A:
            weave(slots, self.v_loads(17) + self.v_loads(18), 0, len(slots) // 4)
            slots[len(slots) // 3] += self.flag_store(sFP, 0, ["Est"])
            slots[-1] += self.poll_issue(pe, V("F"), 0)
            mid += sum(slots, [])
        else:
            mid += self.poll_check(self.v("pk"), V("KF"), 0)
            gl = []
            for r in range(16):
                gl.append(L(f"s_movk_i32 {sOff}, {(r >> 2) * 4096}\nbuffer_load_dwordx4 {vr(96+4*r)}, {V('KG')}, {srd(SW)}, {sOff} offen offset:{(r & 3)*1024} sc1"))
            for i in range(8):
                gl.append(L(f"buffer_load_dword v{176+i}, {V('ZG')}, {srd(SW)}, 0 offen offset:{i*256} sc1"))
            weave(slots, gl + self.v_loads(17) + self.v_loads(18), 0, len(slots) * 3 // 4)
            slots[-1] += self.poll_issue(pe, V("F"), 0)
            mid += sum(slots, [])
            for st in (32, 16, 8, 4):
                for i in range(st): mid += L(f"v_add_f32 v{96+i}, v{96+i}, v{96+st+i}")
            for st in (4, 2, 1):
                for i in range(st): mid += L(f"v_add_f32 v{176+i}, v{176+i}, v{176+st+i}")
            T = [self.v(f"t{i}") for i in range(8)]
            mid += L(f"""
            v_mov_b32 v177, v176
            v_cvt_pk_bf16_f32 v100, v96, v97
            v_cvt_pk_bf16_f32 v101, v98, v99
            v_permlane32_swap_b32 v176, v177
            v_add_f32 v176, v176, v177
            v_lshrrev_b32 v{T[4]}, 1, {V('XW')}
            v_add_u32 v{T[4]}, {LDS_MISC - LDS_MISC//2}, v{T[4]}
            ds_write_b64 v{T[4]}, v[100:101]
            v_cvt_pk_bf16_f32 v176, v176, v176
            v_xor_b32 v{T[4]}, 0x400, v{T[4]}
            ds_write_b16 {V('ZW')}, v176
            @lgkm0
            s_barrier
            ds_read_b64 v[102:103], v{T[4]}
            ds_read_b128 v[184:187], {V('ZR')}
            """)
            mid += self.flag_store(sFP, 256, ["Lst"])
            mid += L(f"""
            v_cndmask_b32 v104, v100, v102, {sMR}
            v_cndmask_b32 v105, v101, v103, {sMR}
            v_cndmask_b32 v106, v102, v100, {sMR}
            v_cndmask_b32 v107, v103, v101, {sMR}
            """)
            for i in range(4):
                mid += L(f"v_cndmask_b32 v{176+i}, v{104+i}, v{184+i}, {sMH}\nv_cndmask_b32 v{180+i}, v{184+i}, v{104+i}, {sMH}")
            for rg in range(2):
                for hh in range(2):
                    mid += L(f"v_mfma_f32_32x32x16_bf16 {vr(96 + (rg*2+hh)*16, 16)}, {vr(176+4*hh)}, {vr(160 + rg*8 + hh*4)}, 0")
            for rg in range(2):
                for hh in range(2):
                    b = 96 + (rg * 2 + hh) * 16
                    num, den = (b, b + 8) if hh == 0 else (b + 8, b)
                    mid += L(f"""
                    v_add_f32 v{den}, {f32(1e-6)}, v{den}
                    v_rcp_f32 v{den}, v{den}
                    v_mul_f32 v{den}, v{den}, v{self.v('g%d' % rg)}
                    """)
                    for j in range(8): mid += L(f"v_mul_f32 v{num+j}, v{num+j}, v{den}")
                    d = 192 + (rg * 2 + hh) * 4
                    for j in range(4): mid += L(f"v_cvt_pk_bf16_f32 v{d+j}, v{num+2*j}, v{num+2*j+1}")
                    mid += L(f"buffer_store_dwordx4 {vr(d)}, {V('HS%d' % rg)}, {srd(SW)}, {sO} offen offset:{hh*1024} sc1", "Ost")
        mid += self.stamp()
        mid += self.poll_check(pe, V("F"), 0)
        for n in range(12):
            for g in self.a_loads(n): mid += g
        mid += L("@vm V0")
        for r in self.v_reads(0): mid += r
        mid += self.stamp()

        DA = opt.get("da", 4)
        ph2 = []
        for n in range(36):
            mf = []
            for sr in range(2):
                for sn in range(2):
                    k, b = self.vfrag(n, sn)
                    acc = vr(96 + (sr * 2 + sn) * 16, 16)
                    mf.append(L(f"v_mfma_f32_32x32x16_bf16 {acc}, {k}[{b}:{b+3}], {ar(self.areg(n, sr))}, {acc if n else 0}"))
            g = [[] for _ in range(4)]
            if n + 1 < 36:
                g[0] += L(f"@vm V{n+1}")
                rd = self.v_reads(n + 1)
                g[0] += rd[0] + rd[1]; g[1] += rd[2] + rd[3]
            if n + 19 < 36:
                vl = self.v_loads(n + 19)
                g[1] += vl[0]; g[2] += vl[1]
            if n == opt.get("lflag_at", 1):
                g[3] += self.flag_store(sFP, 384, ["Ost"]) if A else self.flag_store(sFP, 128, ["Lst"])
            m = n + DA
            if m == 12 - 2: g[3] += self.poll_issue(pl, V("FL"), 128)
            if m == 28 - 2: g[3] += self.poll_issue(po, V("F"), 384)
            if m == 12: g[2] += self.poll_check(pl, V("FL"), 128)
            if m == 28: g[2] += self.poll_check(po, V("F"), 384)
            if 12 <= m < 36:
                al = self.a_loads(m)
                g[3] += al[0] + al[1]
            if n in (12, 28): ph2 += self.stamp()
            ph2 += L("@lgkm0")
            for i in range(4): ph2 += mf[i] + g[i]
        ph2 += self.stamp()

        fin = []
        T = [self.v(f"t{i}") for i in range(8)]
        for sg in range(1, 4):
            fin += L(f"v_xor_b32 v{T[sg]}, {sg*2048}, {V('RW')}")
        for sg in range(1, 4):
            for q in range(4):
                fin += L(f"ds_write_b128 {V('RW')}, {vr(96 + sg*16 + q*4)} offset:{((sg-1)*2 + (q >> 1))*8192 + (q & 1)*1024}")
        fin += L("@lgkm0\ns_barrier")
        for q in range(4):
            for sg in range(1, 4):
                fin += L(f"ds_read_b128 {vr(96 + sg*16 + q*4)}, v{T[sg]} offset:{((sg-1)*2 + (q >> 1))*8192 + (q & 1)*1024}")
        of = opt.get("oflags", "")
        for pr in range(2):
            for q in (2 * pr, 2 * pr + 1):
                for h in range(2):
                    r = 96 + q * 4 + 2 * h
                    fin += L(f"""
                    v_pk_add_f32 v[{r}:{r+1}], v[{r}:{r+1}], v[{r+16}:{r+17}]
                    v_pk_add_f32 v[{r+32}:{r+33}], v[{r+32}:{r+33}], v[{r+48}:{r+49}]
                    v_pk_add_f32 v[{r}:{r+1}], v[{r}:{r+1}], v[{r+32}:{r+33}]
                    """)
            d = 160 + pr * 4
            for i in range(4):
                r = 96 + pr * 8 + 2 * i
                fin += L(f"v_cvt_pk_bf16_f32 v{d+i}, v{r}, v{r+1}")
            fin += L(f"""
            v_permlane32_swap_b32 v{d}, v{d+2}
            v_permlane32_swap_b32 v{d+1}, v{d+3}
            buffer_store_dwordx4 {vr(d)}, {V('OUT')}, {srd(SOUT)}, 0 offen offset:{pr*32} {of}
            """)
        skip = self.lab("noep")
        fin += L(f"""
        s_or_b32 {sT0}, s2, {sW}
        s_cmp_lg_u32 {sT0}, 0
        s_cbranch_scc1 {skip}
        s_mov_b64 exec, 1
        @raw buffer_store_dword {V('tag')}, off, {srd(SW)}, 0 offset:{WS_EPOCH} sc1
        {skip}:
        """)
        if opt.get("padto"):
            lp = self.lab("pad")
            fin += L(f"""
            {lp}:
            @raw s_memrealtime s[82:83]
            @raw s_waitcnt lgkmcnt(0)
            @raw s_sub_u32 s82, s82, s3
            @raw s_cmp_lt_u32 s82, {opt['padto']}
            @raw s_cbranch_scc1 {lp}
            """)
        if opt.get("stamps"):
            fin += L("s_mov_b64 exec, -1\n@vm0") + self.stamp()
            fin += L(f"@lgkm0\ns_lshl_b32 {sT0}, s2, 2\ns_add_u32 {sT0}, {sT0}, {sW}\ns_lshl_b32 {sT0}, {sT0}, 6\ns_add_u32 {sT0}, {sT0}, {WS_STAMP}")
            for i in range(10): fin += L(f"v_mov_b32 v{96+i}, s{STAMP0+2*i}")
            fin += L(f"v_mov_b32 v106, s6\nv_mov_b32 v107, {sSpin}\ns_memrealtime s[82:83]\n@lgkm0\nv_mov_b32 v108, s3\nv_mov_b32 v109, s82\nv_mov_b32 v110, 0\nv_mov_b32 v111, 0\ns_mov_b64 exec, 1")
            for i in range(4): fin += L(f"buffer_store_dwordx4 {vr(96+4*i)}, off, {srd(SW)}, {sT0} offset:{16*i}")
        fin += L("s_endpgm")

        pf = []
        if opt.get("codepf", 1):
            pf = L(f"""
            s_getpc_b64 {sPC}
            L_pc{self.typ}:
            v_lshlrev_b32 v1, 7, v0
            v_min_u32 v1, L_end{self.typ}-L_pc{self.typ}-4, v1
            global_load_dword v255, v1, {sPC}
            """)
        fin += L(f"L_end{self.typ}:")
        head = pf + self.first + L("@lgkm0") + L(f"s_load_dword {sTag}, s[{SW}:{SW+1}], {WS_EPOCH}")
        n0 = len(self.p1_loads(0))
        loads = self.pro_loads
        head += body
        head += sum(loads[:n0 + 1], [])
        rest = [[i] for i in self.second + self.setup]
        slots = [list(g) for g in loads[n0 + 1:]]
        head += sum(rest, []) + sum(slots, [])
        head += L(f"s_add_u32 {sTag}, {sTag}, 0x9e3779b9\nv_mov_b32 {V('tag')}, {sTag}")
        return head + ph1 + mid + ph2 + fin


def common_head(opt):
    o = L("""
    s_cmp_ge_u32 s2, 0x100
    s_cbranch_scc1 L_end
    """)
    for b, slot in ((SX, 0), (SG, 4), (SU, 5), (SQ, 1), (SGW, 7), (SW, 10), (SD, 6), (SO, 2), (SOUT, 8)):
        o += L(f"s_load_dwordx2 s[{b}:{b+1}], s[0:1], {slot*8}")
    if opt.get("stamps") or opt.get("padto"):
        o += L("s_memtime s[6:7]\ns_memrealtime s[4:5]\ns_waitcnt lgkmcnt(0)\ns_mov_b32 s3, s4")
    for b, n in ((SX, 2048 * 1024), (SQ, 512 * 3072), (SG, 512 * 3584), (SU, 512 * 3584), (SD, 1792 * 1024),
                 (SO, 512 * 1024), (SW, WS_BYTES), (SOUT, 2048 * 1024), (SGW, 1024)):
        o += L(f"s_mov_b32 s{b+2}, {n}\ns_mov_b32 s{b+3}, 0x20000")
    o += L("""
    s_bitcmp1_b32 s2, 6
    s_cbranch_scc1 L_pathB
    """)
    return o


def generate(opt):
    head = common_head(opt)
    parts = []
    info = []
    for typ in "AB":
        g = Gen(typ, opt)
        ins, added = finalize(head + g.build())
        k = next(i for i, x in enumerate(ins) if x.text.startswith("s_cbranch_scc1 L_pathB"))
        parts.append((ins[:k + 1], ins[k + 1:]))
        info.append((typ, len(ins), added, g.nv, g.hi_next))
    assert text_of(parts[0][0]) == text_of(parts[1][0])
    txt = text_of(parts[0][0]) + text_of(parts[0][1]) + "L_pathB:\n" + text_of(parts[1][1]) + "L_end:\n    s_endpgm\n"
    ref = open("gated_mix__linear_attn_block__geglu_ffn__prompt.s.ref").read()
    hdr = "".join(l + "\n" for l in ref.split("\n") if l.startswith(";") and "@launch" not in l and "Override" not in l and "grid=ceil" not in l)
    out = f"""{hdr}; @launch grid=(256,1,1) block=(256,1,1) lds=163840
.amdgcn_target "amdgcn-amd-amdhsa--gfx950"
.text
.globl {KNAME}
.p2align 8
.type {KNAME},@function
{KNAME}:
{txt}.section .rodata,"a"
.p2align 6
.amdhsa_kernel {KNAME}
  .amdhsa_next_free_vgpr 512
  .amdhsa_next_free_sgpr 102
  .amdhsa_accum_offset 256
  .amdhsa_group_segment_fixed_size 0
  .amdhsa_kernarg_size 88
  .amdhsa_user_sgpr_count 2
  .amdhsa_user_sgpr_kernarg_segment_ptr 1
  .amdhsa_system_sgpr_workgroup_id_x 1
  .amdhsa_float_denorm_mode_32 3
.end_amdhsa_kernel
"""
    return out, info


def parse_opts(args):
    opt = {}
    for a in args:
        k, v = a.split("=", 1)
        try: v = int(v)
        except ValueError: v = v.replace("+", " ")
        opt[k] = v
    return opt


if __name__ == "__main__":
    out, info = generate(parse_opts(sys.argv[2:]))
    open(sys.argv[1], "w").write(out)
    print(info)
```

```python
import sys, struct
from prog import *

KNAME = "gated_mix__linear_attn_block__geglu_ffn__prompt_kernel"

WS_EPOCH = 0
WS_FL = 0x1000
WS_KF = 0x12000
WS_G = 0x14000
WS_ZP = 0x18000
WS_KP = 0x28000
WS_H = 0x100000
WS_STAMP = 0x8000000
RG_BYTES = 144 * 1024
WS_BYTES = 268435456

def f32(x): return "0x%08x" % struct.unpack("<I", struct.pack("<f", x))[0]
LOG2E = 1.4426950408889634
K0 = -2.0 * 0.7978845608028654 * LOG2E
K1 = K0 * 0.044715

SX, SQ, SG, SU, SD, SO, SW, SOUT, SGW = 8, 12, 16, 20, 24, 28, 32, 36, 40
srd = lambda b: f"s[{b}:{b+3}]"
(sW, sRH, sJ, sR, sT, sTag, sR2, sC2, sT0, sT1, sT2, sRot, sKx, sKw, sKq, sL4, sL2, sL1, sCE, sCH, sCL,
 sE, sEh, sL, sO, sFP, sKFP, sKPP, sZPP, sA0, sA1, sSpin, sGrow, sOff) = [f"s{i}" for i in range(44, 78)]
sMH = "s[78:79]"
sMR = "s[80:81]"
sPC = "s[4:5]"
STAMP0 = 82

ACC = lambda t, rg: 96 + (t * 2 + rg) * 16
vr = lambda b, n=4: f"v[{b}:{b+n-1}]"
ar = lambda b, n=4: f"a[{b}:{b+n-1}]"
LDS_MISC = 19 * 8192


class Gen:
    def __init__(self, typ, opt):
        self.typ = typ
        self.opt = opt
        self.nv = 1
        self.names = {}
        self.setup = []
        self.hi_next = 192
        self.nstamp = 0
        self.nlab = 0

    def v(self, name, n=1, p1only=False):
        if name not in self.names:
            if p1only:
                if n > 1: self.hi_next = (self.hi_next + 1) // 2 * 2
                self.names[name] = self.hi_next; self.hi_next += n
                assert self.hi_next <= 256
            else:
                if n > 1: self.nv = (self.nv + 1) // 2 * 2
                self.names[name] = self.nv; self.nv += n
                assert self.nv <= 64, name
        return self.names[name]

    def V(self, name, p1only=False): return f"v{self.v(name, 1, p1only)}"

    def lab(self, s):
        self.nlab += 1
        return f"L_{self.typ}_{s}_{self.nlab}"

    def stamp(self):
        if "xstamp" in self.opt:
            self.nstamp += 1
            return L("s_memrealtime s[84:85]") if self.nstamp - 1 == self.opt["xstamp"] else []
        if not self.opt.get("stamps"): return []
        i = STAMP0 + 2 * self.nstamp
        self.nstamp += 1
        assert i + 1 <= 101
        return L(f"s_memtime s[{i}:{i+1}]")

    def lds(self, pat, off, p1only=False):
        win, imm = off >> 16, off & 0xFFFF
        if win == 0:
            return self.V(pat, p1only), imm
        name = f"{pat}@{win}"
        if name not in self.names:
            self.setup += L(f"v_add_u32 {self.V(name, p1only)}, {win << 16}, {self.V(pat, p1only)}")
        return self.V(name), imm

    def prologue(self):
        A = self.typ == "A"
        V = self.V
        o = []
        t = [self.V(f"t{i}") for i in range(8)]
        l = V("lane")
        o += L(f"""
        v_and_b32 {l}, 63, v0
        v_lshrrev_b32 {t[0]}, 6, v0
        s_and_b32 {sT0}, s2, 7
        v_readfirstlane_b32 {sW}, {t[0]}
        s_lshr_b32 {sT1}, s2, 3
        s_and_b32 {sR}, {sT0}, 1
        s_lshl_b32 {sR}, {sR}, 3
        s_and_b32 {sT2}, {sT1}, 7
        s_add_u32 {sR}, {sR}, {sT2}
        s_lshr_b32 {sT}, {sT0}, 1
        s_lshl_b32 {sT}, {sT}, 1
        s_lshr_b32 {sOff}, {sT1}, 4
        s_add_u32 {sT}, {sT}, {sOff}
        s_lshr_b32 {sRH}, {sW}, 1
        s_and_b32 {sJ}, {sW}, 1
        """)
        rot = self.opt.get("rot", 0)
        if rot == 0:
            o += L(f"s_mov_b32 {sRot}, 0")
        else:
            o += L(f"""
            s_lshr_b32 {sRot}, {sT1}, 3
            s_add_u32 {sRot}, {sRot}, {sT2}
            s_and_b32 {sRot}, {sRot}, {rot-1}
            s_mul_i32 {sRot}, {sRot}, {8//rot}
            """)
        if self.opt.get("map2", "8x4") == "8x4":
            o += L(f"""
            s_lshr_b32 {sR2}, {sT0}, 1
            s_lshl_b32 {sR2}, {sR2}, 3
            s_add_u32 {sR2}, {sR2}, {sT2}
            s_and_b32 {sC2}, {sT0}, 1
            s_lshl_b32 {sC2}, {sC2}, 2
            s_lshr_b32 {sOff}, {sT1}, 3
            s_add_u32 {sC2}, {sC2}, {sOff}
            """)
        else:
            o += L(f"""
            s_lshl_b32 {sR2}, {sT0}, 2
            s_and_b32 {sOff}, {sT1}, 3
            s_add_u32 {sR2}, {sR2}, {sOff}
            s_lshr_b32 {sC2}, {sT1}, 2
            """)
        l3, l7, l4, hi, nh, r4, c3, l31 = [self.V(n, True) for n in ("l3", "l7", "l4", "hi", "nh", "r4", "c3", "l31")]
        wsw = self.V("wsw", True)
        o += L(f"""
        v_lshrrev_b32 {l3}, 3, {l}
        v_and_b32 {l7}, 7, {l}
        v_lshrrev_b32 {l4}, 4, {l}
        v_lshrrev_b32 {hi}, 5, {l}
        v_and_b32 {nh}, 1, {l4}
        v_bfe_u32 {r4}, {l}, 2, 2
        v_and_b32 {c3}, 3, {l}
        v_and_b32 {l31}, 31, {l}
        s_lshl_b32 {sT0}, {sR}, 17
        s_lshl_b32 {sT1}, {sW}, 15
        s_add_u32 {sT0}, {sT0}, {sT1}
        v_xor_b32 {t[0]}, {l7}, {l4}
        v_lshlrev_b32 {t[0]}, 4, {t[0]}
        v_lshl_add_u32 {t[0]}, {l3}, 10, {t[0]}
        v_add_u32 {V('X0', True)}, {sT0}, {t[0]}
        v_xor_b32 {t[1]}, 64, {V('X0')}
        v_add_u32 {V('X1', True)}, 0x2000, {t[1]}
        v_lshlrev_b32 {t[0]}, 2, {nh}
        v_xor_b32 {t[0]}, {t[0]}, {l7}
        v_lshlrev_b32 {wsw}, 4, {t[0]}
        s_lshl_b32 {sT0}, {sW}, 4
        v_add_u32 {t[0]}, {sT0}, {l3}
        v_mul_u32_u24 {t[1]}, 3584, {t[0]}
        v_add_u32 {V('Wg')}, {t[1]}, {wsw}
        v_xor_b32 {V('Wu')}, 32, {V('Wg')}
        s_lshl_b32 {sL4}, {sW}, 12
        s_lshl_b32 {sL2}, {sW}, 11
        s_lshl_b32 {sL1}, {sW}, 10
        """)
        if A:
            o += L(f"""
            v_mul_u32_u24 {t[1]}, 3072, {t[0]}
            v_add_u32 {V('Wq', True)}, {t[1]}, {wsw}
            s_lshl_b32 {sCE}, {sT}, 7
            s_add_u32 {sCL}, {sCE}, 2560
            """)
        else:
            o += L(f"""
            v_lshrrev_b32 {t[0]}, 2, {l}
            v_add_u32 {t[0]}, {sT0}, {t[0]}
            v_mul_u32_u24 {t[1]}, 3584, {t[0]}
            v_lshl_add_u32 {V('Hg', True)}, {c3}, 4, {t[1]}
            v_xor_b32 {V('Hu', True)}, 32, {V('Hg')}
            s_lshl_b32 {sCE}, {sT}, 7
            s_add_u32 {sCL}, {sCE}, 1536
            s_lshl_b32 {sCH}, {sT}, 6
            s_add_u32 {sCH}, {sCH}, 1024
            """)
        o += L(f"""
        s_lshl_b32 {sGrow}, {sR}, 4
        s_add_u32 {sGrow}, {sGrow}, {sT}
        s_add_u32 {sGrow}, {sGrow}, {0 if A else 8}
        s_lshl_b32 {sGrow}, {sGrow}, 2
        s_add_u32 {sGrow}, {sGrow}, {sW}
        s_lshl_b32 {sGrow}, {sGrow}, 1
        v_lshlrev_b32 {V('l16')}, 4, {l}
        """)
        self.first = o
        o = []
        o += L(f"""
        v_bfe_u32 {t[0]}, {l}, 1, 3
        v_xor_b32 {t[0]}, {t[0]}, {hi}
        v_lshlrev_b32 {t[0]}, 4, {t[0]}
        v_lshl_add_u32 {t[0]}, {l31}, 7, {t[0]}
        s_lshl_b32 {sT0}, {sRH}, 13
        v_add_u32 {V('XR0', True)}, {sT0}, {t[0]}
        v_xor_b32 {V('XR1', True)}, 32, {V('XR0')}
        v_xor_b32 {V('XR2', True)}, 64, {V('XR0')}
        v_xor_b32 {V('XR3', True)}, 0x60, {V('XR0')}
        v_and_b32 {t[0]}, 2, {r4}
        v_xor_b32 {t[0]}, {t[0]}, {nh}
        s_lshl_b32 {sT0}, {sJ}, 1
        v_xor_b32 {t[0]}, {sT0}, {t[0]}
        v_lshlrev_b32 {t[0]}, 5, {t[0]}
        v_lshl_add_u32 {t[0]}, {c3}, 3, {t[0]}
        v_lshl_add_u32 {t[1]}, {hi}, 3, {r4}
        v_lshl_add_u32 {t[2]}, {t[1]}, 7, {t[0]}
        v_lshl_add_u32 {V('M0')}, {nh}, 13, {t[2]}
        v_xor_b32 {V('M1')}, 32, {V('M0')}
        v_lshl_add_u32 {t[3]}, {hi}, 2, {r4}
        v_lshl_add_u32 {t[3]}, {t[3]}, 7, {t[0]}
        v_add_u32 {V('VR0')}, {sL2}, {t[3]}
        v_xor_b32 {V('VR1')}, 64, {V('VR0')}
        """)
        if A:
            o += L(f"v_mov_b32 {V('Pl', True)}, {t[2]}")
        else:
            o += L(f"""
            v_xor_b32 {t[0]}, {sJ}, {nh}
            v_lshlrev_b32 {t[0]}, 5, {t[0]}
            v_lshl_add_u32 {t[0]}, {c3}, 3, {t[0]}
            v_lshl_add_u32 {t[0]}, {t[1]}, 6, {t[0]}
            v_lshl_add_u32 {V('Hf', True)}, {nh}, 12, {t[0]}
            """)
        o += L(f"""
        v_lshl_add_u32 {t[0]}, {l3}, 10, {wsw}
        s_lshl_b32 {sT0}, {sC2}, 7
        s_lshl_b32 {sT1}, {sW}, 16
        s_add_u32 {sT0}, {sT0}, {sT1}
        v_add_u32 {V('V4')}, {sT0}, {t[0]}
        v_add_u32 {V('V8')}, {sT1}, {V('V4')}
        s_mul_i32 {sT0}, {sR2}, {2*RG_BYTES}
        s_add_u32 {sT0}, {sT0}, {WS_H}
        s_add_u32 {sT0}, {sT0}, {sL4}
        v_add_u32 {V('A4')}, {sT0}, {V('l16')}
        v_add_u32 {V('A8')}, {sL4}, {V('A4')}
        s_mul_i32 {sA0}, {sRH}, {RG_BYTES}
        s_sub_u32 {sA1}, {RG_BYTES}, {sA0}
        s_lshl_b32 {sT0}, {sR}, 1
        s_add_u32 {sT0}, {sT0}, {sRH}
        s_mul_i32 {sT1}, {sT0}, {2*RG_BYTES}
        s_add_u32 {sT1}, {sT1}, {WS_H}
        v_add_u32 {V('HS0')}, {sT1}, {V('l16')}
        v_add_u32 {V('HS1')}, {RG_BYTES}, {V('HS0')}
        s_lshl_b32 {sT1}, {sT0}, 9
        s_add_u32 {sT1}, {sT1}, {WS_G}
        v_lshlrev_b32 {t[0]}, 3, {l31}
        v_add_u32 {V('G', True)}, {sT1}, {t[0]}
        s_lshl_b32 {sT0}, {sT0}, 2
        s_lshr_b32 {sT1}, {sT}, 1
        s_add_u32 {sT0}, {sT0}, {sT1}
        s_lshl_b32 {sT0}, {sT0}, 9
        s_and_b32 {sT1}, {sT}, 1
        s_lshl_b32 {sT1}, {sT1}, 1
        s_add_u32 {sT1}, {sT1}, {sJ}
        s_lshl_b32 {sT1}, {sT1}, 2
        s_add_u32 {sT0}, {sT0}, {sT1}
        s_add_u32 {sFP}, {sT0}, {WS_FL}
        s_lshl_b32 {sT0}, {sR2}, 2
        s_add_u32 {sT0}, {sT0}, {sW}
        s_lshl_b32 {sT0}, {sT0}, 9
        s_add_u32 {sT0}, {sT0}, {WS_FL}
        v_lshlrev_b32 {t[0]}, 2, {c3}
        v_add_u32 {V('F')}, {sT0}, {t[0]}
        v_and_b32 {t[0]}, 1, {r4}
        v_lshl_add_u32 {V('FL')}, {t[0]}, 7, {V('F')}
        s_lshl_b32 {sT0}, {sT}, 2
        s_lshl_b32 {sT1}, {sJ}, 1
        s_add_u32 {sT0}, {sT0}, {sT1}
        s_lshl_b32 {sE}, {sT0}, 10
        s_add_u32 {sL}, {sE}, {(80 if A else 48)*1024}
        v_mov_b32 {V('K1')}, {f32(K1)}
        """)
        if A:
            o += L(f"""
            s_add_u32 {sO}, {sE}, {112*1024}
            s_add_u32 {sT0}, {sT0}, {sRH}
            s_lshl_b32 {sT1}, {sT0}, 7
            s_add_u32 {sT1}, {sT1}, {WS_KF}
            s_lshl_b32 {sT2}, {sR}, 2
            s_add_u32 {sKFP}, {sT1}, {sT2}
            v_and_b32 {t[0]}, 15, {l}
            v_lshlrev_b32 {t[0]}, 2, {t[0]}
            v_add_u32 {V('KF')}, {sT1}, {t[0]}
            s_lshl_b32 {sT1}, {sT0}, 14
            s_add_u32 {sT1}, {sT1}, {WS_KP}
            v_add_u32 {V('KG')}, {sT1}, {V('l16')}
            s_lshl_b32 {sKPP}, {sR}, 10
            s_lshl_b32 {sT1}, {sT0}, 11
            s_add_u32 {sT1}, {sT1}, {WS_ZP}
            v_lshlrev_b32 {t[0]}, 2, {l}
            v_add_u32 {V('ZG')}, {sT1}, {t[0]}
            s_lshl_b32 {sZPP}, {sR}, 7
            s_mov_b32 s78, 0xffff0000
            s_mov_b32 s79, 0xffff0000
            s_sub_u32 s80, 0, {sRH}
            s_mov_b32 s81, s80
            v_lshlrev_b32 {t[0]}, 4, {hi}
            v_xor_b32 {t[1]}, 1, {nh}
            v_lshl_add_u32 {t[0]}, {t[1]}, 5, {t[0]}
            s_lshl_b32 {sT1}, {sW}, 6
            s_add_u32 {sT1}, {sT1}, {LDS_MISC + 7168}
            v_add_u32 {V('ZR')}, {sT1}, {t[0]}
            v_bfe_u32 {t[0]}, {l}, 3, 1
            v_lshl_add_u32 {t[0]}, {t[0]}, 2, {c3}
            v_lshlrev_b32 {t[0]}, 1, {t[0]}
            v_and_b32 {t[1]}, 1, {r4}
            v_lshl_add_u32 {t[0]}, {t[1]}, 4, {t[0]}
            v_lshl_add_u32 {t[0]}, {nh}, 5, {t[0]}
            v_add_u32 {V('ZW')}, {sT1}, {t[0]}
            s_add_u32 {sT1}, {sL1}, {LDS_MISC}
            v_add_u32 {V('XW')}, {sT1}, {V('l16')}
            v_xor_b32 {V('XRd')}, 0x800, {V('XW')}
            """)
        else:
            o += L(f"""
            s_lshl_b32 {sT0}, {sT}, 1
            s_add_u32 {sT0}, {sT0}, {sJ}
            s_add_u32 {sT0}, {sT0}, 32
            s_lshl_b32 {sEh}, {sT0}, 10
            """)
        o += L(f"""
        s_lshl_b32 {sT0}, {sR2}, 1
        s_add_u32 {sT0}, {sT0}, {sRH}
        s_lshl_b32 {sT0}, {sT0}, 15
        s_lshl_b32 {sT1}, {sC2}, 1
        s_add_u32 {sT1}, {sT1}, {sJ}
        s_lshl_b32 {sT1}, {sT1}, 6
        s_add_u32 {sT0}, {sT0}, {sT1}
        v_lshlrev_b32 {t[0]}, 4, {hi}
        v_lshl_add_u32 {t[0]}, {l31}, 10, {t[0]}
        v_add_u32 {V('OUT')}, {sT0}, {t[0]}
        v_add_u32 {V('RW')}, {sL2}, {V('l16')}
        s_mov_b32 {sSpin}, 0
        """)
        self.second = o

    def dma(self, s, vreg, soff_code, m0base, ldsoff, tag=None, flags=""):
        return L(f"""
        s_add_u32 m0, {m0base}, {ldsoff}
        {soff_code}
        buffer_load_dwordx4 {vreg}, {srd(s)}, {sOff} offen {flags} lds
        """, tag)

    def kb_setup(self, i, p1):
        A = self.typ == "A"
        o = L(f"""
        s_add_u32 {sT0}, {sRot}, {i}
        s_and_b32 {sT0}, {sT0}, 7
        """)
        if p1:
            o += L(f"s_lshl_b32 {sKx}, {sT0}, 7")
            if A:
                o += L(f"s_mul_i32 {sKq}, {sT0}, {64*3072}\ns_add_u32 {sKq}, {sKq}, {sCE}")
            else:
                o += L(f"s_mul_i32 {sKw}, {sT0}, {64*3584}\ns_add_u32 {sKq}, {sKw}, {sCH}\ns_add_u32 {sKw}, {sKw}, {sCE}")
        else:
            o += L(f"s_mul_i32 {sKw}, {sT0}, {64*3584}\ns_add_u32 {sKw}, {sKw}, {sCL}")
        return o

    def p1_loads(self, s):
        A = self.typ == "A"
        V = self.V
        base = (s % 3) * 40960
        wf = self.opt.get("wflags", ""); xf = self.opt.get("xflags", "")
        g = []
        for jj in range(4):
            g.append(self.dma(SX, V(f"X{jj&1}"), f"s_add_u32 {sOff}, {sKx}, {(jj>>1)*16384}", sL4, base + jj * 1024, flags=xf))
        for ii in range(2):
            if A:
                for reg, col in ((2, 1024), (3, 2048), (4, 0)):
                    g.append(self.dma(SQ, V("Wq"), f"s_add_u32 {sOff}, {sKq}, {ii*8*3072 + col}", sL2, base + reg * 8192 + ii * 1024, flags=wf))
            else:
                g.append(self.dma(SG, V("Wg"), f"s_add_u32 {sOff}, {sKw}, {ii*8*3584}", sL2, base + 2 * 8192 + ii * 1024, flags=wf))
                g.append(self.dma(SU, V("Wu"), f"s_add_u32 {sOff}, {sKw}, {ii*8*3584}", sL2, base + 3 * 8192 + ii * 1024, flags=wf))
                g.append(self.dma(SU if ii else SG, V("Hu" if ii else "Hg"), f"s_mov_b32 {sOff}, {sKq}", sL1, base + 4 * 8192 + ii * 4096, flags=wf))
        g[0] = self.kb_setup(s, True) + g[0]
        g[-1][-1].tag = f"S{s}"
        return g

    P_BLK = [15, 17, 10, 12, 0, 2, 5, 7]
    V_BLK = [14, 4, 9, 15, 16, 17, 18, 10, 11, 12, 13, 0, 1, 2, 3, 5, 6, 7, 8]

    def p2_loads(self, t):
        V = self.V
        base = self.P_BLK[t] * 8192
        wf = self.opt.get("wflags", "")
        g = []
        for ii in range(2):
            g.append(self.dma(SG, V("Wg"), f"s_add_u32 {sOff}, {sKw}, {ii*8*3584}", sL2, base + ii * 1024, flags=wf))
            g.append(self.dma(SU, V("Wu"), f"s_add_u32 {sOff}, {sKw}, {ii*8*3584}", sL2, base + 8192 + ii * 1024, flags=wf))
        g[0] = self.kb_setup(t, False) + g[0]
        g[-1][-1].tag = f"P{t}"
        return g

    @staticmethod
    def step(n):
        if n < 8: return n, 8
        if n < 12: return 32 + (n - 8), 4
        if n < 20: return 48 + (n - 12), 8
        if n < 28: return 80 + (n - 20), 8
        return 112 + (n - 28), 8

    def v_loads(self, n):
        ks, mul = self.step(n)
        s, k = (SD, ks) if ks < 112 else (SO, ks - 112)
        base = self.V_BLK[n % 19] * 8192
        vf = self.opt.get("vflags", "")
        g = [self.dma(s, self.V(f"V{mul}"), f"s_mov_b32 {sOff}, {k*16384 + ii*8192}", sL2, base + ii * 1024, flags=vf) for ii in range(2)]
        g[-1][-1].tag = f"V{n}"
        return g

    def areg(self, n, sr): return 160 + (n % 12) * 8 + sr * 4

    def a_loads(self, n):
        ks, mul = self.step(n)
        return [L(f"""
        s_add_u32 {sOff}, {sA1 if sr else sA0}, {ks*1024}
        buffer_load_dwordx4 {ar(self.areg(n, sr))}, {self.V(f'A{mul}')}, {srd(SW)}, {sOff} offen sc1
        """) for sr in range(2)]

    def vfrag(self, n, sn):
        if n < self.opt.get("park", 0): return "a", n * 8 + sn * 4
        return "v", (64 if n % 2 == 0 else 80) + sn * 4

    def v_reads(self, n):
        base = self.V_BLK[n % 19] * 8192
        o = []
        for sn in range(2):
            k, b = self.vfrag(n, sn)
            for i in range(2):
                a, imm = self.lds(f"VR{sn}", base + i * 1024)
                o.append(L(f"ds_read_b64_tr_b16 {k}[{b+2*i}:{b+2*i+1}], {a} offset:{imm}"))
        return o

    def poll_issue(self, reg, addr, off, wide=False):
        if wide:
            return L(f"buffer_load_dwordx2 {vr(reg, 2)}, {addr}, {srd(SW)}, 0 offen offset:{off} sc1")
        return L(f"buffer_load_dword v{reg}, {addr}, {srd(SW)}, 0 offen offset:{off} sc1")

    def poll_check(self, reg, addr, off, wide=False):
        ok, again = self.lab("ok"), self.lab("again")
        tr = reg + 1 if wide else reg
        ld = self.poll_issue(reg, addr, off, wide)[0].text
        return L(f"""
        v_cmp_ne_u32 vcc, {sTag}, v{tr}
        s_cbranch_vccz {ok}
        {again}:
        @raw s_sleep 1
        @raw {ld}
        @raw s_add_u32 {sSpin}, {sSpin}, 1
        @raw s_waitcnt vmcnt(0)
        @raw v_cmp_ne_u32 vcc, {sTag}, v{tr}
        @raw s_cmp_lt_u32 {sSpin}, 0x8000
        @raw s_cbranch_scc0 {ok}
        @raw s_cbranch_vccnz {again}
        {ok}:
        """)

    def flag_store(self, soff, off, tags):
        return L(f"""
        @vm {' '.join(tags)}
        s_mov_b64 exec, 1
        buffer_store_dword {self.V('tag')}, off, {srd(SW)}, {soff} offset:{off} sc1
        s_mov_b64 exec, -1
        """)

    def gate_loads(self):
        x0, x1, gw = self.v("gx0", 4, True), self.v("gx1", 4, True), self.v("ggw", 4, True)
        return [L(f"""
        s_lshl_b32 {sOff}, {sGrow}, 10
        buffer_load_dwordx4 {vr(x0)}, {self.V('l16')}, {srd(SX)}, {sOff} offen
        buffer_load_dwordx4 {vr(x1)}, {self.V('l16')}, {srd(SX)}, {sOff} offen offset:1024
        buffer_load_dwordx4 {vr(gw)}, {self.V('l16')}, {srd(SGW)}, 0 offen
        """)]

    def gate_compute(self):
        x = [self.v("gx0", 4, True), self.v("gx1", 4, True)]; gw = self.v("ggw", 4, True)
        t = [self.V(f"t{i}") for i in range(8)]
        s = [self.v("gs", 2, True), self.v("gs") + 1]
        one = self.V("gone", True)
        o = L(f"v_mov_b32 {one}, 0x3f803f80\nv_mov_b32 v{s[0]}, 0\nv_mov_b32 v{s[1]}, 0")
        for d in range(4):
            o += L(f"v_lshlrev_b32 {t[0]}, 16, v{gw+d}\nv_and_b32 {t[1]}, 0xffff0000, v{gw+d}")
            for r in range(2):
                o += L(f"""
                v_lshlrev_b32 {t[2+2*r]}, 16, v{x[r]+d}
                v_and_b32 {t[3+2*r]}, 0xffff0000, v{x[r]+d}
                v_mul_f32 {t[2+2*r]}, {t[2+2*r]}, {t[0]}
                v_mul_f32 {t[3+2*r]}, {t[3+2*r]}, {t[1]}
                v_cvt_pk_bf16_f32 {t[2+2*r]}, {t[2+2*r]}, {t[3+2*r]}
                v_lshlrev_b32 {t[6]}, 16, {t[2+2*r]}
                v_and_b32 {t[7]}, 0xffff0000, {t[2+2*r]}
                v_add_f32 v{s[r]}, v{s[r]}, {t[6]}
                v_add_f32 v{s[r]}, v{s[r]}, {t[7]}
                """)
        dpp = "row_mask:0xf bank_mask:0xf"
        o += L(f"""
        v_permlane32_swap_b32 v{s[0]}, v{s[1]}
        v_add_f32 v{s[0]}, v{s[0]}, v{s[1]}
        v_add_f32_dpp v{s[0]}, v{s[0]}, v{s[0]} quad_perm:[1,0,3,2] {dpp}
        v_add_f32_dpp v{s[0]}, v{s[0]}, v{s[0]} quad_perm:[2,3,0,1] {dpp}
        v_add_f32_dpp v{s[0]}, v{s[0]}, v{s[0]} row_half_mirror {dpp}
        v_add_f32_dpp v{s[0]}, v{s[0]}, v{s[0]} row_mirror {dpp}
        v_mov_b32 v{s[1]}, v{s[0]}
        v_permlane16_swap_b32 v{s[0]}, v{s[1]}
        v_add_f32 v{s[0]}, v{s[0]}, v{s[1]}
        v_cvt_pk_bf16_f32 v{s[0]}, v{s[0]}, v{s[0]}
        v_and_b32 v{s[0]}, 0xffff0000, v{s[0]}
        v_mul_f32 v{s[0]}, {f32(-LOG2E)}, v{s[0]}
        v_exp_f32 v{s[0]}, v{s[0]}
        v_add_f32 v{s[0]}, 1.0, v{s[0]}
        v_rcp_f32 v{s[0]}, v{s[0]}
        v_cvt_pk_bf16_f32 v{s[0]}, v{s[0]}, v{s[0]}
        v_and_b32 v{s[0]}, 0xffff0000, v{s[0]}
        v_mov_b32 v{s[1]}, {sTag}
        v_lshlrev_b32 {t[0]}, 3, {self.V('hi')}
        s_lshl_b32 {sOff}, {sGrow}, 3
        s_add_u32 {sOff}, {sOff}, {WS_G}
        """)
        groups = [[i] for i in o]
        groups.append(L(f"""
        s_mov_b32 exec_lo, 1
        s_mov_b32 exec_hi, 1
        buffer_store_dwordx2 {vr(s[0], 2)}, {t[0]}, {srd(SW)}, {sOff} offen sc1
        s_mov_b64 exec, -1
        """))
        groups = groups[:-4] + [sum(groups[-4:], [])]
        return groups

    def gate_fetch(self):
        g0, g1 = self.v("g0", 2), self.v("g1", 2)
        return [self.poll_issue(g0, self.V("G"), 0, True), self.poll_issue(g1, self.V("G"), 256, True)]

    def gate_check(self):
        o = []
        for i, nm in enumerate(("g0", "g1")):
            g = self.v(nm)
            o.append(self.poll_check(g, self.V("G"), 256 * i, True))
            o += [[x] for x in L(f"""
            v_sub_f32 v{g+1}, 1.0, v{g}
            v_cvt_pk_bf16_f32 v{g+1}, v{g+1}, v{g+1}
            v_and_b32 v{g+1}, 0xffff0000, v{g+1}
            v_max_f32 v{g+1}, {f32(1e-30)}, v{g+1}
            v_rcp_f32 v{g+1}, v{g+1}
            """)]
        return o

    def gelu_tile(self, t, rg, soff, off, tag=None):
        a = ACC(t, rg)
        io = f"v{self.v('g%d' % rg) + 1}"
        T = [self.V(f"t{i}") for i in range(8)]
        o = []
        for h in range(2):
            js = range(4 * h, 4 * h + 4)
            for stage in (
                lambda j, x: f"v_mul_f32 {x}, v{a+j}, v{a+j}",
                lambda j, x: f"v_fmaak_f32 {x}, {x}, {self.V('K1')}, {f32(K0)}",
                lambda j, x: f"v_mul_f32 {x}, {x}, v{a+j}",
                lambda j, x: f"v_exp_f32 {x}, {x}",
                lambda j, x: f"v_mul_f32 v{a+8+j}, v{a+8+j}, v{a+j}",
                lambda j, x: f"v_fma_f32 {x}, {x}, {io}, {io}",
                lambda j, x: f"v_rcp_f32 {x}, {x}",
                lambda j, x: f"v_mul_f32 v{a+8+j}, v{a+8+j}, {x}",
            ):
                o += [L(stage(j, T[j & 3])) for j in js]
            o += [L(f"v_cvt_pk_bf16_f32 v{a+d}, v{a+8+2*d}, v{a+9+2*d}") for d in (2 * h, 2 * h + 1)]
        o.append(L(f"buffer_store_dwordx4 {vr(a)}, {self.V('HS%d' % rg)}, {srd(SW)}, {soff} offen offset:{off} sc1", tag))
        return o

    def phi_pack(self, src, dst):
        T = [self.V(f"t{i}") for i in range(8)]
        o = []
        for q in range(4):
            js = range(4 * q, 4 * q + 4)
            for stage in (
                lambda j, x: f"v_mul_f32 {x}, {f32(LOG2E)}, v{src+j}",
                lambda j, x: f"v_exp_f32_e64 {x}, {x} clamp",
                lambda j, x: f"v_max_f32 v{src+j}, {f32(1e-6)}, v{src+j}",
                lambda j, x: f"v_add_f32 {x}, {x}, v{src+j}",
            ):
                o += [L(stage(j, T[j & 3])) for j in js]
            o += [L(f"v_cvt_pk_bf16_f32 v{dst+2*q+d}, {T[2*d]}, {T[2*d+1]}") for d in range(2)]
        return o

    def plain_pack(self, src, dst):
        return [L(f"v_cvt_pk_bf16_f32 v{dst+d}, v{src+2*d}, v{src+2*d+1}") for d in range(8)]

    def build(self):
        A = self.typ == "A"
        opt = self.opt
        V = self.V
        self.prologue()
        body = []

        units = []
        for n in range(32):
            s, k4 = n >> 2, n & 3
            base = (s % 3) * 40960
            wb = 64 if n % 2 == 0 else 80
            rd = []
            def trs(pat, off, dst, istep):
                r = []
                for i in range(2):
                    a, imm = self.lds(pat, off + i * istep, pat in ("Pl", "Hf"))
                    r.append(L(f"ds_read_b64_tr_b16 v[{dst+2*i}:{dst+2*i+1}], {a} offset:{imm}"))
                return r
            xr = []
            for rg in range(2):
                a, imm = self.lds(f"XR{k4}", base + rg * 4096, True)
                xr.append(L(f"ds_read_b128 {ar((n*2+rg)*4)}, {a} offset:{imm}"))
            if A:
                w = [trs("Pl", base + (2 + t) * 8192 + k4 * 2048, wb + 4 * t, 512) for t in range(3)]
            else:
                w = [trs("M0", base + 16384 + k4 * 2048, wb, 512), trs("M1", base + 16384 + k4 * 2048, wb + 4, 512),
                     trs("Hf", base + 32768 + k4 * 1024, wb + 8, 256)]
            rd = [xr[0]] + w[0] + [xr[1]] + w[1] + w[2]
            mf = []
            for t in range(3):
                for rg in range(2):
                    acc = vr(ACC(t, rg), 16)
                    wfr, xfr = vr(wb + 4 * t), ar((n * 2 + rg) * 4)
                    a, b = (xfr, wfr) if (A and t < 2) else (wfr, xfr)
                    mf.append(L(f"v_mfma_f32_32x32x16_bf16 {acc}, {a}, {b}, {acc if n else 0}"))
            units.append(([f"S{s}"] if k4 == 0 else None, rd, mf))
        for m in range(16):
            t2, half = m >> 1, m & 1
            base = self.P_BLK[t2] * 8192
            wb = 64 if m % 2 == 0 else 80
            rd, mf = [], []
            for kk in range(2):
                k4 = half * 2 + kk
                n = t2 * 4 + k4
                for t in range(2):
                    for i in range(2):
                        a, imm = self.lds(f"M{t}", base + k4 * 2048 + i * 512)
                        d = wb + kk * 8 + t * 4 + 2 * i
                        rd.append(L(f"ds_read_b64_tr_b16 v[{d}:{d+1}], {a} offset:{imm}"))
                    for rg in range(2):
                        acc = vr(ACC(3 + t, rg), 16)
                        mf.append(L(f"v_mfma_f32_32x32x16_bf16 {acc}, {vr(wb + kk*8 + t*4)}, {ar((n*2+rg)*4)}, {acc if n else 0}"))
            units.append(([f"P{t2}"] if half == 0 else None, rd, mf))

        gaps, heads, ustart, syncgap = [], [], [], {}
        for u, (sy, rd, mf) in enumerate(units):
            ustart.append(len(gaps))
            for i, m in enumerate(mf):
                heads.append((L("@lgkm0") if i == 0 else []) + m)
                gaps.append([])
            g0 = ustart[u]
            if u + 1 < len(units):
                nsy, nrd, _ = units[u + 1]
                if nsy:
                    gaps[g0] += L(f"@sync {' '.join(nsy)}\ns_barrier")
                    syncgap[nsy[0]] = g0
                for i, r in enumerate(nrd):
                    gaps[g0 + i // 2] += r
            else:
                gaps[g0] += L("@sync\ns_barrier")
                syncgap["END"] = g0
        ustart.append(len(gaps))

        order = [f"S{s}" for s in range(1, 8)] + [f"P{t}" for t in range(8)] + ["END"]
        sched = {k: [] for k in order}
        for s in range(3, 8): sched[f"S{s-2}"] += self.p1_loads(s)
        p = [self.p2_loads(t) for t in range(8)]
        sched["S6"] += p[0] + p[1] + p[2][:2]
        sched["S7"] += p[2][2:] + p[3] + p[4]
        sched["P0"] += p[5] + p[6][:2]
        sched["P1"] += p[6][2:] + p[7]
        sched["P2"] += self.v_loads(0) + self.v_loads(1) + self.v_loads(2)
        vq = {"P3": [3, 4, 5], "P4": [6, 7, 8], "P5": [9, 10, 11], "P6": [12, 13, 14], "P7": [15, 16]}
        for k, ns in vq.items():
            for n in ns: sched[k] += self.v_loads(n)
        for i, k in enumerate(order[:-1]):
            weave(gaps, sched[k], syncgap[k], syncgap[order[i + 1]])

        weave(gaps, self.gate_compute(), 0, ustart[3])
        weave(gaps, self.gate_fetch(), ustart[25], ustart[26])
        weave(gaps, self.gate_check(), ustart[29], ustart[31])

        P2 = ustart[32]
        if not A:
            ep = []
            for t, so, off in ((0, sE, 0), (1, sE, 1024), (2, sEh, 0)):
                for rg in range(2):
                    ep += self.gelu_tile(t, rg, so, off, tag="Est")
            weave(gaps, ep, P2 + 1, ustart[32 + opt.get("e_end", 15)])
        else:
            ones = self.v("ones", 4)
            T = [self.v(f"t{i}") for i in range(8)]
            ep = [L(f"v_mov_b32 v{ones+i}, 0x3f803f80") for i in range(4)]
            ep += self.phi_pack(ACC(0, 0), 96) + self.plain_pack(ACC(1, 0), 128)
            ep += self.phi_pack(ACC(0, 1), 104) + self.plain_pack(ACC(1, 1), 136)
            for f in range(4):
                ep.append(L(f"v_mfma_f32_32x32x16_bf16 v[112:127], {vr(96+4*f)}, {vr(128+4*f)}, {'v[112:127]' if f else 0}"))
                ep.append(L(f"v_mfma_f32_32x32x16_bf16 v[144:159], {vr(ones)}, {vr(96+4*f)}, {'v[144:159]' if f else 0}"))
            ep += self.phi_pack(ACC(2, 0), 160)[:18]
            ep += [L(f"v_cndmask_b32 v{112+i}, v{112+i}, v{120+i}, {sMH}") for i in range(8)]
            ep += [L(f"v_cndmask_b32 v{120+i}, v{112+i}, v{116+i}, {sMR}") for i in range(4)]
            ep += [L(f"v_cndmask_b32 v{124+i}, v{116+i}, v{112+i}, {sMR}") for i in range(4)]
            ep.append(L(f"ds_write_b128 {V('XW')}, v[124:127]"))
            ep.append(L(f"v_lshrrev_b32 v{T[4]}, 2, {V('XW')}\nv_add_u32 v{T[4]}, {LDS_MISC + 4096 - LDS_MISC//4}, v{T[4]}"))
            ep.append(L(f"ds_write_b32 v{T[4]}, v144"))
            kv1 = opt.get("kv1", 6)
            weave(gaps, ep, P2 + 1, ustart[32 + kv1 - 1])
            ep = [L(f"ds_read_b128 v[124:127], {V('XRd')}"),
                  L(f"v_xor_b32 v{T[4]}, 0x200, v{T[4]}\nds_read_b32 v145, v{T[4]}")]
            ep += self.phi_pack(ACC(2, 0), 160)[18:36]
            ep += [L(f"v_add_f32 v{120+i}, v{120+i}, v{124+i}") for i in range(4)]
            ep.append(L(f"v_add_f32 v144, v144, v145"))
            ep.append(L(f"buffer_store_dwordx4 v[120:123], {V('KG')}, {srd(SW)}, {sKPP} offen sc1"))
            ep.append(L(f"""
            s_mov_b32 exec_hi, 0
            buffer_store_dword v144, {V('ZG')}, {srd(SW)}, {sZPP} offen sc1
            s_mov_b32 exec_hi, -1
            """))
            ep[-1][1].tag = "KVst"
            ep += self.phi_pack(ACC(2, 0), 160)[36:] + self.phi_pack(ACC(2, 1), 168)
            weave(gaps, ep, ustart[32 + kv1 - 1] + 1, ustart[32 + kv1 + 5])
            gaps[ustart[32 + kv1 + 5]] += self.flag_store(sKFP, 0, ["KVst"])
            gaps[ustart[32 + 14]] += self.poll_issue(self.v("pk"), V("KF"), 0)

        body += self.stamp()
        pro = self.p1_loads(0) + self.gate_loads() + self.p1_loads(1) + self.p1_loads(2)
        self.pro_loads = pro
        ph1 = L(f"@sync S0\ns_barrier") + self.stamp()
        for r in units[0][1]: ph1 += r
        for u in range(len(units)):
            if u in (32,): ph1 += self.stamp()
            for g in range(ustart[u], ustart[u + 1]):
                ph1 += heads[g] + gaps[g]
        ph1 += self.stamp()

        mid_main = []
        for t in range(2):
            for rg in range(2):
                mid_main += self.gelu_tile(3 + t, rg, sL, t * 1024, tag="Lst")
        slots = [list(g) for g in mid_main]
        pe, pl, po = self.v("pe"), self.v("pl"), self.v("po")
        mid = []
        if not A:
            weave(slots, self.v_loads(17) + self.v_loads(18), 0, len(slots) // 4)
            slots[len(slots) // 3] += self.flag_store(sFP, 0, ["Est"])
            slots[-1] += self.poll_issue(pe, V("F"), 0)
            mid += sum(slots, [])
        else:
            mid += self.poll_check(self.v("pk"), V("KF"), 0)
            gl = []
            for r in range(16):
                gl.append(L(f"s_movk_i32 {sOff}, {(r >> 2) * 4096}\nbuffer_load_dwordx4 {vr(96+4*r)}, {V('KG')}, {srd(SW)}, {sOff} offen offset:{(r & 3)*1024} sc1"))
            for i in range(8):
                gl.append(L(f"buffer_load_dword v{176+i}, {V('ZG')}, {srd(SW)}, 0 offen offset:{i*256} sc1"))
            weave(slots, gl + self.v_loads(17) + self.v_loads(18), 0, len(slots) * 3 // 4)
            slots[-1] += self.poll_issue(pe, V("F"), 0)
            mid += sum(slots, [])
            for st in (32, 16, 8, 4):
                for i in range(st): mid += L(f"v_add_f32 v{96+i}, v{96+i}, v{96+st+i}")
            for st in (4, 2, 1):
                for i in range(st): mid += L(f"v_add_f32 v{176+i}, v{176+i}, v{176+st+i}")
            T = [self.v(f"t{i}") for i in range(8)]
            mid += L(f"""
            v_mov_b32 v177, v176
            v_cvt_pk_bf16_f32 v100, v96, v97
            v_cvt_pk_bf16_f32 v101, v98, v99
            v_permlane32_swap_b32 v176, v177
            v_add_f32 v176, v176, v177
            v_lshrrev_b32 v{T[4]}, 1, {V('XW')}
            v_add_u32 v{T[4]}, {LDS_MISC - LDS_MISC//2}, v{T[4]}
            ds_write_b64 v{T[4]}, v[100:101]
            v_cvt_pk_bf16_f32 v176, v176, v176
            v_xor_b32 v{T[4]}, 0x400, v{T[4]}
            ds_write_b16 {V('ZW')}, v176
            @lgkm0
            s_barrier
            ds_read_b64 v[102:103], v{T[4]}
            ds_read_b128 v[184:187], {V('ZR')}
            """)
            mid += self.flag_store(sFP, 256, ["Lst"])
            mid += L(f"""
            v_cndmask_b32 v104, v100, v102, {sMR}
            v_cndmask_b32 v105, v101, v103, {sMR}
            v_cndmask_b32 v106, v102, v100, {sMR}
            v_cndmask_b32 v107, v103, v101, {sMR}
            """)
            for i in range(4):
                mid += L(f"v_cndmask_b32 v{176+i}, v{104+i}, v{184+i}, {sMH}\nv_cndmask_b32 v{180+i}, v{184+i}, v{104+i}, {sMH}")
            for rg in range(2):
                for hh in range(2):
                    mid += L(f"v_mfma_f32_32x32x16_bf16 {vr(96 + (rg*2+hh)*16, 16)}, {vr(176+4*hh)}, {vr(160 + rg*8 + hh*4)}, 0")
            for rg in range(2):
                for hh in range(2):
                    b = 96 + (rg * 2 + hh) * 16
                    num, den = (b, b + 8) if hh == 0 else (b + 8, b)
                    mid += L(f"""
                    v_add_f32 v{den}, {f32(1e-6)}, v{den}
                    v_rcp_f32 v{den}, v{den}
                    v_mul_f32 v{den}, v{den}, v{self.v('g%d' % rg)}
                    """)
                    for j in range(8): mid += L(f"v_mul_f32 v{num+j}, v{num+j}, v{den}")
                    d = 192 + (rg * 2 + hh) * 4
                    for j in range(4): mid += L(f"v_cvt_pk_bf16_f32 v{d+j}, v{num+2*j}, v{num+2*j+1}")
                    mid += L(f"buffer_store_dwordx4 {vr(d)}, {V('HS%d' % rg)}, {srd(SW)}, {sO} offen offset:{hh*1024} sc1", "Ost")
        mid += self.stamp()
        mid += self.poll_check(pe, V("F"), 0)
        for n in range(12):
            for g in self.a_loads(n): mid += g
        mid += L("@vm V0")
        for r in self.v_reads(0): mid += r
        mid += self.stamp()

        DA = opt.get("da", 4)
        ph2 = []
        for n in range(36):
            mf = []
            for sr in range(2):
                for sn in range(2):
                    k, b = self.vfrag(n, sn)
                    acc = vr(96 + (sr * 2 + sn) * 16, 16)
                    mf.append(L(f"v_mfma_f32_32x32x16_bf16 {acc}, {k}[{b}:{b+3}], {ar(self.areg(n, sr))}, {acc if n else 0}"))
            g = [[] for _ in range(4)]
            if n + 1 < 36:
                g[0] += L(f"@vm V{n+1}")
                rd = self.v_reads(n + 1)
                g[0] += rd[0] + rd[1]; g[1] += rd[2] + rd[3]
            if n + 19 < 36:
                vl = self.v_loads(n + 19)
                g[1] += vl[0]; g[2] += vl[1]
            if n == opt.get("lflag_at", 1):
                g[3] += self.flag_store(sFP, 384, ["Ost"]) if A else self.flag_store(sFP, 128, ["Lst"])
            m = n + DA
            if m == 12 - 2: g[3] += self.poll_issue(pl, V("FL"), 128)
            if m == 28 - 2: g[3] += self.poll_issue(po, V("F"), 384)
            if m == 12: g[2] += self.poll_check(pl, V("FL"), 128)
            if m == 28: g[2] += self.poll_check(po, V("F"), 384)
            if 12 <= m < 36:
                al = self.a_loads(m)
                g[3] += al[0] + al[1]
            if n in (12, 28): ph2 += self.stamp()
            ph2 += L("@lgkm0")
            for i in range(4): ph2 += mf[i] + g[i]
        ph2 += self.stamp()

        fin = []
        T = [self.v(f"t{i}") for i in range(8)]
        for sg in range(1, 4):
            fin += L(f"v_xor_b32 v{T[sg]}, {sg*2048}, {V('RW')}")
        for sg in range(1, 4):
            for q in range(4):
                fin += L(f"ds_write_b128 {V('RW')}, {vr(96 + sg*16 + q*4)} offset:{((sg-1)*2 + (q >> 1))*8192 + (q & 1)*1024}")
        fin += L("@lgkm0\ns_barrier")
        for q in range(4):
            for sg in range(1, 4):
                fin += L(f"ds_read_b128 {vr(96 + sg*16 + q*4)}, v{T[sg]} offset:{((sg-1)*2 + (q >> 1))*8192 + (q & 1)*1024}")
        of = opt.get("oflags", "")
        for pr in range(2):
            for q in (2 * pr, 2 * pr + 1):
                for h in range(2):
                    r = 96 + q * 4 + 2 * h
                    fin += L(f"""
                    v_pk_add_f32 v[{r}:{r+1}], v[{r}:{r+1}], v[{r+16}:{r+17}]
                    v_pk_add_f32 v[{r+32}:{r+33}], v[{r+32}:{r+33}], v[{r+48}:{r+49}]
                    v_pk_add_f32 v[{r}:{r+1}], v[{r}:{r+1}], v[{r+32}:{r+33}]
                    """)
            d = 160 + pr * 4
            for i in range(4):
                r = 96 + pr * 8 + 2 * i
                fin += L(f"v_cvt_pk_bf16_f32 v{d+i}, v{r}, v{r+1}")
            fin += L(f"""
            v_permlane32_swap_b32 v{d}, v{d+2}
            v_permlane32_swap_b32 v{d+1}, v{d+3}
            buffer_store_dwordx4 {vr(d)}, {V('OUT')}, {srd(SOUT)}, 0 offen offset:{pr*32} {of}
            """)
        skip = self.lab("noep")
        fin += L(f"""
        s_or_b32 {sT0}, s2, {sW}
        s_cmp_lg_u32 {sT0}, 0
        s_cbranch_scc1 {skip}
        s_mov_b64 exec, 1
        @raw buffer_store_dword {V('tag')}, off, {srd(SW)}, 0 offset:{WS_EPOCH} sc1
        {skip}:
        """)
        if opt.get("padto"):
            lp = self.lab("pad")
            if "xstamp" in opt:
                fin += L("@lgkm0\ns_mov_b32 s3, s84")
            fin += L(f"""
            {lp}:
            @raw s_memrealtime s[82:83]
            @raw s_waitcnt lgkmcnt(0)
            @raw s_sub_u32 s82, s82, s3
            @raw s_cmp_lt_u32 s82, {opt['padto']}
            @raw s_cbranch_scc1 {lp}
            """)
        if opt.get("stamps"):
            fin += L("s_mov_b64 exec, -1\n@vm0") + self.stamp()
            fin += L(f"@lgkm0\ns_lshl_b32 {sT0}, s2, 2\ns_add_u32 {sT0}, {sT0}, {sW}\ns_lshl_b32 {sT0}, {sT0}, 6\ns_add_u32 {sT0}, {sT0}, {WS_STAMP}")
            for i in range(10): fin += L(f"v_mov_b32 v{96+i}, s{STAMP0+2*i}")
            fin += L(f"v_mov_b32 v106, s6\nv_mov_b32 v107, {sSpin}\ns_memrealtime s[82:83]\n@lgkm0\nv_mov_b32 v108, s3\nv_mov_b32 v109, s82\nv_mov_b32 v110, 0\nv_mov_b32 v111, 0\ns_mov_b64 exec, 1")
            for i in range(4): fin += L(f"buffer_store_dwordx4 {vr(96+4*i)}, off, {srd(SW)}, {sT0} offset:{16*i}")
        fin += L("s_endpgm")

        pf = []
        if opt.get("codepf", 1):
            pf = L(f"""
            s_getpc_b64 {sPC}
            L_pc{self.typ}:
            v_lshlrev_b32 v1, 7, v0
            v_min_u32 v1, L_end{self.typ}-L_pc{self.typ}-4, v1
            global_load_dword v255, v1, {sPC}
            """)
        fin += L(f"L_end{self.typ}:")
        head = pf + self.first + L("@lgkm0") + L(f"s_load_dword {sTag}, s[{SW}:{SW+1}], {WS_EPOCH}")
        n0 = len(self.p1_loads(0))
        loads = self.pro_loads
        head += body
        head += sum(loads[:n0 + 1], [])
        rest = [[i] for i in self.second + self.setup]
        slots = [list(g) for g in loads[n0 + 1:]]
        head += sum(rest, []) + sum(slots, [])
        head += L(f"s_add_u32 {sTag}, {sTag}, 0x9e3779b9\nv_mov_b32 {V('tag')}, {sTag}")
        return head + ph1 + mid + ph2 + fin


def common_head(opt):
    o = L("""
    s_cmp_ge_u32 s2, 0x100
    s_cbranch_scc1 L_end
    """)
    for b, slot in ((SX, 0), (SG, 4), (SU, 5), (SQ, 1), (SGW, 7), (SW, 10), (SD, 6), (SO, 2), (SOUT, 8)):
        o += L(f"s_load_dwordx2 s[{b}:{b+1}], s[0:1], {slot*8}")
    if opt.get("stamps") or opt.get("padto"):
        o += L("s_memtime s[6:7]\ns_memrealtime s[4:5]\ns_waitcnt lgkmcnt(0)\ns_mov_b32 s3, s4")
    for b, n in ((SX, 2048 * 1024), (SQ, 512 * 3072), (SG, 512 * 3584), (SU, 512 * 3584), (SD, 1792 * 1024),
                 (SO, 512 * 1024), (SW, WS_BYTES), (SOUT, 2048 * 1024), (SGW, 1024)):
        o += L(f"s_mov_b32 s{b+2}, {n}\ns_mov_b32 s{b+3}, 0x20000")
    o += L("""
    s_bitcmp1_b32 s2, 6
    s_cbranch_scc1 L_pathB
    """)
    return o


def generate(opt):
    head = common_head(opt)
    parts = []
    info = []
    for typ in "AB":
        g = Gen(typ, opt)
        ins, added = finalize(head + g.build())
        k = next(i for i, x in enumerate(ins) if x.text.startswith("s_cbranch_scc1 L_pathB"))
        parts.append((ins[:k + 1], ins[k + 1:]))
        info.append((typ, len(ins), added, g.nv, g.hi_next))
    assert text_of(parts[0][0]) == text_of(parts[1][0])
    txt = text_of(parts[0][0]) + text_of(parts[0][1]) + "L_pathB:\n" + text_of(parts[1][1]) + "L_end:\n    s_endpgm\n"
    ref = open("gated_mix__linear_attn_block__geglu_ffn__prompt.s.ref").read()
    hdr = "".join(l + "\n" for l in ref.split("\n") if l.startswith(";") and "@launch" not in l and "Override" not in l and "grid=ceil" not in l)
    out = f"""{hdr}; @launch grid=(256,1,1) block=(256,1,1) lds=163840
.amdgcn_target "amdgcn-amd-amdhsa--gfx950"
.text
.globl {KNAME}
.p2align 8
.type {KNAME},@function
{KNAME}:
{txt}.section .rodata,"a"
.p2align 6
.amdhsa_kernel {KNAME}
  .amdhsa_next_free_vgpr 512
  .amdhsa_next_free_sgpr 102
  .amdhsa_accum_offset 256
  .amdhsa_group_segment_fixed_size 0
  .amdhsa_kernarg_size 88
  .amdhsa_user_sgpr_count 2
  .amdhsa_user_sgpr_kernarg_segment_ptr 1
  .amdhsa_system_sgpr_workgroup_id_x 1
  .amdhsa_float_denorm_mode_32 3
.end_amdhsa_kernel
"""
    return out, info


def parse_opts(args):
    opt = {}
    for a in args:
        k, v = a.split("=", 1)
        try: v = int(v)
        except ValueError: v = v.replace("+", " ")
        opt[k] = v
    return opt


if __name__ == "__main__":
    out, info = generate(parse_opts(sys.argv[2:]))
    open(sys.argv[1], "w").write(out)
    print(info)
```

```python
import re

REG_RE = re.compile(r"^(-|\|)?(abs\()?([vas])(\d+)\)?\|?$")
RNG_RE = re.compile(r"^(-)?([vas])\[(\d+):(\d+)\]$")
TRANS = ("v_exp_f32", "v_log_f32", "v_rcp_f32", "v_rsq_f32", "v_sqrt_f32", "v_sin_f32", "v_cos_f32")


def regs_of(tok):
    tok = tok.strip()
    m = RNG_RE.match(tok)
    if m:
        return [(m.group(2), i) for i in range(int(m.group(3)), int(m.group(4)) + 1)]
    m = REG_RE.match(tok)
    if m:
        return [(m.group(3), int(m.group(4)))]
    if tok == "vcc":
        return [("s", "vcc")]
    if tok == "exec":
        return [("s", "exec")]
    if tok == "m0":
        return [("s", "m0")]
    return []


class I:
    __slots__ = ("text", "op", "kind", "rd", "wr", "tag", "srcC", "srcAB", "passes", "lds", "data")

    def __init__(self, text, tag=None):
        self.text = text
        self.tag = tag
        self.rd, self.wr, self.srcC, self.srcAB, self.data = [], [], [], [], []
        self.passes = 0
        self.lds = False
        t = text.strip()
        if t.startswith("@") or t.endswith(":") or t.startswith(";") or t.startswith("."):
            self.op, self.kind = t, ("pseudo" if t.startswith("@") else "label")
            return
        parts = t.split(None, 1)
        op = parts[0]
        self.op = op
        rest = parts[1] if len(parts) > 1 else ""
        ops, depth, cur = [], 0, ""
        for ch in rest:
            if ch in "[(":
                depth += 1
            if ch in "])":
                depth -= 1
            if ch == "," and depth == 0:
                ops.append(cur.strip()); cur = ""
            else:
                cur += ch
        if cur.strip():
            ops.append(cur.strip())
        mods = ""
        if ops:
            last = ops[-1].split(None, 1)
            ops[-1] = last[0]
            mods = last[1] if len(last) > 1 else ""
        R = [regs_of(o) for o in ops]
        flat = lambda l: [x for y in l for x in y]
        if op.startswith("v_mfma"):
            self.kind = "mfma"
            self.wr = R[0]; self.srcAB = R[1] + R[2]; self.srcC = R[3]; self.rd = self.srcAB + self.srcC
            self.passes = 8 if "32x32x16" in op else 4
        elif op.startswith("v_"):
            self.kind = "valu"
            if op.startswith("v_permlane") and "swap" in op:
                self.wr = R[0] + R[1]; self.rd = R[0] + R[1]
            elif op.startswith(("v_fmac", "v_dot2c", "v_writelane")):
                self.wr = R[0]; self.rd = flat(R)
            elif op.startswith(("v_add_co", "v_sub_co", "v_addc_co")):
                self.wr = R[0] + R[1]; self.rd = flat(R[2:])
            elif op == "v_nop":
                pass
            else:
                self.wr = R[0]; self.rd = flat(R[1:])
            if "dpp" in op:
                self.rd = self.rd + R[0]
        elif op.startswith("ds_"):
            self.kind = "ds"
            if op.startswith("ds_read") or op.startswith("ds_bpermute"):
                self.wr = R[0]; self.rd = flat(R[1:])
            else:
                self.rd = flat(R)
        elif op.startswith(("buffer_", "global_")):
            self.kind = "vmem"
            if re.search(r"\blds\b", mods):
                self.lds = True
                self.rd = flat(R) + [("s", "m0")]
            elif "_load" in op:
                self.wr = R[0]; self.rd = flat(R[1:])
            else:
                self.rd = flat(R)
                if "x4" in op or "x3" in op:
                    self.data = R[0] if op.startswith("buffer_") else R[1]
        elif op.startswith(("s_load", "s_memtime", "s_memrealtime")):
            self.kind = "smem"
            self.wr = R[0]; self.rd = flat(R[1:])
        elif op.startswith("s_"):
            self.kind = "salu"
            if op.startswith(("s_cmp", "s_bitcmp")):
                self.rd = flat(R)
            elif op.startswith(("s_waitcnt", "s_barrier", "s_nop", "s_branch", "s_cbranch", "s_sleep", "s_endpgm", "s_setprio")):
                pass
            elif "saveexec" in op:
                self.wr = R[0] + [("s", "exec")]; self.rd = flat(R[1:])
            else:
                self.wr = R[0]; self.rd = flat(R[1:])
        else:
            raise ValueError(text)

    def states(self):
        if self.kind in ("pseudo", "label"):
            return 0
        if self.op == "s_nop":
            return int(self.text.split()[1]) + 1
        return 1


def L(text, tag=None):
    out = [I(l.strip()) for l in text.split("\n") if l.strip()]
    if tag is not None:
        out[-1].tag = tag
    return out


def resolve_waits(ins):
    out = []
    vm_n = 0
    vm_done = 0
    lg_n = 0
    lg_done = 0
    smem_out = False
    pend = {}
    tags = {}

    def wait(vm=None, lg=None):
        nonlocal vm_done, lg_done, smem_out
        s = []
        if vm is not None and vm > vm_done:
            n = vm_n - vm
            if n < 63:
                s.append(f"vmcnt({n})")
            vm_done = vm
        if lg is not None:
            if lg == "all":
                if smem_out or lg_done < lg_n:
                    s.append("lgkmcnt(0)")
                lg_done = lg_n; smem_out = False
                for r in [r for r, v in pend.items() if v[0] == "sm"]: del pend[r]
            elif lg > lg_done:
                n = lg_n - lg
                if smem_out:
                    n = 0; lg = lg_n; smem_out = False
                    for r in [r for r, v in pend.items() if v[0] == "sm"]: del pend[r]
                if n < 15:
                    s.append(f"lgkmcnt({n})")
                lg_done = lg
        if s:
            out.append(I("s_waitcnt " + " ".join(s)))

    for x in ins:
        if x.kind == "pseudo":
            p = x.text.split()
            if p[0] == "@vm":
                wait(vm=max(tags[t] for t in p[1:]))
            elif p[0] == "@sync":
                wait(vm=max([tags[t] for t in p[1:]], default=None), lg="all")
            elif p[0] == "@lgkm":
                wait(lg=lg_n - int(p[1]))
            elif p[0] == "@lgkm0":
                wait(lg="all")
            elif p[0] == "@vm0":
                wait(vm=vm_n)
            elif p[0] == "@raw":
                out.append(I(x.text[5:]))
            else:
                raise ValueError(x.text)
            continue
        needvm, needlg = None, None
        for r in x.rd + x.wr:
            if r in pend:
                k, i = pend[r]
                if k == "vm":
                    if i > vm_done: needvm = max(needvm or 0, i)
                elif k == "lg":
                    if i > lg_done and needlg != "all": needlg = max(needlg or 0, i)
                elif smem_out:
                    needlg = "all"
                del pend[r]
        if needvm is not None or needlg is not None:
            wait(vm=needvm, lg=needlg)
        out.append(x)
        if x.kind == "vmem":
            vm_n += 1
            for r in x.wr: pend[r] = ("vm", vm_n)
            if x.tag: tags[x.tag] = vm_n
        elif x.kind == "ds":
            lg_n += 1
            for r in x.wr: pend[r] = ("lg", lg_n)
        elif x.kind == "smem":
            smem_out = True
            for r in x.wr: pend[r] = ("sm", 0)
    return out


def need_states(p, c):
    n = 0
    pw, cr, cw = set(p.wr), set(c.rd), set(c.wr)
    vec = lambda s: {r for r in s if r[0] in "va"}
    sca = lambda s: {r for r in s if r[0] == "s"}
    if p.kind == "valu":
        if c.kind == "mfma" and vec(pw) & cr: n = max(n, 2)
        if c.kind == "vmem" and sca(pw) & cr: n = max(n, 5)
        if c.kind == "valu":
            if sca(pw) & cr: n = max(n, 4 if c.op.startswith(("v_readlane", "v_writelane")) else 2)
            if vec(pw) & cr:
                if c.op.startswith(("v_readlane", "v_readfirstlane")): n = max(n, 1)
                if c.op.startswith("v_permlane") or "dpp" in c.op: n = max(n, 2)
                if p.op.startswith(TRANS) and not c.op.startswith(TRANS): n = max(n, 1)
    elif p.kind == "mfma":
        big = p.passes == 8
        if c.kind == "mfma":
            if pw & set(c.srcAB): n = max(n, 12 if big else 8)
            if pw & set(c.srcC):
                if not (p.wr == c.srcC and p.passes == c.passes): n = max(n, 10 if big else 6)
            elif pw & cw:
                n = max(n, 10 if big else 6)
        elif c.kind in ("valu", "vmem", "ds"):
            if pw & (cr | cw): n = max(n, 12 if big else 8)
            if c.kind == "valu" and set(p.srcC) & cw: n = max(n, 7 if big else 3)
    elif p.kind == "salu":
        if ("s", "m0") in pw and c.kind == "vmem" and c.lds: n = max(n, 1)
    elif p.kind == "vmem":
        if p.data and set(p.data) & cw: n = max(n, 2)
    return n


def pad_hazards(ins):
    out = []
    added = 0
    for c in ins:
        if c.kind not in ("pseudo", "label"):
            dist, need = 0, 0
            for p in reversed(out):
                if dist >= 20: break
                if p.kind not in ("pseudo", "label"):
                    k = need_states(p, c) - dist
                    if k > need: need = k
                dist += p.states()
            if need > 0:
                out.append(I(f"s_nop {need-1}")); added += need
        out.append(c)
    return out, added


def finalize(ins):
    a = resolve_waits(ins)
    b, added = pad_hazards(a)
    return b, added


def text_of(ins):
    return "\n".join((x.text if x.kind == "label" else "    " + x.text) for x in ins) + "\n"


def weave(slots, side, lo=0, hi=None):
    hi = len(slots) if hi is None else hi
    n = hi - lo
    tot = sum(len(g) for g in side)
    acc = 0
    for g in side:
        k = lo + min(n - 1, (acc * n) // max(tot, 1))
        slots[k].extend(g)
        acc += len(g)


def cost(x):
    if x.kind in ("pseudo", "label"): return 0.5 if x.text.startswith(("@vm", "@sync", "@lgkm")) else 0
    if x.kind == "vmem": return 2.5
    if x.kind == "mfma": return 8
    if x.kind == "valu" and x.op.startswith(TRANS): return 2
    return 1


class Gap:
    def __init__(self):
        self.pre, self.sa, self.ds, self.vm, self.va = [], [], [], [], []
    def used(self):
        return sum(map(cost, self.pre + self.ds + self.vm + self.va)) + max(0, len(self.sa) - (0 if self.pre else 1))
    def emit(self):
        return self.pre + self.sa + self.ds + self.vm + self.va


def place_mem(gaps, groups, lo, hi):
    n, prev = len(groups), lo - 1
    for i, g in enumerate(groups):
        p = lo + (i * (hi - lo)) // n
        pre, ld = g[:-1], g[-1:]
        if p == prev:
            gaps[p].vm += pre + ld
            continue
        q = p
        for x in reversed(pre):
            gaps[q].sa.insert(0, x)
            if q - 1 > prev: q -= 1
        gaps[p].vm += ld
        prev = p


def place_valu(gaps, groups, lo, hi, cap=6.0):
    def kind(g):
        k = {x.kind for x in g if x.kind != "pseudo"}
        if k <= {"ds"}: return "ds"
        if "vmem" in k and k <= {"vmem", "salu"}: return "vm"
        return "va"
    while True:
        used = [g.used() for g in gaps]
        plan, p, ok = [], lo, True
        fresh = True
        for g in groups:
            c, k = sum(map(cost, g)), kind(g)
            if k != "va":
                if not fresh: p += 1
                fresh = True
            else:
                while p < hi and used[p] + c > cap and not (c > cap and used[p] <= 2): p += 1; fresh = True
                fresh = False
            if p >= hi: ok = False; break
            used[p] += c
            plan.append((p, k, g))
        if ok: break
        cap += 0.5
    for p, k, g in plan:
        getattr(gaps[p], k).extend(g)
    return plan[-1][0], cap


def align8(text, assemble):
    lines = text.split("\n")
    sizes = assemble(text)
    idx = [i for i, l in enumerate(lines) if l.startswith("    ") and l.strip() and not l.strip().startswith((".", ";"))]
    assert len(idx) == len(sizes), (len(idx), len(sizes))
    off, cand, out_nop, widened = 0, None, set(), 0
    wide_ok = re.compile(r"^v_(mul|add|sub|max|min)_f32 |^v_(exp|rcp)_f32 |^v_mov_b32 |^v_(and|or|xor|lshlrev|lshrrev)_b32 |^v_add_u32 ")
    for k, i in enumerate(idx):
        sz, t = sizes[k], lines[i].strip()
        if sz == 4:
            if off % 8 == 0: cand = None
            if wide_ok.match(t): cand = i
        elif off % 8 == 4:
            if cand is not None:
                op, rest = lines[cand].strip().split(None, 1)
                lines[cand] = f"    {op}_e64 {rest}"
                off += 4; widened += 1
            else:
                run = 0
                while k + run < len(idx) and sizes[k + run] == 8 and "mfma" not in lines[idx[k + run]]: run += 1
                if run >= 6:
                    out_nop.add(i); off += 4
            cand = None
        else:
            cand = None
        off += sz
    res = []
    for i, l in enumerate(lines):
        if i in out_nop: res.append("    s_nop 0")
        res.append(l)
    return "\n".join(res), widened, len(out_nop)
```

```python
import sys, struct, re
from prog import *

KNAME = "gated_mix__linear_attn_block__geglu_ffn__prompt_kernel"

WS_EPOCH = 0
WS_FL = 0x1000
WS_KF = 0x12000
WS_G = 0x14000
WS_ZP = 0x18000
WS_KP = 0x28000
WS_H = 0x100000
WS_STAMP = 0x8000000
RG_BYTES = 144 * 1024
WS_BYTES = 268435456

def f32(x): return "0x%08x" % struct.unpack("<I", struct.pack("<f", x))[0]
LOG2E = 1.4426950408889634
K0 = -2.0 * 0.7978845608028654 * LOG2E
K1 = K0 * 0.044715

SX, SQ, SG, SU, SD, SO, SW, SOUT, SGW = 8, 12, 16, 20, 24, 28, 32, 36, 40
srd = lambda b: f"s[{b}:{b+3}]"
(sW, sRH, sJ, sR, sT, sTag, sR2, sC2, sT0, sT1, sT2, sRot, sKx, sKw, sKq, sL4, sL2, sL1, sCE, sCH, sCL,
 sE, sEh, sL, sO, sFP, sKFP, sKPP, sZPP, sA0, sA1, sSpin, sGrow, sOff) = [f"s{i}" for i in range(44, 78)]
sMH = "s[78:79]"
sMR = "s[80:81]"
sPC = "s[4:5]"
STAMP0 = 82
sKk, sKv, sVo, sAo, sGW = "s88", "s89", "s90", "s91", "s92"
sTab = [f"s{i}" for i in range(93, 101)]
sSel = "s101"
sKb = [sRot, sKx, sKq, sCL, sKk, sKv, sVo, "s7"]

ACC = lambda t, rg: 96 + (t * 2 + rg) * 16
vr = lambda b, n=4: f"v[{b}:{b+n-1}]"
ar = lambda b, n=4: f"a[{b}:{b+n-1}]"
LDS_MISC = 19 * 8192


def hoist_m0(groups):
    out = [list(g) for g in groups]
    for i in range(1, len(out)):
        if len(out[i]) == 2 and out[i][0].text.startswith("s_add_u32 m0") and out[i - 1][-1].kind == "vmem":
            out[i - 1].append(out[i].pop(0))
    return out


class Gen:
    def __init__(self, typ, opt):
        self.typ = typ
        self.opt = opt
        self.nv = 1
        self.names = {}
        self.setup = []
        self.hi_next = 192
        self.nstamp = 0
        self.nlab = 0

    def v(self, name, n=1, p1only=False):
        if name not in self.names:
            if p1only:
                if n > 1: self.hi_next = (self.hi_next + 1) // 2 * 2
                self.names[name] = self.hi_next; self.hi_next += n
                assert self.hi_next <= 256
            else:
                if n > 1: self.nv = (self.nv + 1) // 2 * 2
                self.names[name] = self.nv; self.nv += n
                assert self.nv <= 64, name
        return self.names[name]

    def V(self, name, p1only=False): return f"v{self.v(name, 1, p1only)}"

    def lab(self, s):
        self.nlab += 1
        return f"L_{self.typ}_{s}_{self.nlab}"

    def stamp(self, name):
        if "xstamp" in self.opt:
            return L("s_memrealtime s[84:85]") if name == self.opt["xstamp"] else []
        if not self.opt.get("stamps"): return []
        if self.opt.get("coarse") and name not in ("start", "sync0", "s4", "p0", "p4", "p1end", "mid", "u8", "u28", "ph2end", "end", "FLUSH"): return []
        return [I("@stamp " + name)]

    def expand_stamps(self, ins):
        out, n = [], 0
        self.stamp_names = []
        for x in ins:
            if x.kind == "pseudo" and x.text.startswith("@stamp"):
                i = STAMP0 + 2 * (n % 2)
                if n: out += L(f"v_writelane_b32 {self.V('stamps')}, s{STAMP0 + 2*((n-1) % 2)}, {n-1}")
                nm = x.text.split()[1]
                if nm != "FLUSH":
                    out += L(f"{'s_memrealtime' if self.opt.get('rt') else 's_memtime'} s[{i}:{i+1}]")
                    self.stamp_names.append(nm)
                    n += 1
                    assert n <= 60, n
            else:
                out.append(x)
        return out

    def lds(self, pat, off, p1only=False):
        win, imm = off >> 16, off & 0xFFFF
        if win == 0:
            return self.V(pat, p1only), imm
        name = f"{pat}@{win}"
        if name not in self.names:
            self.setup += L(f"v_add_u32 {self.V(name, p1only)}, {win << 16}, {self.V(pat, p1only)}")
        return self.V(name), imm

    def prologue(self):
        A = self.typ == "A"
        V = self.V
        o = []
        self.nv = 2
        t = [self.V(f"t{i}") for i in range(8)]
        l = V("lane", True)
        o += L(f"""
        v_and_b32 {l}, 63, v0
        s_and_b32 {sT0}, s2, 7
        s_lshr_b32 {sT1}, s2, 3
        s_and_b32 {sR}, {sT0}, 1
        s_lshl_b32 {sR}, {sR}, 3
        s_and_b32 {sT2}, {sT1}, 7
        s_add_u32 {sR}, {sR}, {sT2}
        s_lshr_b32 {sT}, {sT0}, 1
        s_lshl_b32 {sT}, {sT}, 1
        s_lshr_b32 {sOff}, {sT1}, 4
        s_add_u32 {sT}, {sT}, {sOff}
        s_lshr_b32 {sRH}, {sW}, 1
        s_and_b32 {sJ}, {sW}, 1
        s_and_b32 {sSel}, {sT1}, 3
        """)
        rot = self.opt.get("rot", 0)
        if rot:
            o += L(f"""
            s_lshr_b32 {sOff}, {sT1}, 3
            s_mul_i32 {sOff}, {sOff}, {self.opt.get('rotc', 1)}
            s_add_u32 {sOff}, {sOff}, {sT2}
            s_and_b32 {sOff}, {sOff}, {rot-1}
            s_mul_i32 {sKb[0]}, {sOff}, {8//rot}
            """)
            for i in range(1, 8): o += L(f"s_add_u32 {sKb[i]}, {sKb[0]}, {i}\ns_and_b32 {sKb[i]}, {sKb[i]}, 7")
        if self.opt.get("map2", "8x4") == "8x4":
            o += L(f"""
            s_lshr_b32 {sR2}, {sT0}, 1
            s_lshl_b32 {sR2}, {sR2}, 3
            s_add_u32 {sR2}, {sR2}, {sT2}
            s_and_b32 {sC2}, {sT0}, 1
            s_lshl_b32 {sC2}, {sC2}, 2
            s_lshr_b32 {sOff}, {sT1}, 3
            s_add_u32 {sC2}, {sC2}, {sOff}
            """)
        else:
            o += L(f"""
            s_lshl_b32 {sR2}, {sT0}, 2
            s_and_b32 {sOff}, {sT1}, 3
            s_add_u32 {sR2}, {sR2}, {sOff}
            s_lshr_b32 {sC2}, {sT1}, 2
            """)
        l3, l7, l4, hi, nh, r4, c3, l31 = [self.V(n, True) for n in ("l3", "l7", "l4", "hi", "nh", "r4", "c3", "l31")]
        wsw = self.V("wsw", True)
        o += L(f"""
        v_lshrrev_b32 {l3}, 3, {l}
        v_and_b32 {l7}, 7, {l}
        v_lshrrev_b32 {l4}, 4, {l}
        v_lshrrev_b32 {hi}, 5, {l}
        v_and_b32 {nh}, 1, {l4}
        v_bfe_u32 {r4}, {l}, 2, 2
        v_and_b32 {c3}, 3, {l}
        v_and_b32 {l31}, 31, {l}
        s_lshl_b32 {sT0}, {sR}, 17
        s_lshl_b32 {sT1}, {sW}, 15
        s_add_u32 {sT0}, {sT0}, {sT1}
        v_xor_b32 {t[0]}, {l7}, {l4}
        v_lshlrev_b32 {t[0]}, 4, {t[0]}
        v_lshl_add_u32 {t[0]}, {l3}, 10, {t[0]}
        v_add_u32 {V('X0', True)}, {sT0}, {t[0]}
        v_xor_b32 {t[1]}, 64, {V('X0')}
        v_add_u32 {V('X1', True)}, {8192-1024}, {t[1]}
        v_add_u32 {V('X2', True)}, {16384-2048}, {V('X0')}
        v_add_u32 {V('X3', True)}, {16384-2048}, {V('X1')}
        v_lshlrev_b32 {t[0]}, 2, {nh}
        v_xor_b32 {t[0]}, {t[0]}, {l7}
        v_lshlrev_b32 {wsw}, 4, {t[0]}
        s_lshl_b32 {sT0}, {sW}, 4
        v_add_u32 {t[0]}, {sT0}, {l3}
        s_lshl_b32 {sCE}, {sT}, 7
        v_add_u32 {t[2]}, {sCE}, {wsw}
        v_mul_u32_u24 {t[1]}, 3584, {t[0]}
        v_add_u32 {V('Wg')}, {t[1]}, {t[2]}
        v_xor_b32 {V('Wu')}, 32, {V('Wg')}
        v_add_u32 {V('Wg1')}, {8*3584-1024}, {V('Wg')}
        v_add_u32 {V('Wu1')}, {8*3584-1024}, {V('Wu')}
        s_lshl_b32 {sL4}, {sW}, 12
        s_lshl_b32 {sL2}, {sW}, 11
        s_lshl_b32 {sL1}, {sW}, 10
        """)
        if A:
            o += L(f"""
            v_mul_u32_u24 {t[1]}, 3072, {t[0]}
            v_add_u32 {V('Wq')}, {t[1]}, {t[2]}
            v_add_u32 {V('Wq1')}, {8*3072-1024}, {V('Wq')}
            """)
        else:
            o += L(f"""
            v_lshrrev_b32 {t[0]}, 2, {l}
            v_add_u32 {t[0]}, {sT0}, {t[0]}
            v_mul_u32_u24 {t[1]}, 3584, {t[0]}
            v_lshl_add_u32 {t[1]}, {c3}, 4, {t[1]}
            s_lshl_b32 {sCH}, {sT}, 6
            v_add_u32 {V('Hg')}, {sCH}, {t[1]}
            v_xor_b32 {V('Hu')}, 32, {V('Hg')}
            """)
        o += L(f"""
        s_lshl_b32 {sGrow}, {sR}, 4
        s_add_u32 {sGrow}, {sGrow}, {sT}
        s_add_u32 {sGrow}, {sGrow}, {0 if A else 8}
        s_lshl_b32 {sGrow}, {sGrow}, 2
        s_add_u32 {sGrow}, {sGrow}, {sW}
        s_lshl_b32 {sGrow}, {sGrow}, 1
        v_lshlrev_b32 {V('l16', True)}, 4, {l}
        """)
        self.first = o
        o = []
        o += L(f"""
        v_bfe_u32 {t[0]}, {l}, 1, 3
        v_xor_b32 {t[0]}, {t[0]}, {hi}
        v_lshlrev_b32 {t[0]}, 4, {t[0]}
        v_lshl_add_u32 {t[0]}, {l31}, 7, {t[0]}
        s_lshl_b32 {sT0}, {sRH}, 13
        v_add_u32 {V('XR0', True)}, {sT0}, {t[0]}
        v_xor_b32 {V('XR1', True)}, 32, {V('XR0')}
        v_xor_b32 {V('XR2', True)}, 64, {V('XR0')}
        v_xor_b32 {V('XR3', True)}, 0x60, {V('XR0')}
        v_and_b32 {t[0]}, 2, {r4}
        v_xor_b32 {t[0]}, {t[0]}, {nh}
        s_lshl_b32 {sT0}, {sJ}, 1
        v_xor_b32 {t[0]}, {sT0}, {t[0]}
        v_lshlrev_b32 {t[0]}, 5, {t[0]}
        v_lshl_add_u32 {t[0]}, {c3}, 3, {t[0]}
        v_lshl_add_u32 {t[1]}, {hi}, 3, {r4}
        v_lshl_add_u32 {t[2]}, {t[1]}, 7, {t[0]}
        v_lshl_add_u32 {V('M0')}, {nh}, 13, {t[2]}
        v_xor_b32 {V('M1')}, 32, {V('M0')}
        v_lshl_add_u32 {t[3]}, {hi}, 2, {r4}
        v_lshl_add_u32 {t[3]}, {t[3]}, 7, {t[0]}
        v_add_u32 {V('VR0')}, {sL2}, {t[3]}
        v_xor_b32 {V('VR1')}, 64, {V('VR0')}
        """)
        if A:
            o += L(f"v_mov_b32 {V('Pl')}, {t[2]}")
        else:
            o += L(f"""
            v_xor_b32 {t[0]}, {sJ}, {nh}
            v_lshlrev_b32 {t[0]}, 5, {t[0]}
            v_lshl_add_u32 {t[0]}, {c3}, 3, {t[0]}
            v_lshl_add_u32 {t[0]}, {t[1]}, 6, {t[0]}
            v_lshl_add_u32 {V('Hf')}, {nh}, 12, {t[0]}
            """)
        o += L(f"""
        v_lshl_add_u32 {t[0]}, {l3}, 10, {wsw}
        s_lshl_b32 {sT0}, {sC2}, 7
        s_lshl_b32 {sT1}, {sW}, 16
        s_add_u32 {sT0}, {sT0}, {sT1}
        v_add_u32 {V('V4')}, {sT0}, {t[0]}
        v_add_u32 {V('V8')}, {sT1}, {V('V4')}
        v_add_u32 {V('V41')}, {8192-1024}, {V('V4')}
        v_add_u32 {V('V81')}, {8192-1024}, {V('V8')}
        s_mul_i32 {sT0}, {sR2}, {2*RG_BYTES}
        s_add_u32 {sT0}, {sT0}, {WS_H}
        s_add_u32 {sT0}, {sT0}, {sL4}
        v_add_u32 {t[0]}, {sT0}, {V('l16')}
        s_mul_i32 {sA0}, {sRH}, {RG_BYTES}
        s_sub_u32 {sA1}, {RG_BYTES}, {sA0}
        v_add_u32 {V('A40')}, {sA0}, {t[0]}
        v_add_u32 {V('A41')}, {sA1}, {t[0]}
        v_add_u32 {V('A80')}, {sL4}, {V('A40')}
        v_add_u32 {V('A81')}, {sL4}, {V('A41')}
        s_lshl_b32 {sT0}, {sR}, 1
        s_add_u32 {sT0}, {sT0}, {sRH}
        s_mul_i32 {sT1}, {sT0}, {2*RG_BYTES}
        s_add_u32 {sT1}, {sT1}, {WS_H}
        v_add_u32 {V('HS0')}, {sT1}, {V('l16')}
        v_add_u32 {V('HS1')}, {RG_BYTES}, {V('HS0')}
        s_lshl_b32 {sT1}, {sT0}, 9
        s_add_u32 {sT1}, {sT1}, {WS_G}
        v_lshlrev_b32 {t[0]}, 3, {l31}
        v_add_u32 {V('G', True)}, {sT1}, {t[0]}
        s_lshl_b32 {sT0}, {sT0}, 2
        s_lshr_b32 {sT1}, {sT}, 1
        s_add_u32 {sT0}, {sT0}, {sT1}
        s_lshl_b32 {sT0}, {sT0}, 9
        s_and_b32 {sT1}, {sT}, 1
        s_lshl_b32 {sT1}, {sT1}, 1
        s_add_u32 {sT1}, {sT1}, {sJ}
        s_lshl_b32 {sT1}, {sT1}, 2
        s_add_u32 {sT0}, {sT0}, {sT1}
        s_add_u32 {sFP}, {sT0}, {WS_FL}
        s_lshl_b32 {sT0}, {sR2}, 2
        s_add_u32 {sT0}, {sT0}, {sW}
        s_lshl_b32 {sT0}, {sT0}, 9
        s_add_u32 {sT0}, {sT0}, {WS_FL}
        v_lshlrev_b32 {t[0]}, 2, {c3}
        v_add_u32 {V('F')}, {sT0}, {t[0]}
        s_lshl_b32 {sT0}, {sT}, 2
        s_lshl_b32 {sT1}, {sJ}, 1
        s_add_u32 {sT0}, {sT0}, {sT1}
        s_lshl_b32 {sE}, {sT0}, 10
        s_add_u32 {sL}, {sE}, {(80 if A else 48)*1024}
        v_mov_b32 v{self.v('KK', 2)}, {f32(K0)}
        v_mov_b32 v{self.v('KK', 2) + 1}, {f32(K1)}
        """)
        if A:
            o += L(f"""
            s_add_u32 {sO}, {sE}, {112*1024}
            s_add_u32 {sT0}, {sT0}, {sRH}
            s_lshl_b32 {sT1}, {sT0}, 7
            s_add_u32 {sT1}, {sT1}, {WS_KF}
            s_lshl_b32 {sT2}, {sR}, 2
            s_add_u32 {sKFP}, {sT1}, {sT2}
            v_and_b32 {t[0]}, 15, {l}
            v_lshlrev_b32 {t[0]}, 2, {t[0]}
            v_add_u32 {V('KF')}, {sT1}, {t[0]}
            s_lshl_b32 {sT1}, {sT0}, 14
            s_add_u32 {sT1}, {sT1}, {WS_KP}
            v_add_u32 {V('KG')}, {sT1}, {V('l16')}
            s_lshl_b32 {sKPP}, {sR}, 10
            s_lshl_b32 {sT1}, {sT0}, 11
            s_add_u32 {sT1}, {sT1}, {WS_ZP}
            v_lshlrev_b32 {t[0]}, 2, {l}
            v_add_u32 {V('ZG')}, {sT1}, {t[0]}
            s_lshl_b32 {sZPP}, {sR}, 7
            s_mov_b32 s78, 0xffff0000
            s_mov_b32 s79, 0xffff0000
            s_sub_u32 s80, 0, {sRH}
            s_mov_b32 s81, s80
            v_lshlrev_b32 {t[0]}, 4, {hi}
            v_xor_b32 {t[1]}, 1, {nh}
            v_lshl_add_u32 {t[0]}, {t[1]}, 5, {t[0]}
            s_lshl_b32 {sT1}, {sW}, 6
            s_add_u32 {sT1}, {sT1}, {LDS_MISC + 7168}
            v_add_u32 {V('ZR')}, {sT1}, {t[0]}
            v_bfe_u32 {t[0]}, {l}, 3, 1
            v_lshl_add_u32 {t[0]}, {t[0]}, 2, {c3}
            v_lshlrev_b32 {t[0]}, 1, {t[0]}
            v_and_b32 {t[1]}, 1, {r4}
            v_lshl_add_u32 {t[0]}, {t[1]}, 4, {t[0]}
            v_lshl_add_u32 {t[0]}, {nh}, 5, {t[0]}
            v_add_u32 {V('ZW')}, {sT1}, {t[0]}
            s_add_u32 {sT1}, {sL1}, {LDS_MISC}
            v_add_u32 {V('XW')}, {sT1}, {V('l16')}
            v_xor_b32 {V('XRd')}, 0x800, {V('XW')}
            """)
        else:
            o += L(f"""
            s_lshl_b32 {sT0}, {sT}, 1
            s_add_u32 {sT0}, {sT0}, {sJ}
            s_add_u32 {sT0}, {sT0}, 32
            s_lshl_b32 {sEh}, {sT0}, 10
            """)
        o += L(f"""
        s_lshl_b32 {sT0}, {sR2}, 1
        s_add_u32 {sT0}, {sT0}, {sRH}
        s_lshl_b32 {sT0}, {sT0}, 15
        s_lshl_b32 {sT1}, {sC2}, 1
        s_add_u32 {sT1}, {sT1}, {sJ}
        s_lshl_b32 {sT1}, {sT1}, 6
        s_add_u32 {sT0}, {sT0}, {sT1}
        v_lshlrev_b32 {t[0]}, 4, {hi}
        v_lshl_add_u32 {t[0]}, {l31}, 10, {t[0]}
        v_add_u32 {V('OUT')}, {sT0}, {t[0]}
        v_add_u32 {V('RW')}, {sL2}, {V('l16')}
        s_mov_b32 {sSpin}, 0
        """)
        r2 = self.opt.get("rot2", 2)
        if r2 == 0:
            o += L(f"s_mov_b32 {sT0}, 0")
        else:
            o += L(f"s_mul_i32 {sT0}, {sC2}, {r2}\ns_add_u32 {sT0}, {sT0}, {sR2}")
        for i in range(8):
            o += L(f"s_add_u32 {sT1}, {sT0}, {i}\ns_and_b32 {sT1}, {sT1}, 7\ns_lshl_b32 {sTab[i]}, {sT1}, 10")
        self.second = o

    def dma(self, s, vreg, soff, m0=None, off=0, flags=""):
        o = L(f"s_add_u32 m0, {m0[0]}, {m0[1]}") if m0 else []
        return o + L(f"buffer_load_dwordx4 {vreg}, {srd(s)}, {soff} offen offset:{off} {flags} lds")

    def item_loads(self, kind, i):
        A = self.typ == "A"
        V = self.V
        base = self.blk[(kind, i)] * 8192
        wf = self.opt.get("wflags", ""); xf = self.opt.get("xflags", ""); vf = self.opt.get("vflags", "")
        def so(c):
            stride, c0 = c
            if not self.opt.get("rot", 0): return L(f"s_mov_b32 {sKw}, {i*stride + c0}")
            return L(f"s_mul_i32 {sKw}, {sKb[i]}, {stride}") + (L(f"s_add_u32 {sKw}, {sKw}, {c0}") if c0 else [])
        def two(sr, nm, c, b):
            return [(so(c) if c is not None else []) + self.dma(sr, V(nm), sKw, (sL2, b), 0, wf), self.dma(sr, V(nm + "1"), sKw, None, 1024, wf)]
        kq, kw = 64 * 3072, 64 * 3584
        if kind == "X":
            g = [self.dma(SX, V(f"X{jj}"), sKw, None if jj else (sL4, base), jj * 1024, xf) for jj in range(4)]
            g[0] = so((128, 0)) + g[0]
        elif kind == "W":
            g = two(SQ, "Wq", (kq, 1024), base) + two(SQ, "Wq", (kq, 2048), base + 8192) if A else two(SG, "Wg", (kw, 0), base) + two(SU, "Wu", None, base + 8192)
        elif kind == "G":
            g = two(SG, "Wg", (kw, 2560 if A else 1536), base) + two(SU, "Wu", None, base + 8192)
        elif kind == "H":
            g = two(SQ, "Wq", (kq, 0), base) if A else [so((kw, 1024)) + self.dma(SG, V("Hg"), sKw, (sL1, base), 0, wf), self.dma(SU, V("Hu"), sKw, (sL1, base + 4096), 0, wf)]
        else:
            ks, j, mul = self.step(i)
            sr, k = (SD, ks) if ks < 112 else (SO, ks - 112)
            g = [self.dma(sr, V(f"V{mul}"), sKw, (sL2, base), 0, vf), self.dma(sr, V(f"V{mul}1"), sKw, None, 1024, vf)]
            if mul == 8:
                g[0] = L(f"s_lshl4_add_u32 {sKw}, {sTab[j]}, {k*16384}") + g[0]
            else:
                g[0] = L(f"s_and_b32 {sKw}, {sTab[j]}, 0xc00\ns_lshl4_add_u32 {sKw}, {sKw}, {k*16384}") + g[0]
        g[-1][-1].tag = f"{kind}{i}"
        return g

    def v_loads(self, n): return self.item_loads("V", n)

    def plan(self):
        opt = self.opt
        lead1, lead2 = opt.get("lead1", 2), opt.get("lead2", 2)
        must = []
        for s in range(8): must += [("X", s, 2, 4, s, s + 1, lead1), ("W", s, 2, 4, s, s + 1, lead1)]
        for t in range(8): must += [("G", t, 2, 4, 8 + t, 9 + t, lead2), ("H", t, 1, 2, 8 + t, 9 + t, lead2)]
        b2 = opt.get("b2a", 10) if self.typ == "A" else opt.get("b2", 8)
        budget = {i: opt.get("b1", 8) if i < 8 else b2 for i in range(17)}
        budget[-1], budget[16] = 0, 99
        for k, v in self.budget_cut.items(): budget[k] -= v
        free_at = [-1] * 19
        self.blk, self.when = {}, {i: [] for i in range(-1, 17)}
        nv = 0
        for iv in range(-1, 17):
            left = budget[iv]
            def take(kind, i, nb, fr):
                fb = [b for b in range(19) if free_at[b] <= iv]
                if nb == 2: c = [b for b in fb if b % 2 == 0 and b + 1 in fb]
                elif kind == "V": c = sorted(fb, key=lambda b: (b != 18 and (b ^ 1) in fb, -b))
                else: c = sorted(fb, key=lambda b: (b != 18 and (b ^ 1) in fb, b))
                if not c: return False
                for x in range(nb): free_at[c[0] + x] = fr
                self.blk[(kind, i)] = c[0]
                self.when[iv].append((kind, i))
                return True
            while must and must[0][4] - must[0][6] <= iv:
                kind, i, nb, cost_, need, fr, _ = must[0]
                if not take(kind, i, nb, fr):
                    assert need - 1 > iv, (kind, i, iv)
                    break
                must.pop(0); left -= cost_
            owed = 3 * min(lead2 + 1, 16 - max(iv, 7)) if iv >= 7 else 4 * (lead1 + 1) + 1
            while left >= 2 and nv < 19 - owed and iv >= opt.get("v0", 6):
                if not take("V", nv, 1, 99): break
                nv += 1; left -= 2
        assert not must and nv == 19, (must, nv)
        for n in range(19, 36): self.blk[("V", n)] = self.blk[("V", n - 19)]

    @staticmethod
    def step(n):
        if n < 8: return 0, n, 8
        if n < 16: return 80, n - 8, 8
        if n < 24: return 48, n - 16, 8
        if n < 28: return 32, n - 24, 4
        return 112, n - 28, 8

    def areg(self, n, sr): return 160 + (n % 12) * 8 + sr * 4

    def a_loads(self, n):
        ks, j, mul = self.step(n)
        g = [L(f"buffer_load_dwordx4 {ar(self.areg(n, sr))}, {self.V(f'A{mul}{sr}')}, {srd(SW)}, {sAo} offen sc1") for sr in range(2)]
        if mul == 8:
            g[0] = L(f"s_add_u32 {sAo}, {sTab[j]}, {ks*1024}") + g[0]
        else:
            g[0] = L(f"s_and_b32 {sAo}, {sTab[j]}, 0xc00\ns_add_u32 {sAo}, {sAo}, {ks*1024}") + g[0]
        return g

    PARK0, PARK1 = 8, 17
    def parked(self, n): return self.opt.get("park", 1) and self.PARK0 <= n < self.PARK1

    def vfrag(self, n, sn):
        if self.parked(n): return "a", (n - self.PARK0) * 8 + sn * 4
        return "v", (64 if n % 2 == 0 else 80) + sn * 4

    def v_reads(self, n):
        base = self.blk[("V", n)] * 8192
        o = []
        for sn in range(2):
            k, b = self.vfrag(n, sn)
            for i in range(2):
                a, imm = self.lds(f"VR{sn}", base + i * 1024)
                o.append(L(f"ds_read_b64_tr_b16 {k}[{b+2*i}:{b+2*i+1}], {a} offset:{imm}"))
        return o

    def poll_issue(self, reg, addr, off, wide=False):
        if wide:
            return L(f"buffer_load_dwordx2 {vr(reg, 2)}, {addr}, {srd(SW)}, 0 offen offset:{off} sc1")
        return L(f"buffer_load_dword v{reg}, {addr}, {srd(SW)}, 0 offen offset:{off} sc1")

    def poll_check(self, reg, addr, off, wide=False):
        ok, again = self.lab("ok"), self.lab("again")
        tr = reg + 1 if wide else reg
        ld = self.poll_issue(reg, addr, off, wide)[0].text
        return L(f"""
        v_cmp_ne_u32 vcc, {sTag}, v{tr}
        s_cbranch_vccz {ok}
        {again}:
        @raw s_sleep 1
        @raw {ld}
        @raw s_add_u32 {sSpin}, {sSpin}, 1
        @raw s_waitcnt vmcnt(0)
        @raw v_cmp_ne_u32 vcc, {sTag}, v{tr}
        @raw s_cmp_lt_u32 {sSpin}, 0x8000
        @raw s_cbranch_scc0 {ok}
        @raw s_cbranch_vccnz {again}
        {ok}:
        """)

    def flag_store(self, soff, off, tags):
        return L(f"""
        @vm {' '.join(tags)}
        s_mov_b64 exec, 1
        buffer_store_dword {self.V('tag')}, off, {srd(SW)}, {soff} offset:{off} sc1
        s_mov_b64 exec, -1
        """)

    def gate_loads(self):
        x0, x1, gw = self.v("gx0", 4, True), self.v("gx1", 4, True), self.v("ggw", 4, True)
        return [L(f"""
        s_lshl_b32 {sOff}, {sGrow}, 10
        buffer_load_dwordx4 {vr(x0)}, {self.V('l16')}, {srd(SX)}, {sOff} offen
        buffer_load_dwordx4 {vr(x1)}, {self.V('l16')}, {srd(SX)}, {sOff} offen offset:1024
        buffer_load_dwordx4 {vr(gw)}, {self.V('l16')}, {srd(SGW)}, 0 offen
        """)]

    def gate_compute(self):
        x = [self.v("gx0", 4, True), self.v("gx1", 4, True)]; gw = self.v("ggw", 4, True)
        t = [self.V(f"t{i}") for i in range(8)]
        s = [self.v("gs", 2, True), self.v("gs") + 1]
        one = self.V("gone", True)
        o = L(f"v_mov_b32 {one}, 0x3f803f80\nv_mov_b32 v{s[0]}, 0\nv_mov_b32 v{s[1]}, 0")
        for d in range(4):
            o += L(f"v_lshlrev_b32 {t[0]}, 16, v{gw+d}\nv_and_b32 {t[1]}, 0xffff0000, v{gw+d}")
            for r in range(2):
                o += L(f"""
                v_lshlrev_b32 {t[2+2*r]}, 16, v{x[r]+d}
                v_and_b32 {t[3+2*r]}, 0xffff0000, v{x[r]+d}
                v_mul_f32 {t[2+2*r]}, {t[2+2*r]}, {t[0]}
                v_mul_f32 {t[3+2*r]}, {t[3+2*r]}, {t[1]}
                v_cvt_pk_bf16_f32 {t[2+2*r]}, {t[2+2*r]}, {t[3+2*r]}
                v_lshlrev_b32 {t[6]}, 16, {t[2+2*r]}
                v_and_b32 {t[7]}, 0xffff0000, {t[2+2*r]}
                v_add_f32 v{s[r]}, v{s[r]}, {t[6]}
                v_add_f32 v{s[r]}, v{s[r]}, {t[7]}
                """)
        dpp = "row_mask:0xf bank_mask:0xf"
        o += L(f"""
        v_permlane32_swap_b32 v{s[0]}, v{s[1]}
        v_add_f32 v{s[0]}, v{s[0]}, v{s[1]}
        v_add_f32_dpp v{s[0]}, v{s[0]}, v{s[0]} quad_perm:[1,0,3,2] {dpp}
        v_add_f32_dpp v{s[0]}, v{s[0]}, v{s[0]} quad_perm:[2,3,0,1] {dpp}
        v_add_f32_dpp v{s[0]}, v{s[0]}, v{s[0]} row_half_mirror {dpp}
        v_add_f32_dpp v{s[0]}, v{s[0]}, v{s[0]} row_mirror {dpp}
        v_mov_b32 v{s[1]}, v{s[0]}
        v_permlane16_swap_b32 v{s[0]}, v{s[1]}
        v_add_f32 v{s[0]}, v{s[0]}, v{s[1]}
        v_cvt_pk_bf16_f32 v{s[0]}, v{s[0]}, v{s[0]}
        v_and_b32 v{s[0]}, 0xffff0000, v{s[0]}
        v_mul_f32 v{s[0]}, {f32(-LOG2E)}, v{s[0]}
        v_exp_f32 v{s[0]}, v{s[0]}
        v_add_f32 v{s[0]}, 1.0, v{s[0]}
        v_rcp_f32 v{s[0]}, v{s[0]}
        v_cvt_pk_bf16_f32 v{s[0]}, v{s[0]}, v{s[0]}
        v_and_b32 v{s[0]}, 0xffff0000, v{s[0]}
        v_mov_b32 v{s[1]}, {sTag}
        v_lshlrev_b32 {t[0]}, 3, {self.V('hi')}
        s_lshl_b32 {sOff}, {sGrow}, 3
        s_add_u32 {sOff}, {sOff}, {WS_G}
        """)
        groups = [[i] for i in o]
        groups.append(L(f"""
        s_mov_b32 exec_lo, 1
        s_mov_b32 exec_hi, 1
        buffer_store_dwordx2 {vr(s[0], 2)}, {t[0]}, {srd(SW)}, {sOff} offen sc1
        s_mov_b64 exec, -1
        """))
        groups = groups[:-4] + [sum(groups[-4:], [])]
        return groups

    def gate_fetch(self):
        g0, g1 = self.v("g0", 2), self.v("g1", 2)
        return [self.poll_issue(g0, self.V("G"), 0, True), self.poll_issue(g1, self.V("G"), 256, True)]

    def gate_check(self):
        o = []
        for i, nm in enumerate(("g0", "g1")):
            g = self.v(nm)
            o.append(self.poll_check(g, self.V("G"), 256 * i, True))
            o += [[x] for x in L(f"""
            v_sub_f32 v{g+1}, 1.0, v{g}
            v_cvt_pk_bf16_f32 v{g+1}, v{g+1}, v{g+1}
            v_and_b32 v{g+1}, 0xffff0000, v{g+1}
            v_max_f32 v{g+1}, {f32(1e-30)}, v{g+1}
            v_rcp_f32 v{g+1}, v{g+1}
            """)]
        return o

    def gelu_tile(self, t, rg, soff, off, tag=None):
        a = ACC(t, rg)
        io = f"v{self.v('g%d' % rg) + 1}"
        T = [self.V(f"t{i}") for i in range(8)]
        o = []
        for h in range(2):
            js = range(4 * h, 4 * h + 4)
            for stage in (
                lambda j, x: f"v_mul_f32 {x}, v{a+j}, v{a+j}",
                lambda j, x: f"v_fmaak_f32 {x}, {x}, v{self.v('KK', 2) + 1}, {f32(K0)}",
                lambda j, x: f"v_mul_f32 {x}, {x}, v{a+j}",
                lambda j, x: f"v_exp_f32 {x}, {x}",
                lambda j, x: f"v_mul_f32 v{a+8+j}, v{a+8+j}, v{a+j}",
                lambda j, x: f"v_fma_f32 {x}, {x}, {io}, {io}",
                lambda j, x: f"v_rcp_f32 {x}, {x}",
                lambda j, x: f"v_mul_f32 v{a+8+j}, v{a+8+j}, {x}",
            ):
                o += [L(stage(j, T[j & 3])) for j in js]
            o += [L(f"v_cvt_pk_bf16_f32 v{a+d}, v{a+8+2*d}, v{a+9+2*d}") for d in (2 * h, 2 * h + 1)]
        o.append(L(f"buffer_store_dwordx4 {vr(a)}, {self.V('HS%d' % rg)}, {srd(SW)}, {soff} offen offset:{off} sc1", tag))
        return o

    def gelu_tile_pk(self, t, rg, soff, off, tag=None):
        a = ACC(t, rg)
        g = self.v("g%d" % rg)
        T = self.v("t0")
        kk = self.v("KK", 2)
        p = lambda r: f"v[{r}:{r+1}]"
        o = []
        for st in range(9):
            for q in range(4):
                x, gg, uu = T + 2 * q, a + 2 * q, a + 8 + 2 * q
                if st == 0: o.append(L(f"v_pk_mul_f32 {p(x)}, {p(gg)}, {p(gg)}"))
                if st == 1: o.append(L(f"v_pk_fma_f32 {p(x)}, {p(x)}, {p(kk)}, {p(kk)} op_sel:[0,1,0] op_sel_hi:[1,1,0]"))
                if st == 2: o.append(L(f"v_pk_mul_f32 {p(x)}, {p(x)}, {p(gg)}"))
                if st == 3: o += [L(f"v_exp_f32 v{x}, v{x}"), L(f"v_exp_f32 v{x+1}, v{x+1}")]
                if st == 4: o.append(L(f"v_pk_mul_f32 {p(uu)}, {p(uu)}, {p(gg)}"))
                if st == 5: o.append(L(f"v_pk_fma_f32 {p(x)}, {p(x)}, {p(g)}, {p(g)} op_sel:[0,1,1] op_sel_hi:[1,1,1]"))
                if st == 6: o += [L(f"v_rcp_f32 v{x}, v{x}"), L(f"v_rcp_f32 v{x+1}, v{x+1}")]
                if st == 7: o.append(L(f"v_pk_mul_f32 {p(uu)}, {p(uu)}, {p(x)}"))
                if st == 8: o.append(L(f"v_cvt_pk_bf16_f32 v{a+q}, v{uu}, v{uu+1}"))
        o.append(L(f"buffer_store_dwordx4 {vr(a)}, {self.V('HS%d' % rg)}, {srd(SW)}, {soff} offen offset:{off} sc1", tag))
        return o

    def phi_pack(self, src, dst):
        T = [self.V(f"t{i}") for i in range(8)]
        o = []
        for q in range(4):
            js = range(4 * q, 4 * q + 4)
            for stage in (
                lambda j, x: f"v_mul_f32 {x}, {f32(LOG2E)}, v{src+j}",
                lambda j, x: f"v_exp_f32_e64 {x}, {x} clamp",
                lambda j, x: f"v_max_f32 v{src+j}, {f32(1e-6)}, v{src+j}",
                lambda j, x: f"v_add_f32 {x}, {x}, v{src+j}",
            ):
                o += [L(stage(j, T[j & 3])) for j in js]
            o += [L(f"v_cvt_pk_bf16_f32 v{dst+2*q+d}, {T[2*d]}, {T[2*d+1]}") for d in range(2)]
        return o

    def plain_pack(self, src, dst):
        return [L(f"v_cvt_pk_bf16_f32 v{dst+d}, v{src+2*d}, v{src+2*d+1}") for d in range(8)]

    def build(self):
        A = self.typ == "A"
        opt = self.opt
        V = self.V
        self.prologue()
        self.kvi = opt.get("kvi", 15)
        self.budget_cut = {self.kvi: opt.get("kvn", 10), self.kvi + 1: 8} if A else {}
        self.touch2 = lambda k: touch2(self, k)
        self.plan()
        T = [self.v(f"t{i}") for i in range(8)]

        def trs(pat, off, dst, istep):
            r = []
            for i in range(2):
                a, imm = self.lds(pat, off + i * istep)
                r.append(L(f"ds_read_b64_tr_b16 v[{dst+2*i}:{dst+2*i+1}], {a} offset:{imm}"))
            return r

        def mfma(t, rg, wfr, n, swap):
            acc, xfr = vr(ACC(t, rg), 16), ar((n * 2 + rg) * 4)
            a, b = (xfr, wfr) if swap else (wfr, xfr)
            return L(f"v_mfma_f32_32x32x16_bf16 {acc}, {a}, {b}, {acc if n else 0}")

        units = []
        for m in range(16):
            s, half = m >> 1, m & 1
            xb, wbase = self.blk[("X", s)] * 8192, self.blk[("W", s)] * 8192
            wb = 64 if m % 2 == 0 else 80
            rd, mf = [], []
            for kk in range(2):
                k4 = half * 2 + kk
                n = s * 4 + k4
                xr = []
                for rg in range(2):
                    a, imm = self.lds(f"XR{k4}", xb + rg * 4096, True)
                    xr.append(L(f"ds_read_b128 {ar((n*2+rg)*4)}, {a} offset:{imm}"))
                w = [trs("Pl", wbase + t * 8192 + k4 * 2048, wb + kk * 8 + t * 4, 512) if A else
                     trs(f"M{t}", wbase + k4 * 2048, wb + kk * 8 + t * 4, 512) for t in range(2)]
                rd += [xr[0]] + w[0] + [xr[1]] + w[1]
                mf += [mfma(t, rg, vr(wb + kk * 8 + t * 4), n, A) for t in range(2) for rg in range(2)]
            units.append(([f"W{s}"] if half == 0 else None, rd, mf))
        for n in range(32):
            s, k4 = n >> 2, n & 3
            gb, hb = self.blk[("G", s)] * 8192, self.blk[("H", s)] * 8192
            wb = 64 if n % 2 == 0 else 80
            rd = trs("M0", gb + k4 * 2048, wb, 512) + trs("M1", gb + k4 * 2048, wb + 4, 512)
            rd += trs("Pl", hb + k4 * 2048, wb + 8, 512) if A else trs("Hf", hb + k4 * 1024, wb + 8, 256)
            mf = [mfma(t, rg, vr(wb + 4 * i), n, False) for i, t in enumerate((3, 4, 2)) for rg in range(2)]
            units.append(([f"H{s}"] if k4 == 0 else None, rd, mf))

        gaps, heads, ustart, syncgap = [], [], [], [0]
        for u, (sy, rd, mf) in enumerate(units):
            ustart.append(len(gaps))
            for i, m in enumerate(mf):
                heads.append((L("@lgkm0") if i == 0 else []) + m)
                gaps.append(Gap())
            g0 = ustart[u]
            if u + 1 < len(units):
                nsy, nrd, _ = units[u + 1]
                if nsy:
                    gaps[g0].pre += L(f"@sync {' '.join(nsy)}\ns_barrier")
                    syncgap.append(g0)
                span = len(mf) - (1 if len(nrd) <= 6 else 2)
                for i, r in enumerate(nrd):
                    gaps[g0 + min(span - 1, (i * span) // len(nrd))].ds += r
            else:
                gaps[g0].pre += L("@sync\ns_barrier")
                syncgap.append(g0)
        ustart.append(len(gaps))
        U = lambda n: ustart[16 + n]
        one = lambda ins: [[x] for x in ins]

        def loads_of(iv): return sum((self.item_loads(k, i) for k, i in self.when[iv]), [])
        pro = loads_of(-1)
        pro[8:8] = self.gate_loads()
        self.pro_loads = pro
        pa, pb = self.v("pa"), self.v("pb")
        extra = {iv: [] for iv in range(17)}
        extra[6] += self.gate_fetch()
        if A:
            gl = []
            for r in range(16):
                gl.append((L(f"s_movk_i32 {sAo}, {(r >> 2) * 4096}") if r % 4 == 0 else []) +
                          L(f"buffer_load_dwordx4 {vr(96+4*r)}, {V('KG')}, {srd(SW)}, {sAo} offen offset:{(r & 3)*1024} sc1"))
            Z = T if self.kvi + 2 <= 15 else list(range(80, 88))
            zl = [L(f"buffer_load_dword v{Z[i]}, {V('ZG')}, {srd(SW)}, 0 offen offset:{i*256} sc1") for i in range(8)]
            ng = opt.get("kvn", 10)
            extra[self.kvi] += gl[:ng]
            extra[self.kvi + 1] += gl[ng:]
            extra[self.kvi + 1 if self.kvi + 2 <= 15 else 16] += zl
        for iv in range(16):
            ld = extra[iv] + loads_of(iv)
            if ld: place_mem(gaps, ld, syncgap[iv] + 1, syncgap[iv + 1])
            t2 = opt.get("t2", 1)
            if 0 <= t2 <= iv < t2 + opt.get("t2n", 4):
                gaps[syncgap[iv + 1] - 1].va += self.touch2 (iv - t2)

        place_valu(gaps, self.gate_compute(), ustart[opt.get("gate0", 2)], ustart[opt.get("gate1", 8)])
        place_valu(gaps, self.gate_check(), ustart[14] + 1, ustart[16] - 1)

        cap = opt.get("cap", 12) / 2
        if not A:
            ep = []
            for t in range(2):
                for rg in range(2):
                    ep += self.gelu_tile(t, rg, sE, t * 1024, tag="Est")
            last, c = place_valu(gaps, ep, U(0) + 1, U(24), cap)
            gaps[last + opt.get("e_lag", 36)].va += self.flag_store(sFP, 0, ["Est"]) + self.stamp("Efl")
            self.note = f"E epilogue ends in unit {(last - U(0)) // 6} cap {c}"
        else:
            ones = 76
            ep = [L(f"v_mov_b32 v{ones+i}, 0x3f803f80") for i in range(4)]
            ep += self.phi_pack(ACC(0, 0), 96) + self.plain_pack(ACC(1, 0), 128)
            ep += self.phi_pack(ACC(0, 1), 104) + self.plain_pack(ACC(1, 1), 136)
            last, c = place_valu(gaps, ep, U(0) + 1, U(16), opt.get("kvcap", 12) / 2)
            for f in range(4):
                gaps[last + 1 + f].va += L(f"v_mfma_f32_32x32x16_bf16 v[112:127], {vr(96+4*f)}, {vr(128+4*f)}, {'v[112:127]' if f else 0}")
                gaps[last + 1 + f].va += L(f"v_mfma_f32_32x32x16_bf16 v[144:159], {vr(ones)}, {vr(96+4*f)}, {'v[144:159]' if f else 0}")
            ep = [L(f"v_cndmask_b32 v{112+i}, v{112+i}, v{120+i}, {sMH}") for i in range(8)]
            ep += [L(f"v_cndmask_b32 v{120+i}, v{112+i}, v{116+i}, {sMR}") for i in range(4)]
            ep += [L(f"v_cndmask_b32 v{124+i}, v{116+i}, v{112+i}, {sMR}") for i in range(4)]
            ep += one(L(f"v_lshrrev_b32 v92, 2, {V('XW')}\nv_add_u32 v92, {LDS_MISC + 4096 - LDS_MISC//4}, v92"))
            ep += [L(f"ds_write_b128 {V('XW')}, v[124:127]"), L(f"ds_write_b32 v92, v144"), L(f"v_xor_b32 v92, 0x200, v92")]
            last, c = place_valu(gaps, ep, last + 7, U(24), cap)
            sg = min(x for x in ustart if x > last)
            if sg not in syncgap: gaps[sg].pre += L("s_barrier")
            gaps[sg + 1].ds += L(f"ds_read_b128 v[124:127], {V('XRd')}\nds_read_b32 v145, v92")
            ep = [L(f"v_add_f32 v{120+i}, v{120+i}, v{124+i}") for i in range(4)]
            ep.append(L(f"v_add_f32 v144, v144, v145"))
            ep.append(L(f"buffer_store_dwordx4 v[120:123], {V('KG')}, {srd(SW)}, {sKPP} offen sc1"))
            last, c = place_valu(gaps, ep, sg + 6, U(28), cap)
            z = L(f"""
            s_mov_b32 exec_hi, 0
            buffer_store_dword v144, {V('ZG')}, {srd(SW)}, {sZPP} offen sc1
            s_mov_b32 exec_hi, -1
            """)
            z[1].tag = "KVst"
            gaps[last + 1].va += z
            fl = last + opt.get("kv_lag", 36)
            gaps[fl].va += self.flag_store(sKFP, 0, ["KVst"]) + self.stamp("KVfl")
            chk = syncgap[self.kvi]
            assert fl < chk - opt.get("kv_pl", 12)
            gaps[chk - opt.get("kv_pl", 12)].vm += self.poll_issue(pa, V("KF"), 0)
            gaps[chk].va += self.stamp("KVq") + self.poll_check(pa, V("KF"), 0) + self.stamp("KVok")
            self.note = f"kv flag in unit {(fl - U(0)) // 6}, check in unit {(chk - U(0)) // 6}"
            ep = []
            for st in (32, 16, 8, 4):
                if self.kvi + 2 <= 15: ep += [L(f"v_add_f32 v{96+i}, v{96+i}, v{96+st+i}") for i in range(st)]
                else: ep += [L(f"v_pk_add_f32 v[{96+i}:{97+i}], v[{96+i}:{97+i}], v[{96+st+i}:{97+st+i}]") for i in range(0, st, 2)]
            for st in (4, 2, 1):
                ep += [L(f"v_add_f32 v{Z[i]}, v{Z[i]}, v{Z[st+i]}") for i in range(st)]
            ep += one(L(f"""
            v_mov_b32 v{Z[1]}, v{Z[0]}
            v_cvt_pk_bf16_f32 v100, v96, v97
            v_cvt_pk_bf16_f32 v101, v98, v99
            v_permlane32_swap_b32 v{Z[0]}, v{Z[1]}
            v_add_f32 v{Z[0]}, v{Z[0]}, v{Z[1]}
            v_lshrrev_b32 v92, 1, {V('XW')}
            v_add_u32 v92, {LDS_MISC - LDS_MISC//2}, v92
            v_cvt_pk_bf16_f32 v{Z[0]}, v{Z[0]}, v{Z[0]}
            ds_write_b64 v92, v[100:101]
            ds_write_b16 {V('ZW')}, v{Z[0]}
            v_xor_b32 v92, 0x400, v92
            """))
            self.kv_reduce = ep
            if self.kvi + 2 <= 15:
                place_valu(gaps, ep, syncgap[self.kvi + 2] + opt.get("kv_rl", 1), syncgap[16], cap)
        gaps[U(opt.get("epoll", 29)) + 2].vm += self.poll_issue(pb, V("F"), 0)

        body = self.stamp("start")
        ph1 = self.stamp("issued") + L(f"@sync W0\ns_barrier") + self.stamp("sync0")
        for r in units[0][1]: ph1 += r
        for u in range(len(units)):
            for g in range(ustart[u], ustart[u + 1]):
                ph1 += heads[g]
                if g == ustart[u] and u and ((u < 16 and u % (4 if opt.get("fewp1") else 2) == 0) or (u >= 16 and u % 4 == 0)): ph1 += self.stamp(f"s{u//2}" if u < 16 else f"p{(u-16)//4}")
                ph1 += gaps[g].emit()
        ph1 += self.stamp("p1end")

        gt = self.gelu_tile_pk if opt.get("pk", 1) else self.gelu_tile
        main = []
        kvrd = [L(f"ds_read_b64 v[102:103], v92\nds_read_b128 v[108:111], {V('ZR')}")] if A else []
        if A and self.kvi + 2 <= 15: main += kvrd
        for t in range(2):
            for rg in range(2):
                main += gt(3 + t, rg, sL, t * 1024, tag="Lst")
                main[-1] += self.stamp(f"L{t}{rg}")
        nL = len(main)
        if not A:
            for rg in range(2): main += gt(2, rg, sEh, 0, tag="Lst")
        else:
            lfl = [self.flag_store(sFP, 256, ["Lst"]) + self.stamp("Lfl")]
            la = opt.get("lfa", 0)
            main += self.phi_pack(ACC(2, 0), 160)
            main[-1] += self.stamp("q0")
            if la == 0: main += lfl
            main += self.phi_pack(ACC(2, 1), 168)
            main[-1] += self.stamp("q1")
            if la == 1: main += lfl
            self.need_side = len(main)
            if self.kvi + 2 > 15:
                main += self.kv_reduce
                main[-1] += self.stamp("red")
                main += [L("@lgkm0\ns_barrier") + self.stamp("bar")] + kvrd
            if la == 2: main += lfl
            main += [[x] for x in L(f"""
            v_cndmask_b32 v104, v100, v102, {sMR}
            v_cndmask_b32 v105, v101, v103, {sMR}
            v_cndmask_b32 v106, v102, v100, {sMR}
            v_cndmask_b32 v107, v103, v101, {sMR}
            """)]
            for i in range(4):
                main += [L(f"v_cndmask_b32 v{176+i}, v{104+i}, v{108+i}, {sMH}"), L(f"v_cndmask_b32 v{180+i}, v{108+i}, v{104+i}, {sMH}")]
            for rg in range(2):
                for hh in range(2):
                    main.append(L(f"v_mfma_f32_32x32x16_bf16 {vr(192 + (rg*2+hh)*16, 16)}, {vr(176+4*hh)}, {vr(160 + rg*8 + hh*4)}, 0"))
            dens = []
            for rg in range(2):
                for hh in range(2):
                    b = 192 + (rg * 2 + hh) * 16
                    dens.append((rg, hh, b, b + 8) if hh == 0 else (rg, hh, b + 8, b))
            main += [L(f"v_add_f32 v{d}, {f32(1e-6)}, v{d}") for _, _, _, d in dens]
            main += [L(f"v_rcp_f32 v{d}, v{d}") for _, _, _, d in dens]
            main += [L(f"v_mul_f32 v{d}, v{d}, v{self.v('g%d' % rg)}") for rg, _, _, d in dens]
            for rg, hh, num, den in dens:
                main += [L(f"v_pk_mul_f32 v[{num+j}:{num+j+1}], v[{num+j}:{num+j+1}], v[{den}:{den+1}] op_sel_hi:[1,0]") for j in range(0, 8, 2)]
                d = 160 + (rg * 2 + hh) * 4
                main += [L(f"v_cvt_pk_bf16_f32 v{d+j}, v{num+2*j}, v{num+2*j+1}") for j in range(4)]
                main.append(L(f"buffer_store_dwordx4 {vr(d)}, {V('HS%d' % rg)}, {srd(SW)}, {sO} offen offset:{hh*1024} sc1", "Ost"))
        slots = [list(g) for g in main]
        side = list(extra[16])
        side.append(self.stamp("Eq") + self.poll_check(pb, V("F"), 0) + self.stamp("Eok"))
        for n in range(8): side += self.a_loads(n)
        side += loads_of(16)
        pend_v = [n for n in range(19, 36) if self.parked(n - 19)]
        parks = [n for n in range(36) if self.parked(n)]
        if parks:
            for n in parks:
                side.append(L(f"@vm V{n}") + sum(self.v_reads(n), []))
                if n > parks[0]: side += [L("@lgkm 4")] + self.v_loads(pend_v.pop(0))
            side += [L("@lgkm0")] + self.v_loads(pend_v.pop(0))
        every = (opt.get("midea", 60) if A else opt.get("mide", 60)) / 4.0
        acc, k = opt.get("mid0", 0) / 4.0, 0
        for j, (sl, g) in enumerate(zip(slots, main)):
            if A and j == self.need_side - 1:
                while k < len(extra[16]): sl += side[k]; k += 1
            acc += sum(2 if x.kind == "valu" and x.op.startswith(TRANS) else 1 for x in g)
            if any(x.kind == "vmem" for x in g): acc -= every
            while k < len(side) and acc >= every:
                sl += side[k]
                if any(x.kind == "vmem" for x in side[k]): acc -= every
                k += 1
        rest = side[k:]
        self.note += f"; mid takes {k} of {len(side)} side groups"
        mid = sum(slots, []) + self.stamp("mid")
        nA = max([j + 1 for j, g in enumerate(rest) if any("a[" in x.text and x.kind == "vmem" for x in g)], default=0)
        mid += sum(rest[:nA], [])
        rest = rest[nA:]
        mid += L("@vm V0")
        for r in self.v_reads(0): mid += r

        DA = opt.get("da", 4)
        ph2 = []
        for n in range(36):
            mf = []
            for sr in range(2):
                for sn in range(2):
                    k, b = self.vfrag(n, sn)
                    acc = vr(96 + (sr * 2 + sn) * 16, 16)
                    mf.append(L(f"v_mfma_f32_32x32x16_bf16 {acc}, {k}[{b}:{b+3}], {ar(self.areg(n, sr))}, {acc if n else 0}"))
            g = [[] for _ in range(4)]
            if n + 1 < 36 and not self.parked(n + 1):
                g[0] += L(f"@vm V{n+1}")
                rd = self.v_reads(n + 1)
                g[0] += rd[0] + rd[1]; g[1] += rd[2] + rd[3]
            vl = []
            if n + 19 < 36 and not self.parked(n): vl += self.v_loads(n + 19)
            if n < 8:
                rest = rest + vl
                take = -(-len(rest) // (8 - n))
                vl = rest[:take]
                rest = rest[take:]
            for i, x in enumerate(vl): g[min(3, 1 + i * 3 // len(vl))] += x
            if n == opt.get("lflag_at", 5):
                g[3] += (self.flag_store(sFP, 384, ["Ost"]) if A else self.flag_store(sFP, 128, ["Lst"])) + self.stamp("fl")
            m = n + (DA if n >= 8 else 0)
            for first, off in ((8, 256), (16, 128), (28, 384)):
                at = max(first - DA, 7)
                if n == at - (opt.get("pl8", 3) if first == 8 else opt.get("pl", 3)): g[3] += self.poll_issue(pa, V("F"), off)
                if n == at: g[2] += self.stamp(f"q{first}") + self.poll_check(pa, V("F"), off) + self.stamp(f"k{first}")
            if n == 7:
                for mm in range(8, 8 + DA): g[3] += sum(self.a_loads(mm), [])
            if n >= 8 and n + DA < 36: g[3] += sum(self.a_loads(n + DA), [])
            ph2 += L("@lgkm0")
            for i in range(4):
                ph2 += mf[i]
                if i == 0 and n % 4 == 0: ph2 += self.stamp(f"u{n}")
                ph2 += g[i]
        assert not pend_v and not rest
        ph2 += self.stamp("ph2end")

        fin = []
        T = [self.v(f"t{i}") for i in range(8)]
        for sg in range(1, 4):
            fin += L(f"v_xor_b32 v{T[sg]}, {sg*2048}, {V('RW')}")
        for sg in range(1, 4):
            for q in range(4):
                fin += L(f"ds_write_b128 {V('RW')}, {vr(96 + sg*16 + q*4)} offset:{((sg-1)*2 + (q >> 1))*8192 + (q & 1)*1024}")
        fin += L("@lgkm0\ns_barrier") + self.stamp("redbar")
        for q in range(4):
            for sg in range(1, 4):
                fin += L(f"ds_read_b128 {vr(96 + sg*16 + q*4)}, v{T[sg]} offset:{((sg-1)*2 + (q >> 1))*8192 + (q & 1)*1024}")
        of = opt.get("oflags", "")
        for pr in range(2):
            for q in (2 * pr, 2 * pr + 1):
                for h in range(2):
                    r = 96 + q * 4 + 2 * h
                    fin += L(f"""
                    v_pk_add_f32 v[{r}:{r+1}], v[{r}:{r+1}], v[{r+16}:{r+17}]
                    v_pk_add_f32 v[{r+32}:{r+33}], v[{r+32}:{r+33}], v[{r+48}:{r+49}]
                    v_pk_add_f32 v[{r}:{r+1}], v[{r}:{r+1}], v[{r+32}:{r+33}]
                    """)
            d = 160 + pr * 4
            for i in range(4):
                r = 96 + pr * 8 + 2 * i
                fin += L(f"v_cvt_pk_bf16_f32 v{d+i}, v{r}, v{r+1}")
            fin += L(f"""
            v_permlane32_swap_b32 v{d}, v{d+2}
            v_permlane32_swap_b32 v{d+1}, v{d+3}
            buffer_store_dwordx4 {vr(d)}, {V('OUT')}, {srd(SOUT)}, 0 offen offset:{pr*32} {of}
            """)
        skip = self.lab("noep")
        fin += L(f"""
        s_or_b32 {sT0}, s2, {sW}
        s_cmp_lg_u32 {sT0}, 0
        s_cbranch_scc1 {skip}
        s_mov_b64 exec, 1
        @raw buffer_store_dword {V('tag')}, off, {srd(SW)}, 0 offset:{WS_EPOCH} sc1
        {skip}:
        """)
        if opt.get("padto"):
            lp = self.lab("pad")
            if "xstamp" in opt:
                fin += L("@lgkm0\ns_mov_b32 s3, s84")
            fin += L(f"""
            {lp}:
            @raw s_memrealtime s[82:83]
            @raw s_waitcnt lgkmcnt(0)
            @raw s_sub_u32 s82, s82, s3
            @raw s_cmp_lt_u32 s82, {opt['padto']}
            @raw s_cbranch_scc1 {lp}
            """)
        if opt.get("stamps"):
            st = V("stamps")
            fin += L("s_mov_b64 exec, -1") + self.stamp("stored") + L("@vm0") + self.stamp("end") + self.stamp("FLUSH")
            fin += L(f"""
            s_memrealtime s[86:87]
            v_writelane_b32 {st}, s6, 60
            v_writelane_b32 {st}, {sSpin}, 61
            v_writelane_b32 {st}, s3, 62
            v_writelane_b32 {st}, s86, 63
            s_lshl_b32 {sT0}, s2, 2
            s_add_u32 {sT0}, {sT0}, {sW}
            s_lshl_b32 {sT0}, {sT0}, 8
            s_add_u32 {sT0}, {sT0}, {WS_STAMP}
            v_mbcnt_lo_u32_b32 v96, -1, 0
            v_mbcnt_hi_u32_b32 v96, -1, v96
            v_lshlrev_b32 v96, 2, v96
            buffer_store_dword {st}, v96, {srd(SW)}, {sT0} offen
            """)
        fin += L("s_endpgm")

        pf = []
        fin += L(f"L_end{self.typ}:")
        head = pf + self.first + L("@lgkm0") + L(f"s_load_dword {sTag}, s[{SW}:{SW+1}], {WS_EPOCH}") + body
        n0 = opt.get("n0", 9)
        loads = self.pro_loads
        head += sum(loads[:n0], []) + self.second + self.setup + sum(loads[n0:], [])
        if opt.get("t2", 1) == -3: head += touch2(self, 0, False)
        head += L(f"s_add_u32 {sTag}, {sTag}, 0x9e3779b9\nv_mov_b32 {V('tag')}, {sTag}")
        return self.expand_stamps(head + ph1 + mid + ph2 + fin)


def touch(sr, mask, code, dst, raw=False):
    p = "@raw " if raw else ""
    return L(f"{code}\ns_mov_b64 exec, {mask}\n{p}buffer_load_dword v{dst}, v246, {srd(sr)}, {sOff} offen")


def rowhalf(stride, nbytes, c0):
    return (f"s_lshr_b32 {sOff}, {sGW}, 1\ns_mul_i32 {sOff}, {sOff}, {stride}\ns_and_b32 {sT0}, {sGW}, 1\n"
            f"s_mul_i32 {sT0}, {sT0}, {nbytes}\ns_add_u32 {sOff}, {sOff}, {sT0}" + (f"\ns_add_u32 {sOff}, {sOff}, {c0}" if c0 else ""))


def touch2(g, k, cond=True):
    skip = g.lab("t2") if cond else None
    n = g.opt.get("t2n", 4) if cond else 1
    o = L(f"s_and_b32 {sT0}, {sSel}, {n-1}\ns_cmp_lg_u32 {sT0}, {k}\ns_cbranch_scc1 {skip}") if cond else []
    o += touch(SG, "0x3ff", rowhalf(3584, 1280, 1024), 250, cond) + L(("@raw " if cond else "") + f"buffer_load_dword v249, v246, {srd(SU)}, {sOff} offen")
    o += touch(SQ, "15", rowhalf(3072, 512, 0), 248, cond)
    o += touch(SO, "15", f"s_lshl_b32 {sOff}, {sGW}, 9", 247, cond)
    o += touch(SD, "0x3fff", f"s_mul_i32 {sOff}, {sGW}, 1792", 245, cond)
    o += L("s_mov_b64 exec, -1")
    if cond: o += L(f"{skip}:")
    return o


def common_head(opt):
    o = L("""
    s_cmp_ge_u32 s2, 0x100
    s_cbranch_scc1 L_end
    """)
    for b, slot in ((SX, 0), (SG, 4), (SU, 5), (SQ, 1), (SGW, 7), (SW, 10), (SD, 6), (SO, 2), (SOUT, 8)):
        o += L(f"s_load_dwordx2 s[{b}:{b+1}], s[0:1], {slot*8}")
    if opt.get("stamps") or opt.get("padto"):
        o += L(("s_memrealtime" if opt.get("rt") else "s_memtime") + " s[6:7]\ns_memrealtime s[4:5]")
    if opt.get("codepf", 1):
        o += L(f"""
        s_getpc_b64 s[86:87]
        L_pc:
        s_bitcmp1_b32 s2, 6
        s_cselect_b32 {sT0}, L_pathB-L_pc, 0
        v_lshl_add_u32 v1, v0, 7, {sT0}
        v_min_u32 v1, L_endB-L_pc-4, v1
        global_load_dword v255, v1, s[86:87]
        """)
    o += L(f"""
    v_lshrrev_b32 v1, 6, v0
    v_and_b32 v246, 63, v0
    s_and_b32 {sT0}, s2, 1
    v_readfirstlane_b32 {sW}, v1
    s_lshl_b32 {sGW}, {sT0}, 2
    s_bfe_u32 {sT0}, s2, 0x20001
    s_add_u32 {sGW}, {sGW}, {sT0}
    s_lshl_b32 {sGW}, {sGW}, 5
    s_lshr_b32 {sT0}, s2, 3
    s_add_u32 {sGW}, {sGW}, {sT0}
    s_lshl_b32 {sGW}, {sGW}, 2
    s_add_u32 {sGW}, {sGW}, {sW}
    v_lshlrev_b32 v246, 7, v246
    """)
    for b, n in ((SX, 2048 * 1024), (SQ, 512 * 3072), (SG, 512 * 3584), (SU, 512 * 3584), (SD, 1792 * 1024),
                 (SO, 512 * 1024), (SW, WS_BYTES), (SOUT, 2048 * 1024), (SGW, 1024)):
        o += L(f"s_mov_b32 s{b+2}, {n}\ns_mov_b32 s{b+3}, 0x20000")
    if opt.get("stamps") or opt.get("padto"):
        o += L("s_mov_b32 s3, s4")
    if opt.get("t1", 1):
        o += touch(SX, "0xffff", f"s_lshl_b32 {sOff}, {sGW}, 11", 254)
        o += touch(SQ, "0xff", rowhalf(3072, 1024, 1024), 253)
        o += touch(SG, "15", rowhalf(3584, 512, 0), 252) + L(f"buffer_load_dword v251, v246, {srd(SU)}, {sOff} offen")
        o += L("s_mov_b64 exec, -1")
    if opt.get("t2", 1) == -2:
        o += touch2(None, 0, False)
    o += L("""
    s_bitcmp1_b32 s2, 6
    s_cbranch_scc1 L_pathB
    """)
    return o


def assemble_sizes(txt):
    import subprocess, tempfile, os
    d = tempfile.mkdtemp()
    open(d + "/a.s", "w").write('.amdgcn_target "amdgcn-amd-amdhsa--gfx950"\n.text\nk:\n' + txt)
    subprocess.run(["clang", "-x", "assembler", "-target", "amdgcn-amd-amdhsa", "-mcpu=gfx950", "-c", d + "/a.s", "-o", d + "/a.o"], check=True)
    o = subprocess.run(["llvm-objdump", "-d", "--mcpu=gfx950", d + "/a.o"], capture_output=True, text=True).stdout
    sizes = [4 * len(re.match(r".*// [0-9A-F]+: ((?:[0-9A-F]{8} ?)+)", l).group(1).split()) for l in o.split("\n") if re.match(r".*// [0-9A-F]+: [0-9A-F]{8}", l)]
    return sizes


def generate(opt):
    head = common_head(opt)
    parts = []
    info = []
    names = []
    for typ in "AB":
        g = Gen(typ, opt)
        ins, added = finalize(head + g.build())
        k = next(i for i, x in enumerate(ins) if x.text.startswith("s_cbranch_scc1 L_pathB"))
        parts.append((ins[:k + 1], ins[k + 1:]))
        info.append((typ, len(ins), added, g.nv, g.hi_next))
        if opt.get("plan"):
            print(typ, g.note)
            for k, v in g.when.items(): print("  ", k, " ".join(f"{a}{b}@{g.blk[(a, b)]}" for a, b in v))
        names.append("; stamps " + typ + ": " + " ".join(g.stamp_names) + "\n" if g.stamp_names else "")
    assert text_of(parts[0][0]) == text_of(parts[1][0])
    txt = text_of(parts[0][0]) + text_of(parts[0][1]) + "L_pathB:\n" + text_of(parts[1][1]) + "L_end:\n    s_endpgm\n"
    if opt.get("align", 1):
        txt, nw, nn = align8(txt, assemble_sizes)
        info.append(("align", nw, nn))
    ref = open("gated_mix__linear_attn_block__geglu_ffn__prompt.s.ref").read()
    hdr = "".join(l + "\n" for l in ref.split("\n") if l.startswith(";") and "@launch" not in l and "Override" not in l and "grid=ceil" not in l)
    out = f"""{hdr}{"".join(names)}; @launch grid=(256,1,1) block=(256,1,1) lds=163840
.amdgcn_target "amdgcn-amd-amdhsa--gfx950"
.text
.globl {KNAME}
.p2align 8
.type {KNAME},@function
{KNAME}:
{txt}.section .rodata,"a"
.p2align 6
.amdhsa_kernel {KNAME}
  .amdhsa_next_free_vgpr 512
  .amdhsa_next_free_sgpr 102
  .amdhsa_accum_offset 256
  .amdhsa_group_segment_fixed_size 0
  .amdhsa_kernarg_size 88
  .amdhsa_user_sgpr_count 2
  .amdhsa_user_sgpr_kernarg_segment_ptr 1
  .amdhsa_system_sgpr_workgroup_id_x 1
  .amdhsa_float_denorm_mode_32 3
.end_amdhsa_kernel
"""
    return out, info


def parse_opts(args):
    opt = {}
    for a in args:
        k, v = a.split("=", 1)
        try: v = int(v)
        except ValueError: v = v.replace("+", " ")
        opt[k] = v
    return opt


if __name__ == "__main__":
    out, info = generate(parse_opts(sys.argv[2:]))
    open(sys.argv[1], "w").write(out)
    print(info)
```

```python
import re

REG_RE = re.compile(r"^(-|\|)?(abs\()?([vas])(\d+)\)?\|?$")
RNG_RE = re.compile(r"^(-)?([vas])\[(\d+):(\d+)\]$")
TRANS = ("v_exp_f32", "v_log_f32", "v_rcp_f32", "v_rsq_f32", "v_sqrt_f32", "v_sin_f32", "v_cos_f32")


def regs_of(tok):
    tok = tok.strip()
    m = RNG_RE.match(tok)
    if m:
        return [(m.group(2), i) for i in range(int(m.group(3)), int(m.group(4)) + 1)]
    m = REG_RE.match(tok)
    if m:
        return [(m.group(3), int(m.group(4)))]
    if tok == "vcc":
        return [("s", "vcc")]
    if tok == "exec":
        return [("s", "exec")]
    if tok == "m0":
        return [("s", "m0")]
    return []


class I:
    __slots__ = ("text", "op", "kind", "rd", "wr", "tag", "srcC", "srcAB", "passes", "lds", "data")

    def __init__(self, text, tag=None):
        self.text = text
        self.tag = tag
        self.rd, self.wr, self.srcC, self.srcAB, self.data = [], [], [], [], []
        self.passes = 0
        self.lds = False
        t = text.strip()
        if t.startswith("@") or t.endswith(":") or t.startswith(";") or t.startswith("."):
            self.op, self.kind = t, ("pseudo" if t.startswith("@") else "label")
            return
        parts = t.split(None, 1)
        op = parts[0]
        self.op = op
        rest = parts[1] if len(parts) > 1 else ""
        ops, depth, cur = [], 0, ""
        for ch in rest:
            if ch in "[(":
                depth += 1
            if ch in "])":
                depth -= 1
            if ch == "," and depth == 0:
                ops.append(cur.strip()); cur = ""
            else:
                cur += ch
        if cur.strip():
            ops.append(cur.strip())
        mods = ""
        if ops:
            last = ops[-1].split(None, 1)
            ops[-1] = last[0]
            mods = last[1] if len(last) > 1 else ""
        R = [regs_of(o) for o in ops]
        flat = lambda l: [x for y in l for x in y]
        if op.startswith("v_mfma"):
            self.kind = "mfma"
            self.wr = R[0]; self.srcAB = R[1] + R[2]; self.srcC = R[3]; self.rd = self.srcAB + self.srcC
            self.passes = 8 if "32x32x16" in op else 4
        elif op.startswith("v_"):
            self.kind = "valu"
            if op.startswith("v_permlane") and "swap" in op:
                self.wr = R[0] + R[1]; self.rd = R[0] + R[1]
            elif op.startswith(("v_fmac", "v_dot2c", "v_writelane")):
                self.wr = R[0]; self.rd = flat(R)
            elif op.startswith(("v_add_co", "v_sub_co", "v_addc_co")):
                self.wr = R[0] + R[1]; self.rd = flat(R[2:])
            elif op == "v_nop":
                pass
            else:
                self.wr = R[0]; self.rd = flat(R[1:])
            if "dpp" in op:
                self.rd = self.rd + R[0]
        elif op.startswith("ds_"):
            self.kind = "ds"
            if op.startswith("ds_read") or op.startswith("ds_bpermute"):
                self.wr = R[0]; self.rd = flat(R[1:])
            else:
                self.rd = flat(R)
        elif op.startswith(("buffer_", "global_")):
            self.kind = "vmem"
            if re.search(r"\blds\b", mods):
                self.lds = True
                self.rd = flat(R) + [("s", "m0")]
            elif "_load" in op:
                self.wr = R[0]; self.rd = flat(R[1:])
            else:
                self.rd = flat(R)
                if "x4" in op or "x3" in op:
                    self.data = R[0] if op.startswith("buffer_") else R[1]
        elif op.startswith(("s_load", "s_memtime", "s_memrealtime")):
            self.kind = "smem"
            self.wr = R[0]; self.rd = flat(R[1:])
        elif op.startswith("s_"):
            self.kind = "salu"
            if op.startswith(("s_cmp", "s_bitcmp")):
                self.rd = flat(R)
            elif op.startswith(("s_waitcnt", "s_barrier", "s_nop", "s_branch", "s_cbranch", "s_sleep", "s_endpgm", "s_setprio")):
                pass
            elif "saveexec" in op:
                self.wr = R[0] + [("s", "exec")]; self.rd = flat(R[1:])
            else:
                self.wr = R[0]; self.rd = flat(R[1:])
        else:
            raise ValueError(text)

    def states(self):
        if self.kind in ("pseudo", "label"):
            return 0
        if self.op == "s_nop":
            return int(self.text.split()[1]) + 1
        return 1


def L(text, tag=None):
    out = [I(l.strip()) for l in text.split("\n") if l.strip()]
    if tag is not None:
        out[-1].tag = tag
    return out


def resolve_waits(ins):
    out = []
    vm_n = 0
    vm_done = 0
    lg_n = 0
    lg_done = 0
    smem_out = False
    pend = {}
    tags = {}
    dtags = {}

    def wait(vm=None, lg=None):
        nonlocal vm_done, lg_done, smem_out
        s = []
        if vm is not None and vm > vm_done:
            n = vm_n - vm
            if n < 63:
                s.append(f"vmcnt({n})")
            vm_done = vm
        if lg is not None:
            if lg == "all":
                if smem_out or lg_done < lg_n:
                    s.append("lgkmcnt(0)")
                lg_done = lg_n; smem_out = False
                for r in [r for r, v in pend.items() if v[0] == "sm"]: del pend[r]
            elif lg > lg_done:
                n = lg_n - lg
                if smem_out:
                    n = 0; lg = lg_n; smem_out = False
                    for r in [r for r, v in pend.items() if v[0] == "sm"]: del pend[r]
                if n < 15:
                    s.append(f"lgkmcnt({n})")
                lg_done = lg
        if s:
            out.append(I("s_waitcnt " + " ".join(s)))

    for x in ins:
        if x.kind == "pseudo":
            p = x.text.split()
            if p[0] == "@vm":
                wait(vm=max(tags[t] for t in p[1:]))
            elif p[0] == "@sync":
                wait(vm=max([tags[t] for t in p[1:]], default=None), lg="all")
            elif p[0] == "@rd":
                wait(lg=dtags["R" + p[1]])
            elif p[0] == "@lgkm":
                wait(lg=lg_n - int(p[1]))
            elif p[0] == "@lgkm0":
                wait(lg="all")
            elif p[0] == "@vm0":
                wait(vm=vm_n)
            elif p[0] == "@raw":
                out.append(I(x.text[5:]))
            else:
                raise ValueError(x.text)
            continue
        needvm, needlg = None, None
        for r in x.rd + x.wr:
            if r in pend:
                k, i = pend[r]
                if k == "vm":
                    if i > vm_done: needvm = max(needvm or 0, i)
                elif k == "lg":
                    if i > lg_done and needlg != "all": needlg = max(needlg or 0, i)
                elif smem_out:
                    needlg = "all"
                del pend[r]
        if needvm is not None or needlg is not None:
            wait(vm=needvm, lg=needlg)
        out.append(x)
        if x.kind == "vmem":
            vm_n += 1
            for r in x.wr: pend[r] = ("vm", vm_n)
            if x.tag: tags[x.tag] = vm_n
        elif x.kind == "ds":
            lg_n += 1
            if x.tag: dtags[x.tag] = lg_n
            for r in x.wr: pend[r] = ("lg", lg_n)
        elif x.kind == "smem":
            smem_out = True
            for r in x.wr: pend[r] = ("sm", 0)
    return out


def need_states(p, c):
    n = 0
    pw, cr, cw = set(p.wr), set(c.rd), set(c.wr)
    vec = lambda s: {r for r in s if r[0] in "va"}
    sca = lambda s: {r for r in s if r[0] == "s"}
    if p.kind == "valu":
        if c.kind == "mfma" and vec(pw) & cr: n = max(n, 2)
        if c.kind == "vmem" and sca(pw) & cr: n = max(n, 5)
        if c.kind == "valu":
            if sca(pw) & cr: n = max(n, 4 if c.op.startswith(("v_readlane", "v_writelane")) else 2)
            if vec(pw) & cr:
                if c.op.startswith(("v_readlane", "v_readfirstlane")): n = max(n, 1)
                if c.op.startswith("v_permlane") or "dpp" in c.op: n = max(n, 2)
                if p.op.startswith(TRANS) and not c.op.startswith(TRANS): n = max(n, 1)
    elif p.kind == "mfma":
        big = p.passes == 8
        if c.kind == "mfma":
            if pw & set(c.srcAB): n = max(n, 12 if big else 8)
            if pw & set(c.srcC):
                if not (p.wr == c.srcC and p.passes == c.passes): n = max(n, 10 if big else 6)
            elif pw & cw:
                n = max(n, 10 if big else 6)
        elif c.kind in ("valu", "vmem", "ds"):
            if pw & (cr | cw): n = max(n, 12 if big else 8)
            if c.kind == "valu" and set(p.srcC) & cw: n = max(n, 7 if big else 3)
    elif p.kind == "salu":
        if ("s", "m0") in pw and c.kind == "vmem" and c.lds: n = max(n, 1)
    elif p.kind == "vmem":
        if p.data and set(p.data) & cw: n = max(n, 2)
    return n


def pad_hazards(ins):
    out = []
    added = 0
    for c in ins:
        if c.kind not in ("pseudo", "label"):
            dist, need = 0, 0
            for p in reversed(out):
                if dist >= 20: break
                if p.kind not in ("pseudo", "label"):
                    k = need_states(p, c) - dist
                    if k > need: need = k
                dist += p.states()
            if need > 0:
                out.append(I(f"s_nop {need-1}")); added += need
        out.append(c)
    return out, added


def finalize(ins):
    a = resolve_waits(ins)
    b, added = pad_hazards(a)
    return b, added


def text_of(ins):
    return "\n".join((x.text if x.kind == "label" else "    " + x.text) for x in ins) + "\n"


def weave(slots, side, lo=0, hi=None):
    hi = len(slots) if hi is None else hi
    n = hi - lo
    tot = sum(len(g) for g in side)
    acc = 0
    for g in side:
        k = lo + min(n - 1, (acc * n) // max(tot, 1))
        slots[k].extend(g)
        acc += len(g)


def cost(x):
    if x.kind in ("pseudo", "label"): return 0.5 if x.text.startswith(("@vm", "@sync", "@lgkm")) else 0
    if x.kind == "vmem": return 2.5
    if x.kind == "mfma": return 8
    if x.kind == "valu" and x.op.startswith(TRANS): return 2
    return 1


class Gap:
    def __init__(self):
        self.pre, self.sa, self.ds, self.vm, self.va = [], [], [], [], []
    def used(self):
        return sum(map(cost, self.pre + self.ds + self.vm + self.va)) + max(0, len(self.sa) - (0 if self.pre else 1))
    def emit(self):
        return self.pre + self.sa + self.ds + self.vm + self.va


def place_mem(gaps, groups, lo, hi):
    n, prev = len(groups), lo - 1
    for i, g in enumerate(groups):
        p = lo + (i * (hi - lo)) // n
        pre, ld = g[:-1], g[-1:]
        if p == prev:
            gaps[p].vm += pre + ld
            continue
        q = p
        for x in reversed(pre):
            gaps[q].sa.insert(0, x)
            if q - 1 > prev: q -= 1
        gaps[p].vm += ld
        prev = p


def place_valu(gaps, groups, lo, hi, cap=6.0):
    def kind(g):
        k = {x.kind for x in g if x.kind != "pseudo"}
        if k <= {"ds"}: return "ds"
        if "vmem" in k and k <= {"vmem", "salu"}: return "vm"
        return "va"
    while True:
        used = [g.used() for g in gaps]
        plan, p, ok = [], lo, True
        fresh = True
        for g in groups:
            c, k = sum(map(cost, g)), kind(g)
            if k != "va":
                if not fresh: p += 1
                fresh = True
            else:
                while p < hi and used[p] + c > cap and not (c > cap and used[p] <= 2): p += 1; fresh = True
                fresh = False
            if p >= hi: ok = False; break
            used[p] += c
            plan.append((p, k, g))
        if ok: break
        cap += 0.5
    for p, k, g in plan:
        getattr(gaps[p], k).extend(g)
    return plan[-1][0], cap


def align8(text, assemble):
    lines = text.split("\n")
    sizes = assemble(text)
    idx = [i for i, l in enumerate(lines) if l.startswith("    ") and l.strip() and not l.strip().startswith((".", ";"))]
    assert len(idx) == len(sizes), (len(idx), len(sizes))
    off, cand, out_nop, widened = 0, None, set(), 0
    wide_ok = re.compile(r"^v_(mul|add|sub|max|min)_f32 |^v_(exp|rcp)_f32 |^v_mov_b32 |^v_(and|or|xor|lshlrev|lshrrev)_b32 |^v_add_u32 ")
    for k, i in enumerate(idx):
        sz, t = sizes[k], lines[i].strip()
        if sz == 4:
            if off % 8 == 0: cand = None
            if wide_ok.match(t): cand = i
        elif off % 8 == 4:
            if cand is not None:
                op, rest = lines[cand].strip().split(None, 1)
                lines[cand] = f"    {op}_e64 {rest}"
                off += 4; widened += 1
            else:
                run = 0
                while k + run < len(idx) and sizes[k + run] == 8 and "mfma" not in lines[idx[k + run]]: run += 1
                if run >= 6:
                    out_nop.add(i); off += 4
            cand = None
        else:
            cand = None
        off += sz
    res = []
    for i, l in enumerate(lines):
        if i in out_nop: res.append("    s_nop 0")
        res.append(l)
    return "\n".join(res), widened, len(out_nop)
```

```python
import sys, struct, re
from prog import *

KNAME = "gated_mix__linear_attn_block__geglu_ffn__prompt_kernel"

WS_EPOCH = 0
WS_FL = 0x1000
WS_KF = 0x12000
WS_G = 0x14000
WS_ZP = 0x18000
WS_KP = 0x28000
WS_PF = 0xB0000
WS_PD = 0xC00000
WS_H = 0x100000
WS_STAMP = 0x8000000
RG_BYTES = 144 * 1024
WS_BYTES = 268435456

def f32(x): return "0x%08x" % struct.unpack("<I", struct.pack("<f", x))[0]
LOG2E = 1.4426950408889634
K0 = -2.0 * 0.7978845608028654 * LOG2E
K1 = K0 * 0.044715

SX, SQ, SG, SU, SD, SO, SW, SOUT, SGW = 8, 12, 16, 20, 24, 28, 32, 36, 40
srd = lambda b: f"s[{b}:{b+3}]"
(sW, sRH, sJ, sR, sT, sTag, sR2, sC2, sT0, sT1, sT2, sRot, sKx, sKw, sKq, sL4, sL2, sL1, sCE, sCH, sCL,
 sE, sEh, sL, sO, sFP, sKFP, sKPP, sZPP, sA0, sA1, sSpin, sGrow, sOff) = [f"s{i}" for i in range(44, 78)]
sAo = sA0
sMH = "s[78:79]"
sMR = "s[80:81]"
sPC = "s[4:5]"
STAMP0 = 82
sGW = "s92"
sTab = [f"s{i}" for i in range(93, 101)]
sSel = "s101"
sStr = sCL
sOb = [sTab[6], sTab[7], sRot, sKx]
sPF = sKq
S1, S2 = 84, 88

ACC = lambda t, rg: 96 + (t * 2 + rg) * 16
vr = lambda b, n=4: f"v[{b}:{b+n-1}]"
ar = lambda b, n=4: f"a[{b}:{b+n-1}]"
LDS_MISC = 19 * 8192


def hoist_m0(groups):
    out = [list(g) for g in groups]
    for i in range(1, len(out)):
        if len(out[i]) == 2 and out[i][0].text.startswith("s_add_u32 m0") and out[i - 1][-1].kind == "vmem":
            out[i - 1].append(out[i].pop(0))
    return out


class Gen:
    def __init__(self, typ, opt):
        self.typ = typ
        self.opt = opt
        self.nv = 1
        self.names = {}
        self.setup = []
        self.hi_next = 192
        self.nstamp = 0
        self.nlab = 0

    def v(self, name, n=1, p1only=False):
        if name not in self.names:
            if p1only:
                if n > 1: self.hi_next = (self.hi_next + 1) // 2 * 2
                self.names[name] = self.hi_next; self.hi_next += n
                assert self.hi_next <= 256
            else:
                if n > 1: self.nv = (self.nv + 1) // 2 * 2
                self.names[name] = self.nv; self.nv += n
                assert self.nv <= 64, name
        return self.names[name]

    def V(self, name, p1only=False): return f"v{self.v(name, 1, p1only)}"

    def lab(self, s):
        self.nlab += 1
        return f"L_{self.typ}_{s}_{self.nlab}"

    def stamp(self, name):
        if "xstamp" in self.opt:
            return L("s_memrealtime s[4:5]") if name == self.opt["xstamp"] else []
        if not self.opt.get("stamps"): return []
        if self.opt.get("coarse") and name not in ("start", "sync0", "s4", "p0", "p4", "p1end", "mid", "k8", "u8", "sent", "k28", "uo", "ua", "pfl", "kp", "ph2end", "end", "FLUSH"): return []
        return [I("@stamp " + name)]

    def expand_stamps(self, ins):
        out, n = [], 0
        self.stamp_names = []
        lines = mf = 0
        half = {f"v{self.names.get('Hg', -1)},", f"v{self.names.get('Hu', -1)},"}
        for x in ins:
            if x.kind == "vmem":
                lines += (16 if x.text.split()[1] in half else 8) if "x4" in x.op else 2
            if x.kind == "mfma": mf += 1
            if x.kind == "pseudo" and x.text.startswith("@stamp"):
                i = (STAMP0, 4)[n % 2]
                if n: out += L(f"v_writelane_b32 {self.V('stamps')}, s{(STAMP0, 4)[(n-1) % 2]}, {n-1}")
                nm = x.text.split()[1]
                if nm != "FLUSH":
                    out += L(f"{'s_memrealtime' if self.opt.get('rt') else 's_memtime'} s[{i}:{i+1}]")
                    self.stamp_names.append(f"{nm}:{lines}:{mf}")
                    n += 1
                    assert n <= 60, n
            else:
                out.append(x)
        return out

    def lds(self, pat, off, p1only=False):
        win, imm = off >> 16, off & 0xFFFF
        if win == 0:
            return self.V(pat, p1only), imm
        name = f"{pat}@{win}"
        if name not in self.names:
            self.setup += L(f"v_add_u32 {self.V(name, p1only)}, {win << 16}, {self.V(pat, p1only)}")
        return self.V(name), imm

    def prologue(self):
        A = self.typ == "A"
        V = self.V
        self.nv = 2
        t = [self.V(f"t{i}") for i in range(8)]
        l, l3, l7, l4, nh, wsw = [self.V(n, True) for n in ("lane", "l3", "l7", "l4", "nh", "wsw")]
        P = lambda n: self.V(n, True)
        self.first = L(f"""
        v_lshrrev_b32 {t[0]}, 6, v0
        v_and_b32 {l}, 63, v0
        s_and_b32 {sT0}, s2, 1
        v_readfirstlane_b32 {sW}, {t[0]}
        s_bfe_u32 {sT2}, s2, 0x30003
        s_lshl3_add_u32 {sR}, {sT0}, {sT2}
        s_bfe_u32 {sT1}, s2, 0x20001
        s_lshr_b32 {sOff}, s2, 7
        s_lshl1_add_u32 {sT}, {sT1}, {sOff}
        s_lshl2_add_u32 {sGW}, {sT0}, {sT1}
        s_lshl_b32 {sGW}, {sGW}, 5
        s_lshr_b32 {sOff}, s2, 3
        s_add_u32 {sGW}, {sGW}, {sOff}
        s_lshl2_add_u32 {sGW}, {sGW}, {sW}
        v_lshrrev_b32 {l3}, 3, {l}
        v_and_b32 {l7}, 7, {l}
        v_lshrrev_b32 {l4}, 4, {l}
        v_lshlrev_b32 v246, 7, {l}
        s_lshl2_add_u32 {sT0}, {sR}, {sW}
        s_lshl_b32 {sT0}, {sT0}, 15
        v_xor_b32 {t[0]}, {l7}, {l4}
        v_lshlrev_b32 {t[0]}, 4, {t[0]}
        v_lshl_add_u32 {t[0]}, {l3}, 10, {t[0]}
        v_add_u32 {P('X0')}, {sT0}, {t[0]}
        v_xor_b32 {t[1]}, 64, {P('X0')}
        v_add_u32 {P('X1')}, {8192-1024}, {t[1]}
        v_add_u32 {P('X2')}, {16384-2048}, {P('X0')}
        v_add_u32 {P('X3')}, {16384-2048}, {P('X1')}
        v_and_b32 {nh}, 1, {l4}
        v_lshlrev_b32 {t[0]}, 2, {nh}
        v_xor_b32 {t[0]}, {t[0]}, {l7}
        v_lshlrev_b32 {wsw}, 4, {t[0]}
        s_lshl_b32 {sCE}, {sT}, 7
        s_bitcmp1_b32 s2, 6
        s_cselect_b32 {sStr}, 7, 6
        s_cselect_b32 {sT1}, 0, 1024
        s_cselect_b32 {sT2}, 32, 0
        s_cselect_b32 {sGrow}, 8, 0
        s_lshl_b32 s{S1+2}, {sStr}, 18
        s_lshl_b32 {sStr}, {sStr}, 9
        s_mov_b32 s{S2+2}, s{S1+2}
        s_mov_b32 s{S1+3}, 0x20000
        s_mov_b32 s{S2+3}, 0x20000
        v_lshl_add_u32 {P('kr')}, {sW}, 4, {l3}
        v_add_u32 {P('wc')}, {sCE}, {wsw}
        v_mad_u32_u24 {t[0]}, {P('kr')}, {sStr}, {P('wc')}
        v_add_u32 {P('W1')}, {sT1}, {t[0]}
        v_add_u32 {t[1]}, {sT1}, {P('W1')}
        v_xor_b32 {P('W2')}, {sT2}, {t[1]}
        s_lshl3_add_u32 {sT1}, {sStr}, -1024
        v_add_u32 {P('W11')}, {sT1}, {P('W1')}
        v_add_u32 {P('W21')}, {sT1}, {P('W2')}
        s_lshl_b32 {sStr}, {sStr}, 6
        s_lshl_b32 {sL4}, {sW}, 12
        s_lshl_b32 {sL2}, {sW}, 11
        s_add_u32 {sGrow}, {sGrow}, {sT}
        s_lshl4_add_u32 {sGrow}, {sR}, {sGrow}
        s_lshl2_add_u32 {sGrow}, {sGrow}, {sW}
        s_lshl_b32 {sGrow}, {sGrow}, 1
        v_lshlrev_b32 {P('l16')}, 4, {l}
        """)
        hi, r4, c3, l31 = [P(n) for n in ("hi", "r4", "c3", "l31")]
        o = L(f"""
        s_and_b32 {sT0}, s2, 7
        s_lshr_b32 {sT1}, s2, 3
        s_and_b32 {sT2}, {sT1}, 7
        s_lshr_b32 {sRH}, {sW}, 1
        s_and_b32 {sJ}, {sW}, 1
        s_and_b32 {sSel}, {sT1}, 3
        s_lshl_b32 {sL1}, {sW}, 10
        v_lshrrev_b32 {hi}, 5, {l}
        v_bfe_u32 {r4}, {l}, 2, 2
        v_and_b32 {c3}, 3, {l}
        v_and_b32 {l31}, 31, {l}
        """)
        o += L(f"""
        s_lshr_b32 {sR2}, {sT}, 1
        s_lshr_b32 {sC2}, s2, 6
        """)
        o += L(f"""
        v_mul_u32_u24 {t[1]}, 3584, {P('kr')}
        v_add_u32 {V('Wg')}, {t[1]}, {P('wc')}
        v_xor_b32 {V('Wu')}, 32, {V('Wg')}
        v_add_u32 {V('Wg1')}, {8*3584-1024}, {V('Wg')}
        v_add_u32 {V('Wu1')}, {8*3584-1024}, {V('Wu')}
        """)
        if A:
            o += L(f"""
            v_add_u32 {V('Wq')}, -1024, {P('W1')}
            v_add_u32 {V('Wq1')}, -1024, {P('W11')}
            """)
        else:
            o += L(f"""
            v_lshrrev_b32 {t[0]}, 2, {l}
            v_lshl_add_u32 {t[0]}, {sW}, 4, {t[0]}
            v_mul_u32_u24 {t[1]}, 3584, {t[0]}
            v_lshl_add_u32 {t[1]}, {c3}, 4, {t[1]}
            s_lshl_b32 {sCH}, {sT}, 6
            v_add_u32 {V('Hg')}, {sCH}, {t[1]}
            v_xor_b32 {V('Hu')}, 32, {V('Hg')}
            """)
        self.v("gx0", 4, True); self.v("gx1", 4, True); self.v("ggw", 4, True)
        o += L(f"""
        v_bfe_u32 {t[0]}, {l}, 1, 3
        v_xor_b32 {t[0]}, {t[0]}, {hi}
        v_lshlrev_b32 {t[0]}, 4, {t[0]}
        v_lshl_add_u32 {t[0]}, {l31}, 7, {t[0]}
        s_lshl_b32 {sT0}, {sRH}, 13
        v_add_u32 {V('XR0', True)}, {sT0}, {t[0]}
        v_xor_b32 {V('XR1', True)}, 32, {V('XR0')}
        v_xor_b32 {V('XR2', True)}, 64, {V('XR0')}
        v_xor_b32 {V('XR3', True)}, 0x60, {V('XR0')}
        v_and_b32 {t[0]}, 2, {r4}
        v_xor_b32 {t[0]}, {t[0]}, {nh}
        s_lshl_b32 {sT0}, {sJ}, 1
        v_xor_b32 {t[0]}, {sT0}, {t[0]}
        v_lshlrev_b32 {t[0]}, 5, {t[0]}
        v_lshl_add_u32 {t[0]}, {c3}, 3, {t[0]}
        v_lshl_add_u32 {t[1]}, {hi}, 3, {r4}
        v_lshl_add_u32 {t[2]}, {t[1]}, 7, {t[0]}
        v_lshl_add_u32 {V('M0')}, {nh}, 13, {t[2]}
        v_xor_b32 {V('M1')}, 32, {V('M0')}
        v_lshlrev_b32 {t[4]}, 3, {c3}
        v_lshl_add_u32 {t[4]}, {nh}, 5, {t[4]}
        v_xor_b32 {t[3]}, {sR2}, {r4}
        v_lshl_add_u32 {t[3]}, {t[3]}, 6, {t[4]}
        v_lshl_add_u32 {t[3]}, {r4}, 8, {t[3]}
        v_lshl_add_u32 {V('VR0')}, {hi}, 11, {t[3]}
        v_lshl_add_u32 {t[3]}, {hi}, 2, {r4}
        v_lshl_add_u32 {V('WO')}, {t[3]}, 6, {t[4]}
        """)
        if A:
            o += L(f"v_mov_b32 {V('Pl')}, {t[2]}")
        else:
            o += L(f"""
            v_xor_b32 {t[0]}, {sJ}, {nh}
            v_lshlrev_b32 {t[0]}, 5, {t[0]}
            v_lshl_add_u32 {t[0]}, {c3}, 3, {t[0]}
            v_lshl_add_u32 {t[0]}, {t[1]}, 6, {t[0]}
            v_lshl_add_u32 {V('Hf')}, {nh}, 12, {t[0]}
            """)
        o += L(f"""
        v_lshlrev_b32 {t[0]}, 2, {l4}
        v_and_b32 {t[1]}, 15, {l}
        v_xor_b32 {t[0]}, {t[0]}, {t[1]}
        v_lshlrev_b32 {t[0]}, 4, {t[0]}
        v_lshl_add_u32 {t[0]}, {l4}, 10, {t[0]}
        s_lshl_b32 {sT0}, {sC2}, 8
        s_add_u32 {sT1}, {sT0}, {sL4}
        v_add_u32 {V('Vd')}, {sT1}, {t[0]}
        v_add_u32 {V('Vd1')}, {16384-1024}, {V('Vd')}
        v_lshrrev_b32 {t[0]}, 2, {l}
        v_lshlrev_b32 {t[0]}, 10, {t[0]}
        v_lshl_add_u32 {t[0]}, {c3}, 4, {t[0]}
        s_lshl_b32 {sT1}, {sR2}, 6
        s_add_u32 {sT0}, {sT0}, {sT1}
        s_lshl_b32 {sT1}, {sW}, 15
        s_add_u32 {sT1}, {sT1}, {sT0}
        v_add_u32 {V('Vo')}, {sT1}, {t[0]}
        v_add_u32 {V('Vo1')}, {16384-1024}, {V('Vo')}
        s_lshl2_add_u32 {sT1}, {sR}, {sW}
        s_lshl_b32 {sT2}, {sT1}, 15
        s_add_u32 {sT2}, {sT2}, {sT0}
        v_lshlrev_b32 {t[0]}, 4, {hi}
        v_lshl_add_u32 {t[0]}, {l31}, 10, {t[0]}
        v_add_u32 {V('OUT')}, {sT2}, {t[0]}
        s_mul_i32 {sT1}, {sT1}, {RG_BYTES}
        s_add_u32 {sT1}, {sT1}, {WS_H}
        v_add_u32 {V('AH')}, {sT1}, {V('l16')}
        s_lshl2_add_u32 {sT0}, {sR}, {sC2}
        s_lshl2_add_u32 {sT0}, {sT0}, {sW}
        s_lshl_b32 {sT1}, {sT0}, 15
        s_add_u32 {sT1}, {sT1}, {WS_PD}
        v_add_u32 {V('PS')}, {sT1}, {V('l16')}
        s_lshl_b32 {sT1}, {sT0}, 7
        s_add_u32 {sT1}, {sT1}, {WS_PF}
        v_lshlrev_b32 {t[5]}, 2, {c3}
        v_add_u32 {V('PF')}, {sT1}, {t[5]}
        s_lshl2_add_u32 {sPF}, {sR2}, {sT1}
        s_lshl_b32 {sT0}, {sR}, 1
        s_add_u32 {sT0}, {sT0}, {sRH}
        s_mul_i32 {sT1}, {sT0}, {2*RG_BYTES}
        s_add_u32 {sT1}, {sT1}, {WS_H}
        v_add_u32 {V('HS0')}, {sT1}, {V('l16')}
        v_add_u32 {V('HS1')}, {RG_BYTES}, {V('HS0')}
        s_lshl_b32 {sT1}, {sT0}, 9
        s_add_u32 {sT1}, {sT1}, {WS_G}
        v_lshlrev_b32 {t[0]}, 3, {l31}
        v_add_u32 {V('G', True)}, {sT1}, {t[0]}
        s_lshl_b32 {sT0}, {sT0}, 2
        s_lshr_b32 {sT1}, {sT}, 1
        s_add_u32 {sT0}, {sT0}, {sT1}
        s_lshl_b32 {sT0}, {sT0}, 9
        s_and_b32 {sT1}, {sT}, 1
        s_lshl_b32 {sT1}, {sT1}, 1
        s_add_u32 {sT1}, {sT1}, {sJ}
        s_lshl_b32 {sT1}, {sT1}, 2
        s_add_u32 {sT0}, {sT0}, {sT1}
        s_add_u32 {sFP}, {sT0}, {WS_FL}
        s_lshl1_add_u32 {sT0}, {sR}, {sRH}
        s_lshl_b32 {sT0}, {sT0}, 11
        s_add_u32 {sT0}, {sT0}, {WS_FL}
        v_lshl_add_u32 {t[0]}, {r4}, 9, {t[5]}
        v_add_u32 {V('FO')}, {sT0}, {t[0]}
        s_lshl_b32 {sT1}, {sR2}, 9
        s_add_u32 {sT0}, {sT0}, {sT1}
        v_add_u32 {V('F')}, {sT0}, {t[5]}
        s_lshl_b32 {sT0}, {sT}, 2
        s_lshl_b32 {sT1}, {sJ}, 1
        s_add_u32 {sT0}, {sT0}, {sT1}
        s_lshl_b32 {sE}, {sT0}, 10
        s_add_u32 {sL}, {sE}, {(80 if A else 48)*1024}
        v_mov_b32 v{self.v('KK', 2)}, {f32(K0)}
        v_mov_b32 v{self.v('KK', 2) + 1}, {f32(K1)}
        """)
        if A:
            o += L(f"""
            s_add_u32 {sO}, {sE}, {112*1024}
            s_add_u32 {sT0}, {sT0}, {sRH}
            s_lshl_b32 {sT1}, {sT0}, 7
            s_add_u32 {sT1}, {sT1}, {WS_KF}
            s_lshl_b32 {sT2}, {sR}, 2
            s_add_u32 {sKFP}, {sT1}, {sT2}
            v_and_b32 {t[0]}, 15, {l}
            v_lshlrev_b32 {t[0]}, 2, {t[0]}
            v_add_u32 {V('KF')}, {sT1}, {t[0]}
            s_lshl_b32 {sT1}, {sT0}, 14
            s_add_u32 {sT1}, {sT1}, {WS_KP}
            v_add_u32 {V('KG')}, {sT1}, {V('l16')}
            s_lshl_b32 {sKPP}, {sR}, 10
            s_lshl_b32 {sT1}, {sT0}, 11
            s_add_u32 {sT1}, {sT1}, {WS_ZP}
            v_lshlrev_b32 {t[0]}, 2, {l}
            v_add_u32 {V('ZG')}, {sT1}, {t[0]}
            s_lshl_b32 {sZPP}, {sR}, 7
            s_mov_b32 s78, 0xffff0000
            s_mov_b32 s79, 0xffff0000
            s_sub_u32 s80, 0, {sRH}
            s_mov_b32 s81, s80
            v_lshlrev_b32 {t[0]}, 4, {hi}
            v_xor_b32 {t[1]}, 1, {nh}
            v_lshl_add_u32 {t[0]}, {t[1]}, 5, {t[0]}
            s_lshl_b32 {sT1}, {sW}, 6
            s_add_u32 {sT1}, {sT1}, {LDS_MISC + 7168}
            v_add_u32 {V('ZR')}, {sT1}, {t[0]}
            v_bfe_u32 {t[0]}, {l}, 3, 1
            v_lshl_add_u32 {t[0]}, {t[0]}, 2, {c3}
            v_lshlrev_b32 {t[0]}, 1, {t[0]}
            v_and_b32 {t[1]}, 1, {r4}
            v_lshl_add_u32 {t[0]}, {t[1]}, 4, {t[0]}
            v_lshl_add_u32 {t[0]}, {nh}, 5, {t[0]}
            v_add_u32 {V('ZW')}, {sT1}, {t[0]}
            s_add_u32 {sT1}, {sL1}, {LDS_MISC}
            v_add_u32 {V('XW')}, {sT1}, {V('l16')}
            v_xor_b32 {V('XRd')}, 0x800, {V('XW')}
            """)
        else:
            o += L(f"""
            s_lshl_b32 {sT0}, {sT}, 1
            s_add_u32 {sT0}, {sT0}, {sJ}
            s_add_u32 {sT0}, {sT0}, 32
            s_lshl_b32 {sEh}, {sT0}, 10
            """)
        o += L(f"s_mov_b32 {sSpin}, 0")
        if self.opt.get("rot2", 0):
            o += L(f"s_add_u32 {sT0}, {sC2}, {sR}\ns_lshl_b32 {sT0}, {sT0}, 1\ns_mov_b32 {sT2}, {sC2}")
        else:
            o += L(f"s_mov_b32 {sT0}, 0\ns_mov_b32 {sT2}, 0")
        for i in range(4):
            o += L(f"s_add_u32 {sT1}, {sT0}, {2*i}\ns_and_b32 {sT1}, {sT1}, 7\ns_lshl3_add_u32 {sT1}, {sR2}, {sT1}\ns_lshl_b32 {sTab[i]}, {sT1}, 10")
        for i in range(2):
            o += L(f"s_add_u32 {sT1}, {sT0}, {2*i}\ns_and_b32 {sT1}, {sT1}, 3\ns_lshl2_add_u32 {sT1}, {sR2}, {sT1}\ns_lshl_b32 {sTab[4+i]}, {sT1}, 10")
        for i in range(4):
            o += L(f"s_add_u32 {sT1}, {sT2}, {i}\ns_and_b32 {sT1}, {sT1}, 3\ns_lshl_b32 {sOb[i]}, {sT1}, 13")
        self.second = o

    def dma(self, s, vreg, soff, m0=None, off=0, flags=""):
        o = L(f"s_add_u32 m0, {m0[0]}, {m0[1]}") if m0 else []
        return o + L(f"buffer_load_dwordx4 {vreg}, {srd(s)}, {soff} offen offset:{off} {flags} lds")

    def item_loads(self, kind, i):
        A = self.typ == "A"
        V = self.V
        base = self.blk[(kind, i)] * 8192
        wf = self.opt.get("wflags", ""); xf = self.opt.get("xflags", ""); vf = self.opt.get("vflags", "")
        so = lambda c: L(f"s_mov_b32 {sKw}, {i*c[0] + c[1]}")
        def two(sr, nm, c, b):
            return [(so(c) if c is not None else []) + self.dma(sr, V(nm), sKw, (sL2, b), 0, wf), self.dma(sr, V(nm + "1"), sKw, None, 1024, wf)]
        kq, kw = 64 * 3072, 64 * 3584
        if kind == "X":
            g = [self.dma(SX, V(f"X{jj}"), sKw, None if jj else (sL4, base), jj * 1024, xf) for jj in range(4)]
            g[0] = so((128, 0)) + g[0]
        elif kind == "W":
            g = two(S1, "W1", None, base) + two(S2, "W2", None, base + 8192)
            g[0] = L(f"s_mul_i32 {sKw}, {sStr}, {i}") + g[0]
        elif kind == "G":
            g = two(SG, "Wg", (kw, 2560 if A else 1536), base) + two(SU, "Wu", None, base + 8192)
        elif kind == "H":
            g = two(SQ, "Wq", (kq, 0), base) if A else [so((kw, 1024)) + self.dma(SG, V("Hg"), sKw, (sL1, base), 0, wf), self.dma(SU, V("Hu"), sKw, (sL1, base + 4096), 0, wf)]
        elif i < 14:
            ks, tab = self.step(2 * i)
            g = [L(f"s_lshl4_add_u32 {sKw}, {tab}, {ks*16384}") + self.dma(SD, V("Vd"), sKw, (sL2, base), 0, vf), self.dma(SD, V("Vd1"), sKw, None, 1024, vf)]
        else:
            g = [L(f"s_lshl_b32 {sKw}, {sOb[i-14]}, 4") + self.dma(SO, V("Vo"), sKw, (sL2, base), 0, vf), self.dma(SO, V("Vo1"), sKw, None, 1024, vf)]
        g[-1][-1].tag = f"{kind}{i}"
        return g

    def v_loads(self, n): return self.item_loads("V", n)

    def plan(self):
        opt = self.opt
        lead1, lead2 = opt.get("lead1", 2), opt.get("lead2", 2)
        must = []
        for s in range(8): must += [("X", s, 2, 4, s, s + 1, lead1), ("W", s, 2, 4, s, s + 1, lead1)]
        for t in range(8):
            must.append(("G", t, 2, 4, 8 + t, 9 + t, lead2 if t < 5 else opt.get("lead3", 2)))
            if t < 4: must += [("H", 2 * t + i, 1, 2, 8 + t, 9 + t, lead2) for i in range(2)]
        b2 = opt.get("b2a", 12) if self.typ == "A" else opt.get("b2", 10)
        budget = {i: opt.get("b1", 8) if i < 8 else b2 for i in range(17)}
        budget[-1], budget[16] = 0, 99
        for i in (12, 13, 14, 15): budget[i] = opt.get("b3", 6)
        for k, v in self.budget_cut.items(): budget[k] -= v
        free_at = [-1] * 19
        self.blk, self.when = {}, {i: [] for i in range(-1, 17)}
        nv = 0
        for iv in range(-1, 16):
            left = budget[iv]
            def take(kind, i, nb, fr):
                fb = [b for b in range(19) if free_at[b] <= iv]
                if nb == 2: c = [b for b in fb if b % 2 == 0 and b + 1 in fb]
                elif kind == "V": c = sorted(fb, key=lambda b: (b != 18 and (b ^ 1) in fb, -b))
                else: c = sorted(fb, key=lambda b: (b != 18 and (b ^ 1) in fb, b))
                if not c: return False
                for x in range(nb): free_at[c[0] + x] = fr
                self.blk[(kind, i)] = c[0]
                self.when[iv].append((kind, i))
                return True
            while must and must[0][4] - must[0][6] <= iv:
                kind, i, nb, cost_, need, fr, _ = must[0]
                if not take(kind, i, nb, fr):
                    assert need - 1 > iv, (kind, i, iv)
                    break
                must.pop(0); left -= cost_
            live = lambda j: sum(4 if st < 12 else 2 for st in range(max(j, 0), min(16, j + lead2 + 1)))
            owed = max(live(j) for j in range(iv, 17)) + (1 if iv < 10 else 0)
            while left >= 2 and nv < min(18, opt.get("vmax", 18)) and nv < 19 - owed and iv >= opt.get("v0", 6):
                if not take("V", nv, 1, 99): break
                nv += 1; left -= 2
        assert not must
        self.cover = max(i for iv in range(15) for k, i in self.when[iv] if k == "V")
        assert self.cover >= 3
        fb = [b for b in range(19) if free_at[b] <= 16]
        while nv < 18:
            self.blk[("V", nv)] = fb.pop(0)
            self.when[16].append(("V", nv)); nv += 1

    @staticmethod
    def step(n):
        if n < 8: return 0, sTab[n >> 1]
        if n < 16: return 80, sTab[(n - 8) >> 1]
        if n < 24: return 48, sTab[(n - 16) >> 1]
        return 32, sTab[4 + ((n - 24) >> 1)]

    def a_load(self, n):
        if n < 28:
            ks, tab = self.step(n)
            pre = L(f"s_add_u32 {sAo}, {tab}, {ks*1024}") if n % 2 == 0 else []
            off = (n & 1) * 1024
        else:
            p = n - 28
            pre = L(f"s_add_u32 {sAo}, {sOb[p >> 3]}, {(112 + (p & 7))*1024}") if p % 4 == 0 else []
            off = (p & 3) * 1024
        return pre + L(f"buffer_load_dwordx4 {ar(4*n)}, {self.V('AH')}, {srd(SW)}, {sAo} offen offset:{off} sc1")

    def late(self, pat, off):
        win, imm = off >> 16, off & 0xFFFF
        name = f"{pat}@{win}"
        if name in ("VR0@0", "WO@0"): return self.V(pat), imm
        if name not in self.late_regs:
            r = self.late_regs[name] = 224 + len(self.late_regs)
            assert r < 248
            if win == 0:
                self.late_setup += L(f"v_xor_b32 v{r}, {int(pat[2:]) * 64}, {self.V('VR0')}")
            else:
                b, _ = self.late(pat, 0)
                self.late_setup += L(f"v_add_u32 v{r}, {win << 16}, {b}")
        return f"v{self.late_regs[name]}", imm

    def w_reads(self, n, sg, dst):
        o = []
        for i in range(2):
            if n < 28: a, imm = self.late(f"VR{sg}", self.blk[("V", n >> 1)] * 8192 + (n & 1) * 1024 + i * 4096)
            else: a, imm = self.late("WO", self.blk[("V", 14 + ((n - 28) >> 3))] * 8192 + ((n - 28) & 7) * 1024 + i * 512)
            o.append(L(f"ds_read_b64_tr_b16 v[{dst+2*i}:{dst+2*i+1}], {a} offset:{imm}"))
        return o

    def poll_issue(self, reg, addr, off, wide=False):
        if wide:
            return L(f"buffer_load_dwordx2 {vr(reg, 2)}, {addr}, {srd(SW)}, 0 offen offset:{off} sc1")
        return L(f"buffer_load_dword v{reg}, {addr}, {srd(SW)}, 0 offen offset:{off} sc1")

    def poll_check(self, reg, addr, off, wide=False):
        ok, again = self.lab("ok"), self.lab("again")
        tr = reg + 1 if wide else reg
        ld = self.poll_issue(reg, addr, off, wide)[0].text
        return L(f"""
        v_cmp_ne_u32 vcc, {sTag}, v{tr}
        s_cbranch_vccz {ok}
        {again}:
        {'@raw s_sleep 1' if self.opt.get('slp', 0) else ''}
        @raw {ld}
        @raw s_add_u32 {sSpin}, {sSpin}, 1
        @raw s_waitcnt vmcnt(0)
        @raw v_cmp_ne_u32 vcc, {sTag}, v{tr}
        @raw s_cmp_lt_u32 {sSpin}, 0x8000
        @raw s_cbranch_scc0 {ok}
        @raw s_cbranch_vccnz {again}
        {ok}:
        """)

    def flag_store(self, soff, off, tags):
        return L(f"""
        @vm {' '.join(tags)}
        s_mov_b64 exec, 1
        buffer_store_dword {self.V('tag')}, off, {srd(SW)}, {soff} offset:{off} sc1
        s_mov_b64 exec, -1
        """)

    def gate_loads(self):
        x0, x1, gw = self.v("gx0", 4, True), self.v("gx1", 4, True), self.v("ggw", 4, True)
        return [L(f"""
        s_lshl_b32 {sOff}, {sGrow}, 10
        buffer_load_dwordx4 {vr(x0)}, {self.V('l16')}, {srd(SX)}, {sOff} offen
        buffer_load_dwordx4 {vr(x1)}, {self.V('l16')}, {srd(SX)}, {sOff} offen offset:1024
        buffer_load_dwordx4 {vr(gw)}, {self.V('l16')}, {srd(SGW)}, 0 offen
        """)]

    def gate_compute(self):
        x = [self.v("gx0", 4, True), self.v("gx1", 4, True)]; gw = self.v("ggw", 4, True)
        t = [self.V(f"t{i}") for i in range(8)]
        s = [self.v("gs", 2, True), self.v("gs") + 1]
        one = self.V("gone", True)
        o = L(f"v_mov_b32 {one}, 0x3f803f80\nv_mov_b32 v{s[0]}, 0\nv_mov_b32 v{s[1]}, 0")
        for d in range(4):
            o += L(f"v_lshlrev_b32 {t[0]}, 16, v{gw+d}\nv_and_b32 {t[1]}, 0xffff0000, v{gw+d}")
            for r in range(2):
                o += L(f"""
                v_lshlrev_b32 {t[2+2*r]}, 16, v{x[r]+d}
                v_and_b32 {t[3+2*r]}, 0xffff0000, v{x[r]+d}
                v_mul_f32 {t[2+2*r]}, {t[2+2*r]}, {t[0]}
                v_mul_f32 {t[3+2*r]}, {t[3+2*r]}, {t[1]}
                v_cvt_pk_bf16_f32 {t[2+2*r]}, {t[2+2*r]}, {t[3+2*r]}
                v_lshlrev_b32 {t[6]}, 16, {t[2+2*r]}
                v_and_b32 {t[7]}, 0xffff0000, {t[2+2*r]}
                v_add_f32 v{s[r]}, v{s[r]}, {t[6]}
                v_add_f32 v{s[r]}, v{s[r]}, {t[7]}
                """)
        dpp = "row_mask:0xf bank_mask:0xf"
        o += L(f"""
        v_permlane32_swap_b32 v{s[0]}, v{s[1]}
        v_add_f32 v{s[0]}, v{s[0]}, v{s[1]}
        v_add_f32_dpp v{s[0]}, v{s[0]}, v{s[0]} quad_perm:[1,0,3,2] {dpp}
        v_add_f32_dpp v{s[0]}, v{s[0]}, v{s[0]} quad_perm:[2,3,0,1] {dpp}
        v_add_f32_dpp v{s[0]}, v{s[0]}, v{s[0]} row_half_mirror {dpp}
        v_add_f32_dpp v{s[0]}, v{s[0]}, v{s[0]} row_mirror {dpp}
        v_mov_b32 v{s[1]}, v{s[0]}
        v_permlane16_swap_b32 v{s[0]}, v{s[1]}
        v_add_f32 v{s[0]}, v{s[0]}, v{s[1]}
        v_cvt_pk_bf16_f32 v{s[0]}, v{s[0]}, v{s[0]}
        v_and_b32 v{s[0]}, 0xffff0000, v{s[0]}
        v_mul_f32 v{s[0]}, {f32(-LOG2E)}, v{s[0]}
        v_exp_f32 v{s[0]}, v{s[0]}
        v_add_f32 v{s[0]}, 1.0, v{s[0]}
        v_rcp_f32 v{s[0]}, v{s[0]}
        v_cvt_pk_bf16_f32 v{s[0]}, v{s[0]}, v{s[0]}
        v_and_b32 v{s[0]}, 0xffff0000, v{s[0]}
        v_mov_b32 v{s[1]}, {sTag}
        v_lshlrev_b32 {t[0]}, 3, {self.V('hi')}
        s_lshl_b32 {sOff}, {sGrow}, 3
        s_add_u32 {sOff}, {sOff}, {WS_G}
        """)
        groups = [[i] for i in o]
        groups.append(L(f"""
        s_mov_b32 exec_lo, 1
        s_mov_b32 exec_hi, 1
        buffer_store_dwordx2 {vr(s[0], 2)}, {t[0]}, {srd(SW)}, {sOff} offen sc1
        s_mov_b64 exec, -1
        """))
        groups = groups[:-4] + [sum(groups[-4:], [])]
        return groups

    def gate_fetch(self):
        g0, g1 = self.v("g0", 2), self.v("g1", 2)
        return [self.poll_issue(g0, self.V("G"), 0, True), self.poll_issue(g1, self.V("G"), 256, True)]

    def gate_check(self):
        o = []
        for i, nm in enumerate(("g0", "g1")):
            g = self.v(nm)
            o.append(self.poll_check(g, self.V("G"), 256 * i, True))
            o += [[x] for x in L(f"""
            v_sub_f32 v{g+1}, 1.0, v{g}
            v_cvt_pk_bf16_f32 v{g+1}, v{g+1}, v{g+1}
            v_and_b32 v{g+1}, 0xffff0000, v{g+1}
            v_max_f32 v{g+1}, {f32(1e-30)}, v{g+1}
            v_rcp_f32 v{g+1}, v{g+1}
            """)]
        return o

    def gelu_tile(self, t, rg, soff, off, tag=None):
        a = ACC(t, rg)
        io = f"v{self.v('g%d' % rg) + 1}"
        T = [self.V(f"t{i}") for i in range(8)]
        o = []
        for h in range(2):
            js = range(4 * h, 4 * h + 4)
            for stage in (
                lambda j, x: f"v_mul_f32 {x}, v{a+j}, v{a+j}",
                lambda j, x: f"v_fmaak_f32 {x}, {x}, v{self.v('KK', 2) + 1}, {f32(K0)}",
                lambda j, x: f"v_mul_f32 {x}, {x}, v{a+j}",
                lambda j, x: f"v_exp_f32 {x}, {x}",
                lambda j, x: f"v_mul_f32 v{a+8+j}, v{a+8+j}, v{a+j}",
                lambda j, x: f"v_fma_f32 {x}, {x}, {io}, {io}",
                lambda j, x: f"v_rcp_f32 {x}, {x}",
                lambda j, x: f"v_mul_f32 v{a+8+j}, v{a+8+j}, {x}",
            ):
                o += [L(stage(j, T[j & 3])) for j in js]
            o += [L(f"v_cvt_pk_bf16_f32 v{a+d}, v{a+8+2*d}, v{a+9+2*d}") for d in (2 * h, 2 * h + 1)]
        o.append(L(f"buffer_store_dwordx4 {vr(a)}, {self.V('HS%d' % rg)}, {srd(SW)}, {soff} offen offset:{off} sc1", tag))
        return o

    def gelu_tile_pk(self, t, rg, soff, off, tag=None):
        a = ACC(t, rg)
        g = self.v("g%d" % rg)
        T = self.v("t0")
        kk = self.v("KK", 2)
        p = lambda r: f"v[{r}:{r+1}]"
        o = []
        for st in range(9):
            for q in range(4):
                x, gg, uu = T + 2 * q, a + 2 * q, a + 8 + 2 * q
                if st == 0: o.append(L(f"v_pk_mul_f32 {p(x)}, {p(gg)}, {p(gg)}"))
                if st == 1: o.append(L(f"v_pk_fma_f32 {p(x)}, {p(x)}, {p(kk)}, {p(kk)} op_sel:[0,1,0] op_sel_hi:[1,1,0]"))
                if st == 2: o.append(L(f"v_pk_mul_f32 {p(x)}, {p(x)}, {p(gg)}"))
                if st == 3: o += [L(f"v_exp_f32 v{x}, v{x}"), L(f"v_exp_f32 v{x+1}, v{x+1}")]
                if st == 4: o.append(L(f"v_pk_mul_f32 {p(uu)}, {p(uu)}, {p(gg)}"))
                if st == 5: o.append(L(f"v_pk_fma_f32 {p(x)}, {p(x)}, {p(g)}, {p(g)} op_sel:[0,1,1] op_sel_hi:[1,1,1]"))
                if st == 6: o += [L(f"v_rcp_f32 v{x}, v{x}"), L(f"v_rcp_f32 v{x+1}, v{x+1}")]
                if st == 7: o.append(L(f"v_pk_mul_f32 {p(uu)}, {p(uu)}, {p(x)}"))
                if st == 8: o.append(L(f"v_cvt_pk_bf16_f32 v{a+q}, v{uu}, v{uu+1}"))
        o.append(L(f"buffer_store_dwordx4 {vr(a)}, {self.V('HS%d' % rg)}, {srd(SW)}, {soff} offen offset:{off} sc1", tag))
        return o

    def phi_pack(self, src, dst):
        T = [self.V(f"t{i}") for i in range(8)]
        o = []
        for q in range(4):
            js = range(4 * q, 4 * q + 4)
            for stage in (
                lambda j, x: f"v_mul_f32 {x}, {f32(LOG2E)}, v{src+j}",
                lambda j, x: f"v_exp_f32_e64 {x}, {x} clamp",
                lambda j, x: f"v_max_f32 v{src+j}, {f32(1e-6)}, v{src+j}",
                lambda j, x: f"v_add_f32 {x}, {x}, v{src+j}",
            ):
                o += [L(stage(j, T[j & 3])) for j in js]
            o += [L(f"v_cvt_pk_bf16_f32 v{dst+2*q+d}, {T[2*d]}, {T[2*d+1]}") for d in range(2)]
        return o

    def plain_pack(self, src, dst):
        return [L(f"v_cvt_pk_bf16_f32 v{dst+d}, v{src+2*d}, v{src+2*d+1}") for d in range(8)]

    def build(self):
        A = self.typ == "A"
        opt = self.opt
        V = self.V
        self.prologue()
        self.kvi = opt.get("kvi", 14)
        self.budget_cut = {i: opt.get("kvn", 6) for i in range(self.kvi, 16)} if A else {}
        self.touch2 = lambda k: touch2(self, k)
        self.late_regs, self.late_setup = {}, []
        self.plan()
        T = [self.v(f"t{i}") for i in range(8)]

        def trs(pat, off, dst, istep):
            r = []
            for i in range(2):
                a, imm = self.lds(pat, off + i * istep)
                r.append(L(f"ds_read_b64_tr_b16 v[{dst+2*i}:{dst+2*i+1}], {a} offset:{imm}"))
            return r

        def mfma(t, rg, wfr, n, swap):
            acc, xfr = vr(ACC(t, rg), 16), ar((n * 2 + rg) * 4)
            a, b = (xfr, wfr) if swap else (wfr, xfr)
            return L(f"v_mfma_f32_32x32x16_bf16 {acc}, {a}, {b}, {acc if n else 0}")

        units = []
        for m in range(16):
            s, half = m >> 1, m & 1
            xb, wbase = self.blk[("X", s)] * 8192, self.blk[("W", s)] * 8192
            wb = 64 if m % 2 == 0 else 80
            rd, mf = [], []
            for kk in range(2):
                k4 = half * 2 + kk
                n = s * 4 + k4
                xr = []
                for rg in range(2):
                    a, imm = self.lds(f"XR{k4}", xb + rg * 4096, True)
                    xr.append(L(f"ds_read_b128 {ar((n*2+rg)*4)}, {a} offset:{imm}"))
                w = [trs("Pl", wbase + t * 8192 + k4 * 2048, wb + kk * 8 + t * 4, 512) if A else
                     trs(f"M{t}", wbase + k4 * 2048, wb + kk * 8 + t * 4, 512) for t in range(2)]
                rd += [xr[0]] + w[0] + [xr[1]] + w[1]
                mf += [mfma(t, rg, vr(wb + kk * 8 + t * 4), n, A) for t in range(2) for rg in range(2)]
            units.append(([f"W{s}"] if half == 0 else None, rd, mf))
        for m in range(24):
            wb = 64 if m % 2 == 0 else 80
            rd, mf = [], []
            def pair(n, dst):
                gb = self.blk[("G", n >> 2)] * 8192 + (n & 3) * 2048
                return trs("M0", gb, dst, 512) + trs("M1", gb, dst + 4, 512), [mfma(t, rg, vr(dst + 4 * i), n, False) for i, t in enumerate((3, 4)) for rg in range(2)]
            def third(n, dst):
                hb = self.blk[("H", n >> 2)] * 8192
                r = trs("Pl", hb + (n & 3) * 2048, dst, 512) if A else trs("Hf", hb + (n & 3) * 1024, dst, 256)
                return r, [mfma(2, rg, vr(dst), n, False) for rg in range(2)]
            if m < 16:
                parts = [third(2 * m, wb), pair(m, wb + 4), third(2 * m + 1, wb + 12)]
                sy = [f"H{2*(m >> 2) + 1}"] if m % 4 == 0 else None
            else:
                n = 16 + 2 * (m - 16)
                parts = [pair(n, wb), pair(n + 1, wb + 8)]
                sy = [f"G{n >> 2}"] if m % 2 == 0 else None
            for r, f in parts: rd += r; mf += f
            units.append((sy, rd, mf))

        gaps, heads, ustart, syncgap = [], [], [], [0]
        for u, (sy, rd, mf) in enumerate(units):
            ustart.append(len(gaps))
            for i, m in enumerate(mf):
                heads.append((L("@lgkm0") if i == 0 else []) + m)
                gaps.append(Gap())
            g0 = ustart[u]
            if u + 1 < len(units):
                nsy, nrd, _ = units[u + 1]
                if nsy:
                    gaps[g0].pre += L(f"@sync {' '.join(nsy)}\ns_barrier")
                    syncgap.append(g0)
                span = len(mf) - 2
                for i, r in enumerate(nrd):
                    gaps[g0 + min(span - 1, (i * span) // len(nrd))].ds += r
            else:
                gaps[g0].pre += L(f"@sync V{self.cover}\ns_barrier")
                syncgap.append(g0)
        ustart.append(len(gaps))
        U = lambda n: ustart[16 + n]
        one = lambda ins: [[x] for x in ins]

        def loads_of(iv): return sum((self.item_loads(k, i) for k, i in self.when[iv]), [])
        pro = loads_of(-1)
        pro[8:8] = self.gate_loads()
        self.pro_loads = pro
        pa, pb = self.v("pa"), self.v("pb")
        extra = {iv: [] for iv in range(17)}
        extra[6] += self.gate_fetch()
        if A:
            gl = []
            for r in range(16):
                gl.append((L(f"s_movk_i32 {sAo}, {(r >> 2) * 4096}") if r % 4 == 0 else []) +
                          L(f"buffer_load_dwordx4 {vr(96+4*r)}, {V('KG')}, {srd(SW)}, {sAo} offen offset:{(r & 3)*1024} sc1"))
            zin = opt.get("zin", 1)
            Z = [self.v("ones", 4) + i for i in range(4)] + T[4:8] if zin else list(range(80, 88))
            zl = [L(f"buffer_load_dword v{Z[i]}, {V('ZG')}, {srd(SW)}, 0 offen offset:{i*256} sc1") for i in range(8)]
            ng = opt.get("kvn", 6)
            if zin: gl = zl + gl; zl = []
            for iv in range(self.kvi, 16):
                k = ng + (8 if zin and iv == self.kvi else 0)
                extra[iv] += gl[:k]; gl = gl[k:]
            extra[16] += gl + zl
        for iv in range(16):
            ld = extra[iv] + loads_of(iv)
            if ld: place_mem(gaps, ld, syncgap[iv] + 1, syncgap[iv + 1])
            t2 = opt.get("t2", 1)
            if 0 <= t2 <= iv < t2 + opt.get("t2n", 4):
                gaps[syncgap[iv + 1] - 1].va += self.touch2 (iv - t2)

        place_valu(gaps, self.gate_compute(), ustart[opt.get("gate0", 1)], ustart[opt.get("gate1", 5)])
        place_valu(gaps, self.gate_check(), ustart[14] + 1, ustart[16] - 1)

        cap = opt.get("cap", 12) / 2
        G0, G3 = U(0), U(16)
        if not A:
            ep = []
            for t in range(2):
                for rg in range(2): ep += self.gelu_tile(t, rg, sE, t * 1024, tag="Est")
            last, c = place_valu(gaps, ep, G0 + 1, G3, cap)
            gaps[last + opt.get("e_lag", 36)].va += self.flag_store(sFP, 0, ["Est"]) + self.stamp("Efl")
            self.note = f"E epilogue ends in gap {last - G0} cap {c}"
            ep = self.gelu_tile(2, 0, sEh, 0, tag="Lst") + self.gelu_tile(2, 1, sEh, 0, tag="Lst")
            last, c = place_valu(gaps, ep, G3 + 2, U(24) - 1, cap)
            self.note += f"; third tile ends in gap {last - G0} cap {c}"
        else:
            ones, za = self.v("ones", 4), self.V("za")
            ep = [L(f"v_mov_b32 v{ones+i}, 0x3f803f80") for i in range(4)]
            ep += self.phi_pack(ACC(0, 0), 96) + self.plain_pack(ACC(1, 0), 128)
            ep += self.phi_pack(ACC(0, 1), 104) + self.plain_pack(ACC(1, 1), 136)
            last, c = place_valu(gaps, ep, G0 + 1, G3, opt.get("kvcap", 12) / 2)
            for f in range(4):
                gaps[last + 1 + f].va += L(f"v_mfma_f32_32x32x16_bf16 v[112:127], {vr(96+4*f)}, {vr(128+4*f)}, {'v[112:127]' if f else 0}")
                gaps[last + 1 + f].va += L(f"v_mfma_f32_32x32x16_bf16 v[144:159], {vr(ones)}, {vr(96+4*f)}, {'v[144:159]' if f else 0}")
            ep = [L(f"v_cndmask_b32 v{112+i}, v{112+i}, v{120+i}, {sMH}") for i in range(8)]
            ep += [L(f"v_cndmask_b32 v{120+i}, v{112+i}, v{116+i}, {sMR}") for i in range(4)]
            ep += [L(f"v_cndmask_b32 v{124+i}, v{116+i}, v{112+i}, {sMR}") for i in range(4)]
            ep += one(L(f"v_lshrrev_b32 {za}, 2, {V('XW')}\nv_add_u32 {za}, {LDS_MISC + 4096 - LDS_MISC//4}, {za}"))
            ep += [L(f"ds_write_b128 {V('XW')}, v[124:127]"), L(f"ds_write_b32 {za}, v144"), L(f"v_xor_b32 {za}, 0x200, {za}")]
            last, c = place_valu(gaps, ep, last + 7, G3, cap)
            sg = min(x for x in ustart if x > last)
            if sg not in syncgap: gaps[sg].pre += L("s_barrier")
            gaps[sg + 1].ds += L(f"ds_read_b128 v[124:127], {V('XRd')}\nds_read_b32 v145, {za}")
            ep = [L(f"v_add_f32 v{120+i}, v{120+i}, v{124+i}") for i in range(4)]
            ep.append(L(f"v_add_f32 v144, v144, v145"))
            ep.append(L(f"buffer_store_dwordx4 v[120:123], {V('KG')}, {srd(SW)}, {sKPP} offen sc1"))
            last, c = place_valu(gaps, ep, sg + 5, G3, cap)
            z = L(f"""
            s_mov_b32 exec_hi, 0
            buffer_store_dword v144, {V('ZG')}, {srd(SW)}, {sZPP} offen sc1
            s_mov_b32 exec_hi, -1
            """)
            z[1].tag = "KVst"
            gaps[last + 1].va += z
            fl = last + opt.get("kv_lag", 32)
            gaps[fl].va += self.flag_store(sKFP, 0, ["KVst"]) + self.stamp("KVfl")
            chk = syncgap[self.kvi]
            assert fl < chk - opt.get("kv_pl", 12)
            gaps[chk - opt.get("kv_pl", 12)].vm += self.poll_issue(pa, V("KF"), 0)
            gaps[chk].va += self.stamp("KVq") + self.poll_check(pa, V("KF"), 0) + self.stamp("KVok")
            self.note = f"kv flag in gap {fl - G0}, check in gap {chk - G0}"
            last, c = place_valu(gaps, self.phi_pack(ACC(2, 0), 160) + self.phi_pack(ACC(2, 1), 168), G3 + 2, U(24) - 1, cap)
            self.note += f"; third tile ends in gap {last - G0} cap {c}"
            ep = []
            for st in (32, 16, 8, 4):
                ep += [L(f"v_pk_add_f32 v[{96+i}:{97+i}], v[{96+i}:{97+i}], v[{96+st+i}:{97+st+i}]") for i in range(0, st, 2)]
            zs = [L(f"v_pk_add_f32 v[{Z[i]}:{Z[i]+1}], v[{Z[i]}:{Z[i]+1}], v[{Z[st+i]}:{Z[st+i]+1}]") for st in (4, 2) for i in range(0, st, 2)]
            self.z_first = zs if zin else []
            if not zin: ep += zs
            ep += one(L(f"""
            v_add_f32 v{Z[0]}, v{Z[0]}, v{Z[1]}
            v_cvt_pk_bf16_f32 v100, v96, v97
            v_mov_b32 v{Z[1]}, v{Z[0]}
            v_cvt_pk_bf16_f32 v101, v98, v99
            v_lshrrev_b32 {za}, 1, {V('XW')}
            v_permlane32_swap_b32 v{Z[0]}, v{Z[1]}
            v_add_u32 {za}, {LDS_MISC - LDS_MISC//2}, {za}
            v_add_f32 v{Z[0]}, v{Z[0]}, v{Z[1]}
            ds_write_b64 {za}, v[100:101]
            v_cvt_pk_bf16_f32 v{Z[0]}, v{Z[0]}, v{Z[0]}
            v_xor_b32 {za}, 0x400, {za}
            ds_write_b16 {V('ZW')}, v{Z[0]}
            """))
            self.kv_reduce = ep
        gaps[U(24) - opt.get("epoll", 14)].vm += self.poll_issue(pb, V("F"), 0)

        body = self.stamp("start")
        ph1 = self.stamp("issued") + L(f"@sync W0\ns_barrier") + self.stamp("sync0")
        for r in units[0][1]: ph1 += r
        for u in range(len(units)):
            for g in range(ustart[u], ustart[u + 1]):
                ph1 += heads[g]
                if g == ustart[u] and u and ((u < 16 and u % (4 if opt.get("fewp1") else 2) == 0) or (u >= 16 and u % 4 == 0)): ph1 += self.stamp(f"s{u//2}" if u < 16 else f"p{(u-16)//4}")
                ph1 += gaps[g].emit()
        ph1 += self.stamp("p1end")

        gt = self.gelu_tile_pk if opt.get("pk", 1) else self.gelu_tile
        main = []
        tiles = []
        for t in range(2):
            for rg in range(2):
                tiles.append(gt(3 + t, rg, sL, t * 1024, tag="Lst"))
                tiles[-1][-1] += self.stamp(f"L{t}{rg}")
        if not A:
            main = sum(tiles, [])
            nL = len(main)
        else:
            kr = opt.get("kvr", 4)
            main = self.z_first + sum(tiles[:kr], [])
            self.need_side = len(main)
            main += self.kv_reduce
            main[-1] += self.stamp("red")
            main += sum(tiles[kr:], [])
            nL = len(main)
            main += [L("@lgkm0\ns_barrier") + self.stamp("bar"), L(f"ds_read_b64 v[102:103], {self.V('za')}\nds_read_b128 v[108:111], {V('ZR')}")]
            main += [[x] for x in L(f"""
            v_cndmask_b32 v104, v100, v102, {sMR}
            v_cndmask_b32 v105, v101, v103, {sMR}
            v_cndmask_b32 v106, v102, v100, {sMR}
            v_cndmask_b32 v107, v103, v101, {sMR}
            """)]
            for i in range(4):
                main += [L(f"v_cndmask_b32 v{176+i}, v{104+i}, v{108+i}, {sMH}"), L(f"v_cndmask_b32 v{180+i}, v{108+i}, v{104+i}, {sMH}")]
            for rg in range(2):
                for hh in range(2):
                    main.append(L(f"v_mfma_f32_32x32x16_bf16 {vr(192 + (rg*2+hh)*16, 16)}, {vr(176+4*hh)}, {vr(160 + rg*8 + hh*4)}, 0"))
            dens = []
            for rg in range(2):
                for hh in range(2):
                    b = 192 + (rg * 2 + hh) * 16
                    dens.append((rg, hh, b, b + 8) if hh == 0 else (rg, hh, b + 8, b))
            main += [L(f"v_add_f32 v{d}, {f32(1e-6)}, v{d}") for _, _, _, d in dens]
            main += [L(f"v_rcp_f32 v{d}, v{d}") for _, _, _, d in dens]
            main += [L(f"v_mul_f32 v{d}, v{d}, v{self.v('g%d' % rg)}") for rg, _, _, d in dens]
            osts = []
            for rg, hh, num, den in dens:
                main += [L(f"v_pk_mul_f32 v[{num+j}:{num+j+1}], v[{num+j}:{num+j+1}], v[{den}:{den+1}] op_sel_hi:[1,0]") for j in range(0, 8, 2)]
                d = 160 + (rg * 2 + hh) * 4
                main += [L(f"v_cvt_pk_bf16_f32 v{d+j}, v{num+2*j}, v{num+2*j+1}") for j in range(4)]
                osts.append(L(f"buffer_store_dwordx4 {vr(d)}, {V('HS%d' % rg)}, {srd(SW)}, {sO} offen offset:{hh*1024} sc1", "Ost"))
                if not opt.get("batch", 0): main.append(osts.pop())
            main += osts
            lf = opt.get("lfa", 60)
            lastL = max(j for j, g in enumerate(main) if any(x.tag == "Lst" for x in g))
            main.insert(min(len(main), lastL + 1 + lf), self.flag_store(sFP, 256, ["Lst"]) + self.stamp("Lfl"))
        slots = [list(g) for g in main]
        side = list(extra[16])
        side.append(self.stamp("Eq") + self.poll_check(pb, V("F"), 0) + self.stamp("Eok"))
        late_wd = sum((self.item_loads(k, i) for k, i in self.when[16] if i < 14), [])
        late_wo = sum((self.item_loads(k, i) for k, i in self.when[16] if i >= 14), [])
        side += [self.a_load(n) for n in range(8)]
        side[len(extra[16]):len(extra[16])] = late_wd
        side += late_wo
        every2 = (opt.get("midea2", 45) if A else opt.get("mide2", 60)) / 4.0
        every = (opt.get("midea", 60) if A else opt.get("mide", 60)) / 4.0
        acc, k = opt.get("mid0", 0) / 4.0, 0
        for j, (sl, g) in enumerate(zip(slots, main)):
            if j == nL: every = every2
            if A and j == self.need_side - 1:
                while k < len(extra[16]): sl += side[k]; k += 1
            acc += sum(2 if x.kind == "valu" and x.op.startswith(TRANS) else 1 for x in g)
            if any(x.kind == "vmem" for x in g): acc -= every
            while k < len(side) and acc >= every:
                sl += side[k]
                if any(x.kind == "vmem" for x in side[k]): acc -= every
                k += 1
        rest = side[k:]
        self.note += f"; mid takes {k} of {len(side)} side groups"
        mid = sum(slots, []) + self.stamp("mid")
        nA = max([j + 1 for j, g in enumerate(rest) if any("a[" in x.text and x.kind == "vmem" for x in g)], default=0)
        mid += sum(rest[:nA], [])
        rest = rest[nA:]

        C = lambda sg: vr(96 + 16 * sg, 16)
        u2 = []
        def unit(steps):
            wb = 64 if len(u2) % 2 == 0 else 80
            rd, mf = [], []
            for i, (n, sg) in enumerate(steps):
                rd += self.w_reads(n, sg, wb + 4 * i)
                mf.append(L(f"v_mfma_f32_32x32x16_bf16 {C(sg)}, {vr(wb + 4*i)}, {ar(4*n)}, {C(sg) if n else 0}"))
            u2.append((rd, mf))
        own0 = 0 if (A and opt.get("defer", 1)) else 8
        for n in range(8): unit([(n, sg) for sg in ((1, 2, 3, 0) if own0 else (1, 2, 3))])
        nk = opt.get("nk", 8)
        for n in range(8, 8 + nk): unit([(n, sg) for sg in (1, 2, 3)])
        done_at = {}
        for sg in (1, 2, 3):
            for n in range(8 + nk, 28, 4): unit([(n + i, sg) for i in range(4)])
            done_at[sg] = len(u2)
        UL, UO = 8, len(u2)
        for n in range(own0, 60, 4): unit([(n + i, 0) for i in range(4)])
        UA = UO + (28 - own0) // 4
        g2, h2, s2 = [], [], []
        for u, (rd, mf) in enumerate(u2):
            s2.append(len(g2))
            for i, m in enumerate(mf):
                h2.append((L("@lgkm0") if i == 0 else []) + m)
                g2.append(Gap())
            if u + 1 < len(u2) and u + 1 != UL:
                nrd = u2[u + 1][0]
                for i, r in enumerate(nrd): g2[s2[u] + min(len(mf) - 1, i // 3)].ds += r
        s2.append(len(g2))
        before = {u: [] for u in range(len(u2) + 1)}
        if rest: place_mem(g2, rest, 0, s2[opt.get("restu", 7)])
        fa = opt.get("lflag_at", 2)
        g2[s2[fa] + 2].va += (self.flag_store(sFP, 384, ["Ost"]) if A else self.flag_store(sFP, 128, ["Lst"])) + self.stamp("fl")
        pl8 = opt.get("pl8a", 3) if A else opt.get("pl8", 0)
        if pl8: g2[s2[UL - pl8]].vm += self.poll_issue(pa, V("F"), 256)
        if self.cover < 13: before[UL] += L("@vm V13\ns_barrier")
        before[UL] += sum(u2[UL][0], [])
        g2[s2[UA - 1]].pre += L("@vm V17\ns_barrier")
        if not pl8: before[UL] += self.poll_issue(pa, V("F"), 256)
        before[UL] += self.stamp("q8") + self.poll_check(pa, V("F"), 256) + self.stamp("k8")
        na = opt.get("na", 8)
        before[UL] += self.poll_issue(pb, V("F"), 128) + sum((self.a_load(n) for n in range(8, 8 + na)), [])
        bat = opt.get("bat", 1)
        if na < 8: place_mem(g2, [self.a_load(n) for n in range(8 + na, 16)], s2[UL], s2[UL + bat])
        before[UL + bat] += self.stamp("q16") + self.poll_check(pb, V("F"), 128) + self.stamp("k16")
        bend = UL + bat + opt.get("bspan", 6)
        place_mem(g2, [self.a_load(n) for n in range(16, 28)], s2[UL + bat], s2[bend])
        oat = bend + opt.get("oat", 2)
        g2[s2[oat - opt.get("plo", 2)]].vm += self.poll_issue(pa, V("FO"), 384)
        before[oat] += self.stamp("q28") + self.poll_check(pa, V("FO"), 384) + self.stamp("k28")
        o1 = opt.get("o1", 8)
        ol = [self.a_load(n) for n in range(28, 60)]
        if o1: place_mem(g2, ol[:o1], s2[oat], s2[UO + 1])
        oend = UA + opt.get("oend", 6)
        pk = opt.get("pk2", 6)
        rem = ol[o1:]
        rem.insert(len(rem) - pk, self.poll_issue(pb, V("PF"), 0))
        place_mem(g2, rem, s2[UO + 1] + 2, s2[oend])
        for sg in (1, 2, 3):
            grp = []
            for hf in range(2):
                d = 160 + (sg - 1) * 8 + hf * 4
                grp += [L(f"v_cvt_pk_bf16_f32 v{d+j}, v{96 + 16*sg + 8*hf + 2*j}, v{97 + 16*sg + 8*hf + 2*j}") for j in range(4)]
                pre = L(f"s_xor_b32 {sOff}, {sR2}, {sg}\ns_lshl2_add_u32 {sOff}, {sOff}, {sR2}\ns_lshl_b32 {sOff}, {sOff}, 11")
                grp.append((pre if hf == 0 else []) + L(f"buffer_store_dwordx4 {vr(d)}, {V('PS')}, {srd(SW)}, {sOff} offen offset:{hf*1024} sc1", "Pst"))
            u = done_at[sg] if nk < 20 else UO + sg - 1
            last, _ = place_valu(g2, grp, s2[u] + 2, s2[u + 2], 7)
            if sg == 3: g2[last].va += self.stamp("sent")
        ID = 248
        idc = L(f"""
        v_mbcnt_lo_u32_b32 v{T[0]}, -1, 0
        v_mbcnt_hi_u32_b32 v{T[0]}, -1, v{T[0]}
        v_lshrrev_b32 v{T[1]}, 5, v{T[0]}
        v_and_b32 v{T[0]}, 31, v{T[0]}
        v_lshlrev_b32 v{T[1]}, 2, v{T[1]}
        v_sub_u32 v{T[0]}, v{T[0]}, v{T[1]}
        v_and_b32 v{T[1]}, 1, v{T[0]}
        v_lshlrev_b32 v{T[1]}, 4, v{T[1]}
        v_mov_b32 v{T[2]}, 0x3f80
        v_lshlrev_b32 v{T[1]}, v{T[1]}, v{T[2]}
        v_lshrrev_b32 v{T[0]}, 1, v{T[0]}
        """)
        idg = [[x] for x in idc]
        for f in range(2):
            for d in range(4):
                idg.append(L(f"v_cmp_eq_u32 vcc, {8*f + 4*(d >> 1) + (d & 1)}, v{T[0]}\nv_cndmask_b32 v{ID + 4*f + d}, 0, v{T[1]}, vcc"))
        place_valu(g2, idg, s2[1], s2[6])
        pfa = UO + opt.get("pfa", 5)
        g2[s2[pfa] + 3].va += self.flag_store(sPF, 0, ["Pst"]) + self.stamp("pfl")
        pca = oend + opt.get("pca", 0)
        pin = self.stamp("qp") + self.poll_check(pb, V("PF"), 0) + self.stamp("kp")
        for sg in (1, 2, 3):
            pin += L(f"s_xor_b32 {sOff}, {sR2}, {sg}\ns_lshl2_add_u32 {sOff}, {sR2}, {sOff}\ns_lshl_b32 {sOff}, {sOff}, 11")
            for hf in range(2):
                pin += L(f"buffer_load_dwordx4 {vr(184 + (sg-1)*8 + hf*4)}, {V('PS')}, {srd(SW)}, {sOff} offen offset:{hf*1024} sc1")
        before[pca] += pin
        ph2 = []
        for u in range(len(u2)):
            ph2 += before[u]
            for g in range(s2[u], s2[u + 1]):
                ph2 += h2[g]
                if g == s2[u] and (u % 4 == 0 or u in (UO, UA)): ph2 += self.stamp({UO: "uo", UA: "ua"}.get(u, f"u{u}"))
                ph2 += g2[g].emit()
        ph2 += before[len(u2)]
        mid += self.late_setup + sum(u2[0][0], [])
        ph2 += self.stamp("ph2end")
        seen = set()
        for x in mid + ph2:
            if x.kind == "vmem": seen |= set(x.wr)
            if x.kind == "mfma": assert all(r in seen for r in x.srcAB if r[0] == "a"), x.text

        fin = []
        for sg in (1, 2, 3):
            for hf in range(2):
                fin += L(f"v_mfma_f32_32x32x16_bf16 {C(0)}, {vr(ID + 4*hf)}, {vr(184 + (sg-1)*8 + hf*4)}, {C(0)}")
        of = opt.get("oflags", "")
        for pr in range(2):
            d = 160 + pr * 4
            for i in range(4):
                r = 96 + pr * 8 + 2 * i
                fin += L(f"v_cvt_pk_bf16_f32 v{d+i}, v{r}, v{r+1}")
            fin += L(f"""
            v_permlane32_swap_b32 v{d}, v{d+2}
            v_permlane32_swap_b32 v{d+1}, v{d+3}
            buffer_store_dwordx4 {vr(d)}, {V('OUT')}, {srd(SOUT)}, 0 offen offset:{pr*32} {of}
            """)
        skip = self.lab("noep")
        fin += L(f"""
        s_or_b32 {sT0}, s2, {sW}
        s_cmp_lg_u32 {sT0}, 0
        s_cbranch_scc1 {skip}
        s_mov_b64 exec, 1
        @raw buffer_store_dword {V('tag')}, off, {srd(SW)}, 0 offset:{WS_EPOCH} sc1
        {skip}:
        """)
        if opt.get("padto"):
            lp = self.lab("pad")
            if "xstamp" in opt:
                fin += L("@lgkm0\ns_mov_b32 s3, s4")
            fin += L(f"""
            {lp}:
            @raw s_memrealtime s[82:83]
            @raw s_waitcnt lgkmcnt(0)
            @raw s_sub_u32 s82, s82, s3
            @raw s_cmp_lt_u32 s82, {opt['padto']}
            @raw s_cbranch_scc1 {lp}
            """)
        if opt.get("stamps"):
            st = V("stamps")
            fin += L("s_mov_b64 exec, -1") + self.stamp("stored") + L("@vm0") + self.stamp("end") + self.stamp("FLUSH")
            fin += L(f"""
            s_memrealtime s[4:5]
            v_writelane_b32 {st}, s6, 60
            v_writelane_b32 {st}, {sSpin}, 61
            v_writelane_b32 {st}, s3, 62
            v_writelane_b32 {st}, s4, 63
            s_lshl_b32 {sT0}, s2, 2
            s_add_u32 {sT0}, {sT0}, {sW}
            s_lshl_b32 {sT0}, {sT0}, 8
            s_add_u32 {sT0}, {sT0}, {WS_STAMP}
            v_mbcnt_lo_u32_b32 v96, -1, 0
            v_mbcnt_hi_u32_b32 v96, -1, v96
            v_lshlrev_b32 v96, 2, v96
            buffer_store_dword {st}, v96, {srd(SW)}, {sT0} offen
            """)
        fin += L("s_endpgm")

        fin += L(f"L_end{self.typ}:")
        loads = self.pro_loads
        t1 = []
        common = common_head(opt) + self.first + L("@lgkm0")
        if opt.get("stamps") or opt.get("padto"): common += L("s_mov_b32 s3, s4")
        common += L(f"s_load_dword {sTag}, s[{SW}:{SW+1}], {WS_EPOCH}")
        p1 = opt.get("t1pos", 0)
        nc = opt.get("nc", 8)
        common += sum(loads[:p1], []) + t1 + sum(loads[p1:nc], [])
        common += L("s_bitcmp1_b32 s2, 6\ns_cbranch_scc1 L_pathB")
        head = body + self.second + self.setup + sum(loads[nc:], [])
        if opt.get("t2", 1) == -3: head += touch2(self, 0, False)
        head += L(f"s_add_u32 {sTag}, {sTag}, 0x9e3779b9\nv_mov_b32 {V('tag')}, {sTag}")
        if opt.get("nosc1"):
            for x in ph1 + mid:
                if x.kind == "vmem" and "store_dwordx4" in x.op: x.text = x.text.replace(" sc1", "")
        if opt.get("nost") == 2:
            for x in ph1 + mid:
                if x.kind == "vmem" and "store_dwordx4" in x.op: x.text = re.sub(r"(s\[\d+:\d+\]), \S+ offen", r"\1, s35 offen", x.text.replace("s[32:35]", "s[40:43]")).replace(" sc1", "")
        if opt.get("novalu"):
            mid = [x for x in mid if not (x.kind == "valu" and x.op.startswith(("v_pk", "v_exp", "v_rcp", "v_mul", "v_max", "v_add_f32", "v_cvt")))]
        if opt.get("novalu") == 2:
            keep = lambda x: not (x.kind == "valu" and x.op.startswith(("v_pk", "v_exp", "v_rcp", "v_mul", "v_max", "v_add_f32", "v_cvt", "v_fma")))
            k0 = next(i for i, x in enumerate(ph1) if "H1" in x.text)
            ph1 = ph1[:k0 + 200] + [x for x in ph1[k0 + 200:] if keep(x)]
        if opt.get("nost") == 1:
            for x in ph1 + mid:
                if x.kind == "vmem" and "store_dwordx4" in x.op: x.text = x.text.replace("_dwordx4", "_dword").replace(" sc1", ""); x.text = re.sub(r"v\[(\d+):\d+\]", r"v\1", x.text, 1)
        if opt.get("nomfma"): ph1 = [x for x in ph1 if x.kind != "mfma"]; ph2 = [x for x in ph2 if x.kind != "mfma"]
        if opt.get("nods"): ph1 = [x for x in ph1 if not x.op.startswith("ds_read")]; ph2 = [x for x in ph2 if not x.op.startswith("ds_read")]
        if opt.get("nobar"): ph1 = [x for x in ph1 if x.op != "s_barrier"]
        if opt.get("nodma"): ph1 = [x for x in ph1 if not (x.kind == "vmem" and x.lds and not x.tag)]
        return self.expand_stamps(common + head + ph1 + mid + ph2 + fin)


def touch(sr, mask, code, dst, raw=False):
    p = "@raw " if raw else ""
    return L(f"{code}\ns_mov_b64 exec, {mask}\n{p}buffer_load_dword v{dst}, v246, {srd(sr)}, {sOff} offen")


def rowhalf(stride, nbytes, c0):
    return (f"s_lshr_b32 {sOff}, {sGW}, 1\ns_mul_i32 {sOff}, {sOff}, {stride}\ns_and_b32 {sT0}, {sGW}, 1\n"
            f"s_mul_i32 {sT0}, {sT0}, {nbytes}\ns_add_u32 {sOff}, {sOff}, {sT0}" + (f"\ns_add_u32 {sOff}, {sOff}, {c0}" if c0 else ""))


def touch2(g, k, cond=True):
    bonly = g.opt.get("t2b", 0)
    if bonly and g.typ == "A": return []
    skip = g.lab("t2") if cond else None
    n = g.opt.get("t2n", 4) if cond else 1
    o = L(f"s_and_b32 {sT0}, {sSel}, {n-1}\ns_cmp_lg_u32 {sT0}, {k}\ns_cbranch_scc1 {skip}") if cond else []
    p = "@raw " if cond else ""
    if bonly:
        o += L(f"s_lshr_b32 {sT1}, {sGW}, 6\ns_lshl_b32 {sT1}, {sT1}, 5\ns_and_b32 {sT0}, {sGW}, 31\ns_add_u32 {sT1}, {sT1}, {sT0}")
        o += touch(SG, "0xfffff", f"s_mul_i32 {sOff}, {sT1}, 3584\ns_add_u32 {sOff}, {sOff}, 1024", 250, cond) + L(p + f"buffer_load_dword v249, v246, {srd(SU)}, {sOff} offen")
        o += touch(SQ, "0xff", f"s_mul_i32 {sOff}, {sT1}, 3072", 248, cond)
        o += touch(SO, "0xff", f"s_lshl_b32 {sOff}, {sT1}, 10", 247, cond)
        o += touch(SD, "0xfffffff", f"s_mul_i32 {sOff}, {sT1}, 3584", 245, cond)
    else:
        o += touch(SG, "0x3ff", rowhalf(3584, 1280, 1024), 250, cond) + L(p + f"buffer_load_dword v249, v246, {srd(SU)}, {sOff} offen")
        o += touch(SQ, "15", rowhalf(3072, 512, 0), 248, cond)
        o += touch(SO, "15", f"s_lshl_b32 {sOff}, {sGW}, 9", 247, cond)
        o += touch(SD, "0x3fff", f"s_mul_i32 {sOff}, {sGW}, 1792", 245, cond)
    o += L("s_mov_b64 exec, -1")
    if cond: o += L(f"{skip}:")
    return o


def codepf(opt):
    o = L(f"""
    s_getpc_b64 s[82:83]
    L_pc:
    s_bitcmp1_b32 s2, 6
    s_cselect_b32 {sT2}, L_pathB-L_pathA, 0
    s_add_u32 {sT2}, {sT2}, L_pathA-L_pc
    """)
    m = opt.get("codepf", 3)
    if m == 1:
        o += L(f"""
        s_bfe_u32 {sT0}, s2, 0x30003
        s_lshr_b32 {sT1}, s2, 7
        s_lshl3_add_u32 {sT0}, {sT1}, {sT0}
        s_mul_i32 {sT0}, {sT0}, 1536
        s_add_u32 {sT2}, {sT2}, {sT0}
        v_min_u32 v1, 11, v0
        v_lshl_add_u32 v1, v1, 7, {sT2}
        v_min_u32 v1, L_endB-L_pc-4, v1
        global_load_dword v255, v1, s[82:83]
        """)
    elif m == 2:
        o += L(f"""
        v_lshl_add_u32 v1, v0, 7, {sT2}
        v_min_u32 v1, L_endB-L_pc-4, v1
        global_load_dword v255, v1, s[82:83]
        """)
    elif m == 3:
        o += L(f"""
        s_bfe_u32 {sT0}, s2, 0x30003
        s_lshr_b32 {sT1}, s2, 7
        s_lshl3_add_u32 {sT0}, {sT1}, {sT0}
        s_mul_i32 {sT0}, {sT0}, 1536
        s_add_u32 {sT0}, {sT2}, {sT0}
        v_and_b32 v1, 63, v0
        v_lshlrev_b32 v1, 7, v1
        s_mov_b64 exec, 0x1ff
        global_load_dword v244, v1, s[82:83]
        v_add_u32 v2, {sT2}, v1
        global_load_dword v243, v2, s[82:83]
        s_mov_b64 exec, -1
        v_min_u32 v1, 11, v0
        v_lshl_add_u32 v1, v1, 7, {sT0}
        v_min_u32 v1, L_endB-L_pc-4, v1
        global_load_dword v255, v1, s[82:83]
        """)
    return o


def common_head(opt):
    o = L(f"""
    s_cmp_ge_u32 s2, 0x100
    s_cbranch_scc1 L_end
    """)
    if opt.get("stamps") or opt.get("padto"):
        o += L(("s_memrealtime" if opt.get("rt") else "s_memtime") + " s[6:7]\ns_memrealtime s[4:5]")
    if opt.get("t1", 2) == 2:
        o += L("""
        s_load_dwordx4 s[44:47], s[0:1], 0
        s_load_dwordx4 s[48:51], s[0:1], 32
        """)
    if opt.get("pftop", 1): o += codepf(opt)
    if opt.get("t1", 2) == 2:
        o += L(f"""
        v_lshrrev_b32 v2, 6, v0
        v_lshl_add_u32 v2, s2, 2, v2
        v_and_b32 v1, 63, v0
        v_lshlrev_b32 v1, 7, v1
        v_lshl_add_u32 v3, v2, 11, v1
        v_lshrrev_b32 v4, 1, v2
        v_and_b32 v2, 1, v2
        v_mad_u32_u24 v5, v4, 3, v2
        v_mad_u32_u24 v4, v4, 7, v2
        v_lshl_add_u32 v5, v5, 10, v1
        v_lshl_add_u32 v4, v4, 9, v1
        s_mov_b64 exec, 0xffff
        @lgkm0
        global_load_dword v254, v3, s[44:45]
        s_mov_b64 exec, 0xff
        global_load_dword v253, v5, s[46:47] offset:1024
        s_mov_b64 exec, 15
        global_load_dword v252, v4, s[48:49]
        global_load_dword v251, v4, s[50:51]
        s_mov_b64 exec, -1
        """)
    o += L(f"""
    s_bitcmp1_b32 s2, 6
    s_cselect_b32 {sT0}, 32, 8
    s_cselect_b32 {sT1}, 40, 8
    s_load_dwordx2 s[{S1}:{S1+1}], s[0:1], {sT0}
    s_load_dwordx2 s[{S2}:{S2+1}], s[0:1], {sT1}
    """)
    for b, slot in ((SX, 0), (SG, 4), (SU, 5), (SQ, 1), (SGW, 7), (SW, 10), (SD, 6), (SO, 2), (SOUT, 8)):
        o += L(f"s_load_dwordx2 s[{b}:{b+1}], s[0:1], {slot*8}")
    if not opt.get("pftop", 1): o += codepf(opt)
    for b, n in ((SX, 2048 * 1024), (SQ, 512 * 3072), (SG, 512 * 3584), (SU, 512 * 3584), (SD, 1792 * 1024),
                 (SO, 512 * 1024), (SW, WS_BYTES), (SOUT, 2048 * 1024), (SGW, 1024)):
        o += L(f"s_mov_b32 s{b+2}, {n}\ns_mov_b32 s{b+3}, 0x20000")
    return o


def assemble_sizes(txt):
    import subprocess, tempfile, os
    d = tempfile.mkdtemp()
    open(d + "/a.s", "w").write('.amdgcn_target "amdgcn-amd-amdhsa--gfx950"\n.text\nk:\n' + txt)
    subprocess.run(["clang", "-x", "assembler", "-target", "amdgcn-amd-amdhsa", "-mcpu=gfx950", "-c", d + "/a.s", "-o", d + "/a.o"], check=True)
    o = subprocess.run(["llvm-objdump", "-d", "--mcpu=gfx950", d + "/a.o"], capture_output=True, text=True).stdout
    sizes = [4 * len(re.match(r".*// [0-9A-F]+: ((?:[0-9A-F]{8} ?)+)", l).group(1).split()) for l in o.split("\n") if re.match(r".*// [0-9A-F]+: [0-9A-F]{8}", l)]
    return sizes


def generate(opt):
    parts = []
    info = []
    names = []
    for typ in "AB":
        g = Gen(typ, opt)
        ins, added = finalize(g.build())
        k = next(i for i, x in enumerate(ins) if x.text.startswith("s_cbranch_scc1 L_pathB"))
        parts.append((ins[:k + 1], ins[k + 1:]))
        info.append((typ, len(ins), added, g.nv, g.hi_next))
        if opt.get("plan"):
            print(typ, g.note)
            for k, v in g.when.items(): print("  ", k, " ".join(f"{a}{b}@{g.blk[(a, b)]}" for a, b in v))
        names.append("; stamps " + typ + ": " + " ".join(g.stamp_names) + "\n" if g.stamp_names else "")
    assert text_of(parts[0][0]) == text_of(parts[1][0])
    txt = text_of(parts[0][0]) + "L_pathA:\n" + text_of(parts[0][1]) + "L_pathB:\n" + text_of(parts[1][1]) + "L_end:\n    s_endpgm\n"
    if opt.get("align", 1):
        txt, nw, nn = align8(txt, assemble_sizes)
        info.append(("align", nw, nn))
    ref = open("gated_mix__linear_attn_block__geglu_ffn__prompt.s.ref").read()
    hdr = "".join(l + "\n" for l in ref.split("\n") if l.startswith(";") and "@launch" not in l and "Override" not in l and "grid=ceil" not in l)
    out = f"""{hdr}{"".join(names)}; @launch grid=(256,1,1) block=(256,1,1) lds=163840
.amdgcn_target "amdgcn-amd-amdhsa--gfx950"
.text
.globl {KNAME}
.p2align 8
.type {KNAME},@function
{KNAME}:
{txt}.section .rodata,"a"
.p2align 6
.amdhsa_kernel {KNAME}
  .amdhsa_next_free_vgpr 512
  .amdhsa_next_free_sgpr 102
  .amdhsa_accum_offset 256
  .amdhsa_group_segment_fixed_size 0
  .amdhsa_kernarg_size 88
  .amdhsa_user_sgpr_count 2
  .amdhsa_user_sgpr_kernarg_segment_ptr 1
  .amdhsa_system_sgpr_workgroup_id_x 1
  .amdhsa_float_denorm_mode_32 3
.end_amdhsa_kernel
"""
    return out, info


def parse_opts(args):
    opt = {}
    for a in args:
        k, v = a.split("=", 1)
        try: v = int(v)
        except ValueError: v = v.replace("+", " ")
        opt[k] = v
    return opt


if __name__ == "__main__":
    out, info = generate(parse_opts(sys.argv[2:]))
    open(sys.argv[1], "w").write(out)
    print(info)
```

```python
import sys, struct, re
from prog import *

KNAME = "gated_mix__linear_attn_block__geglu_ffn__prompt_kernel"

WS_EPOCH = 0
WS_FL = 0x1000
WS_KF = 0x12000
WS_G = 0x14000
WS_ZP = 0x18000
WS_KP = 0x28000
WS_H = 0x100000
WS_STAMP = 0x8000000
RG_BYTES = 144 * 1024
WS_BYTES = 268435456

def f32(x): return "0x%08x" % struct.unpack("<I", struct.pack("<f", x))[0]
LOG2E = 1.4426950408889634
K0 = -2.0 * 0.7978845608028654 * LOG2E
K1 = K0 * 0.044715

SX, SQ, SG, SU, SD, SO, SW, SOUT, SGW = 8, 12, 16, 20, 24, 28, 32, 36, 40
srd = lambda b: f"s[{b}:{b+3}]"
(sW, sRH, sJ, sR, sT, sTag, sR2, sC2, sT0, sT1, sT2, sRot, sKx, sKw, sKq, sL4, sL2, sL1, sCE, sCH, sCL,
 sE, sEh, sL, sO, sFP, sKFP, sKPP, sZPP, sA0, sA1, sSpin, sGrow, sOff) = [f"s{i}" for i in range(44, 78)]
sAo = sA0
sMH = "s[78:79]"
sMR = "s[80:81]"
sPC = "s[4:5]"
STAMP0 = 82
sGW = "s92"
sTab = [f"s{i}" for i in range(93, 101)]
sSel = "s101"
sTx, sTq, sTg, sStr = sRot, sKx, sKq, sCL
S1, S2 = 84, 88

ACC = lambda t, rg: 96 + (t * 2 + rg) * 16
vr = lambda b, n=4: f"v[{b}:{b+n-1}]"
ar = lambda b, n=4: f"a[{b}:{b+n-1}]"
LDS_MISC = 19 * 8192


def hoist_m0(groups):
    out = [list(g) for g in groups]
    for i in range(1, len(out)):
        if len(out[i]) == 2 and out[i][0].text.startswith("s_add_u32 m0") and out[i - 1][-1].kind == "vmem":
            out[i - 1].append(out[i].pop(0))
    return out


class Gen:
    def __init__(self, typ, opt):
        self.typ = typ
        self.opt = opt
        self.nv = 1
        self.names = {}
        self.setup = []
        self.hi_next = 192
        self.nstamp = 0
        self.nlab = 0

    def v(self, name, n=1, p1only=False):
        if name not in self.names:
            if p1only:
                if n > 1: self.hi_next = (self.hi_next + 1) // 2 * 2
                self.names[name] = self.hi_next; self.hi_next += n
                assert self.hi_next <= 256
            else:
                if n > 1: self.nv = (self.nv + 1) // 2 * 2
                self.names[name] = self.nv; self.nv += n
                assert self.nv <= 64, name
        return self.names[name]

    def V(self, name, p1only=False): return f"v{self.v(name, 1, p1only)}"

    def lab(self, s):
        self.nlab += 1
        return f"L_{self.typ}_{s}_{self.nlab}"

    def stamp(self, name):
        if "xstamp" in self.opt:
            return L("s_memrealtime s[4:5]") if name == self.opt["xstamp"] else []
        if not self.opt.get("stamps"): return []
        if self.opt.get("coarse") and name not in ("start", "sync0", "s4", "p0", "p4", "p1end", "mid", "u8", "u28", "ph2end", "end", "FLUSH"): return []
        return [I("@stamp " + name)]

    def expand_stamps(self, ins):
        out, n = [], 0
        self.stamp_names = []
        lines = mf = 0
        half = {f"v{self.names.get('Hg', -1)},", f"v{self.names.get('Hu', -1)},"}
        for x in ins:
            if x.kind == "vmem":
                lines += (16 if x.text.split()[1] in half else 8) if "x4" in x.op else 2
            if x.kind == "mfma": mf += 1
            if x.kind == "pseudo" and x.text.startswith("@stamp"):
                i = (STAMP0, 4)[n % 2]
                if n: out += L(f"v_writelane_b32 {self.V('stamps')}, s{(STAMP0, 4)[(n-1) % 2]}, {n-1}")
                nm = x.text.split()[1]
                if nm != "FLUSH":
                    out += L(f"{'s_memrealtime' if self.opt.get('rt') else 's_memtime'} s[{i}:{i+1}]")
                    self.stamp_names.append(f"{nm}:{lines}:{mf}")
                    n += 1
                    assert n <= 60, n
            else:
                out.append(x)
        return out

    def lds(self, pat, off, p1only=False):
        win, imm = off >> 16, off & 0xFFFF
        if win == 0:
            return self.V(pat, p1only), imm
        name = f"{pat}@{win}"
        if name not in self.names:
            self.setup += L(f"v_add_u32 {self.V(name, p1only)}, {win << 16}, {self.V(pat, p1only)}")
        return self.V(name), imm

    def prologue(self):
        A = self.typ == "A"
        V = self.V
        self.nv = 2
        t = [self.V(f"t{i}") for i in range(8)]
        l, l3, l7, l4, nh, wsw = [self.V(n, True) for n in ("lane", "l3", "l7", "l4", "nh", "wsw")]
        P = lambda n: self.V(n, True)
        self.first = L(f"""
        v_lshrrev_b32 {t[0]}, 6, v0
        v_and_b32 {l}, 63, v0
        s_and_b32 {sT0}, s2, 1
        v_readfirstlane_b32 {sW}, {t[0]}
        s_bfe_u32 {sT2}, s2, 0x30003
        s_lshl3_add_u32 {sR}, {sT0}, {sT2}
        s_bfe_u32 {sT1}, s2, 0x20001
        s_lshr_b32 {sOff}, s2, 7
        s_lshl1_add_u32 {sT}, {sT1}, {sOff}
        s_lshl2_add_u32 {sGW}, {sT0}, {sT1}
        s_lshl_b32 {sGW}, {sGW}, 5
        s_lshr_b32 {sOff}, s2, 3
        s_add_u32 {sGW}, {sGW}, {sOff}
        s_lshl2_add_u32 {sGW}, {sGW}, {sW}
        v_lshrrev_b32 {l3}, 3, {l}
        v_and_b32 {l7}, 7, {l}
        v_lshrrev_b32 {l4}, 4, {l}
        v_lshlrev_b32 v246, 7, {l}
        s_lshl2_add_u32 {sT0}, {sR}, {sW}
        s_lshl_b32 {sT0}, {sT0}, 15
        v_xor_b32 {t[0]}, {l7}, {l4}
        v_lshlrev_b32 {t[0]}, 4, {t[0]}
        v_lshl_add_u32 {t[0]}, {l3}, 10, {t[0]}
        v_add_u32 {P('X0')}, {sT0}, {t[0]}
        v_xor_b32 {t[1]}, 64, {P('X0')}
        v_add_u32 {P('X1')}, {8192-1024}, {t[1]}
        v_add_u32 {P('X2')}, {16384-2048}, {P('X0')}
        v_add_u32 {P('X3')}, {16384-2048}, {P('X1')}
        v_and_b32 {nh}, 1, {l4}
        v_lshlrev_b32 {t[0]}, 2, {nh}
        v_xor_b32 {t[0]}, {t[0]}, {l7}
        v_lshlrev_b32 {wsw}, 4, {t[0]}
        s_lshl_b32 {sCE}, {sT}, 7
        s_bitcmp1_b32 s2, 6
        s_cselect_b32 {sStr}, 7, 6
        s_cselect_b32 {sT1}, 0, 1024
        s_cselect_b32 {sT2}, 32, 0
        s_cselect_b32 {sGrow}, 8, 0
        s_lshl_b32 s{S1+2}, {sStr}, 18
        s_lshl_b32 {sStr}, {sStr}, 9
        s_mov_b32 s{S2+2}, s{S1+2}
        s_mov_b32 s{S1+3}, 0x20000
        s_mov_b32 s{S2+3}, 0x20000
        v_lshl_add_u32 {P('kr')}, {sW}, 4, {l3}
        v_add_u32 {P('wc')}, {sCE}, {wsw}
        v_mad_u32_u24 {t[0]}, {P('kr')}, {sStr}, {P('wc')}
        v_add_u32 {P('W1')}, {sT1}, {t[0]}
        v_add_u32 {t[1]}, {sT1}, {P('W1')}
        v_xor_b32 {P('W2')}, {sT2}, {t[1]}
        s_lshl3_add_u32 {sT1}, {sStr}, -1024
        v_add_u32 {P('W11')}, {sT1}, {P('W1')}
        v_add_u32 {P('W21')}, {sT1}, {P('W2')}
        s_lshl_b32 {sStr}, {sStr}, 6
        s_lshl_b32 {sL4}, {sW}, 12
        s_lshl_b32 {sL2}, {sW}, 11
        s_add_u32 {sGrow}, {sGrow}, {sT}
        s_lshl4_add_u32 {sGrow}, {sR}, {sGrow}
        s_lshl2_add_u32 {sGrow}, {sGrow}, {sW}
        s_lshl_b32 {sGrow}, {sGrow}, 1
        v_lshlrev_b32 {P('l16')}, 4, {l}
        s_lshl_b32 {sTx}, {sGW}, 11
        s_lshr_b32 {sT0}, {sGW}, 1
        s_and_b32 {sT1}, {sGW}, 1
        s_mul_i32 {sTq}, {sT0}, 3
        s_add_u32 {sTq}, {sTq}, {sT1}
        s_add_u32 {sTq}, {sTq}, 1
        s_lshl_b32 {sTq}, {sTq}, 10
        s_mul_i32 {sTg}, {sT0}, 7
        s_add_u32 {sTg}, {sTg}, {sT1}
        s_lshl_b32 {sTg}, {sTg}, 9
        """)
        hi, r4, c3, l31 = [P(n) for n in ("hi", "r4", "c3", "l31")]
        o = L(f"""
        s_and_b32 {sT0}, s2, 7
        s_lshr_b32 {sT1}, s2, 3
        s_and_b32 {sT2}, {sT1}, 7
        s_lshr_b32 {sRH}, {sW}, 1
        s_and_b32 {sJ}, {sW}, 1
        s_and_b32 {sSel}, {sT1}, 3
        s_lshl_b32 {sL1}, {sW}, 10
        v_lshrrev_b32 {hi}, 5, {l}
        v_bfe_u32 {r4}, {l}, 2, 2
        v_and_b32 {c3}, 3, {l}
        v_and_b32 {l31}, 31, {l}
        """)
        if self.opt.get("map2", "8x4") == "8x4":
            o += L(f"""
            s_lshr_b32 {sR2}, {sT0}, 1
            s_lshl3_add_u32 {sR2}, {sR2}, {sT2}
            s_and_b32 {sC2}, {sT0}, 1
            s_lshr_b32 {sOff}, {sT1}, 3
            s_lshl2_add_u32 {sC2}, {sC2}, {sOff}
            """)
        else:
            o += L(f"""
            s_and_b32 {sOff}, {sT1}, 3
            s_lshl2_add_u32 {sR2}, {sT0}, {sOff}
            s_lshr_b32 {sC2}, {sT1}, 2
            """)
        o += L(f"""
        v_mul_u32_u24 {t[1]}, 3584, {P('kr')}
        v_add_u32 {V('Wg')}, {t[1]}, {P('wc')}
        v_xor_b32 {V('Wu')}, 32, {V('Wg')}
        v_add_u32 {V('Wg1')}, {8*3584-1024}, {V('Wg')}
        v_add_u32 {V('Wu1')}, {8*3584-1024}, {V('Wu')}
        """)
        if A:
            o += L(f"""
            v_add_u32 {V('Wq')}, -1024, {P('W1')}
            v_add_u32 {V('Wq1')}, -1024, {P('W11')}
            """)
        else:
            o += L(f"""
            v_lshrrev_b32 {t[0]}, 2, {l}
            v_lshl_add_u32 {t[0]}, {sW}, 4, {t[0]}
            v_mul_u32_u24 {t[1]}, 3584, {t[0]}
            v_lshl_add_u32 {t[1]}, {c3}, 4, {t[1]}
            s_lshl_b32 {sCH}, {sT}, 6
            v_add_u32 {V('Hg')}, {sCH}, {t[1]}
            v_xor_b32 {V('Hu')}, 32, {V('Hg')}
            """)
        self.v("gx0", 4, True); self.v("gx1", 4, True); self.v("ggw", 4, True)
        o += L(f"""
        v_bfe_u32 {t[0]}, {l}, 1, 3
        v_xor_b32 {t[0]}, {t[0]}, {hi}
        v_lshlrev_b32 {t[0]}, 4, {t[0]}
        v_lshl_add_u32 {t[0]}, {l31}, 7, {t[0]}
        s_lshl_b32 {sT0}, {sRH}, 13
        v_add_u32 {V('XR0', True)}, {sT0}, {t[0]}
        v_xor_b32 {V('XR1', True)}, 32, {V('XR0')}
        v_xor_b32 {V('XR2', True)}, 64, {V('XR0')}
        v_xor_b32 {V('XR3', True)}, 0x60, {V('XR0')}
        v_and_b32 {t[0]}, 2, {r4}
        v_xor_b32 {t[0]}, {t[0]}, {nh}
        s_lshl_b32 {sT0}, {sJ}, 1
        v_xor_b32 {t[0]}, {sT0}, {t[0]}
        v_lshlrev_b32 {t[0]}, 5, {t[0]}
        v_lshl_add_u32 {t[0]}, {c3}, 3, {t[0]}
        v_lshl_add_u32 {t[1]}, {hi}, 3, {r4}
        v_lshl_add_u32 {t[2]}, {t[1]}, 7, {t[0]}
        v_lshl_add_u32 {V('M0')}, {nh}, 13, {t[2]}
        v_xor_b32 {V('M1')}, 32, {V('M0')}
        v_lshl_add_u32 {t[3]}, {hi}, 2, {r4}
        v_lshl_add_u32 {t[3]}, {t[3]}, 7, {t[0]}
        v_add_u32 {V('VR0')}, {sL2}, {t[3]}
        v_xor_b32 {V('VR1')}, 64, {V('VR0')}
        """)
        if A:
            o += L(f"v_mov_b32 {V('Pl')}, {t[2]}")
        else:
            o += L(f"""
            v_xor_b32 {t[0]}, {sJ}, {nh}
            v_lshlrev_b32 {t[0]}, 5, {t[0]}
            v_lshl_add_u32 {t[0]}, {c3}, 3, {t[0]}
            v_lshl_add_u32 {t[0]}, {t[1]}, 6, {t[0]}
            v_lshl_add_u32 {V('Hf')}, {nh}, 12, {t[0]}
            """)
        o += L(f"""
        v_lshl_add_u32 {t[0]}, {l3}, 10, {wsw}
        s_lshl_b32 {sT0}, {sC2}, 7
        s_lshl_b32 {sT1}, {sW}, 16
        s_add_u32 {sT0}, {sT0}, {sT1}
        v_add_u32 {V('V4')}, {sT0}, {t[0]}
        v_add_u32 {V('V8')}, {sT1}, {V('V4')}
        v_add_u32 {V('V41')}, {8192-1024}, {V('V4')}
        v_add_u32 {V('V81')}, {8192-1024}, {V('V8')}
        s_mul_i32 {sT0}, {sR2}, {2*RG_BYTES}
        s_add_u32 {sT0}, {sT0}, {WS_H}
        s_add_u32 {sT0}, {sT0}, {sL4}
        v_add_u32 {t[0]}, {sT0}, {V('l16')}
        s_mul_i32 {sA0}, {sRH}, {RG_BYTES}
        s_sub_u32 {sA1}, {RG_BYTES}, {sA0}
        v_add_u32 {V('A40')}, {sA0}, {t[0]}
        v_add_u32 {V('A41')}, {sA1}, {t[0]}
        v_add_u32 {V('A80')}, {sL4}, {V('A40')}
        v_add_u32 {V('A81')}, {sL4}, {V('A41')}
        s_lshl_b32 {sT0}, {sR}, 1
        s_add_u32 {sT0}, {sT0}, {sRH}
        s_mul_i32 {sT1}, {sT0}, {2*RG_BYTES}
        s_add_u32 {sT1}, {sT1}, {WS_H}
        v_add_u32 {V('HS0')}, {sT1}, {V('l16')}
        v_add_u32 {V('HS1')}, {RG_BYTES}, {V('HS0')}
        s_lshl_b32 {sT1}, {sT0}, 9
        s_add_u32 {sT1}, {sT1}, {WS_G}
        v_lshlrev_b32 {t[0]}, 3, {l31}
        v_add_u32 {V('G', True)}, {sT1}, {t[0]}
        s_lshl_b32 {sT0}, {sT0}, 2
        s_lshr_b32 {sT1}, {sT}, 1
        s_add_u32 {sT0}, {sT0}, {sT1}
        s_lshl_b32 {sT0}, {sT0}, 9
        s_and_b32 {sT1}, {sT}, 1
        s_lshl_b32 {sT1}, {sT1}, 1
        s_add_u32 {sT1}, {sT1}, {sJ}
        s_lshl_b32 {sT1}, {sT1}, 2
        s_add_u32 {sT0}, {sT0}, {sT1}
        s_add_u32 {sFP}, {sT0}, {WS_FL}
        s_lshl_b32 {sT0}, {sR2}, 2
        s_add_u32 {sT0}, {sT0}, {sW}
        s_lshl_b32 {sT0}, {sT0}, 9
        s_add_u32 {sT0}, {sT0}, {WS_FL}
        v_lshlrev_b32 {t[0]}, 2, {c3}
        v_add_u32 {V('F')}, {sT0}, {t[0]}
        s_lshl_b32 {sT0}, {sT}, 2
        s_lshl_b32 {sT1}, {sJ}, 1
        s_add_u32 {sT0}, {sT0}, {sT1}
        s_lshl_b32 {sE}, {sT0}, 10
        s_add_u32 {sL}, {sE}, {(80 if A else 48)*1024}
        v_mov_b32 v{self.v('KK', 2)}, {f32(K0)}
        v_mov_b32 v{self.v('KK', 2) + 1}, {f32(K1)}
        """)
        if A:
            o += L(f"""
            s_add_u32 {sO}, {sE}, {112*1024}
            s_add_u32 {sT0}, {sT0}, {sRH}
            s_lshl_b32 {sT1}, {sT0}, 7
            s_add_u32 {sT1}, {sT1}, {WS_KF}
            s_lshl_b32 {sT2}, {sR}, 2
            s_add_u32 {sKFP}, {sT1}, {sT2}
            v_and_b32 {t[0]}, 15, {l}
            v_lshlrev_b32 {t[0]}, 2, {t[0]}
            v_add_u32 {V('KF')}, {sT1}, {t[0]}
            s_lshl_b32 {sT1}, {sT0}, 14
            s_add_u32 {sT1}, {sT1}, {WS_KP}
            v_add_u32 {V('KG')}, {sT1}, {V('l16')}
            s_lshl_b32 {sKPP}, {sR}, 10
            s_lshl_b32 {sT1}, {sT0}, 11
            s_add_u32 {sT1}, {sT1}, {WS_ZP}
            v_lshlrev_b32 {t[0]}, 2, {l}
            v_add_u32 {V('ZG')}, {sT1}, {t[0]}
            s_lshl_b32 {sZPP}, {sR}, 7
            s_mov_b32 s78, 0xffff0000
            s_mov_b32 s79, 0xffff0000
            s_sub_u32 s80, 0, {sRH}
            s_mov_b32 s81, s80
            v_lshlrev_b32 {t[0]}, 4, {hi}
            v_xor_b32 {t[1]}, 1, {nh}
            v_lshl_add_u32 {t[0]}, {t[1]}, 5, {t[0]}
            s_lshl_b32 {sT1}, {sW}, 6
            s_add_u32 {sT1}, {sT1}, {LDS_MISC + 7168}
            v_add_u32 {V('ZR')}, {sT1}, {t[0]}
            v_bfe_u32 {t[0]}, {l}, 3, 1
            v_lshl_add_u32 {t[0]}, {t[0]}, 2, {c3}
            v_lshlrev_b32 {t[0]}, 1, {t[0]}
            v_and_b32 {t[1]}, 1, {r4}
            v_lshl_add_u32 {t[0]}, {t[1]}, 4, {t[0]}
            v_lshl_add_u32 {t[0]}, {nh}, 5, {t[0]}
            v_add_u32 {V('ZW')}, {sT1}, {t[0]}
            s_add_u32 {sT1}, {sL1}, {LDS_MISC}
            v_add_u32 {V('XW')}, {sT1}, {V('l16')}
            """)
        else:
            o += L(f"""
            s_lshl_b32 {sT0}, {sT}, 1
            s_add_u32 {sT0}, {sT0}, {sJ}
            s_add_u32 {sT0}, {sT0}, 32
            s_lshl_b32 {sEh}, {sT0}, 10
            """)
        o += L(f"""
        s_lshl_b32 {sT0}, {sR2}, 1
        s_add_u32 {sT0}, {sT0}, {sRH}
        s_lshl_b32 {sT0}, {sT0}, 15
        s_lshl_b32 {sT1}, {sC2}, 1
        s_add_u32 {sT1}, {sT1}, {sJ}
        s_lshl_b32 {sT1}, {sT1}, 6
        s_add_u32 {sT0}, {sT0}, {sT1}
        v_lshlrev_b32 {t[0]}, 4, {hi}
        v_lshl_add_u32 {t[0]}, {l31}, 10, {t[0]}
        v_add_u32 {V('OUT')}, {sT0}, {t[0]}
        s_mov_b32 {sSpin}, 0
        """)
        r2 = self.opt.get("rot2", 2)
        if r2 == 0:
            o += L(f"s_mov_b32 {sT0}, 0")
        else:
            o += L(f"s_mul_i32 {sT0}, {sC2}, {r2}\ns_add_u32 {sT0}, {sT0}, {sR2}")
        for i in range(8):
            o += L(f"s_add_u32 {sT1}, {sT0}, {i}\ns_and_b32 {sT1}, {sT1}, 7\ns_lshl_b32 {sTab[i]}, {sT1}, 10")
        self.second = o

    def dma(self, s, vreg, soff, m0=None, off=0, flags=""):
        o = L(f"s_add_u32 m0, {m0[0]}, {m0[1]}") if m0 else []
        return o + L(f"buffer_load_dwordx4 {vreg}, {srd(s)}, {soff} offen offset:{off} {flags} lds")

    def item_loads(self, kind, i):
        A = self.typ == "A"
        V = self.V
        base = self.blk[(kind, i)] * 8192
        wf = self.opt.get("wflags", ""); xf = self.opt.get("xflags", ""); vf = self.opt.get("vflags", "")
        so = lambda c: L(f"s_mov_b32 {sKw}, {i*c[0] + c[1]}")
        def two(sr, nm, c, b):
            return [(so(c) if c is not None else []) + self.dma(sr, V(nm), sKw, (sL2, b), 0, wf), self.dma(sr, V(nm + "1"), sKw, None, 1024, wf)]
        kq, kw = 64 * 3072, 64 * 3584
        if kind == "X":
            g = [self.dma(SX, V(f"X{jj}"), sKw, None if jj else (sL4, base), jj * 1024, xf) for jj in range(4)]
            g[0] = so((128, 0)) + g[0]
        elif kind == "W":
            g = two(S1, "W1", None, base) + two(S2, "W2", None, base + 8192)
            g[0] = L(f"s_mul_i32 {sKw}, {sStr}, {i}") + g[0]
        elif kind == "G":
            g = two(SG, "Wg", (kw, 2560 if A else 1536), base) + two(SU, "Wu", None, base + 8192)
        elif kind == "H":
            g = two(SQ, "Wq", (kq, 0), base) if A else [so((kw, 1024)) + self.dma(SG, V("Hg"), sKw, (sL1, base), 0, wf), self.dma(SU, V("Hu"), sKw, (sL1, base + 4096), 0, wf)]
        else:
            ks, j, mul = self.step(i)
            sr, k = (SD, ks) if ks < 112 else (SO, ks - 112)
            g = [self.dma(sr, V(f"V{mul}"), sKw, (sL2, base), 0, vf), self.dma(sr, V(f"V{mul}1"), sKw, None, 1024, vf)]
            if mul == 8:
                g[0] = L(f"s_lshl4_add_u32 {sKw}, {sTab[j]}, {k*16384}") + g[0]
            else:
                g[0] = L(f"s_and_b32 {sKw}, {sTab[j]}, 0xc00\ns_lshl4_add_u32 {sKw}, {sKw}, {k*16384}") + g[0]
        g[-1][-1].tag = f"{kind}{i}"
        return g

    def v_loads(self, n): return self.item_loads("V", n)

    def plan(self):
        opt = self.opt
        lead1, lead2 = opt.get("lead1", 2), opt.get("lead2", 2)
        must = []
        for s in range(8): must += [("X", s, 2, 4, s, s + 1, lead1), ("W", s, 2, 4, s, s + 1, lead1)]
        for t in range(8):
            must.append(("G", t, 2, 4, 8 + t, 9 + t, lead2 if t < 5 else opt.get("lead3", 2)))
            if t < 4: must += [("H", 2 * t + i, 1, 2, 8 + t, 9 + t, lead2) for i in range(2)]
        b2 = opt.get("b2a", 12) if self.typ == "A" else opt.get("b2", 10)
        budget = {i: opt.get("b1", 8) if i < 8 else b2 for i in range(17)}
        budget[-1], budget[16] = 0, 99
        for i in (12, 13, 14, 15): budget[i] = opt.get("b3", 8)
        for k, v in self.budget_cut.items(): budget[k] -= v
        free_at = [-1] * 19
        self.blk, self.when = {}, {i: [] for i in range(-1, 17)}
        self.parks = {i: [] for i in range(-1, 17)}
        prate = opt.get("parka", 3) if self.typ == "A" else opt.get("parkb", 2)
        nv, npk, issued = 0, 0, {}
        for iv in range(-1, 16):
            left = budget[iv]
            def take(kind, i, nb, fr):
                fb = [b for b in range(19) if free_at[b] <= iv]
                if nb == 2: c = [b for b in fb if b % 2 == 0 and b + 1 in fb]
                elif kind == "V": c = sorted(fb, key=lambda b: (b != 18 and (b ^ 1) in fb, -b))
                else: c = sorted(fb, key=lambda b: (b != 18 and (b ^ 1) in fb, b))
                if not c: return False
                for x in range(nb): free_at[c[0] + x] = fr
                self.blk[(kind, i)] = c[0]
                self.when[iv].append((kind, i))
                return True
            while must and must[0][4] - must[0][6] <= iv:
                kind, i, nb, cost_, need, fr, _ = must[0]
                if not take(kind, i, nb, fr):
                    assert need - 1 > iv, (kind, i, iv)
                    break
                must.pop(0); left -= cost_
            while iv >= opt.get("park0", 99) and len(self.parks[iv]) < prate and npk < 17 and npk < nv and issued[npk] <= iv - opt.get("parklag", 2) and npk <= 4 * (iv - 8) - 2:
                self.parks[iv].append(npk)
                free_at[self.blk[("V", npk)]] = iv + 1
                npk += 1
            live = lambda j: sum(4 if st < 12 else 2 for st in range(max(j, 0), min(16, j + lead2 + 1)))
            owed = max(live(j) for j in range(iv, 17)) + (1 if iv < 10 else 0)
            while left >= 2 and nv < 36 and nv - (npk - len(self.parks[iv])) < 19 - owed and iv >= opt.get("v0", 6):
                if not take("V", nv, 1, 99): break
                issued[nv] = iv
                nv += 1; left -= 2
        assert not must
        fb = [b for b in range(19) if free_at[b] <= 16]
        self.post = []
        while nv < 36:
            if not fb:
                self.post.append(("park", npk)); fb.append(self.blk[("V", npk)]); npk += 1
            self.blk[("V", nv)] = fb.pop(0)
            self.post.append(("load", nv)); nv += 1
        self.npark = npk
        assert npk <= 20

    @staticmethod
    def step(n):
        if n < 8: return 0, n, 8
        if n < 16: return 80, n - 8, 8
        if n < 24: return 48, n - 16, 8
        if n < 28: return 32, n - 24, 4
        return 112, n - 28, 8

    def areg(self, n, sr): return 160 + (n % 12) * 8 + sr * 4

    def a_loads(self, n):
        ks, j, mul = self.step(n)
        g = [L(f"buffer_load_dwordx4 {ar(self.areg(n, sr))}, {self.V(f'A{mul}{sr}')}, {srd(SW)}, {sAo} offen sc1") for sr in range(2)]
        if mul == 8:
            g[0] = L(f"s_add_u32 {sAo}, {sTab[j]}, {ks*1024}") + g[0]
        else:
            g[0] = L(f"s_and_b32 {sAo}, {sTab[j]}, 0xc00\ns_add_u32 {sAo}, {sAo}, {ks*1024}") + g[0]
        return g

    def parked(self, n): return n < self.npark

    def vfrag(self, n, sn):
        if self.parked(n): return "a", n * 8 + sn * 4
        return "v", (64 if n % 2 == 0 else 80) + sn * 4

    def v_reads(self, n):
        base = self.blk[("V", n)] * 8192
        o = []
        for sn in range(2):
            k, b = self.vfrag(n, sn)
            for i in range(2):
                a, imm = self.lds(f"VR{sn}", base + i * 1024)
                o.append(L(f"ds_read_b64_tr_b16 {k}[{b+2*i}:{b+2*i+1}], {a} offset:{imm}"))
        o[-1][-1].tag = f"RV{n}"
        return o

    def poll_issue(self, reg, addr, off, wide=False):
        if wide:
            return L(f"buffer_load_dwordx2 {vr(reg, 2)}, {addr}, {srd(SW)}, 0 offen offset:{off} sc1")
        return L(f"buffer_load_dword v{reg}, {addr}, {srd(SW)}, 0 offen offset:{off} sc1")

    def poll_check(self, reg, addr, off, wide=False):
        ok, again = self.lab("ok"), self.lab("again")
        tr = reg + 1 if wide else reg
        ld = self.poll_issue(reg, addr, off, wide)[0].text
        return L(f"""
        v_cmp_ne_u32 vcc, {sTag}, v{tr}
        s_cbranch_vccz {ok}
        {again}:
        @raw s_sleep 2
        @raw {ld}
        @raw s_add_u32 {sSpin}, {sSpin}, 1
        @raw s_waitcnt vmcnt(0)
        @raw v_cmp_ne_u32 vcc, {sTag}, v{tr}
        @raw s_cmp_lt_u32 {sSpin}, 0x8000
        @raw s_cbranch_scc0 {ok}
        @raw s_cbranch_vccnz {again}
        {ok}:
        """)

    def flag_store(self, soff, off, tags):
        return L(f"""
        @vm {' '.join(tags)}
        s_mov_b64 exec, 1
        buffer_store_dword {self.V('tag')}, off, {srd(SW)}, {soff} offset:{off} sc1
        s_mov_b64 exec, -1
        """)

    def gate_loads(self):
        x0, x1, gw = self.v("gx0", 4, True), self.v("gx1", 4, True), self.v("ggw", 4, True)
        return [L(f"""
        s_lshl_b32 {sOff}, {sGrow}, 10
        buffer_load_dwordx4 {vr(x0)}, {self.V('l16')}, {srd(SX)}, {sOff} offen
        buffer_load_dwordx4 {vr(x1)}, {self.V('l16')}, {srd(SX)}, {sOff} offen offset:1024
        buffer_load_dwordx4 {vr(gw)}, {self.V('l16')}, {srd(SGW)}, 0 offen
        """)]

    def gate_compute(self):
        x = [self.v("gx0", 4, True), self.v("gx1", 4, True)]; gw = self.v("ggw", 4, True)
        t = [self.V(f"t{i}") for i in range(8)]
        s = [self.v("gs", 2, True), self.v("gs") + 1]
        one = self.V("gone", True)
        o = L(f"v_mov_b32 {one}, 0x3f803f80\nv_mov_b32 v{s[0]}, 0\nv_mov_b32 v{s[1]}, 0")
        for d in range(4):
            o += L(f"v_lshlrev_b32 {t[0]}, 16, v{gw+d}\nv_and_b32 {t[1]}, 0xffff0000, v{gw+d}")
            for r in range(2):
                o += L(f"""
                v_lshlrev_b32 {t[2+2*r]}, 16, v{x[r]+d}
                v_and_b32 {t[3+2*r]}, 0xffff0000, v{x[r]+d}
                v_mul_f32 {t[2+2*r]}, {t[2+2*r]}, {t[0]}
                v_mul_f32 {t[3+2*r]}, {t[3+2*r]}, {t[1]}
                v_cvt_pk_bf16_f32 {t[2+2*r]}, {t[2+2*r]}, {t[3+2*r]}
                v_lshlrev_b32 {t[6]}, 16, {t[2+2*r]}
                v_and_b32 {t[7]}, 0xffff0000, {t[2+2*r]}
                v_add_f32 v{s[r]}, v{s[r]}, {t[6]}
                v_add_f32 v{s[r]}, v{s[r]}, {t[7]}
                """)
        dpp = "row_mask:0xf bank_mask:0xf"
        o += L(f"""
        v_permlane32_swap_b32 v{s[0]}, v{s[1]}
        v_add_f32 v{s[0]}, v{s[0]}, v{s[1]}
        v_add_f32_dpp v{s[0]}, v{s[0]}, v{s[0]} quad_perm:[1,0,3,2] {dpp}
        v_add_f32_dpp v{s[0]}, v{s[0]}, v{s[0]} quad_perm:[2,3,0,1] {dpp}
        v_add_f32_dpp v{s[0]}, v{s[0]}, v{s[0]} row_half_mirror {dpp}
        v_add_f32_dpp v{s[0]}, v{s[0]}, v{s[0]} row_mirror {dpp}
        v_mov_b32 v{s[1]}, v{s[0]}
        v_permlane16_swap_b32 v{s[0]}, v{s[1]}
        v_add_f32 v{s[0]}, v{s[0]}, v{s[1]}
        v_cvt_pk_bf16_f32 v{s[0]}, v{s[0]}, v{s[0]}
        v_and_b32 v{s[0]}, 0xffff0000, v{s[0]}
        v_mul_f32 v{s[0]}, {f32(-LOG2E)}, v{s[0]}
        v_exp_f32 v{s[0]}, v{s[0]}
        v_add_f32 v{s[0]}, 1.0, v{s[0]}
        v_rcp_f32 v{s[0]}, v{s[0]}
        v_cvt_pk_bf16_f32 v{s[0]}, v{s[0]}, v{s[0]}
        v_and_b32 v{s[0]}, 0xffff0000, v{s[0]}
        v_mov_b32 v{s[1]}, {sTag}
        v_lshlrev_b32 {t[0]}, 3, {self.V('hi')}
        s_lshl_b32 {sOff}, {sGrow}, 3
        s_add_u32 {sOff}, {sOff}, {WS_G}
        """)
        groups = [[i] for i in o]
        groups.append(L(f"""
        s_mov_b32 exec_lo, 1
        s_mov_b32 exec_hi, 1
        buffer_store_dwordx2 {vr(s[0], 2)}, {t[0]}, {srd(SW)}, {sOff} offen sc1
        s_mov_b64 exec, -1
        """))
        groups = groups[:-4] + [sum(groups[-4:], [])]
        return groups

    def gate_fetch(self):
        g0, g1 = self.v("g0", 2), self.v("g1", 2)
        return [self.poll_issue(g0, self.V("G"), 0, True), self.poll_issue(g1, self.V("G"), 256, True)]

    def gate_check(self):
        o = []
        for i, nm in enumerate(("g0", "g1")):
            g = self.v(nm)
            o.append(self.poll_check(g, self.V("G"), 256 * i, True))
            o += [[x] for x in L(f"""
            v_sub_f32 v{g+1}, 1.0, v{g}
            v_cvt_pk_bf16_f32 v{g+1}, v{g+1}, v{g+1}
            v_and_b32 v{g+1}, 0xffff0000, v{g+1}
            v_max_f32 v{g+1}, {f32(1e-30)}, v{g+1}
            v_rcp_f32 v{g+1}, v{g+1}
            """)]
        return o

    def gelu_tile(self, t, rg, soff, off, tag=None):
        a = ACC(t, rg)
        io = f"v{self.v('g%d' % rg) + 1}"
        T = [self.V(f"t{i}") for i in range(8)]
        o = []
        for h in range(2):
            js = range(4 * h, 4 * h + 4)
            for stage in (
                lambda j, x: f"v_mul_f32 {x}, v{a+j}, v{a+j}",
                lambda j, x: f"v_fmaak_f32 {x}, {x}, v{self.v('KK', 2) + 1}, {f32(K0)}",
                lambda j, x: f"v_mul_f32 {x}, {x}, v{a+j}",
                lambda j, x: f"v_exp_f32 {x}, {x}",
                lambda j, x: f"v_mul_f32 v{a+8+j}, v{a+8+j}, v{a+j}",
                lambda j, x: f"v_fma_f32 {x}, {x}, {io}, {io}",
                lambda j, x: f"v_rcp_f32 {x}, {x}",
                lambda j, x: f"v_mul_f32 v{a+8+j}, v{a+8+j}, {x}",
            ):
                o += [L(stage(j, T[j & 3])) for j in js]
            o += [L(f"v_cvt_pk_bf16_f32 v{a+d}, v{a+8+2*d}, v{a+9+2*d}") for d in (2 * h, 2 * h + 1)]
        o.append(L(f"buffer_store_dwordx4 {vr(a)}, {self.V('HS%d' % rg)}, {srd(SW)}, {soff} offen offset:{off} sc1", tag))
        return o

    def gelu_tile_pk(self, t, rg, soff, off, tag=None):
        a = ACC(t, rg)
        g = self.v("g%d" % rg)
        T = self.v("t0")
        kk = self.v("KK", 2)
        p = lambda r: f"v[{r}:{r+1}]"
        o = []
        for st in range(9):
            for q in range(4):
                x, gg, uu = T + 2 * q, a + 2 * q, a + 8 + 2 * q
                if st == 0: o.append(L(f"v_pk_mul_f32 {p(x)}, {p(gg)}, {p(gg)}"))
                if st == 1: o.append(L(f"v_pk_fma_f32 {p(x)}, {p(x)}, {p(kk)}, {p(kk)} op_sel:[0,1,0] op_sel_hi:[1,1,0]"))
                if st == 2: o.append(L(f"v_pk_mul_f32 {p(x)}, {p(x)}, {p(gg)}"))
                if st == 3: o += [L(f"v_exp_f32 v{x}, v{x}"), L(f"v_exp_f32 v{x+1}, v{x+1}")]
                if st == 4: o.append(L(f"v_pk_mul_f32 {p(uu)}, {p(uu)}, {p(gg)}"))
                if st == 5: o.append(L(f"v_pk_fma_f32 {p(x)}, {p(x)}, {p(g)}, {p(g)} op_sel:[0,1,1] op_sel_hi:[1,1,1]"))
                if st == 6: o += [L(f"v_rcp_f32 v{x}, v{x}"), L(f"v_rcp_f32 v{x+1}, v{x+1}")]
                if st == 7: o.append(L(f"v_pk_mul_f32 {p(uu)}, {p(uu)}, {p(x)}"))
                if st == 8: o.append(L(f"v_cvt_pk_bf16_f32 v{a+q}, v{uu}, v{uu+1}"))
        o.append(L(f"buffer_store_dwordx4 {vr(a)}, {self.V('HS%d' % rg)}, {srd(SW)}, {soff} offen offset:{off} sc1", tag))
        return o

    def phi_pack(self, src, dst):
        T = [self.V(f"t{i}") for i in range(8)]
        o = []
        for q in range(4):
            js = range(4 * q, 4 * q + 4)
            for stage in (
                lambda j, x: f"v_mul_f32 {x}, {f32(LOG2E)}, v{src+j}",
                lambda j, x: f"v_exp_f32_e64 {x}, {x} clamp",
                lambda j, x: f"v_max_f32 v{src+j}, {f32(1e-6)}, v{src+j}",
                lambda j, x: f"v_add_f32 {x}, {x}, v{src+j}",
            ):
                o += [L(stage(j, T[j & 3])) for j in js]
            o += [L(f"v_cvt_pk_bf16_f32 v{dst+2*q+d}, {T[2*d]}, {T[2*d+1]}") for d in range(2)]
        return o

    def plain_pack(self, src, dst):
        return [L(f"v_cvt_pk_bf16_f32 v{dst+d}, v{src+2*d}, v{src+2*d+1}") for d in range(8)]

    def build(self):
        A = self.typ == "A"
        opt = self.opt
        V = self.V
        self.prologue()
        self.kvi = opt.get("kvi", 14)
        self.budget_cut = {i: opt.get("kvn", 6) for i in range(self.kvi, 16)} if A else {}
        self.touch2 = lambda k: touch2(self, k)
        self.plan()
        T = [self.v(f"t{i}") for i in range(8)]

        def trs(pat, off, dst, istep):
            r = []
            for i in range(2):
                a, imm = self.lds(pat, off + i * istep)
                r.append(L(f"ds_read_b64_tr_b16 v[{dst+2*i}:{dst+2*i+1}], {a} offset:{imm}"))
            return r

        def mfma(t, rg, wfr, n, swap):
            acc, xfr = vr(ACC(t, rg), 16), ar((n * 2 + rg) * 4)
            a, b = (xfr, wfr) if swap else (wfr, xfr)
            return L(f"v_mfma_f32_32x32x16_bf16 {acc}, {a}, {b}, {acc if n else 0}")

        units = []
        for m in range(16):
            s, half = m >> 1, m & 1
            xb, wbase = self.blk[("X", s)] * 8192, self.blk[("W", s)] * 8192
            wb = 64 if m % 2 == 0 else 80
            rd, mf = [], []
            for kk in range(2):
                k4 = half * 2 + kk
                n = s * 4 + k4
                xr = []
                for rg in range(2):
                    a, imm = self.lds(f"XR{k4}", xb + rg * 4096, True)
                    xr.append(L(f"ds_read_b128 {ar((n*2+rg)*4)}, {a} offset:{imm}"))
                w = [trs("Pl", wbase + t * 8192 + k4 * 2048, wb + kk * 8 + t * 4, 512) if A else
                     trs(f"M{t}", wbase + k4 * 2048, wb + kk * 8 + t * 4, 512) for t in range(2)]
                rd += [xr[0]] + w[0] + [xr[1]] + w[1]
                mf += [mfma(t, rg, vr(wb + kk * 8 + t * 4), n, A) for t in range(2) for rg in range(2)]
            units.append(([f"W{s}"] if half == 0 else None, rd, mf))
        for m in range(24):
            wb = 64 if m % 2 == 0 else 80
            rd, mf = [], []
            def pair(n, dst):
                gb = self.blk[("G", n >> 2)] * 8192 + (n & 3) * 2048
                return trs("M0", gb, dst, 512) + trs("M1", gb, dst + 4, 512), [mfma(t, rg, vr(dst + 4 * i), n, False) for i, t in enumerate((3, 4)) for rg in range(2)]
            def third(n, dst):
                hb = self.blk[("H", n >> 2)] * 8192
                r = trs("Pl", hb + (n & 3) * 2048, dst, 512) if A else trs("Hf", hb + (n & 3) * 1024, dst, 256)
                return r, [mfma(2, rg, vr(dst), n, False) for rg in range(2)]
            if m < 16:
                parts = [third(2 * m, wb), pair(m, wb + 4), third(2 * m + 1, wb + 12)]
                sy = [f"H{2*(m >> 2) + 1}"] if m % 4 == 0 else None
            else:
                n = 16 + 2 * (m - 16)
                parts = [pair(n, wb), pair(n + 1, wb + 8)]
                sy = [f"G{n >> 2}"] if m % 2 == 0 else None
            for r, f in parts: rd += r; mf += f
            units.append((sy, rd, mf))

        gaps, heads, ustart, syncgap = [], [], [], [0]
        for u, (sy, rd, mf) in enumerate(units):
            ustart.append(len(gaps))
            for i, m in enumerate(mf):
                heads.append((L("@lgkm0") if i == 0 else []) + m)
                gaps.append(Gap())
            g0 = ustart[u]
            if u + 1 < len(units):
                nsy, nrd, _ = units[u + 1]
                if nsy:
                    gaps[g0].pre += L(f"@sync {' '.join(nsy)}\ns_barrier")
                    syncgap.append(g0)
                span = len(mf) - 2
                for i, r in enumerate(nrd):
                    gaps[g0 + min(span - 1, (i * span) // len(nrd))].ds += r
            else:
                gaps[g0].pre += L("@sync\ns_barrier")
                syncgap.append(g0)
        ustart.append(len(gaps))
        U = lambda n: ustart[16 + n]
        one = lambda ins: [[x] for x in ins]

        def loads_of(iv): return sum((self.item_loads(k, i) for k, i in self.when[iv]), [])
        pro = loads_of(-1)
        pro[8:8] = self.gate_loads()
        self.pro_loads = pro
        pa, pb = self.v("pa"), self.v("pb")
        extra = {iv: [] for iv in range(17)}
        extra[6] += self.gate_fetch()
        if A:
            gl = []
            for r in range(16):
                gl.append((L(f"s_movk_i32 {sAo}, {(r >> 2) * 4096}") if r % 4 == 0 else []) +
                          L(f"buffer_load_dwordx4 {vr(96+4*r)}, {V('KG')}, {srd(SW)}, {sAo} offen offset:{(r & 3)*1024} sc1"))
            zin = opt.get("zin", 1)
            Z = [self.v("ones", 4) + i for i in range(4)] + T[4:8] if zin else list(range(80, 88))
            zl = [L(f"buffer_load_dword v{Z[i]}, {V('ZG')}, {srd(SW)}, 0 offen offset:{i*256} sc1") for i in range(8)]
            ng = opt.get("kvn", 6)
            if zin: gl = zl + gl; zl = []
            for iv in range(self.kvi, 16):
                k = ng + (8 if zin and iv == self.kvi else 0)
                extra[iv] += gl[:k]; gl = gl[k:]
            extra[16] += gl + zl
        for iv in range(16):
            ld = extra[iv] + loads_of(iv)
            if ld: place_mem(gaps, ld, syncgap[iv] + 1, syncgap[iv + 1])
            if self.parks[iv]:
                rd = []
                for n in self.parks[iv]:
                    r = self.v_reads(n)
                    r[0] = L(f"@vm V{n}") + r[0]
                    rd += r
                lo, hi = syncgap[iv] + 1, syncgap[iv + 1]
                cand = sorted(sorted(range(lo, hi), key=lambda g: gaps[g].used())[:len(rd)])
                for g, r in zip(cand, rd): gaps[g].ds += r
            t2 = opt.get("t2", 1)
            if 0 <= t2 <= iv < t2 + opt.get("t2n", 4):
                gaps[syncgap[iv + 1] - 1].va += touch2(self, iv - t2, True, 1 if opt.get("t3", -1) >= 0 else 0)
            if iv == opt.get("t3", -1): gaps[syncgap[iv + 1] - 1].va += touch2(self, 0, False, 2)

        place_valu(gaps, self.gate_compute(), ustart[opt.get("gate0", 1)], ustart[opt.get("gate1", 5)])
        place_valu(gaps, self.gate_check(), ustart[14] + 1, ustart[16] - 1)

        cap = opt.get("cap", 12) / 2
        G0, G3 = U(0), U(16)
        if not A:
            ep = []
            for t in range(2):
                for rg in range(2): ep += self.gelu_tile(t, rg, sE, t * 1024, tag="Est")
            last, c = place_valu(gaps, ep, G0 + 1, G3, cap)
            gaps[last + opt.get("e_lag", 36)].va += self.flag_store(sFP, 0, ["Est"]) + self.stamp("Efl")
            self.note = f"E epilogue ends in gap {last - G0} cap {c}"
            ep = self.gelu_tile(2, 0, sEh, 0, tag="Lst") + self.gelu_tile(2, 1, sEh, 0, tag="Lst")
            last, c = place_valu(gaps, ep, G3 + 2, U(24) - 1, cap)
            self.note += f"; third tile ends in gap {last - G0} cap {c}"
        else:
            ones, za = self.v("ones", 4), self.V("za")
            ep = [L(f"v_mov_b32 v{ones+i}, 0x3f803f80") for i in range(4)]
            ep += self.phi_pack(ACC(0, 0), 96) + self.plain_pack(ACC(1, 0), 128)
            ep += self.phi_pack(ACC(0, 1), 104) + self.plain_pack(ACC(1, 1), 136)
            last, c = place_valu(gaps, ep, G0 + 1, G3, opt.get("kvcap", 12) / 2)
            for f in range(4):
                gaps[last + 1 + f].va += L(f"v_mfma_f32_32x32x16_bf16 v[112:127], {vr(96+4*f)}, {vr(128+4*f)}, {'v[112:127]' if f else 0}")
                gaps[last + 1 + f].va += L(f"v_mfma_f32_32x32x16_bf16 v[144:159], {vr(ones)}, {vr(96+4*f)}, {'v[144:159]' if f else 0}")
            ep = [L(f"v_cndmask_b32 v{112+i}, v{112+i}, v{120+i}, {sMH}") for i in range(8)]
            ep += [L(f"v_cndmask_b32 v{120+i}, v{112+i}, v{116+i}, {sMR}") for i in range(4)]
            ep += [L(f"v_cndmask_b32 v{124+i}, v{116+i}, v{112+i}, {sMR}") for i in range(4)]
            ep += one(L(f"v_lshrrev_b32 {za}, 2, {V('XW')}\nv_add_u32 {za}, {LDS_MISC + 4096 - LDS_MISC//4}, {za}"))
            ep += [L(f"ds_write_b128 {V('XW')}, v[124:127]"), L(f"ds_write_b32 {za}, v144"), L(f"v_xor_b32 {za}, 0x200, {za}"), L(f"v_xor_b32 v{T[4]}, 0x800, {V('XW')}")]
            last, c = place_valu(gaps, ep, last + 7, G3, cap)
            sg = min(x for x in ustart if x > last)
            if sg not in syncgap: gaps[sg].pre += L("s_barrier")
            gaps[sg + 1].ds += L(f"ds_read_b128 v[124:127], v{T[4]}\nds_read_b32 v145, {za}")
            ep = [L(f"v_add_f32 v{120+i}, v{120+i}, v{124+i}") for i in range(4)]
            ep.append(L(f"v_add_f32 v144, v144, v145"))
            ep.append(L(f"buffer_store_dwordx4 v[120:123], {V('KG')}, {srd(SW)}, {sKPP} offen sc1"))
            last, c = place_valu(gaps, ep, sg + 5, G3, cap)
            z = L(f"""
            s_mov_b32 exec_hi, 0
            buffer_store_dword v144, {V('ZG')}, {srd(SW)}, {sZPP} offen sc1
            s_mov_b32 exec_hi, -1
            """)
            z[1].tag = "KVst"
            gaps[last + 1].va += z
            fl = last + opt.get("kv_lag", 32)
            gaps[fl].va += self.flag_store(sKFP, 0, ["KVst"]) + self.stamp("KVfl")
            chk = syncgap[self.kvi]
            assert fl < chk - opt.get("kv_pl", 12)
            gaps[chk - opt.get("kv_pl", 12)].vm += self.poll_issue(pa, V("KF"), 0)
            gaps[chk].va += self.stamp("KVq") + self.poll_check(pa, V("KF"), 0) + self.stamp("KVok")
            self.note = f"kv flag in gap {fl - G0}, check in gap {chk - G0}"
            last, c = place_valu(gaps, self.phi_pack(ACC(2, 0), 160) + self.phi_pack(ACC(2, 1), 168), G3 + 2, U(24) - 1, cap)
            self.note += f"; third tile ends in gap {last - G0} cap {c}"
            ep = []
            for st in (32, 16, 8, 4):
                ep += [L(f"v_pk_add_f32 v[{96+i}:{97+i}], v[{96+i}:{97+i}], v[{96+st+i}:{97+st+i}]") for i in range(0, st, 2)]
            zs = [L(f"v_pk_add_f32 v[{Z[i]}:{Z[i]+1}], v[{Z[i]}:{Z[i]+1}], v[{Z[st+i]}:{Z[st+i]+1}]") for st in (4, 2) for i in range(0, st, 2)]
            self.z_first = zs if zin else []
            if not zin: ep += zs
            ep += one(L(f"""
            v_add_f32 v{Z[0]}, v{Z[0]}, v{Z[1]}
            v_cvt_pk_bf16_f32 v100, v96, v97
            v_mov_b32 v{Z[1]}, v{Z[0]}
            v_cvt_pk_bf16_f32 v101, v98, v99
            v_lshrrev_b32 {za}, 1, {V('XW')}
            v_permlane32_swap_b32 v{Z[0]}, v{Z[1]}
            v_add_u32 {za}, {LDS_MISC - LDS_MISC//2}, {za}
            v_add_f32 v{Z[0]}, v{Z[0]}, v{Z[1]}
            ds_write_b64 {za}, v[100:101]
            v_cvt_pk_bf16_f32 v{Z[0]}, v{Z[0]}, v{Z[0]}
            v_xor_b32 {za}, 0x400, {za}
            ds_write_b16 {V('ZW')}, v{Z[0]}
            """))
            self.kv_reduce = ep
        gaps[U(24) - opt.get("epoll", 14)].vm += self.poll_issue(pb, V("F"), 0)

        body = self.stamp("start")
        ph1 = self.stamp("issued") + L(f"@sync W0\ns_barrier") + self.stamp("sync0")
        for r in units[0][1]: ph1 += r
        for u in range(len(units)):
            for g in range(ustart[u], ustart[u + 1]):
                ph1 += heads[g]
                if g == ustart[u] and u and ((u < 16 and u % (4 if opt.get("fewp1") else 2) == 0) or (u >= 16 and u % 4 == 0)): ph1 += self.stamp(f"s{u//2}" if u < 16 else f"p{(u-16)//4}")
                ph1 += gaps[g].emit()
        ph1 += self.stamp("p1end")

        gt = self.gelu_tile_pk if opt.get("pk", 1) else self.gelu_tile
        main = []
        tiles = []
        for t in range(2):
            for rg in range(2):
                tiles.append(gt(3 + t, rg, sL, t * 1024, tag="Lst"))
                tiles[-1][-1] += self.stamp(f"L{t}{rg}")
        if not A:
            main = sum(tiles, [])
            nL = len(main)
        else:
            kr = opt.get("kvr", 4)
            main = self.z_first + sum(tiles[:kr], [])
            self.need_side = len(main)
            main += self.kv_reduce
            main[-1] += self.stamp("red")
            main += sum(tiles[kr:], [])
            nL = len(main)
            main += [L("@lgkm0\ns_barrier") + self.stamp("bar"), L(f"ds_read_b64 v[102:103], {self.V('za')}\nds_read_b128 v[108:111], {V('ZR')}")]
            main += [[x] for x in L(f"""
            v_cndmask_b32 v104, v100, v102, {sMR}
            v_cndmask_b32 v105, v101, v103, {sMR}
            v_cndmask_b32 v106, v102, v100, {sMR}
            v_cndmask_b32 v107, v103, v101, {sMR}
            """)]
            for i in range(4):
                main += [L(f"v_cndmask_b32 v{176+i}, v{104+i}, v{108+i}, {sMH}"), L(f"v_cndmask_b32 v{180+i}, v{108+i}, v{104+i}, {sMH}")]
            for rg in range(2):
                for hh in range(2):
                    main.append(L(f"v_mfma_f32_32x32x16_bf16 {vr(192 + (rg*2+hh)*16, 16)}, {vr(176+4*hh)}, {vr(160 + rg*8 + hh*4)}, 0"))
            dens = []
            for rg in range(2):
                for hh in range(2):
                    b = 192 + (rg * 2 + hh) * 16
                    dens.append((rg, hh, b, b + 8) if hh == 0 else (rg, hh, b + 8, b))
            main += [L(f"v_add_f32 v{d}, {f32(1e-6)}, v{d}") for _, _, _, d in dens]
            main += [L(f"v_rcp_f32 v{d}, v{d}") for _, _, _, d in dens]
            main += [L(f"v_mul_f32 v{d}, v{d}, v{self.v('g%d' % rg)}") for rg, _, _, d in dens]
            osts = []
            for rg, hh, num, den in dens:
                main += [L(f"v_pk_mul_f32 v[{num+j}:{num+j+1}], v[{num+j}:{num+j+1}], v[{den}:{den+1}] op_sel_hi:[1,0]") for j in range(0, 8, 2)]
                d = 160 + (rg * 2 + hh) * 4
                main += [L(f"v_cvt_pk_bf16_f32 v{d+j}, v{num+2*j}, v{num+2*j+1}") for j in range(4)]
                osts.append(L(f"buffer_store_dwordx4 {vr(d)}, {V('HS%d' % rg)}, {srd(SW)}, {sO} offen offset:{hh*1024} sc1", "Ost"))
                if not opt.get("batch", 0): main.append(osts.pop())
            main += osts
            lf = opt.get("lfa", 60)
            lastL = max(j for j, g in enumerate(main) if any(x.tag == "Lst" for x in g))
            main.insert(min(len(main), lastL + 1 + lf), self.flag_store(sFP, 256, ["Lst"]) + self.stamp("Lfl"))
        slots = [list(g) for g in main]
        side = list(extra[16])
        side.append(self.stamp("Eq") + self.poll_check(pb, V("F"), 0) + self.stamp("Eok"))
        for n in range(8): side += self.a_loads(n)
        post = list(self.post)
        seq = []
        for j, (k, n) in enumerate(post):
            if k == "park":
                pos = len(seq) - 1 if seq and seq[-1][0] == "load" and j > 0 else len(seq)
                seq.insert(max(pos, 0), (k, n))
            else:
                seq.append((k, n))
        for k, n in seq:
            if k == "park": side.append(L(f"@vm V{n}") + sum(self.v_reads(n), []))
            else:
                src = [m for m in range(n) if self.blk[("V", m)] == self.blk[("V", n)] and ("park", m) in post]
                if src: side.append(L(f"@rd V{src[-1]}"))
                side += self.v_loads(n)
        every2 = (opt.get("midea2", 30) if A else opt.get("mide2", 60)) / 4.0
        every = (opt.get("midea", 60) if A else opt.get("mide", 45)) / 4.0
        acc, k = opt.get("mid0", 0) / 4.0, 0
        for j, (sl, g) in enumerate(zip(slots, main)):
            if j == nL: every = every2
            if A and j == self.need_side - 1:
                while k < len(extra[16]): sl += side[k]; k += 1
            acc += sum(2 if x.kind == "valu" and x.op.startswith(TRANS) else 1 for x in g)
            if any(x.kind == "vmem" for x in g): acc -= every
            while k < len(side) and acc >= every:
                sl += side[k]
                if any(x.kind == "vmem" for x in side[k]): acc -= every
                k += 1
        rest = side[k:]
        self.note += f"; mid takes {k} of {len(side)} side groups"
        mid = sum(slots, []) + self.stamp("mid")
        nA = max([j + 1 for j, g in enumerate(rest) if any("a[" in x.text and x.kind == "vmem" for x in g)], default=0)
        mid += sum(rest[:nA], [])
        rest = rest[nA:]
        nP = max([j + 1 for j, g in enumerate(rest) if any(x.kind == "ds" and x.tag and int(x.tag[2:]) < 8 for x in g)], default=0)
        mid += sum(rest[:nP], [])
        rest = rest[nP:]
        if not self.parked(0):
            mid += L("@vm V0")
            for r in self.v_reads(0): mid += r

        DA = opt.get("da", 4)
        ph2 = []
        for n in range(36):
            mf = []
            for sr in range(2):
                for sn in range(2):
                    k, b = self.vfrag(n, sn)
                    acc = vr(96 + (sr * 2 + sn) * 16, 16)
                    mf.append(L(f"v_mfma_f32_32x32x16_bf16 {acc}, {k}[{b}:{b+3}], {ar(self.areg(n, sr))}, {acc if n else 0}"))
            g = [[] for _ in range(4)]
            if n + 1 < 36 and not self.parked(n + 1):
                g[0] += L(f"@vm V{n+1}")
                rd = self.v_reads(n + 1)
                g[0] += rd[0] + rd[1]; g[1] += rd[2] + rd[3]
            vl = []
            if n < 8:
                rest = rest + vl
                take = -(-len(rest) // (8 - n))
                vl = rest[:take]
                rest = rest[take:]
            for i, x in enumerate(vl): g[min(3, 1 + i * 3 // len(vl))] += x
            if n == (opt.get("oflag_at", 3) if A else opt.get("lflag_at", 3)):
                g[3] += (self.flag_store(sFP, 384, ["Ost"]) if A else self.flag_store(sFP, 128, ["Lst"])) + self.stamp("fl")
            m = n + (DA if n >= 8 else 0)
            for first, off in ((8, 256), (16, 128), (28, 384)):
                at = max(first - DA, 7)
                if n == at - (opt.get("pl8", 3) if first == 8 else opt.get("pl", 3)): g[3] += self.poll_issue(pa, V("F"), off)
                if n == at: g[2] += self.stamp(f"q{first}") + self.poll_check(pa, V("F"), off) + self.stamp(f"k{first}")
            if n == 7:
                for mm in range(8, 8 + DA): g[3] += sum(self.a_loads(mm), [])
            if n >= 8 and n + DA < 36: g[3] += sum(self.a_loads(n + DA), [])
            ph2 += L("@lgkm0")
            for i in range(4):
                ph2 += mf[i]
                if i == 0 and n % 4 == 0: ph2 += self.stamp(f"u{n}")
                ph2 += g[i]
        assert not rest
        ph2 += self.stamp("ph2end")

        fin = []
        T = [self.v(f"t{i}") for i in range(8)]
        RW = f"v{T[0]}"
        rws = L(f"v_mbcnt_lo_u32_b32 {RW}, -1, 0\nv_mbcnt_hi_u32_b32 {RW}, -1, {RW}\nv_lshl_add_u32 {RW}, {RW}, 4, {sL2}")
        for sg in range(1, 4): rws += L(f"v_xor_b32 v{T[sg]}, {sg*2048}, {RW}")
        mid += rws
        for sg in range(1, 4):
            for q in range(4):
                fin += L(f"ds_write_b128 {RW}, {vr(96 + sg*16 + q*4)} offset:{((sg-1)*2 + (q >> 1))*8192 + (q & 1)*1024}")
        fin += L("@lgkm0\ns_barrier") + self.stamp("redbar")
        for q in range(4):
            for sg in range(1, 4):
                fin += L(f"ds_read_b128 {vr(96 + sg*16 + q*4)}, v{T[sg]} offset:{((sg-1)*2 + (q >> 1))*8192 + (q & 1)*1024}")
        of = opt.get("oflags", "")
        for pr in range(2):
            for q in (2 * pr, 2 * pr + 1):
                for h in range(2):
                    r = 96 + q * 4 + 2 * h
                    fin += L(f"""
                    v_pk_add_f32 v[{r}:{r+1}], v[{r}:{r+1}], v[{r+16}:{r+17}]
                    v_pk_add_f32 v[{r+32}:{r+33}], v[{r+32}:{r+33}], v[{r+48}:{r+49}]
                    v_pk_add_f32 v[{r}:{r+1}], v[{r}:{r+1}], v[{r+32}:{r+33}]
                    """)
            d = 160 + pr * 4
            for i in range(4):
                r = 96 + pr * 8 + 2 * i
                fin += L(f"v_cvt_pk_bf16_f32 v{d+i}, v{r}, v{r+1}")
            fin += L(f"""
            v_permlane32_swap_b32 v{d}, v{d+2}
            v_permlane32_swap_b32 v{d+1}, v{d+3}
            buffer_store_dwordx4 {vr(d)}, {V('OUT')}, {srd(SOUT)}, 0 offen offset:{pr*32} {of}
            """)
        skip = self.lab("noep")
        fin += L(f"""
        s_or_b32 {sT0}, s2, {sW}
        s_cmp_lg_u32 {sT0}, 0
        s_cbranch_scc1 {skip}
        s_mov_b64 exec, 1
        @raw buffer_store_dword {V('tag')}, off, {srd(SW)}, 0 offset:{WS_EPOCH} sc1
        {skip}:
        """)
        if opt.get("padto"):
            lp = self.lab("pad")
            if "xstamp" in opt:
                fin += L("@lgkm0\ns_mov_b32 s3, s4")
            fin += L(f"""
            {lp}:
            @raw s_memrealtime s[82:83]
            @raw s_waitcnt lgkmcnt(0)
            @raw s_sub_u32 s82, s82, s3
            @raw s_cmp_lt_u32 s82, {opt['padto']}
            @raw s_cbranch_scc1 {lp}
            """)
        if opt.get("stamps"):
            st = V("stamps")
            fin += L("s_mov_b64 exec, -1") + self.stamp("stored") + L("@vm0") + self.stamp("end") + self.stamp("FLUSH")
            fin += L(f"""
            s_memrealtime s[4:5]
            v_writelane_b32 {st}, s6, 60
            v_writelane_b32 {st}, {sSpin}, 61
            v_writelane_b32 {st}, s3, 62
            v_writelane_b32 {st}, s4, 63
            s_lshl_b32 {sT0}, s2, 2
            s_add_u32 {sT0}, {sT0}, {sW}
            s_lshl_b32 {sT0}, {sT0}, 8
            s_add_u32 {sT0}, {sT0}, {WS_STAMP}
            v_mbcnt_lo_u32_b32 v96, -1, 0
            v_mbcnt_hi_u32_b32 v96, -1, v96
            v_lshlrev_b32 v96, 2, v96
            buffer_store_dword {st}, v96, {srd(SW)}, {sT0} offen
            """)
        fin += L("s_endpgm")

        fin += L(f"L_end{self.typ}:")
        loads = self.pro_loads
        t1 = []
        if opt.get("t1", 2) == 1:
            t1 = L(f"""
            s_mov_b64 exec, 0xffff
            buffer_load_dword v254, v246, {srd(SX)}, {sTx} offen
            s_mov_b64 exec, 0xff
            buffer_load_dword v253, v246, {srd(SQ)}, {sTq} offen
            s_mov_b64 exec, 15
            buffer_load_dword v252, v246, {srd(SG)}, {sTg} offen
            buffer_load_dword v251, v246, {srd(SU)}, {sTg} offen
            s_mov_b64 exec, -1
            """)
        common = common_head(opt) + self.first + L("@lgkm0")
        if opt.get("stamps") or opt.get("padto"): common += L("s_mov_b32 s3, s4")
        common += L(f"s_load_dword {sTag}, s[{SW}:{SW+1}], {WS_EPOCH}")
        p1 = opt.get("t1pos", 0)
        nc = opt.get("nc", 8)
        common += sum(loads[:p1], []) + t1 + sum(loads[p1:nc], [])
        common += L("s_bitcmp1_b32 s2, 6\ns_cbranch_scc1 L_pathB")
        head = body + self.second + self.setup + sum(loads[nc:], [])
        if opt.get("t2", 1) == -3: head += touch2(self, 0, False)
        head += L(f"s_add_u32 {sTag}, {sTag}, 0x9e3779b9\nv_mov_b32 {V('tag')}, {sTag}")
        if opt.get("nosc1"):
            for x in ph1 + mid:
                if x.kind == "vmem" and "store_dwordx4" in x.op: x.text = x.text.replace(" sc1", "")
        if opt.get("nost") == 2:
            for x in ph1 + mid:
                if x.kind == "vmem" and "store_dwordx4" in x.op: x.text = re.sub(r"(s\[\d+:\d+\]), \S+ offen", r"\1, s35 offen", x.text.replace("s[32:35]", "s[40:43]")).replace(" sc1", "")
        if opt.get("novalu"):
            mid = [x for x in mid if not (x.kind == "valu" and x.op.startswith(("v_pk", "v_exp", "v_rcp", "v_mul", "v_max", "v_add_f32", "v_cvt")))]
        if opt.get("novalu") == 2:
            keep = lambda x: not (x.kind == "valu" and x.op.startswith(("v_pk", "v_exp", "v_rcp", "v_mul", "v_max", "v_add_f32", "v_cvt", "v_fma")))
            k0 = next(i for i, x in enumerate(ph1) if "H1" in x.text)
            ph1 = ph1[:k0 + 200] + [x for x in ph1[k0 + 200:] if keep(x)]
        if opt.get("nost") == 1:
            for x in ph1 + mid:
                if x.kind == "vmem" and "store_dwordx4" in x.op: x.text = x.text.replace("_dwordx4", "_dword").replace(" sc1", ""); x.text = re.sub(r"v\[(\d+):\d+\]", r"v\1", x.text, 1)
        if opt.get("nomfma"): ph1 = [x for x in ph1 if x.kind != "mfma"]; ph2 = [x for x in ph2 if x.kind != "mfma"]
        if opt.get("nods"): ph1 = [x for x in ph1 if not x.op.startswith("ds_read")]; ph2 = [x for x in ph2 if not x.op.startswith("ds_read")]
        if opt.get("nobar"): ph1 = [x for x in ph1 if x.op != "s_barrier"]
        if opt.get("nodma"): ph1 = [x for x in ph1 if not (x.kind == "vmem" and x.lds and not x.tag)]
        return self.expand_stamps(common + head + ph1 + mid + ph2 + fin)


def touch(sr, mask, code, dst, raw=False):
    p = "@raw " if raw else ""
    return L(f"{code}\ns_mov_b64 exec, {mask}\n{p}buffer_load_dword v{dst}, v246, {srd(sr)}, {sOff} offen")


def rowhalf(stride, nbytes, c0):
    return (f"s_lshr_b32 {sOff}, {sGW}, 1\ns_mul_i32 {sOff}, {sOff}, {stride}\ns_and_b32 {sT0}, {sGW}, 1\n"
            f"s_mul_i32 {sT0}, {sT0}, {nbytes}\ns_add_u32 {sOff}, {sOff}, {sT0}" + (f"\ns_add_u32 {sOff}, {sOff}, {c0}" if c0 else ""))


def touch2(g, k, cond=True, part=0):
    skip = g.lab("t2") if cond else None
    n = g.opt.get("t2n", 4) if cond else 1
    o = L(f"s_and_b32 {sT0}, {sSel}, {n-1}\ns_cmp_lg_u32 {sT0}, {k}\ns_cbranch_scc1 {skip}") if cond else []
    p = "@raw " if cond else ""
    if part in (0, 1):
        o += touch(SG, "0x3ff", rowhalf(3584, 1280, 1024), 250, cond) + L(p + f"buffer_load_dword v249, v246, {srd(SU)}, {sOff} offen")
        o += touch(SQ, "15", rowhalf(3072, 512, 0), 248, cond)
    if part == 0:
        o += touch(SO, "15", f"s_lshl_b32 {sOff}, {sGW}, 9", 247, cond)
        o += touch(SD, "0x3fff", f"s_mul_i32 {sOff}, {sGW}, 1792", 245, cond)
    if part == 2:
        a, d = g.v("t5"), g.v("t6")
        o += L(f"v_mbcnt_lo_u32_b32 v{a}, -1, 0\nv_mbcnt_hi_u32_b32 v{a}, -1, v{a}\nv_lshlrev_b32 v{a}, 7, v{a}")
        o += L(f"s_lshl_b32 {sOff}, {sGW}, 9\ns_mov_b64 exec, 15\nbuffer_load_dword v{d}, v{a}, {srd(SO)}, {sOff} offen")
        o += L(f"s_mul_i32 {sOff}, {sGW}, 1792\ns_mov_b64 exec, 0x3fff\nbuffer_load_dword v{d+1}, v{a}, {srd(SD)}, {sOff} offen")
    o += L("s_mov_b64 exec, -1")
    if cond: o += L(f"{skip}:")
    return o


def codepf(opt):
    o = L(f"""
    s_getpc_b64 s[82:83]
    L_pc:
    s_bitcmp1_b32 s2, 6
    s_cselect_b32 {sT2}, L_pathB-L_pathA, 0
    s_add_u32 {sT2}, {sT2}, L_pathA-L_pc
    """)
    m = opt.get("codepf", 3)
    if m == 1:
        o += L(f"""
        s_bfe_u32 {sT0}, s2, 0x30003
        s_lshr_b32 {sT1}, s2, 7
        s_lshl3_add_u32 {sT0}, {sT1}, {sT0}
        s_mul_i32 {sT0}, {sT0}, 1536
        s_add_u32 {sT2}, {sT2}, {sT0}
        v_min_u32 v1, 11, v0
        v_lshl_add_u32 v1, v1, 7, {sT2}
        v_min_u32 v1, L_endB-L_pc-4, v1
        global_load_dword v255, v1, s[82:83]
        """)
    elif m == 2:
        o += L(f"""
        v_lshl_add_u32 v1, v0, 7, {sT2}
        v_min_u32 v1, L_endB-L_pc-4, v1
        global_load_dword v255, v1, s[82:83]
        """)
    elif m == 3:
        o += L(f"""
        s_bfe_u32 {sT0}, s2, 0x30003
        s_lshr_b32 {sT1}, s2, 7
        s_lshl3_add_u32 {sT0}, {sT1}, {sT0}
        s_mul_i32 {sT0}, {sT0}, 1536
        s_add_u32 {sT0}, {sT2}, {sT0}
        v_and_b32 v1, 63, v0
        v_lshlrev_b32 v1, 7, v1
        s_mov_b64 exec, 0x1ff
        global_load_dword v244, v1, s[82:83]
        v_add_u32 v2, {sT2}, v1
        global_load_dword v243, v2, s[82:83]
        s_mov_b64 exec, -1
        v_min_u32 v1, 11, v0
        v_lshl_add_u32 v1, v1, 7, {sT0}
        v_min_u32 v1, L_endB-L_pc-4, v1
        global_load_dword v255, v1, s[82:83]
        """)
    return o


def common_head(opt):
    o = L(f"""
    s_cmp_ge_u32 s2, 0x100
    s_cbranch_scc1 L_end
    """)
    if opt.get("stamps") or opt.get("padto"):
        o += L(("s_memrealtime" if opt.get("rt") else "s_memtime") + " s[6:7]\ns_memrealtime s[4:5]")
    if opt.get("t1", 2) == 2:
        o += L("""
        s_load_dwordx4 s[44:47], s[0:1], 0
        s_load_dwordx4 s[48:51], s[0:1], 32
        """)
    if opt.get("pftop", 1): o += codepf(opt)
    if opt.get("t1", 2) == 2:
        o += L(f"""
        v_lshrrev_b32 v2, 6, v0
        v_lshl_add_u32 v2, s2, 2, v2
        v_and_b32 v1, 63, v0
        v_lshlrev_b32 v1, 7, v1
        v_lshl_add_u32 v3, v2, 11, v1
        v_lshrrev_b32 v4, 1, v2
        v_and_b32 v2, 1, v2
        v_mad_u32_u24 v5, v4, 3, v2
        v_mad_u32_u24 v4, v4, 7, v2
        v_lshl_add_u32 v5, v5, 10, v1
        v_lshl_add_u32 v4, v4, 9, v1
        s_mov_b64 exec, 0xffff
        @lgkm0
        global_load_dword v254, v3, s[44:45]
        s_mov_b64 exec, 0xff
        global_load_dword v253, v5, s[46:47] offset:1024
        s_mov_b64 exec, 15
        global_load_dword v252, v4, s[48:49]
        global_load_dword v251, v4, s[50:51]
        s_mov_b64 exec, -1
        """)
    o += L(f"""
    s_bitcmp1_b32 s2, 6
    s_cselect_b32 {sT0}, 32, 8
    s_cselect_b32 {sT1}, 40, 8
    s_load_dwordx2 s[{S1}:{S1+1}], s[0:1], {sT0}
    s_load_dwordx2 s[{S2}:{S2+1}], s[0:1], {sT1}
    """)
    for b, slot in ((SX, 0), (SG, 4), (SU, 5), (SQ, 1), (SGW, 7), (SW, 10), (SD, 6), (SO, 2), (SOUT, 8)):
        o += L(f"s_load_dwordx2 s[{b}:{b+1}], s[0:1], {slot*8}")
    if not opt.get("pftop", 1): o += codepf(opt)
    for b, n in ((SX, 2048 * 1024), (SQ, 512 * 3072), (SG, 512 * 3584), (SU, 512 * 3584), (SD, 1792 * 1024),
                 (SO, 512 * 1024), (SW, WS_BYTES), (SOUT, 2048 * 1024), (SGW, 1024)):
        o += L(f"s_mov_b32 s{b+2}, {n}\ns_mov_b32 s{b+3}, 0x20000")
    return o


def assemble_sizes(txt):
    import subprocess, tempfile, os
    d = tempfile.mkdtemp()
    open(d + "/a.s", "w").write('.amdgcn_target "amdgcn-amd-amdhsa--gfx950"\n.text\nk:\n' + txt)
    subprocess.run(["clang", "-x", "assembler", "-target", "amdgcn-amd-amdhsa", "-mcpu=gfx950", "-c", d + "/a.s", "-o", d + "/a.o"], check=True)
    o = subprocess.run(["llvm-objdump", "-d", "--mcpu=gfx950", d + "/a.o"], capture_output=True, text=True).stdout
    sizes = [4 * len(re.match(r".*// [0-9A-F]+: ((?:[0-9A-F]{8} ?)+)", l).group(1).split()) for l in o.split("\n") if re.match(r".*// [0-9A-F]+: [0-9A-F]{8}", l)]
    return sizes


def generate(opt):
    parts = []
    info = []
    names = []
    for typ in "AB":
        g = Gen(typ, opt)
        ins, added = finalize(g.build())
        k = next(i for i, x in enumerate(ins) if x.text.startswith("s_cbranch_scc1 L_pathB"))
        parts.append((ins[:k + 1], ins[k + 1:]))
        info.append((typ, len(ins), added, g.nv, g.hi_next))
        if opt.get("plan"):
            print(typ, g.note)
            for k, v in g.when.items(): print("  ", k, " ".join(f"{a}{b}@{g.blk[(a, b)]}" for a, b in v), "park", g.parks[k])
            print("   post", g.post)
        names.append("; stamps " + typ + ": " + " ".join(g.stamp_names) + "\n" if g.stamp_names else "")
    assert text_of(parts[0][0]) == text_of(parts[1][0])
    txt = text_of(parts[0][0]) + "L_pathA:\n" + text_of(parts[0][1]) + "L_pathB:\n" + text_of(parts[1][1]) + "L_end:\n    s_endpgm\n"
    if opt.get("align", 1):
        txt, nw, nn = align8(txt, assemble_sizes)
        info.append(("align", nw, nn))
    ref = open("gated_mix__linear_attn_block__geglu_ffn__prompt.s.ref").read()
    hdr = "".join(l + "\n" for l in ref.split("\n") if l.startswith(";") and "@launch" not in l and "Override" not in l and "grid=ceil" not in l)
    out = f"""{hdr}{"".join(names)}; @launch grid=(256,1,1) block=(256,1,1) lds=163840
.amdgcn_target "amdgcn-amd-amdhsa--gfx950"
.text
.globl {KNAME}
.p2align 8
.type {KNAME},@function
{KNAME}:
{txt}.section .rodata,"a"
.p2align 6
.amdhsa_kernel {KNAME}
  .amdhsa_next_free_vgpr 512
  .amdhsa_next_free_sgpr 102
  .amdhsa_accum_offset 256
  .amdhsa_group_segment_fixed_size 0
  .amdhsa_kernarg_size 88
  .amdhsa_user_sgpr_count 2
  .amdhsa_user_sgpr_kernarg_segment_ptr 1
  .amdhsa_system_sgpr_workgroup_id_x 1
  .amdhsa_float_denorm_mode_32 3
.end_amdhsa_kernel
"""
    return out, info


def parse_opts(args):
    opt = {}
    for a in args:
        k, v = a.split("=", 1)
        try: v = int(v)
        except ValueError: v = v.replace("+", " ")
        opt[k] = v
    return opt


if __name__ == "__main__":
    out, info = generate(parse_opts(sys.argv[2:]))
    open(sys.argv[1], "w").write(out)
    print(info)
```

```python
import sys, struct, re
from prog import *

KNAME = "gated_mix__linear_attn_block__geglu_ffn__prompt_kernel"

WS_EPOCH = 0
WS_FL = 0x1000
WS_KF = 0x12000
WS_G = 0x14000
WS_ZP = 0x18000
WS_KP = 0x28000
WS_KT = 0xA8000
WS_H = 0x100000
WS_STAMP = 0x8000000
RG_BYTES = 144 * 1024
WS_BYTES = 268435456

def f32(x): return "0x%08x" % struct.unpack("<I", struct.pack("<f", x))[0]
LOG2E = 1.4426950408889634
K0 = -2.0 * 0.7978845608028654 * LOG2E
K1 = K0 * 0.044715

SX, SQ, SG, SU, SD, SO, SW, SOUT, SGW = 8, 12, 16, 20, 24, 28, 32, 36, 40
srd = lambda b: f"s[{b}:{b+3}]"
(sW, sRH, sJ, sR, sT, sTag, sR2, sC2, sT0, sT1, sT2, sRot, sKx, sKw, sKq, sL4, sL2, sL1, sCE, sCH, sCL,
 sE, sEh, sL, sO, sFP, sKFP, sKPP, sZPP, sA0, sA1, sSpin, sGrow, sOff) = [f"s{i}" for i in range(44, 78)]
sAo = sA0
sMH = "s[78:79]"
sMR = "s[80:81]"
sPC = "s[4:5]"
STAMP0 = 82
sGW = "s92"
sTab = [f"s{i}" for i in range(93, 101)]
sSel = "s101"
sKB, sZB, sTB, sStr = sRot, sKx, sKq, sCL
S1, S2 = 84, 88

ACC = lambda t, rg: 96 + (t * 2 + rg) * 16
vr = lambda b, n=4: f"v[{b}:{b+n-1}]"
ar = lambda b, n=4: f"a[{b}:{b+n-1}]"
LDS_MISC = 19 * 8192


def hoist_m0(groups):
    out = [list(g) for g in groups]
    for i in range(1, len(out)):
        if len(out[i]) == 2 and out[i][0].text.startswith("s_add_u32 m0") and out[i - 1][-1].kind == "vmem":
            out[i - 1].append(out[i].pop(0))
    return out


class Gen:
    def __init__(self, typ, opt):
        self.typ = typ
        self.opt = opt
        self.nv = 1
        self.names = {}
        self.setup = []
        self.hi_next = 192
        self.nstamp = 0
        self.nlab = 0

    def v(self, name, n=1, p1only=False):
        if name not in self.names:
            if p1only:
                if n > 1: self.hi_next = (self.hi_next + 1) // 2 * 2
                self.names[name] = self.hi_next; self.hi_next += n
                assert self.hi_next <= 256
            else:
                if n > 1: self.nv = (self.nv + 1) // 2 * 2
                self.names[name] = self.nv; self.nv += n
                assert self.nv <= 64, name
        return self.names[name]

    def V(self, name, p1only=False): return f"v{self.v(name, 1, p1only)}"

    def lab(self, s):
        self.nlab += 1
        return f"L_{self.typ}_{s}_{self.nlab}"

    def stamp(self, name):
        if "xstamp" in self.opt:
            return L("s_memrealtime s[4:5]") if name == self.opt["xstamp"] else []
        if not self.opt.get("stamps"): return []
        if self.opt.get("coarse") and name not in ("start", "sync0", "s4", "p0", "p4", "p1end", "mid", "u8", "u28", "ph2end", "end", "FLUSH"): return []
        return [I("@stamp " + name)]

    def expand_stamps(self, ins):
        out, n = [], 0
        self.stamp_names = []
        lines = mf = 0
        half = {f"v{self.names.get('Hg', -1)},", f"v{self.names.get('Hu', -1)},"}
        for x in ins:
            if x.kind == "vmem":
                lines += (16 if x.text.split()[1] in half else 8) if "x4" in x.op else 2
            if x.kind == "mfma": mf += 1
            if x.kind == "pseudo" and x.text.startswith("@stamp"):
                i = (STAMP0, 4)[n % 2]
                if n: out += L(f"v_writelane_b32 {self.V('stamps')}, s{(STAMP0, 4)[(n-1) % 2]}, {n-1}")
                nm = x.text.split()[1]
                if nm != "FLUSH":
                    out += L(f"{'s_memrealtime' if self.opt.get('rt') else 's_memtime'} s[{i}:{i+1}]")
                    self.stamp_names.append(f"{nm}:{lines}:{mf}")
                    n += 1
                    assert n <= 60, n
            else:
                out.append(x)
        return out

    def lds(self, pat, off, p1only=False):
        win, imm = off >> 16, off & 0xFFFF
        if win == 0:
            return self.V(pat, p1only), imm
        name = f"{pat}@{win}"
        if name not in self.names:
            self.setup += L(f"v_add_u32 {self.V(name, p1only)}, {win << 16}, {self.V(pat, p1only)}")
        return self.V(name), imm

    def prologue(self):
        A = self.typ == "A"
        V = self.V
        self.nv = 2
        t = [self.V(f"t{i}") for i in range(8)]
        l, l3, l7, l4, nh, wsw = [self.V(n, True) for n in ("lane", "l3", "l7", "l4", "nh", "wsw")]
        P = lambda n: self.V(n, True)
        self.first = L(f"""
        v_lshrrev_b32 {t[0]}, 6, v0
        v_and_b32 {l}, 63, v0
        s_and_b32 {sT0}, s2, 1
        v_readfirstlane_b32 {sW}, {t[0]}
        s_bfe_u32 {sT2}, s2, 0x30003
        s_lshl3_add_u32 {sR}, {sT0}, {sT2}
        s_bfe_u32 {sT1}, s2, 0x20001
        s_lshr_b32 {sOff}, s2, 7
        s_lshl1_add_u32 {sT}, {sT1}, {sOff}
        s_lshl2_add_u32 {sGW}, {sT0}, {sT1}
        s_lshl_b32 {sGW}, {sGW}, 5
        s_lshr_b32 {sOff}, s2, 3
        s_add_u32 {sGW}, {sGW}, {sOff}
        s_lshl2_add_u32 {sGW}, {sGW}, {sW}
        v_lshrrev_b32 {l3}, 3, {l}
        v_and_b32 {l7}, 7, {l}
        v_lshrrev_b32 {l4}, 4, {l}
        v_lshlrev_b32 v246, 7, {l}
        s_lshl2_add_u32 {sT0}, {sR}, {sW}
        s_lshl_b32 {sT0}, {sT0}, 15
        v_xor_b32 {t[0]}, {l7}, {l4}
        v_lshlrev_b32 {t[0]}, 4, {t[0]}
        v_lshl_add_u32 {t[0]}, {l3}, 10, {t[0]}
        v_add_u32 {P('X0')}, {sT0}, {t[0]}
        v_xor_b32 {t[1]}, 64, {P('X0')}
        v_add_u32 {P('X1')}, {8192-1024}, {t[1]}
        v_add_u32 {P('X2')}, {16384-2048}, {P('X0')}
        v_add_u32 {P('X3')}, {16384-2048}, {P('X1')}
        v_and_b32 {nh}, 1, {l4}
        v_lshlrev_b32 {t[0]}, 2, {nh}
        v_xor_b32 {t[0]}, {t[0]}, {l7}
        v_lshlrev_b32 {wsw}, 4, {t[0]}
        s_lshl_b32 {sCE}, {sT}, 7
        s_bitcmp1_b32 s2, 6
        s_cselect_b32 {sStr}, 7, 6
        s_cselect_b32 {sT1}, 0, 1024
        s_cselect_b32 {sT2}, 32, 0
        s_cselect_b32 {sGrow}, 8, 0
        s_lshl_b32 s{S1+2}, {sStr}, 18
        s_lshl_b32 {sStr}, {sStr}, 9
        s_mov_b32 s{S2+2}, s{S1+2}
        s_mov_b32 s{S1+3}, 0x20000
        s_mov_b32 s{S2+3}, 0x20000
        v_lshl_add_u32 {P('kr')}, {sW}, 4, {l3}
        v_add_u32 {P('wc')}, {sCE}, {wsw}
        v_mad_u32_u24 {t[0]}, {P('kr')}, {sStr}, {P('wc')}
        v_add_u32 {P('W1')}, {sT1}, {t[0]}
        v_add_u32 {t[1]}, {sT1}, {P('W1')}
        v_xor_b32 {P('W2')}, {sT2}, {t[1]}
        s_lshl3_add_u32 {sT1}, {sStr}, -1024
        v_add_u32 {P('W11')}, {sT1}, {P('W1')}
        v_add_u32 {P('W21')}, {sT1}, {P('W2')}
        s_lshl_b32 {sStr}, {sStr}, 6
        s_lshl_b32 {sL4}, {sW}, 12
        s_lshl_b32 {sL2}, {sW}, 11
        s_add_u32 {sGrow}, {sGrow}, {sT}
        s_lshl4_add_u32 {sGrow}, {sR}, {sGrow}
        s_lshl2_add_u32 {sGrow}, {sGrow}, {sW}
        s_lshl_b32 {sGrow}, {sGrow}, 1
        v_lshlrev_b32 {P('l16')}, 4, {l}
        """)
        hi, r4, c3, l31 = [P(n) for n in ("hi", "r4", "c3", "l31")]
        o = L(f"""
        s_and_b32 {sT0}, s2, 7
        s_lshr_b32 {sT1}, s2, 3
        s_and_b32 {sT2}, {sT1}, 7
        s_lshr_b32 {sRH}, {sW}, 1
        s_and_b32 {sJ}, {sW}, 1
        s_and_b32 {sSel}, {sT1}, 3
        s_lshl_b32 {sL1}, {sW}, 10
        v_lshrrev_b32 {hi}, 5, {l}
        v_bfe_u32 {r4}, {l}, 2, 2
        v_and_b32 {c3}, 3, {l}
        v_and_b32 {l31}, 31, {l}
        """)
        if self.opt.get("map2", "8x4") == "8x4":
            o += L(f"""
            s_lshr_b32 {sR2}, {sT0}, 1
            s_lshl3_add_u32 {sR2}, {sR2}, {sT2}
            s_and_b32 {sC2}, {sT0}, 1
            s_lshr_b32 {sOff}, {sT1}, 3
            s_lshl2_add_u32 {sC2}, {sC2}, {sOff}
            """)
        else:
            o += L(f"""
            s_and_b32 {sOff}, {sT1}, 3
            s_lshl2_add_u32 {sR2}, {sT0}, {sOff}
            s_lshr_b32 {sC2}, {sT1}, 2
            """)
        o += L(f"""
        v_mul_u32_u24 {t[1]}, 3584, {P('kr')}
        v_add_u32 {V('Wg')}, {t[1]}, {P('wc')}
        v_xor_b32 {V('Wu')}, 32, {V('Wg')}
        v_add_u32 {V('Wg1')}, {8*3584-1024}, {V('Wg')}
        v_add_u32 {V('Wu1')}, {8*3584-1024}, {V('Wu')}
        """)
        if A:
            o += L(f"""
            v_add_u32 {V('Wq')}, -1024, {P('W1')}
            v_add_u32 {V('Wq1')}, -1024, {P('W11')}
            """)
        else:
            o += L(f"""
            v_lshrrev_b32 {t[0]}, 2, {l}
            v_lshl_add_u32 {t[0]}, {sW}, 4, {t[0]}
            v_mul_u32_u24 {t[1]}, 3584, {t[0]}
            v_lshl_add_u32 {t[1]}, {c3}, 4, {t[1]}
            s_lshl_b32 {sCH}, {sT}, 6
            v_add_u32 {V('Hg')}, {sCH}, {t[1]}
            v_xor_b32 {V('Hu')}, 32, {V('Hg')}
            """)
        self.v("gx0", 4, True); self.v("gx1", 4, True); self.v("ggw", 4, True)
        o += L(f"""
        v_bfe_u32 {t[0]}, {l}, 1, 3
        v_xor_b32 {t[0]}, {t[0]}, {hi}
        v_lshlrev_b32 {t[0]}, 4, {t[0]}
        v_lshl_add_u32 {t[0]}, {l31}, 7, {t[0]}
        s_lshl_b32 {sT0}, {sRH}, 13
        v_add_u32 {V('XR0', True)}, {sT0}, {t[0]}
        v_xor_b32 {V('XR1', True)}, 32, {V('XR0')}
        v_xor_b32 {V('XR2', True)}, 64, {V('XR0')}
        v_xor_b32 {V('XR3', True)}, 0x60, {V('XR0')}
        v_and_b32 {t[0]}, 2, {r4}
        v_xor_b32 {t[0]}, {t[0]}, {nh}
        s_lshl_b32 {sT0}, {sJ}, 1
        v_xor_b32 {t[0]}, {sT0}, {t[0]}
        v_lshlrev_b32 {t[0]}, 5, {t[0]}
        v_lshl_add_u32 {t[0]}, {c3}, 3, {t[0]}
        v_lshl_add_u32 {t[1]}, {hi}, 3, {r4}
        v_lshl_add_u32 {t[2]}, {t[1]}, 7, {t[0]}
        v_lshl_add_u32 {V('M0')}, {nh}, 13, {t[2]}
        v_xor_b32 {V('M1')}, 32, {V('M0')}
        v_lshl_add_u32 {t[3]}, {hi}, 2, {r4}
        v_lshl_add_u32 {t[3]}, {t[3]}, 7, {t[0]}
        v_add_u32 {V('VR0')}, {sL2}, {t[3]}
        v_xor_b32 {V('VR1')}, 64, {V('VR0')}
        """)
        if A:
            o += L(f"v_mov_b32 {V('Pl')}, {t[2]}")
        else:
            o += L(f"""
            v_xor_b32 {t[0]}, {sJ}, {nh}
            v_lshlrev_b32 {t[0]}, 5, {t[0]}
            v_lshl_add_u32 {t[0]}, {c3}, 3, {t[0]}
            v_lshl_add_u32 {t[0]}, {t[1]}, 6, {t[0]}
            v_lshl_add_u32 {V('Hf')}, {nh}, 12, {t[0]}
            """)
        o += L(f"""
        v_lshl_add_u32 {t[0]}, {l3}, 10, {wsw}
        s_lshl_b32 {sT0}, {sC2}, 7
        s_lshl_b32 {sT1}, {sW}, 16
        s_add_u32 {sT0}, {sT0}, {sT1}
        v_add_u32 {V('V4')}, {sT0}, {t[0]}
        v_add_u32 {V('V8')}, {sT1}, {V('V4')}
        v_add_u32 {V('V41')}, {8192-1024}, {V('V4')}
        v_add_u32 {V('V81')}, {8192-1024}, {V('V8')}
        s_mul_i32 {sT0}, {sR2}, {2*RG_BYTES}
        s_add_u32 {sT0}, {sT0}, {WS_H}
        s_add_u32 {sT0}, {sT0}, {sL4}
        v_add_u32 {t[0]}, {sT0}, {V('l16')}
        s_mul_i32 {sA0}, {sRH}, {RG_BYTES}
        s_sub_u32 {sA1}, {RG_BYTES}, {sA0}
        v_add_u32 {V('A40')}, {sA0}, {t[0]}
        v_add_u32 {V('A41')}, {sA1}, {t[0]}
        v_add_u32 {V('A80')}, {sL4}, {V('A40')}
        v_add_u32 {V('A81')}, {sL4}, {V('A41')}
        s_lshl_b32 {sT0}, {sR}, 1
        s_add_u32 {sT0}, {sT0}, {sRH}
        s_mul_i32 {sT1}, {sT0}, {2*RG_BYTES}
        s_add_u32 {sT1}, {sT1}, {WS_H}
        v_add_u32 {V('HS0')}, {sT1}, {V('l16')}
        v_add_u32 {V('HS1')}, {RG_BYTES}, {V('HS0')}
        s_lshl_b32 {sT1}, {sT0}, 9
        s_add_u32 {sT1}, {sT1}, {WS_G}
        v_lshlrev_b32 {t[0]}, 3, {l31}
        v_add_u32 {V('G', True)}, {sT1}, {t[0]}
        s_lshl_b32 {sT0}, {sT0}, 2
        s_lshr_b32 {sT1}, {sT}, 1
        s_add_u32 {sT0}, {sT0}, {sT1}
        s_lshl_b32 {sT0}, {sT0}, 9
        s_and_b32 {sT1}, {sT}, 1
        s_lshl_b32 {sT1}, {sT1}, 1
        s_add_u32 {sT1}, {sT1}, {sJ}
        s_lshl_b32 {sT1}, {sT1}, 2
        s_add_u32 {sT0}, {sT0}, {sT1}
        s_add_u32 {sFP}, {sT0}, {WS_FL}
        s_lshl_b32 {sT0}, {sR2}, 2
        s_add_u32 {sT0}, {sT0}, {sW}
        s_lshl_b32 {sT0}, {sT0}, 9
        s_add_u32 {sT0}, {sT0}, {WS_FL}
        v_lshlrev_b32 {t[0]}, 2, {c3}
        v_add_u32 {V('F')}, {sT0}, {t[0]}
        s_lshl_b32 {sT0}, {sT}, 2
        s_lshl_b32 {sT1}, {sJ}, 1
        s_add_u32 {sT0}, {sT0}, {sT1}
        s_lshl_b32 {sE}, {sT0}, 10
        s_add_u32 {sL}, {sE}, {(80 if A else 48)*1024}
        v_mov_b32 v{self.v('KK', 2)}, {f32(K0)}
        v_mov_b32 v{self.v('KK', 2) + 1}, {f32(K1)}
        """)
        if A:
            o += L(f"""
            s_add_u32 {sO}, {sE}, {112*1024}
            s_add_u32 {sT0}, {sT0}, {sRH}
            s_lshl_b32 {sT1}, {sT0}, 7
            s_add_u32 {sT1}, {sT1}, {WS_KF}
            s_lshl_b32 {sT2}, {sR}, 2
            s_add_u32 {sKFP}, {sT1}, {sT2}
            v_and_b32 {t[0]}, 15, {l}
            v_lshlrev_b32 {t[0]}, 2, {t[0]}
            v_add_u32 {V('KF')}, {sT1}, {t[0]}
            s_lshl_b32 {sT1}, {sT0}, 14
            s_add_u32 {sT1}, {sT1}, {WS_KP}
            v_add_u32 {V('KG')}, {sT1}, {V('l16')}
            s_lshl_b32 {sKPP}, {sR}, 6
            s_add_u32 {sKB}, {sT1}, {sKPP}
            s_lshr_b32 {sTB}, {sT0}, 1
            s_lshl_b32 {sTB}, {sTB}, 11
            s_add_u32 {sTB}, {sTB}, {WS_KT}
            s_lshl_b32 {sKPP}, {sR}, 10
            s_lshl_b32 {sT1}, {sT0}, 11
            s_add_u32 {sT1}, {sT1}, {WS_ZP}
            v_lshlrev_b32 {t[0]}, 2, {l}
            v_add_u32 {V('ZG')}, {sT1}, {t[0]}
            s_lshl1_add_u32 {sZB}, {sR}, {sRH}
            s_lshl2_add_u32 {sZB}, {sZB}, {sT1}
            s_lshl_b32 {sZPP}, {sR}, 7
            s_mov_b32 s78, 0xffff0000
            s_mov_b32 s79, 0xffff0000
            s_sub_u32 s80, 0, {sRH}
            s_mov_b32 s81, s80
            v_lshlrev_b32 {t[0]}, 4, {hi}
            v_xor_b32 {t[1]}, 1, {nh}
            v_lshl_add_u32 {t[0]}, {t[1]}, 5, {t[0]}
            s_lshl_b32 {sT1}, {sW}, 6
            s_add_u32 {sT1}, {sT1}, {LDS_MISC + 7168}
            v_add_u32 {V('ZR')}, {sT1}, {t[0]}
            v_and_b32 {t[0]}, 0x24, {l}
            v_bfe_u32 {t[1]}, {l}, 3, 1
            v_lshl_add_u32 {t[0]}, {t[1]}, 4, {t[0]}
            v_lshl_add_u32 {t[0]}, {nh}, 3, {t[0]}
            v_add_u32 {V('ZW')}, {sT1}, {t[0]}
            s_add_u32 {sT1}, {sL1}, {LDS_MISC}
            v_add_u32 {V('XW')}, {sT1}, {V('l16')}
            """)
        else:
            o += L(f"""
            s_lshl_b32 {sT0}, {sT}, 1
            s_add_u32 {sT0}, {sT0}, {sJ}
            s_add_u32 {sT0}, {sT0}, 32
            s_lshl_b32 {sEh}, {sT0}, 10
            """)
        o += L(f"""
        s_lshl_b32 {sT0}, {sR2}, 1
        s_add_u32 {sT0}, {sT0}, {sRH}
        s_lshl_b32 {sT0}, {sT0}, 15
        s_lshl_b32 {sT1}, {sC2}, 1
        s_add_u32 {sT1}, {sT1}, {sJ}
        s_lshl_b32 {sT1}, {sT1}, 6
        s_add_u32 {sT0}, {sT0}, {sT1}
        v_lshlrev_b32 {t[0]}, 4, {hi}
        v_lshl_add_u32 {t[0]}, {l31}, 10, {t[0]}
        v_add_u32 {V('OUT')}, {sT0}, {t[0]}
        s_mov_b32 {sSpin}, 0
        """)
        r2 = self.opt.get("rot2", 2)
        if r2 == 0:
            o += L(f"s_mov_b32 {sT0}, 0")
        else:
            o += L(f"s_mul_i32 {sT0}, {sC2}, {r2}\ns_add_u32 {sT0}, {sT0}, {sR2}")
        for i in range(8):
            o += L(f"s_add_u32 {sT1}, {sT0}, {i}\ns_and_b32 {sT1}, {sT1}, 7\ns_lshl_b32 {sTab[i]}, {sT1}, 10")
        self.second = o

    def dma(self, s, vreg, soff, m0=None, off=0, flags=""):
        o = L(f"s_add_u32 m0, {m0[0]}, {m0[1]}") if m0 else []
        return o + L(f"buffer_load_dwordx4 {vreg}, {srd(s)}, {soff} offen offset:{off} {flags} lds")

    def item_loads(self, kind, i):
        A = self.typ == "A"
        V = self.V
        base = self.blk[(kind, i)] * 8192
        wf = self.opt.get("wflags", ""); xf = self.opt.get("xflags", ""); vf = self.opt.get("vflags", "")
        so = lambda c: L(f"s_mov_b32 {sKw}, {i*c[0] + c[1]}")
        def two(sr, nm, c, b):
            return [(so(c) if c is not None else []) + self.dma(sr, V(nm), sKw, (sL2, b), 0, wf), self.dma(sr, V(nm + "1"), sKw, None, 1024, wf)]
        kq, kw = 64 * 3072, 64 * 3584
        if kind == "X":
            g = [self.dma(SX, V(f"X{jj}"), sKw, None if jj else (sL4, base), jj * 1024, xf) for jj in range(4)]
            g[0] = so((128, 0)) + g[0]
        elif kind == "W":
            g = two(S1, "W1", None, base) + two(S2, "W2", None, base + 8192)
            g[0] = L(f"s_mul_i32 {sKw}, {sStr}, {i}") + g[0]
        elif kind == "G":
            g = two(SG, "Wg", (kw, 2560 if A else 1536), base) + two(SU, "Wu", None, base + 8192)
        elif kind == "H":
            g = two(SQ, "Wq", (kq, 0), base) if A else [so((kw, 1024)) + self.dma(SG, V("Hg"), sKw, (sL1, base), 0, wf), self.dma(SU, V("Hu"), sKw, (sL1, base + 4096), 0, wf)]
        else:
            ks, j, mul = self.step(i)
            sr, k = (SD, ks) if ks < 112 else (SO, ks - 112)
            g = [self.dma(sr, V(f"V{mul}"), sKw, (sL2, base), 0, vf), self.dma(sr, V(f"V{mul}1"), sKw, None, 1024, vf)]
            if mul == 8:
                g[0] = L(f"s_lshl4_add_u32 {sKw}, {sTab[j]}, {k*16384}") + g[0]
            else:
                g[0] = L(f"s_and_b32 {sKw}, {sTab[j]}, 0xc00\ns_lshl4_add_u32 {sKw}, {sKw}, {k*16384}") + g[0]
        g[-1][-1].tag = f"{kind}{i}"
        return g

    def v_loads(self, n): return self.item_loads("V", n)

    def plan(self):
        opt = self.opt
        lead1, lead2 = opt.get("lead1", 2), opt.get("lead2", 2)
        must = []
        for s in range(8): must += [("X", s, 2, 4, s, s + 1, lead1), ("W", s, 2, 4, s, s + 1, lead1)]
        for t in range(8):
            must.append(("G", t, 2, 4, 8 + t, 9 + t, lead2 if t < 5 else opt.get("lead3", 2)))
            if t < 4: must += [("H", 2 * t + i, 1, 2, 8 + t, 9 + t, lead2) for i in range(2)]
        b2 = opt.get("b2a", 10) if self.typ == "A" else opt.get("b2", 10)
        budget = {i: opt.get("b1", 8) if i < 8 else b2 for i in range(17)}
        budget[-1], budget[16] = 0, 99
        for i in (12, 13, 14, 15): budget[i] = opt.get("b3", 8)
        for k, v in self.budget_cut.items(): budget[k] -= v
        free_at = [-1] * 19
        self.blk, self.when = {}, {i: [] for i in range(-1, 17)}
        self.parks = {i: [] for i in range(-1, 17)}
        prate = opt.get("parka", 3) if self.typ == "A" else opt.get("parkb", 2)
        nv, npk, issued = 0, 0, {}
        for iv in range(-1, 16):
            left = budget[iv]
            def take(kind, i, nb, fr):
                fb = [b for b in range(19) if free_at[b] <= iv]
                if nb == 2: c = [b for b in fb if b % 2 == 0 and b + 1 in fb]
                elif kind == "V": c = sorted(fb, key=lambda b: (b != 18 and (b ^ 1) in fb, -b))
                else: c = sorted(fb, key=lambda b: (b != 18 and (b ^ 1) in fb, b))
                if not c: return False
                for x in range(nb): free_at[c[0] + x] = fr
                self.blk[(kind, i)] = c[0]
                self.when[iv].append((kind, i))
                return True
            while must and must[0][4] - must[0][6] <= iv:
                kind, i, nb, cost_, need, fr, _ = must[0]
                if not take(kind, i, nb, fr):
                    assert need - 1 > iv, (kind, i, iv)
                    break
                must.pop(0); left -= cost_
            while iv >= opt.get("park0", 99) and len(self.parks[iv]) < prate and npk < 17 and npk < nv and issued[npk] <= iv - opt.get("parklag", 2) and npk <= 4 * (iv - 8) - 2:
                self.parks[iv].append(npk)
                free_at[self.blk[("V", npk)]] = iv + 1
                npk += 1
            live = lambda j: sum(4 if st < 12 else 2 for st in range(max(j, 0), min(16, j + lead2 + 1)))
            owed = max(live(j) for j in range(iv, 17)) + (1 if iv < 10 else 0)
            while left >= 2 and nv < 36 and nv - (npk - len(self.parks[iv])) < 19 - owed and iv >= opt.get("v0", 6):
                if not take("V", nv, 1, 99): break
                issued[nv] = iv
                nv += 1; left -= 2
        assert not must
        fb = [b for b in range(19) if free_at[b] <= 16]
        self.post = []
        while nv < 36:
            if not fb:
                self.post.append(("park", npk)); fb.append(self.blk[("V", npk)]); npk += 1
            self.blk[("V", nv)] = fb.pop(0)
            self.post.append(("load", nv)); nv += 1
        self.npark = npk
        assert npk <= 20

    @staticmethod
    def step(n):
        if n < 8: return 0, n, 8
        if n < 16: return 80, n - 8, 8
        if n < 24: return 48, n - 16, 8
        if n < 28: return 32, n - 24, 4
        return 112, n - 28, 8

    def areg(self, n, sr): return 160 + (n % 12) * 8 + sr * 4

    def a_loads(self, n):
        ks, j, mul = self.step(n)
        g = [L(f"buffer_load_dwordx4 {ar(self.areg(n, sr))}, {self.V(f'A{mul}{sr}')}, {srd(SW)}, {sAo} offen sc1") for sr in range(2)]
        if mul == 8:
            g[0] = L(f"s_add_u32 {sAo}, {sTab[j]}, {ks*1024}") + g[0]
        else:
            g[0] = L(f"s_and_b32 {sAo}, {sTab[j]}, 0xc00\ns_add_u32 {sAo}, {sAo}, {ks*1024}") + g[0]
        return g

    def parked(self, n): return n < self.npark

    def vfrag(self, n, sn):
        if self.parked(n): return "a", n * 8 + sn * 4
        return "v", (64 if n % 2 == 0 else 80) + sn * 4

    def v_reads(self, n):
        base = self.blk[("V", n)] * 8192
        o = []
        for sn in range(2):
            k, b = self.vfrag(n, sn)
            for i in range(2):
                a, imm = self.lds(f"VR{sn}", base + i * 1024)
                o.append(L(f"ds_read_b64_tr_b16 {k}[{b+2*i}:{b+2*i+1}], {a} offset:{imm}"))
        o[-1][-1].tag = f"RV{n}"
        return o

    def poll_issue(self, reg, addr, off, wide=False):
        if wide:
            return L(f"buffer_load_dwordx2 {vr(reg, 2)}, {addr}, {srd(SW)}, 0 offen offset:{off} sc1")
        return L(f"buffer_load_dword v{reg}, {addr}, {srd(SW)}, 0 offen offset:{off} sc1")

    def poll_check(self, reg, addr, off, wide=False):
        ok, again = self.lab("ok"), self.lab("again")
        tr = reg + 1 if wide else reg
        ld = self.poll_issue(reg, addr, off, wide)[0].text
        return L(f"""
        v_cmp_ne_u32 vcc, {sTag}, v{tr}
        s_cbranch_vccz {ok}
        {again}:
        @raw s_sleep 2
        @raw {ld}
        @raw s_add_u32 {sSpin}, {sSpin}, 1
        @raw s_waitcnt vmcnt(0)
        @raw v_cmp_ne_u32 vcc, {sTag}, v{tr}
        @raw s_cmp_lt_u32 {sSpin}, 0x8000
        @raw s_cbranch_scc0 {ok}
        @raw s_cbranch_vccnz {again}
        {ok}:
        """)

    def flag_store(self, soff, off, tags):
        return L(f"""
        @vm {' '.join(tags)}
        s_mov_b64 exec, 1
        buffer_store_dword {self.V('tag')}, off, {srd(SW)}, {soff} offset:{off} sc1
        s_mov_b64 exec, -1
        """)

    def gate_loads(self):
        x0, x1, gw = self.v("gx0", 4, True), self.v("gx1", 4, True), self.v("ggw", 4, True)
        return [L(f"""
        s_lshl_b32 {sOff}, {sGrow}, 10
        buffer_load_dwordx4 {vr(x0)}, {self.V('l16')}, {srd(SX)}, {sOff} offen
        buffer_load_dwordx4 {vr(x1)}, {self.V('l16')}, {srd(SX)}, {sOff} offen offset:1024
        buffer_load_dwordx4 {vr(gw)}, {self.V('l16')}, {srd(SGW)}, 0 offen
        """)]

    def gate_compute(self):
        x = [self.v("gx0", 4, True), self.v("gx1", 4, True)]; gw = self.v("ggw", 4, True)
        t = [self.V(f"t{i}") for i in range(8)]
        s = [self.v("gs", 2, True), self.v("gs") + 1]
        one = self.V("gone", True)
        o = L(f"v_mov_b32 {one}, 0x3f803f80\nv_mov_b32 v{s[0]}, 0\nv_mov_b32 v{s[1]}, 0")
        for d in range(4):
            o += L(f"v_lshlrev_b32 {t[0]}, 16, v{gw+d}\nv_and_b32 {t[1]}, 0xffff0000, v{gw+d}")
            for r in range(2):
                o += L(f"""
                v_lshlrev_b32 {t[2+2*r]}, 16, v{x[r]+d}
                v_and_b32 {t[3+2*r]}, 0xffff0000, v{x[r]+d}
                v_mul_f32 {t[2+2*r]}, {t[2+2*r]}, {t[0]}
                v_mul_f32 {t[3+2*r]}, {t[3+2*r]}, {t[1]}
                v_cvt_pk_bf16_f32 {t[2+2*r]}, {t[2+2*r]}, {t[3+2*r]}
                v_lshlrev_b32 {t[6]}, 16, {t[2+2*r]}
                v_and_b32 {t[7]}, 0xffff0000, {t[2+2*r]}
                v_add_f32 v{s[r]}, v{s[r]}, {t[6]}
                v_add_f32 v{s[r]}, v{s[r]}, {t[7]}
                """)
        dpp = "row_mask:0xf bank_mask:0xf"
        o += L(f"""
        v_permlane32_swap_b32 v{s[0]}, v{s[1]}
        v_add_f32 v{s[0]}, v{s[0]}, v{s[1]}
        v_add_f32_dpp v{s[0]}, v{s[0]}, v{s[0]} quad_perm:[1,0,3,2] {dpp}
        v_add_f32_dpp v{s[0]}, v{s[0]}, v{s[0]} quad_perm:[2,3,0,1] {dpp}
        v_add_f32_dpp v{s[0]}, v{s[0]}, v{s[0]} row_half_mirror {dpp}
        v_add_f32_dpp v{s[0]}, v{s[0]}, v{s[0]} row_mirror {dpp}
        v_mov_b32 v{s[1]}, v{s[0]}
        v_permlane16_swap_b32 v{s[0]}, v{s[1]}
        v_add_f32 v{s[0]}, v{s[0]}, v{s[1]}
        v_cvt_pk_bf16_f32 v{s[0]}, v{s[0]}, v{s[0]}
        v_and_b32 v{s[0]}, 0xffff0000, v{s[0]}
        v_mul_f32 v{s[0]}, {f32(-LOG2E)}, v{s[0]}
        v_exp_f32 v{s[0]}, v{s[0]}
        v_add_f32 v{s[0]}, 1.0, v{s[0]}
        v_rcp_f32 v{s[0]}, v{s[0]}
        v_cvt_pk_bf16_f32 v{s[0]}, v{s[0]}, v{s[0]}
        v_and_b32 v{s[0]}, 0xffff0000, v{s[0]}
        v_mov_b32 v{s[1]}, {sTag}
        v_lshlrev_b32 {t[0]}, 3, {self.V('hi')}
        s_lshl_b32 {sOff}, {sGrow}, 3
        s_add_u32 {sOff}, {sOff}, {WS_G}
        """)
        groups = [[i] for i in o]
        groups.append(L(f"""
        s_mov_b32 exec_lo, 1
        s_mov_b32 exec_hi, 1
        buffer_store_dwordx2 {vr(s[0], 2)}, {t[0]}, {srd(SW)}, {sOff} offen sc1
        s_mov_b64 exec, -1
        """))
        groups = groups[:-4] + [sum(groups[-4:], [])]
        return groups

    def gate_fetch(self):
        g0, g1 = self.v("g0", 2), self.v("g1", 2)
        return [self.poll_issue(g0, self.V("G"), 0, True), self.poll_issue(g1, self.V("G"), 256, True)]

    def gate_check(self):
        o = []
        for i, nm in enumerate(("g0", "g1")):
            g = self.v(nm)
            o.append(self.poll_check(g, self.V("G"), 256 * i, True))
            o += [[x] for x in L(f"""
            v_sub_f32 v{g+1}, 1.0, v{g}
            v_cvt_pk_bf16_f32 v{g+1}, v{g+1}, v{g+1}
            v_and_b32 v{g+1}, 0xffff0000, v{g+1}
            v_max_f32 v{g+1}, {f32(1e-30)}, v{g+1}
            v_rcp_f32 v{g+1}, v{g+1}
            """)]
        return o

    def gelu_tile(self, t, rg, soff, off, tag=None):
        a = ACC(t, rg)
        io = f"v{self.v('g%d' % rg) + 1}"
        T = [self.V(f"t{i}") for i in range(8)]
        o = []
        for h in range(2):
            js = range(4 * h, 4 * h + 4)
            for stage in (
                lambda j, x: f"v_mul_f32 {x}, v{a+j}, v{a+j}",
                lambda j, x: f"v_fmaak_f32 {x}, {x}, v{self.v('KK', 2) + 1}, {f32(K0)}",
                lambda j, x: f"v_mul_f32 {x}, {x}, v{a+j}",
                lambda j, x: f"v_exp_f32 {x}, {x}",
                lambda j, x: f"v_mul_f32 v{a+8+j}, v{a+8+j}, v{a+j}",
                lambda j, x: f"v_fma_f32 {x}, {x}, {io}, {io}",
                lambda j, x: f"v_rcp_f32 {x}, {x}",
                lambda j, x: f"v_mul_f32 v{a+8+j}, v{a+8+j}, {x}",
            ):
                o += [L(stage(j, T[j & 3])) for j in js]
            o += [L(f"v_cvt_pk_bf16_f32 v{a+d}, v{a+8+2*d}, v{a+9+2*d}") for d in (2 * h, 2 * h + 1)]
        o.append(L(f"buffer_store_dwordx4 {vr(a)}, {self.V('HS%d' % rg)}, {srd(SW)}, {soff} offen offset:{off} sc1", tag))
        return o

    def gelu_tile_pk(self, t, rg, soff, off, tag=None):
        a = ACC(t, rg)
        g = self.v("g%d" % rg)
        T = self.v("t0")
        kk = self.v("KK", 2)
        p = lambda r: f"v[{r}:{r+1}]"
        o = []
        for st in range(9):
            for q in range(4):
                x, gg, uu = T + 2 * q, a + 2 * q, a + 8 + 2 * q
                if st == 0: o.append(L(f"v_pk_mul_f32 {p(x)}, {p(gg)}, {p(gg)}"))
                if st == 1: o.append(L(f"v_pk_fma_f32 {p(x)}, {p(x)}, {p(kk)}, {p(kk)} op_sel:[0,1,0] op_sel_hi:[1,1,0]"))
                if st == 2: o.append(L(f"v_pk_mul_f32 {p(x)}, {p(x)}, {p(gg)}"))
                if st == 3: o += [L(f"v_exp_f32 v{x}, v{x}"), L(f"v_exp_f32 v{x+1}, v{x+1}")]
                if st == 4: o.append(L(f"v_pk_mul_f32 {p(uu)}, {p(uu)}, {p(gg)}"))
                if st == 5: o.append(L(f"v_pk_fma_f32 {p(x)}, {p(x)}, {p(g)}, {p(g)} op_sel:[0,1,1] op_sel_hi:[1,1,1]"))
                if st == 6: o += [L(f"v_rcp_f32 v{x}, v{x}"), L(f"v_rcp_f32 v{x+1}, v{x+1}")]
                if st == 7: o.append(L(f"v_pk_mul_f32 {p(uu)}, {p(uu)}, {p(x)}"))
                if st == 8: o.append(L(f"v_cvt_pk_bf16_f32 v{a+q}, v{uu}, v{uu+1}"))
        o.append(L(f"buffer_store_dwordx4 {vr(a)}, {self.V('HS%d' % rg)}, {srd(SW)}, {soff} offen offset:{off} sc1", tag))
        return o

    def phi_pack(self, src, dst):
        T = [self.V(f"t{i}") for i in range(8)]
        o = []
        for q in range(4):
            js = range(4 * q, 4 * q + 4)
            for stage in (
                lambda j, x: f"v_mul_f32 {x}, {f32(LOG2E)}, v{src+j}",
                lambda j, x: f"v_exp_f32_e64 {x}, {x} clamp",
                lambda j, x: f"v_max_f32 v{src+j}, {f32(1e-6)}, v{src+j}",
                lambda j, x: f"v_add_f32 {x}, {x}, v{src+j}",
            ):
                o += [L(stage(j, T[j & 3])) for j in js]
            o += [L(f"v_cvt_pk_bf16_f32 v{dst+2*q+d}, {T[2*d]}, {T[2*d+1]}") for d in range(2)]
        return o

    def plain_pack(self, src, dst):
        return [L(f"v_cvt_pk_bf16_f32 v{dst+d}, v{src+2*d}, v{src+2*d+1}") for d in range(8)]

    def build(self):
        A = self.typ == "A"
        opt = self.opt
        V = self.V
        self.prologue()
        self.kvi = opt.get("kvi", 14)
        self.budget_cut = {}
        self.touch2 = lambda k: touch2(self, k)
        self.plan()
        T = [self.v(f"t{i}") for i in range(8)]

        def trs(pat, off, dst, istep):
            r = []
            for i in range(2):
                a, imm = self.lds(pat, off + i * istep)
                r.append(L(f"ds_read_b64_tr_b16 v[{dst+2*i}:{dst+2*i+1}], {a} offset:{imm}"))
            return r

        def mfma(t, rg, wfr, n, swap):
            acc, xfr = vr(ACC(t, rg), 16), ar((n * 2 + rg) * 4)
            a, b = (xfr, wfr) if swap else (wfr, xfr)
            return L(f"v_mfma_f32_32x32x16_bf16 {acc}, {a}, {b}, {acc if n else 0}")

        units = []
        for m in range(16):
            s, half = m >> 1, m & 1
            xb, wbase = self.blk[("X", s)] * 8192, self.blk[("W", s)] * 8192
            wb = 64 if m % 2 == 0 else 80
            rd, mf = [], []
            for kk in range(2):
                k4 = half * 2 + kk
                n = s * 4 + k4
                xr = []
                for rg in range(2):
                    a, imm = self.lds(f"XR{k4}", xb + rg * 4096, True)
                    xr.append(L(f"ds_read_b128 {ar((n*2+rg)*4)}, {a} offset:{imm}"))
                w = [trs("Pl", wbase + t * 8192 + k4 * 2048, wb + kk * 8 + t * 4, 512) if A else
                     trs(f"M{t}", wbase + k4 * 2048, wb + kk * 8 + t * 4, 512) for t in range(2)]
                rd += [xr[0]] + w[0] + [xr[1]] + w[1]
                mf += [mfma(t, rg, vr(wb + kk * 8 + t * 4), n, A) for t in range(2) for rg in range(2)]
            units.append(([f"W{s}"] if half == 0 else None, rd, mf))
        for m in range(24):
            wb = 64 if m % 2 == 0 else 80
            rd, mf = [], []
            def pair(n, dst):
                gb = self.blk[("G", n >> 2)] * 8192 + (n & 3) * 2048
                return trs("M0", gb, dst, 512) + trs("M1", gb, dst + 4, 512), [mfma(t, rg, vr(dst + 4 * i), n, False) for i, t in enumerate((3, 4)) for rg in range(2)]
            def third(n, dst):
                hb = self.blk[("H", n >> 2)] * 8192
                r = trs("Pl", hb + (n & 3) * 2048, dst, 512) if A else trs("Hf", hb + (n & 3) * 1024, dst, 256)
                return r, [mfma(2, rg, vr(dst), n, False) for rg in range(2)]
            if m < 16:
                parts = [third(2 * m, wb), pair(m, wb + 4), third(2 * m + 1, wb + 12)]
                sy = [f"H{2*(m >> 2) + 1}"] if m % 4 == 0 else None
            else:
                n = 16 + 2 * (m - 16)
                parts = [pair(n, wb), pair(n + 1, wb + 8)]
                sy = [f"G{n >> 2}"] if m % 2 == 0 else None
            for r, f in parts: rd += r; mf += f
            units.append((sy, rd, mf))

        gaps, heads, ustart, syncgap = [], [], [], [0]
        for u, (sy, rd, mf) in enumerate(units):
            ustart.append(len(gaps))
            for i, m in enumerate(mf):
                heads.append((L("@lgkm0") if i == 0 else []) + m)
                gaps.append(Gap())
            g0 = ustart[u]
            if u + 1 < len(units):
                nsy, nrd, _ = units[u + 1]
                if nsy:
                    gaps[g0].pre += L(f"@sync {' '.join(nsy)}\ns_barrier")
                    syncgap.append(g0)
                span = len(mf) - 2
                for i, r in enumerate(nrd):
                    gaps[g0 + min(span - 1, (i * span) // len(nrd))].ds += r
            else:
                gaps[g0].pre += L("@sync\ns_barrier")
                syncgap.append(g0)
        ustart.append(len(gaps))
        U = lambda n: ustart[16 + n]
        one = lambda ins: [[x] for x in ins]

        def loads_of(iv): return sum((self.item_loads(k, i) for k, i in self.when[iv]), [])
        pro = loads_of(-1)
        pro[8:8] = self.gate_loads()
        self.pro_loads = pro
        pa, pb = self.v("pa"), self.v("pb")
        extra = {iv: [] for iv in range(17)}
        extra[6] += self.gate_fetch()
        for iv in range(16):
            ld = extra[iv] + loads_of(iv)
            if ld: place_mem(gaps, ld, syncgap[iv] + 1, syncgap[iv + 1])
            if self.parks[iv]:
                rd = []
                for n in self.parks[iv]:
                    r = self.v_reads(n)
                    r[0] = L(f"@vm V{n}") + r[0]
                    rd += r
                lo, hi = syncgap[iv] + 1, syncgap[iv + 1]
                cand = sorted(sorted(range(lo, hi), key=lambda g: gaps[g].used())[:len(rd)])
                for g, r in zip(cand, rd): gaps[g].ds += r
            t2 = opt.get("t2", 1)
            if 0 <= t2 <= iv < t2 + opt.get("t2n", 4):
                gaps[syncgap[iv + 1] - 1].va += touch2(self, iv - t2, True, 1 if opt.get("t3", -1) >= 0 else 0)
            if iv == opt.get("t3", -1): gaps[syncgap[iv + 1] - 1].va += touch2(self, 0, False, 2)
            if iv == opt.get("t4", -1): gaps[syncgap[iv + 1] - 1].va += touch4(self)

        place_valu(gaps, self.gate_compute(), ustart[opt.get("gate0", 1)], ustart[opt.get("gate1", 5)])
        place_valu(gaps, self.gate_check(), ustart[14] + 1, ustart[16] - 1)

        cap = opt.get("cap", 12) / 2
        G0, G3 = U(0), U(16)
        if not A:
            ep = []
            for t in range(2):
                for rg in range(2): ep += self.gelu_tile(t, rg, sE, t * 1024, tag="Est")
            last, c = place_valu(gaps, ep, G0 + 1, G3, cap)
            gaps[last + opt.get("e_lag", 36)].va += self.flag_store(sFP, 0, ["Est"]) + self.stamp("Efl")
            self.note = f"E epilogue ends in gap {last - G0} cap {c}"
            ep = self.gelu_tile(2, 0, sEh, 0, tag="Lst") + self.gelu_tile(2, 1, sEh, 0, tag="Lst")
            last, c = place_valu(gaps, ep, G3 + 2, U(24) - 1, cap)
            self.note += f"; third tile ends in gap {last - G0} cap {c}"
        else:
            ones, za = self.v("ones", 4), self.V("za")
            ep = [L(f"v_mov_b32 v{ones+i}, 0x3f803f80") for i in range(4)]
            ep += self.phi_pack(ACC(0, 0), 96) + self.plain_pack(ACC(1, 0), 128)
            ep += self.phi_pack(ACC(0, 1), 104) + self.plain_pack(ACC(1, 1), 136)
            last, c = place_valu(gaps, ep, G0 + 1, G3, opt.get("kvcap", 12) / 2)
            for f in range(4):
                gaps[last + 1 + f].va += L(f"v_mfma_f32_32x32x16_bf16 v[112:127], {vr(96+4*f)}, {vr(128+4*f)}, {'v[112:127]' if f else 0}")
                gaps[last + 1 + f].va += L(f"v_mfma_f32_32x32x16_bf16 v[144:159], {vr(ones)}, {vr(96+4*f)}, {'v[144:159]' if f else 0}")
            ep = [L(f"v_cndmask_b32 v{112+i}, v{112+i}, v{120+i}, {sMH}") for i in range(8)]
            ep += [L(f"v_cndmask_b32 v{120+i}, v{112+i}, v{116+i}, {sMR}") for i in range(4)]
            ep += [L(f"v_cndmask_b32 v{124+i}, v{116+i}, v{112+i}, {sMR}") for i in range(4)]
            ep += one(L(f"v_lshrrev_b32 {za}, 2, {V('XW')}\nv_add_u32 {za}, {LDS_MISC + 4096 - LDS_MISC//4}, {za}"))
            ep += [L(f"ds_write_b128 {V('XW')}, v[124:127]"), L(f"ds_write_b32 {za}, v144"), L(f"v_xor_b32 {za}, 0x200, {za}"), L(f"v_xor_b32 v{T[4]}, 0x800, {V('XW')}")]
            last, c = place_valu(gaps, ep, last + 7, G3, cap)
            sg = min(x for x in ustart if x > last)
            if sg not in syncgap: gaps[sg].pre += L("s_barrier")
            gaps[sg + 1].ds += L(f"ds_read_b128 v[124:127], v{T[4]}\nds_read_b32 v145, {za}")
            ep = [L(f"v_add_f32 v{120+i}, v{120+i}, v{124+i}") for i in range(4)]
            ep.append(L(f"v_add_f32 v144, v144, v145"))
            ep.append(L(f"buffer_store_dwordx4 v[120:123], {V('KG')}, {srd(SW)}, {sKPP} offen sc1"))
            last, c = place_valu(gaps, ep, sg + 5, G3, cap)
            z = L(f"""
            s_mov_b32 exec_hi, 0
            buffer_store_dword v144, {V('ZG')}, {srd(SW)}, {sZPP} offen sc1
            s_mov_b32 exec_hi, -1
            """)
            z[1].tag = "KVst"
            gaps[last + 1].va += z
            fl = last + opt.get("kv_lag", 32)
            gaps[fl].va += self.flag_store(sKFP, 0, ["KVst"]) + self.stamp("KVfl")
            chk = syncgap[self.kvi]
            assert fl < chk - opt.get("kv_pl", 12)
            gaps[chk - opt.get("kv_pl", 12)].vm += self.poll_issue(pa, V("KF"), 0)
            gaps[chk].va += self.stamp("KVq") + self.poll_check(pa, V("KF"), 0) + self.stamp("KVok")
            self.note = f"kv flag in gap {fl - G0}, check in gap {chk - G0}"
            ad = one(L(f"""
            v_mbcnt_lo_u32_b32 v110, -1, 0
            v_mbcnt_hi_u32_b32 v110, -1, v110
            v_lshrrev_b32 v108, 2, v110
            v_and_b32 v109, 3, v110
            v_lshlrev_b32 v109, 4, v109
            v_lshl_add_u32 v109, v108, 10, v109
            v_lshlrev_b32 v108, 7, v108
            v_lshlrev_b32 v110, 4, v110
            """))
            place_valu(gaps, ad, fl + 1, G3, cap)
            gaps[chk + 1].vm += L(f"buffer_load_dwordx4 v[96:99], v109, {srd(SW)}, {sKB} offen sc1")
            gaps[chk + 2].vm += L(f"buffer_load_dword v100, v108, {srd(SW)}, {sZB} offen sc1")
            dpp = "row_mask:0xf bank_mask:0xf"
            red = [L(f"v_add_f32_dpp v{r}, v{r}, v{r} row_ror:{n} {dpp}") for n in (4, 8) for r in range(96, 101)]
            for sw in ("v_permlane16_swap_b32", "v_permlane32_swap_b32"):
                red += [L(f"v_mov_b32 v{r+6}, v{r}") for r in range(96, 101)]
                red += [L(f"{sw} v{r}, v{r+6}") for r in range(96, 101)]
                red += [L(f"v_add_f32 v{r}, v{r}, v{r+6}") for r in range(96, 101)]
            red += one(L(f"""
            v_cvt_pk_bf16_f32 v96, v96, v97
            v_cvt_pk_bf16_f32 v97, v98, v99
            v_mov_b32 v98, v100
            v_mov_b32 v99, {sTag}
            """))
            pub = L(f"""
            s_lshl4_add_u32 {sOff}, {sRH}, {sR}
            s_lshl_b32 {sOff}, {sOff}, 6
            s_add_u32 {sOff}, {sOff}, {sTB}
            s_mov_b64 exec, 15
            buffer_store_dwordx4 v[96:99], v109, {srd(SW)}, {sOff} offen sc1
            s_mov_b64 exec, -1
            """) + self.stamp("KVt")
            r0 = chk + opt.get("kv_rl", 20)
            self.kv_first = []
            if opt.get("kvin", 1):
                last, c = place_valu(gaps, red, r0, U(24) - 2, cap)
                gaps[last + 1].va += pub
                self.note += f"; totals leave in gap {last + 1 - G0} cap {c}"
            else:
                self.kv_first = red + [pub]
            last, c = place_valu(gaps, self.phi_pack(ACC(2, 0), 160) + self.phi_pack(ACC(2, 1), 168), G3 + 2, U(24) - 1, cap)
            self.note += f"; third tile ends in gap {last - G0} cap {c}"
        gaps[U(24) - opt.get("epoll", 14)].vm += self.poll_issue(pb, V("F"), 0)

        body = self.stamp("start")
        ph1 = self.stamp("issued") + L(f"@sync W0\ns_barrier") + self.stamp("sync0")
        for r in units[0][1]: ph1 += r
        for u in range(len(units)):
            for g in range(ustart[u], ustart[u + 1]):
                ph1 += heads[g]
                if g == ustart[u] and u and ((u < 16 and u % (4 if opt.get("fewp1") else 2) == 0) or (u >= 16 and u % 4 == 0)): ph1 += self.stamp(f"s{u//2}" if u < 16 else f"p{(u-16)//4}")
                ph1 += gaps[g].emit()
        ph1 += self.stamp("p1end")

        gt = self.gelu_tile_pk if opt.get("pk", 1) else self.gelu_tile
        main = []
        tiles = []
        for t in range(2):
            for rg in range(2):
                tiles.append(gt(3 + t, rg, sL, t * 1024, tag="Lst"))
                tiles[-1][-1] += self.stamp(f"L{t}{rg}")
        if not A:
            main = sum(tiles, [])
            nL = len(main)
        else:
            kr = opt.get("kvr", 4)
            ld = [f"buffer_load_dwordx4 v[{100+4*h}:{103+4*h}], v110, {srd(SW)}, {sTB} offen offset:{1024*h} sc1" for h in range(2)]
            ok, again = self.lab("ok"), self.lab("again")
            test = f"v_xor_b32 v111, {sTag}, v103\nv_xor_b32 v112, {sTag}, v107\nv_or_b32 v111, v111, v112\nv_cmp_ne_u32 vcc, 0, v111"
            raw = lambda t: "\n".join("@raw " + x for x in t.split("\n"))
            main = self.kv_first + sum(tiles[:kr], []) + [L(ld[0]), L(ld[1])] + sum(tiles[kr:], [])
            nL = len(main)
            self.need_side = 0
            self.burst_at = len(main)
            main.append([])
            main.append(self.stamp("Tq") + L(f"""
            {test}
            s_cbranch_vccz {ok}
            {again}:
            @raw s_sleep 2
            @raw {ld[0]}
            @raw {ld[1]}
            @raw s_add_u32 {sSpin}, {sSpin}, 1
            @raw s_waitcnt vmcnt(0)
            {raw(test)}
            @raw s_cmp_lt_u32 {sSpin}, 0x8000
            @raw s_cbranch_scc0 {ok}
            @raw s_cbranch_vccnz {again}
            {ok}:
            """) + self.stamp("Tok"))
            main += one(L(f"""
            v_cvt_pk_bf16_f32 v102, v102, v106
            ds_write_b32 {V('ZW')}, v102
            @lgkm0
            ds_read_b128 v[108:111], {V('ZR')}
            """))
            for i, kvr in enumerate((100, 101, 104, 105)):
                main += [L(f"v_cndmask_b32 v{176+i}, v{kvr}, v{108+i}, {sMH}"), L(f"v_cndmask_b32 v{180+i}, v{108+i}, v{kvr}, {sMH}")]
            for rg in range(2):
                for hh in range(2):
                    main.append(L(f"v_mfma_f32_32x32x16_bf16 {vr(192 + (rg*2+hh)*16, 16)}, {vr(176+4*hh)}, {vr(160 + rg*8 + hh*4)}, 0"))
            dens = []
            for rg in range(2):
                for hh in range(2):
                    b = 192 + (rg * 2 + hh) * 16
                    dens.append((rg, hh, b, b + 8) if hh == 0 else (rg, hh, b + 8, b))
            main += [L(f"v_add_f32 v{d}, {f32(1e-6)}, v{d}") for _, _, _, d in dens]
            main += [L(f"v_rcp_f32 v{d}, v{d}") for _, _, _, d in dens]
            main += [L(f"v_mul_f32 v{d}, v{d}, v{self.v('g%d' % rg)}") for rg, _, _, d in dens]
            osts = []
            for rg, hh, num, den in dens:
                main += [L(f"v_pk_mul_f32 v[{num+j}:{num+j+1}], v[{num+j}:{num+j+1}], v[{den}:{den+1}] op_sel_hi:[1,0]") for j in range(0, 8, 2)]
                d = 160 + (rg * 2 + hh) * 4
                main += [L(f"v_cvt_pk_bf16_f32 v{d+j}, v{num+2*j}, v{num+2*j+1}") for j in range(4)]
                osts.append(L(f"buffer_store_dwordx4 {vr(d)}, {V('HS%d' % rg)}, {srd(SW)}, {sO} offen offset:{hh*1024} sc1", "Ost"))
                if not opt.get("batch", 0): main.append(osts.pop())
            main += osts
            lf = opt.get("lfa", 1)
            lastL = max(j for j, g in enumerate(main) if any(x.tag == "Lst" for x in g))
            main.insert(min(len(main), lastL + 1 + lf), self.flag_store(sFP, 256, ["Lst"]) + self.stamp("Lfl"))
        slots = [list(g) for g in main]
        side = list(extra[16])
        side.append(self.stamp("Eq") + self.poll_check(pb, V("F"), 0) + self.stamp("Eok"))
        for n in range(8): side += self.a_loads(n)
        post = list(self.post)
        seq = []
        for j, (k, n) in enumerate(post):
            if k == "park":
                pos = len(seq) - 1 if seq and seq[-1][0] == "load" and j > 0 else len(seq)
                seq.insert(max(pos, 0), (k, n))
            else:
                seq.append((k, n))
        for k, n in seq:
            if k == "park": side.append(L(f"@vm V{n}") + sum(self.v_reads(n), []))
            else:
                src = [m for m in range(n) if self.blk[("V", m)] == self.blk[("V", n)] and ("park", m) in post]
                if src: side.append(L(f"@rd V{src[-1]}"))
                side += self.v_loads(n)
        every2 = (opt.get("midea2", 30) if A else opt.get("mide2", 60)) / 4.0
        every = (opt.get("midea", 60) if A else opt.get("mide", 45)) / 4.0
        acc, k = opt.get("mid0", 0) / 4.0, 0
        for j, (sl, g) in enumerate(zip(slots, main)):
            if j == nL: every = every2
            if A and j == self.burst_at:
                nb = opt.get("burst", 12)
                while nb > 0 and k < len(side):
                    sl += side[k]
                    if any(x.kind == "vmem" for x in side[k]): nb -= 1
                    k += 1
            if A and j == self.need_side - 1:
                while k < len(extra[16]): sl += side[k]; k += 1
            acc += sum(2 if x.kind == "valu" and x.op.startswith(TRANS) else 1 for x in g)
            if any(x.kind == "vmem" for x in g): acc -= every
            while k < len(side) and acc >= every:
                sl += side[k]
                if any(x.kind == "vmem" for x in side[k]): acc -= every
                k += 1
        rest = side[k:]
        self.note += f"; mid takes {k} of {len(side)} side groups"
        mid = sum(slots, []) + self.stamp("mid")
        nA = max([j + 1 for j, g in enumerate(rest) if any("a[" in x.text and x.kind == "vmem" for x in g)], default=0)
        mid += sum(rest[:nA], [])
        rest = rest[nA:]
        nP = max([j + 1 for j, g in enumerate(rest) if any(x.kind == "ds" and x.tag and int(x.tag[2:]) < 8 for x in g)], default=0)
        pre0 = rest[:nP]
        if not A and opt.get("lflag_at", -12) < 0:
            pre0.insert(min(len(pre0), -opt.get("lflag_at", -12)), self.flag_store(sFP, 128, ["Lst"]) + self.stamp("fl"))
        mid += sum(pre0, [])
        rest = rest[nP:]
        if not self.parked(0):
            mid += L("@vm V0")
            for r in self.v_reads(0): mid += r

        DA = opt.get("da", 4)
        ph2 = []
        for n in range(36):
            mf = []
            for sr in range(2):
                for sn in range(2):
                    k, b = self.vfrag(n, sn)
                    acc = vr(96 + (sr * 2 + sn) * 16, 16)
                    mf.append(L(f"v_mfma_f32_32x32x16_bf16 {acc}, {k}[{b}:{b+3}], {ar(self.areg(n, sr))}, {acc if n else 0}"))
            g = [[] for _ in range(4)]
            if n + 1 < 36 and not self.parked(n + 1):
                g[0] += L(f"@vm V{n+1}")
                rd = self.v_reads(n + 1)
                g[0] += rd[0] + rd[1]; g[1] += rd[2] + rd[3]
            vl = []
            ru = opt.get("restu", 12)
            if n < ru:
                take = -(-len(rest) // (ru - n))
                due = max([j + 1 for j, gg in enumerate(rest) if any(x.kind == "ds" and x.tag and int(x.tag[2:]) <= n + 2 for x in gg)], default=0)
                take = max(take, due)
                split = take < len(rest) and take and len(rest[take]) == 1 and rest[take][0].kind == "vmem" and rest[take][0].lds
                vl = rest[:take]
                rest = rest[take:]
            for i, x in enumerate(vl): g[min(3, 1 + i * 3 // len(vl))] += x
            if n == (opt.get("oflag_at", 4) if A else opt.get("lflag_at", -12)):
                g[3] += (self.flag_store(sFP, 384, ["Ost"]) if A else self.flag_store(sFP, 128, ["Lst"])) + self.stamp("fl")
            m = n + (DA if n >= 8 else 0)
            for first, off in ((8, 256), (16, 128), (28, 384)):
                at = max(first - DA, 7)
                if n == at - (opt.get("pl8", 3) if first == 8 else opt.get("pl", 3)): g[2] += self.poll_issue(pa, V("F"), off)
                if n == at: g[2] += self.stamp(f"q{first}") + self.poll_check(pa, V("F"), off) + self.stamp(f"k{first}")
            if n == 7:
                for mm in range(8, 8 + DA): g[3] += sum(self.a_loads(mm), [])
            if n >= 8 and n + DA < 36: g[3] += sum(self.a_loads(n + DA), [])
            ph2 += L("@lgkm0")
            for i in range(4):
                ph2 += mf[i]
                if i == 0 and n % 4 == 0: ph2 += self.stamp(f"u{n}")
                ph2 += g[i]
        assert not rest
        ph2 += self.stamp("ph2end")

        fin = []
        T = [self.v(f"t{i}") for i in range(8)]
        of = opt.get("oflags", "")
        if opt.get("full", 1):
            AD = 160
            rws = L(f"""
            v_mbcnt_lo_u32_b32 v{T[0]}, -1, 0
            v_mbcnt_hi_u32_b32 v{T[0]}, -1, v{T[0]}
            v_and_b32 v{T[1]}, 7, v{T[0]}
            v_lshrrev_b32 v{T[2]}, 5, v{T[0]}
            v_xor_b32 v{T[2]}, v{T[2]}, v{T[1]}
            v_lshlrev_b32 v{T[2]}, 4, v{T[2]}
            v_lshl_add_u32 v{T[2]}, v{T[1]}, 8, v{T[2]}
            v_bfe_u32 v{T[3]}, v{T[0]}, 3, 2
            v_lshl_add_u32 v{T[2]}, v{T[3]}, 13, v{T[2]}
            s_lshl_b32 {sT0}, {sRH}, 15
            s_lshl_b32 {sT1}, {sJ}, 7
            s_add_u32 {sT0}, {sT0}, {sT1}
            s_add_u32 {sT0}, {sT0}, {sL2}
            v_add_u32 v{AD}, {sT0}, v{T[2]}
            """)
            for sg in range(4):
                for q in range(4):
                    if sg or q: rws += L(f"v_xor_b32 v{AD + sg*4 + q}, {q*32 + (sg & 1)*128 + (sg >> 1)*32768}, v{AD}")
            rws += L(f"""
            v_lshrrev_b32 v{T[3]}, 3, v{T[0]}
            v_lshlrev_b32 v{T[4]}, 1, v{T[1]}
            v_xor_b32 v{T[4]}, v{T[4]}, v{T[3]}
            v_lshlrev_b32 v{T[4]}, 4, v{T[4]}
            v_lshl_add_u32 v{T[4]}, v{T[3]}, 8, v{T[4]}
            s_lshl_b32 {sT0}, {sW}, 14
            v_add_u32 v{T[4]}, {sT0}, v{T[4]}
            v_xor_b32 v{T[5]}, 16, v{T[4]}
            v_lshlrev_b32 v{T[1]}, 4, v{T[1]}
            v_lshl_add_u32 v{T[1]}, v{T[3]}, 10, v{T[1]}
            s_lshl2_add_u32 {sT0}, {sR2}, {sW}
            s_lshl_b32 {sT0}, {sT0}, 14
            s_lshl_b32 {sT1}, {sC2}, 7
            s_add_u32 {sT0}, {sT0}, {sT1}
            v_add_u32 v{T[1]}, {sT0}, v{T[1]}
            s_movk_i32 {sT2}, 0x2000
            """)
            k8 = next(i for i, x in enumerate(ph2) if x.kind == "mfma" and "a[160:163]" in x.text and i > 200)
            ph2[k8:k8] = rws
            for sg in range(4):
                for q in range(4):
                    fin += L(f"ds_write_b128 v{AD + sg*4 + q}, {vr(96 + sg*16 + q*4)}")
            fin += L("@lgkm0\ns_barrier") + self.stamp("redbar")
            for h in range(2):
                for sw in range(4):
                    for e in range(2):
                        fin += L(f"ds_read_b128 {vr(96 + h*32 + sw*8 + e*4)}, v{T[4+e]} offset:{h*8192 + sw*2048}")
            for h in range(2):
                b0 = 96 + h * 32
                for i in range(0, 8, 2):
                    fin += L(f"v_pk_add_f32 v[{b0+i}:{b0+i+1}], v[{b0+i}:{b0+i+1}], v[{b0+8+i}:{b0+9+i}]")
                for i in range(0, 8, 2):
                    fin += L(f"v_pk_add_f32 v[{b0+16+i}:{b0+17+i}], v[{b0+16+i}:{b0+17+i}], v[{b0+24+i}:{b0+25+i}]")
                for i in range(0, 8, 2):
                    fin += L(f"v_pk_add_f32 v[{b0+i}:{b0+i+1}], v[{b0+i}:{b0+i+1}], v[{b0+16+i}:{b0+17+i}]")
                d = 176 + h * 4
                for i in range(4): fin += L(f"v_cvt_pk_bf16_f32 v{d+i}, v{b0+2*i}, v{b0+2*i+1}")
                fin += L(f"buffer_store_dwordx4 {vr(d)}, v{T[1]}, {srd(SOUT)}, {sT2 if h else 0} offen {of}")
        else:
            RW = f"v{T[0]}"
            rws = L(f"v_mbcnt_lo_u32_b32 {RW}, -1, 0\nv_mbcnt_hi_u32_b32 {RW}, -1, {RW}\nv_lshl_add_u32 {RW}, {RW}, 4, {sL2}")
            for sg in range(1, 4): rws += L(f"v_xor_b32 v{T[sg]}, {sg*2048}, {RW}")
            mid += rws
            for sg in range(1, 4):
                for q in range(4):
                    fin += L(f"ds_write_b128 {RW}, {vr(96 + sg*16 + q*4)} offset:{((sg-1)*2 + (q >> 1))*8192 + (q & 1)*1024}")
            fin += L("@lgkm0\ns_barrier") + self.stamp("redbar")
            for q in range(4):
                for sg in range(1, 4):
                    fin += L(f"ds_read_b128 {vr(96 + sg*16 + q*4)}, v{T[sg]} offset:{((sg-1)*2 + (q >> 1))*8192 + (q & 1)*1024}")
            of = opt.get("oflags", "")
            for pr in range(2):
                for q in (2 * pr, 2 * pr + 1):
                    for h in range(2):
                        r = 96 + q * 4 + 2 * h
                        fin += L(f"""
                        v_pk_add_f32 v[{r}:{r+1}], v[{r}:{r+1}], v[{r+16}:{r+17}]
                        v_pk_add_f32 v[{r+32}:{r+33}], v[{r+32}:{r+33}], v[{r+48}:{r+49}]
                        v_pk_add_f32 v[{r}:{r+1}], v[{r}:{r+1}], v[{r+32}:{r+33}]
                        """)
                d = 160 + pr * 4
                for i in range(4):
                    r = 96 + pr * 8 + 2 * i
                    fin += L(f"v_cvt_pk_bf16_f32 v{d+i}, v{r}, v{r+1}")
                fin += L(f"""
                v_permlane32_swap_b32 v{d}, v{d+2}
                v_permlane32_swap_b32 v{d+1}, v{d+3}
                buffer_store_dwordx4 {vr(d)}, {V('OUT')}, {srd(SOUT)}, 0 offen offset:{pr*32} {of}
                """)
        skip = self.lab("noep")
        fin += L(f"""
        s_or_b32 {sT0}, s2, {sW}
        s_cmp_lg_u32 {sT0}, 0
        s_cbranch_scc1 {skip}
        s_mov_b64 exec, 1
        @raw buffer_store_dword {V('tag')}, off, {srd(SW)}, 0 offset:{WS_EPOCH} sc1
        {skip}:
        """)
        if opt.get("padto"):
            lp = self.lab("pad")
            if "xstamp" in opt:
                fin += L("@lgkm0\ns_mov_b32 s3, s4")
            fin += L(f"""
            {lp}:
            @raw s_memrealtime s[82:83]
            @raw s_waitcnt lgkmcnt(0)
            @raw s_sub_u32 s82, s82, s3
            @raw s_cmp_lt_u32 s82, {opt['padto']}
            @raw s_cbranch_scc1 {lp}
            """)
        if opt.get("stamps"):
            st = V("stamps")
            fin += L("s_mov_b64 exec, -1") + self.stamp("stored") + L("@vm0") + self.stamp("end") + self.stamp("FLUSH")
            fin += L(f"""
            s_memrealtime s[4:5]
            v_writelane_b32 {st}, s6, 60
            v_writelane_b32 {st}, {sSpin}, 61
            v_writelane_b32 {st}, s3, 62
            v_writelane_b32 {st}, s4, 63
            s_lshl_b32 {sT0}, s2, 2
            s_add_u32 {sT0}, {sT0}, {sW}
            s_lshl_b32 {sT0}, {sT0}, 8
            s_add_u32 {sT0}, {sT0}, {WS_STAMP}
            v_mbcnt_lo_u32_b32 v96, -1, 0
            v_mbcnt_hi_u32_b32 v96, -1, v96
            v_lshlrev_b32 v96, 2, v96
            buffer_store_dword {st}, v96, {srd(SW)}, {sT0} offen
            """)
        fin += L("s_endpgm")

        fin += L(f"L_end{self.typ}:")
        loads = self.pro_loads
        t1 = []
        common = common_head(opt) + self.first + L("@lgkm0")
        if opt.get("stamps") or opt.get("padto"): common += L("s_mov_b32 s3, s4")
        common += L(f"s_load_dword {sTag}, s[{SW}:{SW+1}], {WS_EPOCH}")
        p1 = opt.get("t1pos", 0)
        nc = opt.get("nc", 8)
        common += sum(loads[:p1], []) + t1 + sum(loads[p1:nc], [])
        common += L("s_bitcmp1_b32 s2, 6\ns_cbranch_scc1 L_pathB")
        head = body + self.second + self.setup + sum(loads[nc:], [])
        if opt.get("t2", 1) == -3: head += touch2(self, 0, False)
        head += L(f"s_add_u32 {sTag}, {sTag}, 0x9e3779b9\nv_mov_b32 {V('tag')}, {sTag}")
        if opt.get("nosc1"):
            for x in ph1 + mid:
                if x.kind == "vmem" and "store_dwordx4" in x.op: x.text = x.text.replace(" sc1", "")
        if opt.get("nost") == 2:
            for x in ph1 + mid:
                if x.kind == "vmem" and "store_dwordx4" in x.op: x.text = re.sub(r"(s\[\d+:\d+\]), \S+ offen", r"\1, s35 offen", x.text.replace("s[32:35]", "s[40:43]")).replace(" sc1", "")
        if opt.get("novalu"):
            mid = [x for x in mid if not (x.kind == "valu" and x.op.startswith(("v_pk", "v_exp", "v_rcp", "v_mul", "v_max", "v_add_f32", "v_cvt")))]
        if opt.get("novalu") == 2:
            keep = lambda x: not (x.kind == "valu" and x.op.startswith(("v_pk", "v_exp", "v_rcp", "v_mul", "v_max", "v_add_f32", "v_cvt", "v_fma")))
            k0 = next(i for i, x in enumerate(ph1) if "H1" in x.text)
            ph1 = ph1[:k0 + 200] + [x for x in ph1[k0 + 200:] if keep(x)]
        if opt.get("nost") == 1:
            for x in ph1 + mid:
                if x.kind == "vmem" and "store_dwordx4" in x.op: x.text = x.text.replace("_dwordx4", "_dword").replace(" sc1", ""); x.text = re.sub(r"v\[(\d+):\d+\]", r"v\1", x.text, 1)
        if opt.get("nomfma"): ph1 = [x for x in ph1 if x.kind != "mfma"]; ph2 = [x for x in ph2 if x.kind != "mfma"]
        if opt.get("nods"): ph1 = [x for x in ph1 if not x.op.startswith("ds_read")]; ph2 = [x for x in ph2 if not x.op.startswith("ds_read")]
        if opt.get("nobar"): ph1 = [x for x in ph1 if x.op != "s_barrier"]
        if opt.get("nodma"): ph1 = [x for x in ph1 if not (x.kind == "vmem" and x.lds and not x.tag)]
        return self.expand_stamps(common + head + ph1 + mid + ph2 + fin)


def touch(sr, mask, code, dst, raw=False):
    p = "@raw " if raw else ""
    return L(f"{code}\ns_mov_b64 exec, {mask}\n{p}buffer_load_dword v{dst}, v246, {srd(sr)}, {sOff} offen")


def rowhalf(stride, nbytes, c0):
    return (f"s_lshr_b32 {sOff}, {sGW}, 1\ns_mul_i32 {sOff}, {sOff}, {stride}\ns_and_b32 {sT0}, {sGW}, 1\n"
            f"s_mul_i32 {sT0}, {sT0}, {nbytes}\ns_add_u32 {sOff}, {sOff}, {sT0}" + (f"\ns_add_u32 {sOff}, {sOff}, {c0}" if c0 else ""))


def touch2(g, k, cond=True, part=0):
    skip = g.lab("t2") if cond else None
    n = g.opt.get("t2n", 4) if cond else 1
    o = L(f"s_and_b32 {sT0}, {sSel}, {n-1}\ns_cmp_lg_u32 {sT0}, {k}\ns_cbranch_scc1 {skip}") if cond else []
    p = "@raw " if cond else ""
    if g.opt.get("xt", 1):
        t = [0, 0, 0, 0, 239, 240, 241, 242]
        assert g.hi_next <= 239
        x8 = g.opt.get("map2", "8x4") == "8x4"
        o += L(f"""
        v_lshrrev_b32 v{t[4]}, 7, v246
        s_and_b32 {sT0}, {sGW}, 127
        s_bfe_u32 {sT1}, s2, 0x10000
        s_lshl_b32 {sT2}, {sT1}, 7
        s_add_u32 {sT2}, {sT2}, {sT0}
        s_lshl_b32 {sT2}, {sT2}, 1
        s_bfe_u32 {sOff}, s2, 0x20001
        """)
        if part in (0, 1):
            o += L(f"""
            v_bfe_u32 v{t[5]}, v{t[4]}, 1, 1
            v_add_u32 v{t[5]}, {sT2}, v{t[5]}
            v_and_b32 v{t[6]}, 1, v{t[4]}
            v_lshl_add_u32 v{t[6]}, {sOff}, 1, v{t[6]}
            v_lshlrev_b32 v{t[6]}, 7, v{t[6]}
            v_mul_u32_u24 v{t[7]}, 3072, v{t[5]}
            v_add_u32 v{t[7]}, v{t[7]}, v{t[6]}
            s_mov_b64 exec, 15
            {p}buffer_load_dword v248, v{t[7]}, {srd(SQ)}, 0 offen
            s_mov_b64 exec, -1
            v_lshrrev_b32 v{t[7]}, 2, v{t[4]}
            v_lshl_add_u32 v{t[6]}, v{t[7]}, 10, v{t[6]}
            v_add_u32 v{t[6]}, 1536, v{t[6]}
            v_lshlrev_b32 v{t[7]}, 7, {sOff}
            v_add_u32 v{t[7]}, 1024, v{t[7]}
            v_cmp_gt_u32 vcc, 8, v{t[4]}
            v_cndmask_b32 v{t[6]}, v{t[7]}, v{t[6]}, vcc
            v_mul_u32_u24 v{t[5]}, 3584, v{t[5]}
            v_add_u32 v{t[6]}, v{t[6]}, v{t[5]}
            s_mov_b64 exec, 0x5ff
            {p}buffer_load_dword v250, v{t[6]}, {srd(SG)}, 0 offen
            {p}buffer_load_dword v249, v{t[6]}, {srd(SU)}, 0 offen
            s_mov_b64 exec, -1
            """)
        if part in (0, 2) and x8:
            o += L(f"""
            v_lshrrev_b32 v{t[5]}, 2, v{t[4]}
            v_and_b32 v{t[6]}, 3, v{t[4]}
            v_lshlrev_b32 v{t[6]}, 7, v{t[6]}
            v_lshl_add_u32 v{t[6]}, v{t[5]}, 10, v{t[6]}
            s_lshl_b32 {sT1}, {sT1}, 9
            s_lshl_b32 {sT2}, {sOff}, 7
            s_add_u32 {sT2}, {sT2}, {sT0}
            s_lshl_b32 {sOff}, {sT2}, 10
            s_add_u32 {sOff}, {sOff}, {sT1}
            s_mov_b64 exec, 15
            {p}buffer_load_dword v247, v{t[6]}, {srd(SO)}, {sOff} offen
            s_lshl_b32 {sOff}, {sT2}, 12
            s_add_u32 {sOff}, {sOff}, {sT1}
            s_mov_b64 exec, 0xffff
            {p}buffer_load_dword v245, v{t[6]}, {srd(SD)}, {sOff} offen
            """)
        elif part in (0, 2):
            o += touch(SO, "15", f"s_lshl_b32 {sOff}, {sGW}, 9", 247, cond)
            o += touch(SD, "0x3fff", f"s_mul_i32 {sOff}, {sGW}, 1792", 245, cond)
        part = 9
    if part in (0, 1):
        o += touch(SG, "0x3ff", rowhalf(3584, 1280, 1024), 250, cond) + L(p + f"buffer_load_dword v249, v246, {srd(SU)}, {sOff} offen")
        o += touch(SQ, "15", rowhalf(3072, 512, 0), 248, cond)
    if part == 0:
        o += touch(SO, "15", f"s_lshl_b32 {sOff}, {sGW}, 9", 247, cond)
        o += touch(SD, "0x3fff", f"s_mul_i32 {sOff}, {sGW}, 1792", 245, cond)
    if part == 2:
        a, d = g.v("t5"), g.v("t6")
        o += L(f"v_mbcnt_lo_u32_b32 v{a}, -1, 0\nv_mbcnt_hi_u32_b32 v{a}, -1, v{a}\nv_lshlrev_b32 v{a}, 7, v{a}")
        o += L(f"s_lshl_b32 {sOff}, {sGW}, 9\ns_mov_b64 exec, 15\nbuffer_load_dword v{d}, v{a}, {srd(SO)}, {sOff} offen")
        o += L(f"s_mul_i32 {sOff}, {sGW}, 1792\ns_mov_b64 exec, 0x3fff\nbuffer_load_dword v{d+1}, v{a}, {srd(SD)}, {sOff} offen")
    o += L("s_mov_b64 exec, -1")
    if cond: o += L(f"{skip}:")
    return o


def touch4(g):
    a, b, d = g.v("t5"), g.v("t4"), g.v("t6")
    return L(f"""
    v_mbcnt_lo_u32_b32 v{a}, -1, 0
    v_mbcnt_hi_u32_b32 v{a}, -1, v{a}
    v_and_b32 v{b}, 3, v{a}
    v_lshrrev_b32 v{a}, 2, v{a}
    v_lshlrev_b32 v{b}, 7, v{b}
    v_lshl_add_u32 v{a}, v{a}, 10, v{b}
    s_and_b32 {sT0}, {sGW}, 127
    s_bfe_u32 {sT1}, s2, 0x10000
    s_lshl_b32 {sT1}, {sT1}, 9
    s_mul_i32 {sOff}, {sT0}, {14*1024}
    s_add_u32 {sOff}, {sOff}, {sT1}
    s_mov_b32 exec_hi, 0xffffff
    buffer_load_dword v{d}, v{a}, {srd(SD)}, {sOff} offen
    s_lshl_b32 {sOff}, {sT0}, 12
    s_add_u32 {sOff}, {sOff}, {sT1}
    s_mov_b64 exec, 0xffff
    buffer_load_dword v{d+1}, v{a}, {srd(SO)}, {sOff} offen
    s_mov_b64 exec, -1
    """)


def codepf(opt):
    o = L(f"""
    s_getpc_b64 s[82:83]
    L_pc:
    s_bitcmp1_b32 s2, 6
    s_cselect_b32 {sT2}, L_pathB-L_pathA, 0
    s_add_u32 {sT2}, {sT2}, L_pathA-L_pc
    """)
    m = opt.get("codepf", 3)
    if m == 1:
        o += L(f"""
        s_bfe_u32 {sT0}, s2, 0x30003
        s_lshr_b32 {sT1}, s2, 7
        s_lshl3_add_u32 {sT0}, {sT1}, {sT0}
        s_mul_i32 {sT0}, {sT0}, 1536
        s_add_u32 {sT2}, {sT2}, {sT0}
        v_min_u32 v1, 11, v0
        v_lshl_add_u32 v1, v1, 7, {sT2}
        v_min_u32 v1, L_endB-L_pc-4, v1
        global_load_dword v255, v1, s[82:83]
        """)
    elif m == 2:
        o += L(f"""
        v_lshl_add_u32 v1, v0, 7, {sT2}
        v_min_u32 v1, L_endB-L_pc-4, v1
        global_load_dword v255, v1, s[82:83]
        """)
    elif m == 3:
        o += L(f"""
        s_bfe_u32 {sT0}, s2, 0x30003
        s_lshr_b32 {sT1}, s2, 7
        s_lshl3_add_u32 {sT0}, {sT1}, {sT0}
        s_mul_i32 {sT0}, {sT0}, 1536
        s_add_u32 {sT0}, {sT2}, {sT0}
        v_and_b32 v1, 63, v0
        v_lshlrev_b32 v1, 7, v1
        s_mov_b64 exec, 0x1ff
        global_load_dword v244, v1, s[82:83]
        v_add_u32 v2, {sT2}, v1
        global_load_dword v243, v2, s[82:83]
        s_mov_b64 exec, -1
        v_min_u32 v1, 11, v0
        v_lshl_add_u32 v1, v1, 7, {sT0}
        v_min_u32 v1, L_endB-L_pc-4, v1
        global_load_dword v255, v1, s[82:83]
        """)
    return o


T1 = """
        v_lshrrev_b32 v2, 6, v0
        v_lshl_add_u32 v2, s2, 2, v2
        v_and_b32 v1, 63, v0
        v_lshlrev_b32 v1, 7, v1
        v_lshl_add_u32 v3, v2, 11, v1
        v_lshrrev_b32 v4, 1, v2
        v_and_b32 v2, 1, v2
        v_mad_u32_u24 v5, v4, 3, v2
        v_mad_u32_u24 v4, v4, 7, v2
        v_lshl_add_u32 v5, v5, 10, v1
        v_lshl_add_u32 v4, v4, 9, v1
        s_mov_b64 exec, 0xffff
        @lgkm0
        global_load_dword v254, v3, s[44:45]
        s_mov_b64 exec, 0xff
        global_load_dword v253, v5, s[46:47] offset:1024
        s_mov_b64 exec, 15
        global_load_dword v252, v4, s[48:49]
        global_load_dword v251, v4, s[50:51]
"""
T1X = """
        v_lshrrev_b32 v2, 6, v0
        s_lshr_b32 s52, s2, 3
        s_and_b32 s53, s2, 1
        s_bfe_u32 s54, s2, 0x20001
        v_lshl_add_u32 v2, s52, 2, v2
        v_and_b32 v1, 63, v0
        s_lshl2_add_u32 s52, s53, s54
        s_lshl_b32 s52, s52, 18
        v_lshlrev_b32 v3, 11, v2
        v_lshl_add_u32 v3, v1, 7, v3
        v_add_u32 v3, s52, v3
        s_lshl_b32 s53, s53, 8
        v_lshl_add_u32 v2, v2, 1, s53
        v_bfe_u32 v4, v1, 1, 1
        v_add_u32 v2, v2, v4
        v_and_b32 v4, 1, v1
        v_lshl_add_u32 v4, s54, 1, v4
        v_lshlrev_b32 v4, 7, v4
        v_lshrrev_b32 v1, 2, v1
        v_lshl_add_u32 v5, v1, 10, v4
        s_movk_i32 s52, 0xc00
        s_movk_i32 s53, 0xe00
        v_mad_u32_u24 v5, v2, s52, v5
        v_mad_u32_u24 v4, v2, s53, v4
        s_mov_b64 exec, 0xffff
        @lgkm0
        global_load_dword v254, v3, s[44:45]
        s_mov_b64 exec, 0xff
        global_load_dword v253, v5, s[46:47] offset:1024
        s_mov_b64 exec, 15
        global_load_dword v252, v4, s[48:49]
        global_load_dword v251, v4, s[50:51]
"""
T1Z = """
        v_lshrrev_b32 v2, 6, v0
        s_lshr_b32 s52, s2, 3
        s_and_b32 s53, s2, 1
        s_bfe_u32 s54, s2, 0x20001
        v_lshl_add_u32 v2, s52, 2, v2
        v_and_b32 v1, 63, v0
        s_lshl2_add_u32 s52, s53, s54
        s_lshl_b32 s52, s52, 18
        v_lshlrev_b32 v3, 11, v2
        v_lshl_add_u32 v3, v1, 7, v3
        v_add_u32 v3, s52, v3
        s_lshl_b32 s53, s53, 8
        v_lshl_add_u32 v2, v2, 1, s53
        v_bfe_u32 v4, v1, 1, 1
        v_add_u32 v2, v2, v4
        v_and_b32 v4, 1, v1
        v_lshl_add_u32 v4, s54, 1, v4
        v_lshlrev_b32 v4, 7, v4
        v_lshrrev_b32 v1, 2, v1
        v_lshl_add_u32 v5, v1, 10, v4
        s_movk_i32 s52, 0xc00
        s_movk_i32 s53, 0xe00
        v_mad_u32_u24 v5, v2, s52, v5
        v_mad_u32_u24 v4, v2, s53, v4
        s_mov_b64 exec, 0xfefe
        @lgkm0
        global_load_dword v254, v3, s[44:45]
        s_mov_b64 exec, 0xff
        global_load_dword v253, v5, s[46:47] offset:1024
        s_mov_b64 exec, 15
        global_load_dword v252, v4, s[48:49]
        global_load_dword v251, v4, s[50:51]
"""
T1V = """
        v_lshrrev_b32 v2, 6, v0
        s_lshr_b32 s52, s2, 3
        s_and_b32 s53, s2, 1
        s_bfe_u32 s54, s2, 0x20001
        v_lshl_add_u32 v2, s52, 2, v2
        v_and_b32 v1, 63, v0
        s_lshl2_add_u32 s52, s53, s54
        s_lshl_b32 s52, s52, 18
        v_lshlrev_b32 v3, 11, v2
        v_lshl_add_u32 v3, v1, 7, v3
        v_add_u32 v3, s52, v3
        s_lshl_b32 s53, s53, 8
        v_lshl_add_u32 v2, v2, 1, s53
        v_bfe_u32 v4, v1, 1, 1
        v_add_u32 v2, v2, v4
        v_and_b32 v4, 1, v1
        v_lshl_add_u32 v4, s54, 1, v4
        v_lshlrev_b32 v4, 7, v4
        v_lshrrev_b32 v1, 2, v1
        v_lshl_add_u32 v5, v1, 10, v4
        s_movk_i32 s52, 0xc00
        s_movk_i32 s53, 0xe00
        v_mad_u32_u24 v5, v2, s52, v5
        v_mad_u32_u24 v4, v2, s53, v4
        s_mov_b64 exec, 0xfcfc
        @lgkm0
        global_load_dword v254, v3, s[44:45]
        s_mov_b64 exec, 0xff
        global_load_dword v253, v5, s[46:47] offset:1024
        s_mov_b64 exec, 15
        global_load_dword v252, v4, s[48:49]
        global_load_dword v251, v4, s[50:51]
"""
T1W = """
        v_lshrrev_b32 v2, 6, v0
        s_lshr_b32 s52, s2, 3
        s_and_b32 s53, s2, 1
        s_bfe_u32 s54, s2, 0x20001
        v_lshl_add_u32 v2, s52, 2, v2
        v_and_b32 v1, 63, v0
        s_lshl2_add_u32 s52, s53, s54
        s_lshl_b32 s52, s52, 18
        v_lshlrev_b32 v3, 11, v2
        v_lshl_add_u32 v3, v1, 7, v3
        v_add_u32 v3, s52, v3
        v_bfe_u32 v4, v1, 1, 2
        v_lshl_add_u32 v2, v2, 2, v4
        v_and_b32 v4, 1, v1
        v_lshl_add_u32 v4, s54, 1, v4
        v_lshlrev_b32 v4, 7, v4
        v_lshrrev_b32 v1, 3, v1
        v_lshl_add_u32 v5, v1, 10, v4
        s_movk_i32 s52, 0xc00
        s_movk_i32 s53, 0xe00
        v_mad_u32_u24 v5, v2, s52, v5
        v_mad_u32_u24 v4, v2, s53, v4
        s_mov_b64 exec, 0xffff
        @lgkm0
        global_load_dword v254, v3, s[44:45]
        global_load_dword v253, v5, s[46:47] offset:1024
        s_mov_b64 exec, 0xff
        global_load_dword v252, v4, s[48:49]
        global_load_dword v251, v4, s[50:51]
"""
T1Y = """
        v_lshrrev_b32 v2, 6, v0
        s_lshr_b32 s52, s2, 3
        s_and_b32 s53, s2, 1
        s_bfe_u32 s54, s2, 0x20001
        v_lshl_add_u32 v2, s52, 2, v2
        v_and_b32 v1, 63, v0
        s_and_b32 s52, s54, 1
        s_lshl1_add_u32 s52, s53, s52
        s_lshl_b32 s52, s52, 19
        v_lshlrev_b32 v3, 12, v2
        v_lshl_add_u32 v3, v1, 7, v3
        v_add_u32 v3, s52, v3
        s_lshl_b32 s53, s53, 8
        v_lshl_add_u32 v2, v2, 1, s53
        v_bfe_u32 v4, v1, 1, 1
        v_add_u32 v2, v2, v4
        v_and_b32 v4, 1, v1
        v_lshl_add_u32 v4, s54, 1, v4
        v_lshlrev_b32 v4, 7, v4
        v_lshrrev_b32 v1, 2, v1
        v_lshl_add_u32 v5, v1, 10, v4
        s_movk_i32 s52, 0xc00
        s_movk_i32 s53, 0xe00
        v_mad_u32_u24 v5, v2, s52, v5
        v_mad_u32_u24 v4, v2, s53, v4
        s_mov_b32 exec_hi, 0
        @lgkm0
        global_load_dword v254, v3, s[44:45]
        s_mov_b64 exec, 0xff
        global_load_dword v253, v5, s[46:47] offset:1024
        s_mov_b64 exec, 15
        global_load_dword v252, v4, s[48:49]
        global_load_dword v251, v4, s[50:51]
"""


def common_head(opt):
    o = L(f"""
    s_cmp_ge_u32 s2, 0x100
    s_cbranch_scc1 L_end
    """)
    if opt.get("stamps") or opt.get("padto"):
        o += L(("s_memrealtime" if opt.get("rt") else "s_memtime") + " s[6:7]\ns_memrealtime s[4:5]")
    if opt.get("t1", 2) == 2:
        o += L("""
        s_load_dwordx4 s[44:47], s[0:1], 0
        s_load_dwordx4 s[48:51], s[0:1], 32
        """)
    if opt.get("pftop", 1): o += codepf(opt)
    if opt.get("t1", 2) == 2:
        o += L(f"""
        {(T1, T1X, T1W, T1Y, T1Z, T1V)[opt.get("xt", 1)]}
        s_mov_b64 exec, -1
        """)
    o += L(f"""
    s_bitcmp1_b32 s2, 6
    s_cselect_b32 {sT0}, 32, 8
    s_cselect_b32 {sT1}, 40, 8
    s_load_dwordx2 s[{S1}:{S1+1}], s[0:1], {sT0}
    s_load_dwordx2 s[{S2}:{S2+1}], s[0:1], {sT1}
    """)
    for b, slot in ((SX, 0), (SG, 4), (SU, 5), (SQ, 1), (SGW, 7), (SW, 10), (SD, 6), (SO, 2), (SOUT, 8)):
        o += L(f"s_load_dwordx2 s[{b}:{b+1}], s[0:1], {slot*8}")
    if not opt.get("pftop", 1): o += codepf(opt)
    for b, n in ((SX, 2048 * 1024), (SQ, 512 * 3072), (SG, 512 * 3584), (SU, 512 * 3584), (SD, 1792 * 1024),
                 (SO, 512 * 1024), (SW, WS_BYTES), (SOUT, 2048 * 1024), (SGW, 1024)):
        o += L(f"s_mov_b32 s{b+2}, {n}\ns_mov_b32 s{b+3}, 0x20000")
    return o


def assemble_sizes(txt):
    import subprocess, tempfile, os
    d = tempfile.mkdtemp()
    open(d + "/a.s", "w").write('.amdgcn_target "amdgcn-amd-amdhsa--gfx950"\n.text\nk:\n' + txt)
    subprocess.run(["clang", "-x", "assembler", "-target", "amdgcn-amd-amdhsa", "-mcpu=gfx950", "-c", d + "/a.s", "-o", d + "/a.o"], check=True)
    o = subprocess.run(["llvm-objdump", "-d", "--mcpu=gfx950", d + "/a.o"], capture_output=True, text=True).stdout
    sizes = [4 * len(re.match(r".*// [0-9A-F]+: ((?:[0-9A-F]{8} ?)+)", l).group(1).split()) for l in o.split("\n") if re.match(r".*// [0-9A-F]+: [0-9A-F]{8}", l)]
    return sizes


def generate(opt):
    parts = []
    info = []
    names = []
    for typ in "AB":
        g = Gen(typ, opt)
        ins, added = finalize(g.build())
        k = next(i for i, x in enumerate(ins) if x.text.startswith("s_cbranch_scc1 L_pathB"))
        parts.append((ins[:k + 1], ins[k + 1:]))
        info.append((typ, len(ins), added, g.nv, g.hi_next))
        if opt.get("plan"):
            print(typ, g.note)
            for k, v in g.when.items(): print("  ", k, " ".join(f"{a}{b}@{g.blk[(a, b)]}" for a, b in v), "park", g.parks[k])
            print("   post", g.post)
        names.append("; stamps " + typ + ": " + " ".join(g.stamp_names) + "\n" if g.stamp_names else "")
    assert text_of(parts[0][0]) == text_of(parts[1][0])
    txt = text_of(parts[0][0]) + "L_pathA:\n" + text_of(parts[0][1]) + "L_pathB:\n" + text_of(parts[1][1]) + "L_end:\n    s_endpgm\n"
    if opt.get("align", 1):
        txt, nw, nn = align8(txt, assemble_sizes)
        info.append(("align", nw, nn))
    ref = open("gated_mix__linear_attn_block__geglu_ffn__prompt.s.ref").read()
    hdr = "".join(l + "\n" for l in ref.split("\n") if l.startswith(";") and "@launch" not in l and "Override" not in l and "grid=ceil" not in l)
    out = f"""{hdr}{"".join(names)}; @launch grid=(256,1,1) block=(256,1,1) lds=163840
.amdgcn_target "amdgcn-amd-amdhsa--gfx950"
.text
.globl {KNAME}
.p2align 8
.type {KNAME},@function
{KNAME}:
{txt}.section .rodata,"a"
.p2align 6
.amdhsa_kernel {KNAME}
  .amdhsa_next_free_vgpr 512
  .amdhsa_next_free_sgpr 102
  .amdhsa_accum_offset 256
  .amdhsa_group_segment_fixed_size 0
  .amdhsa_kernarg_size 88
  .amdhsa_user_sgpr_count 2
  .amdhsa_user_sgpr_kernarg_segment_ptr 1
  .amdhsa_system_sgpr_workgroup_id_x 1
  .amdhsa_float_denorm_mode_32 3
.end_amdhsa_kernel
"""
    return out, info


def parse_opts(args):
    opt = {}
    for a in args:
        k, v = a.split("=", 1)
        try: v = int(v)
        except ValueError: v = v.replace("+", " ")
        opt[k] = v
    return opt


if __name__ == "__main__":
    out, info = generate(parse_opts(sys.argv[2:]))
    open(sys.argv[1], "w").write(out)
    print(info)
```

```python
import re

REG_RE = re.compile(r"^(-|\|)?(abs\()?([vas])(\d+)\)?\|?$")
RNG_RE = re.compile(r"^(-)?([vas])\[(\d+):(\d+)\]$")
TRANS = ("v_exp_f32", "v_log_f32", "v_rcp_f32", "v_rsq_f32", "v_sqrt_f32", "v_sin_f32", "v_cos_f32")


def regs_of(tok):
    tok = tok.strip()
    m = RNG_RE.match(tok)
    if m:
        return [(m.group(2), i) for i in range(int(m.group(3)), int(m.group(4)) + 1)]
    m = REG_RE.match(tok)
    if m:
        return [(m.group(3), int(m.group(4)))]
    if tok == "vcc":
        return [("s", "vcc")]
    if tok == "exec":
        return [("s", "exec")]
    if tok == "m0":
        return [("s", "m0")]
    return []


class I:
    __slots__ = ("text", "op", "kind", "rd", "wr", "tag", "srcC", "srcAB", "passes", "lds", "data")

    def __init__(self, text, tag=None):
        self.text = text
        self.tag = tag
        self.rd, self.wr, self.srcC, self.srcAB, self.data = [], [], [], [], []
        self.passes = 0
        self.lds = False
        t = text.strip()
        if t.startswith("@") or t.endswith(":") or t.startswith(";") or t.startswith("."):
            self.op, self.kind = t, ("pseudo" if t.startswith("@") else "label")
            return
        parts = t.split(None, 1)
        op = parts[0]
        self.op = op
        rest = parts[1] if len(parts) > 1 else ""
        ops, depth, cur = [], 0, ""
        for ch in rest:
            if ch in "[(":
                depth += 1
            if ch in "])":
                depth -= 1
            if ch == "," and depth == 0:
                ops.append(cur.strip()); cur = ""
            else:
                cur += ch
        if cur.strip():
            ops.append(cur.strip())
        mods = ""
        if ops:
            last = ops[-1].split(None, 1)
            ops[-1] = last[0]
            mods = last[1] if len(last) > 1 else ""
        R = [regs_of(o) for o in ops]
        flat = lambda l: [x for y in l for x in y]
        if op.startswith("v_mfma"):
            self.kind = "mfma"
            self.wr = R[0]; self.srcAB = R[1] + R[2]; self.srcC = R[3]; self.rd = self.srcAB + self.srcC
            self.passes = 8 if "32x32x16" in op else 4
        elif op.startswith("v_"):
            self.kind = "valu"
            if op.startswith("v_permlane") and "swap" in op:
                self.wr = R[0] + R[1]; self.rd = R[0] + R[1]
            elif op.startswith(("v_fmac", "v_dot2c", "v_writelane")):
                self.wr = R[0]; self.rd = flat(R)
            elif op.startswith(("v_add_co", "v_sub_co", "v_addc_co")):
                self.wr = R[0] + R[1]; self.rd = flat(R[2:])
            elif op == "v_nop":
                pass
            else:
                self.wr = R[0]; self.rd = flat(R[1:])
            if "dpp" in op:
                self.rd = self.rd + R[0]
        elif op.startswith("ds_"):
            self.kind = "ds"
            if op.startswith("ds_read") or op.startswith("ds_bpermute"):
                self.wr = R[0]; self.rd = flat(R[1:])
            else:
                self.rd = flat(R)
        elif op.startswith(("buffer_", "global_")):
            self.kind = "vmem"
            if re.search(r"\blds\b", mods):
                self.lds = True
                self.rd = flat(R) + [("s", "m0")]
            elif "_load" in op:
                self.wr = R[0]; self.rd = flat(R[1:])
            else:
                self.rd = flat(R)
                if "x4" in op or "x3" in op:
                    self.data = R[0] if op.startswith("buffer_") else R[1]
        elif op.startswith(("s_load", "s_memtime", "s_memrealtime")):
            self.kind = "smem"
            self.wr = R[0]; self.rd = flat(R[1:])
        elif op.startswith("s_"):
            self.kind = "salu"
            if op.startswith(("s_cmp", "s_bitcmp")):
                self.rd = flat(R)
            elif op.startswith(("s_waitcnt", "s_barrier", "s_nop", "s_branch", "s_cbranch", "s_sleep", "s_endpgm", "s_setprio")):
                pass
            elif "saveexec" in op:
                self.wr = R[0] + [("s", "exec")]; self.rd = flat(R[1:])
            else:
                self.wr = R[0]; self.rd = flat(R[1:])
        else:
            raise ValueError(text)

    def states(self):
        if self.kind in ("pseudo", "label"):
            return 0
        if self.op == "s_nop":
            return int(self.text.split()[1]) + 1
        return 1


def L(text, tag=None):
    out = [I(l.strip()) for l in text.split("\n") if l.strip()]
    if tag is not None:
        out[-1].tag = tag
    return out


def resolve_waits(ins):
    out = []
    vm_n = 0
    vm_done = 0
    lg_n = 0
    lg_done = 0
    smem_out = False
    pend = {}
    tags = {}
    dtags = {}

    def wait(vm=None, lg=None):
        nonlocal vm_done, lg_done, smem_out
        s = []
        if vm is not None and vm > vm_done:
            n = vm_n - vm
            if n < 63:
                s.append(f"vmcnt({n})")
            vm_done = vm
        if lg is not None:
            if lg == "all":
                if smem_out or lg_done < lg_n:
                    s.append("lgkmcnt(0)")
                lg_done = lg_n; smem_out = False
                for r in [r for r, v in pend.items() if v[0] == "sm"]: del pend[r]
            elif lg > lg_done:
                n = lg_n - lg
                if smem_out:
                    n = 0; lg = lg_n; smem_out = False
                    for r in [r for r, v in pend.items() if v[0] == "sm"]: del pend[r]
                if n < 15:
                    s.append(f"lgkmcnt({n})")
                lg_done = lg
        if s:
            out.append(I("s_waitcnt " + " ".join(s)))

    for x in ins:
        if x.kind == "pseudo":
            p = x.text.split()
            if p[0] == "@vm":
                wait(vm=max(tags[t] for t in p[1:]))
            elif p[0] == "@sync":
                wait(vm=max([tags[t] for t in p[1:]], default=None), lg="all")
            elif p[0] == "@rd":
                wait(lg=dtags["R" + p[1]])
            elif p[0] == "@lgkm":
                wait(lg=lg_n - int(p[1]))
            elif p[0] == "@lgkm0":
                wait(lg="all")
            elif p[0] == "@vm0":
                wait(vm=vm_n)
            elif p[0] == "@raw":
                out.append(I(x.text[5:]))
            else:
                raise ValueError(x.text)
            continue
        needvm, needlg = None, None
        for r in x.rd + x.wr:
            if r in pend:
                k, i = pend[r]
                if k == "vm":
                    if i > vm_done: needvm = max(needvm or 0, i)
                elif k == "lg":
                    if i > lg_done and needlg != "all": needlg = max(needlg or 0, i)
                elif smem_out:
                    needlg = "all"
                del pend[r]
        if needvm is not None or needlg is not None:
            wait(vm=needvm, lg=needlg)
        out.append(x)
        if x.kind == "vmem":
            vm_n += 1
            for r in x.wr: pend[r] = ("vm", vm_n)
            if x.tag: tags[x.tag] = vm_n
        elif x.kind == "ds":
            lg_n += 1
            if x.tag: dtags[x.tag] = lg_n
            for r in x.wr: pend[r] = ("lg", lg_n)
        elif x.kind == "smem":
            smem_out = True
            for r in x.wr: pend[r] = ("sm", 0)
    return out


def need_states(p, c):
    n = 0
    pw, cr, cw = set(p.wr), set(c.rd), set(c.wr)
    vec = lambda s: {r for r in s if r[0] in "va"}
    sca = lambda s: {r for r in s if r[0] == "s"}
    if p.kind == "valu":
        if c.kind == "mfma" and vec(pw) & cr: n = max(n, 2)
        if c.kind == "vmem" and sca(pw) & cr: n = max(n, 5)
        if c.kind == "valu":
            if sca(pw) & cr: n = max(n, 4 if c.op.startswith(("v_readlane", "v_writelane")) else 2)
            if vec(pw) & cr:
                if c.op.startswith(("v_readlane", "v_readfirstlane")): n = max(n, 1)
                if c.op.startswith("v_permlane") or "dpp" in c.op: n = max(n, 2)
                if p.op.startswith(TRANS) and not c.op.startswith(TRANS): n = max(n, 1)
    elif p.kind == "mfma":
        big = p.passes == 8
        if c.kind == "mfma":
            if pw & set(c.srcAB): n = max(n, 12 if big else 8)
            if pw & set(c.srcC):
                if not (p.wr == c.srcC and p.passes == c.passes): n = max(n, 10 if big else 6)
            elif pw & cw:
                n = max(n, 10 if big else 6)
        elif c.kind in ("valu", "vmem", "ds"):
            if pw & (cr | cw): n = max(n, 12 if big else 8)
            if c.kind == "valu" and set(p.srcC) & cw: n = max(n, 7 if big else 3)
    elif p.kind == "salu":
        if ("s", "m0") in pw and c.kind == "vmem" and c.lds: n = max(n, 1)
    elif p.kind == "vmem":
        if p.data and set(p.data) & cw: n = max(n, 2)
    return n


def pad_hazards(ins):
    out = []
    added = 0
    for c in ins:
        if c.kind not in ("pseudo", "label"):
            dist, need = 0, 0
            for p in reversed(out):
                if dist >= 20: break
                if p.kind not in ("pseudo", "label"):
                    k = need_states(p, c) - dist
                    if k > need: need = k
                dist += p.states()
            if need > 0:
                out.append(I(f"s_nop {need-1}")); added += need
        out.append(c)
    return out, added


def finalize(ins):
    a = resolve_waits(ins)
    b, added = pad_hazards(a)
    return b, added


def text_of(ins):
    return "\n".join((x.text if x.kind == "label" else "    " + x.text) for x in ins) + "\n"


def weave(slots, side, lo=0, hi=None):
    hi = len(slots) if hi is None else hi
    n = hi - lo
    tot = sum(len(g) for g in side)
    acc = 0
    for g in side:
        k = lo + min(n - 1, (acc * n) // max(tot, 1))
        slots[k].extend(g)
        acc += len(g)


def cost(x):
    if x.kind in ("pseudo", "label"): return 0.5 if x.text.startswith(("@vm", "@sync", "@lgkm")) else 0
    if x.kind == "vmem": return 2.5
    if x.kind == "mfma": return 8
    if x.kind == "valu" and x.op.startswith(TRANS): return 2
    return 1


class Gap:
    def __init__(self):
        self.pre, self.sa, self.ds, self.vm, self.va = [], [], [], [], []
    def used(self):
        return sum(map(cost, self.pre + self.ds + self.vm + self.va)) + max(0, len(self.sa) - (0 if self.pre else 1))
    def emit(self):
        return self.pre + self.sa + self.ds + self.vm + self.va


def place_mem(gaps, groups, lo, hi):
    n, prev = len(groups), lo - 1
    for i, g in enumerate(groups):
        p = lo + (i * (hi - lo)) // n
        pre, ld = g[:-1], g[-1:]
        if p == prev:
            gaps[p].vm += pre + ld
            continue
        q = p
        for x in reversed(pre):
            gaps[q].sa.insert(0, x)
            if q - 1 > prev: q -= 1
        gaps[p].vm += ld
        prev = p


def place_valu(gaps, groups, lo, hi, cap=6.0):
    def kind(g):
        k = {x.kind for x in g if x.kind != "pseudo"}
        if k <= {"ds"}: return "ds"
        if "vmem" in k and k <= {"vmem", "salu"}: return "vm"
        return "va"
    while True:
        used = [g.used() for g in gaps]
        plan, p, ok = [], lo, True
        fresh = True
        for g in groups:
            c, k = sum(map(cost, g)), kind(g)
            if k != "va":
                if not fresh: p += 1
                fresh = True
            else:
                while p < hi and used[p] + c > cap and not (c > cap and used[p] <= 2): p += 1; fresh = True
                fresh = False
            if p >= hi: ok = False; break
            used[p] += c
            plan.append((p, k, g))
        if ok: break
        cap += 0.5
    for p, k, g in plan:
        getattr(gaps[p], k).extend(g)
    return plan[-1][0], cap


def align8(text, assemble, islands=None, first=None):
    lines = text.split("\n")
    sizes = assemble(text)
    isins = lambda l: l.startswith("    ") and l.strip() and not l.strip().startswith((".", ";"))
    idx = [i for i, l in enumerate(lines) if isins(l)]
    assert len(idx) == len(sizes), (len(idx), len(sizes))
    size_of = dict(zip(idx, sizes))
    off, cand, extra, widened, nops = 0, None, {}, 0, 0
    wide_ok = re.compile(r"^v_(mul|add|sub|max|min)_f32 |^v_(exp|rcp)_f32 |^v_mov_b32 |^v_(and|or|xor|lshlrev|lshrrev)_b32 |^v_add_u32 ")
    cur, page, count = None, 0, {}
    if first: off, cur = first[0], first[1]; count[cur[1]] = 0
    pos = {i: k for k, i in enumerate(idx)}
    for i, l in enumerate(lines):
        if islands and l.endswith(":"):
            if l[:-1] in islands: cur, off, page, cand = islands[l[:-1]], 0, 0, None; count[cur[1]] = 0
            elif cur and l[:-1] == cur[0]: cur = None
        if i not in size_of: continue
        if cur and off >> 12 > page:
            page = off >> 12
            count[cur[1]] += 1
            extra.setdefault(i, []).append(f"@ISL {cur[1]} {count[cur[1]]}")
            if off % 8 == 0: cand = None
            off += 4
        k, sz, t = pos[i], size_of[i], l.strip()
        if sz == 4:
            if off % 8 == 0: cand = None
            if wide_ok.match(t): cand = i
        elif off % 8 == 4:
            if cand is not None and not (cur and (off + 4) >> 12 > page):
                op, rest = lines[cand].strip().split(None, 1)
                lines[cand] = f"    {op}_e64 {rest}"
                off += 4; widened += 1
            else:
                run = 0
                while k + run < len(idx) and sizes[k + run] == 8 and "mfma" not in lines[idx[k + run]]: run += 1
                if run >= 6:
                    extra.setdefault(i, []).append("    s_nop 0"); off += 4; nops += 1
            cand = None
        else:
            cand = None
        off += sz
    res = []
    for i, l in enumerate(lines):
        for e in extra.get(i, []):
            if e.startswith("@ISL"):
                _, nm, k = e.split(); k = int(k)
                tgt = f"L_isl{nm}{k+4}" if k + 4 <= count[nm] else f"L_ret{nm}"
                res += [f"L_isl{nm}{k}:", f"    s_cbranch_execz {tgt}"]
            else: res.append(e)
        res.append(l)
    return "\n".join(res), widened, nops, count
```

```python
import sys, struct, re
from prog import *

KNAME = "gated_mix__linear_attn_block__geglu_ffn__prompt_kernel"

WS_EPOCH = 0
WS_FL = 0x1000
WS_KF = 0x12000
WS_G = 0x14000
WS_ZP = 0x18000
WS_KP = 0x28000
WS_KT = 0xA8000
WS_H = 0x100000
WS_STAMP = 0x8000000
RG_BYTES = 144 * 1024
WS_BYTES = 268435456

def f32(x): return "0x%08x" % struct.unpack("<I", struct.pack("<f", x))[0]
LOG2E = 1.4426950408889634
K0 = -2.0 * 0.7978845608028654 * LOG2E
K1 = K0 * 0.044715

SX, SQ, SG, SU, SD, SO, SW, SOUT, SGW = 8, 12, 16, 20, 24, 28, 32, 36, 40
srd = lambda b: f"s[{b}:{b+3}]"
(sW, sRH, sJ, sR, sT, sTag, sR2, sC2, sT0, sT1, sT2, sRot, sKx, sKw, sKq, sL4, sL2, sL1, sCE, sCH, sCL,
 sE, sEh, sL, sO, sFP, sKFP, sKPP, sZPP, sA0, sA1, sSpin, sGrow, sOff) = [f"s{i}" for i in range(44, 78)]
sAo = sA0
sMH = "s[78:79]"
sMR = "s[80:81]"
sPC = "s[4:5]"
STAMP0 = 82
sGW = "s92"
sTab = [f"s{i}" for i in range(93, 101)]
sSel = "s101"
sKB, sZB, sTB, sStr = sRot, sKx, sKq, sCL
S1, S2 = 84, 88

ACC = lambda t, rg: 96 + (t * 2 + rg) * 16
vr = lambda b, n=4: f"v[{b}:{b+n-1}]"
ar = lambda b, n=4: f"a[{b}:{b+n-1}]"
LDS_MISC = 19 * 8192


def hoist_m0(groups):
    out = [list(g) for g in groups]
    for i in range(1, len(out)):
        if len(out[i]) == 2 and out[i][0].text.startswith("s_add_u32 m0") and out[i - 1][-1].kind == "vmem":
            out[i - 1].append(out[i].pop(0))
    return out


class Gen:
    def __init__(self, typ, opt):
        self.typ = typ
        self.opt = opt
        self.nv = 1
        self.names = {}
        self.setup = []
        self.hi_next = 192
        self.ool = []
        self.nstamp = 0
        self.nlab = 0

    def v(self, name, n=1, p1only=False):
        if name not in self.names:
            if p1only:
                if n > 1: self.hi_next = (self.hi_next + 1) // 2 * 2
                self.names[name] = self.hi_next; self.hi_next += n
                assert self.hi_next <= 256
            else:
                if n > 1: self.nv = (self.nv + 1) // 2 * 2
                self.names[name] = self.nv; self.nv += n
                assert self.nv <= 64, name
        return self.names[name]

    def V(self, name, p1only=False): return f"v{self.v(name, 1, p1only)}"

    def lab(self, s):
        self.nlab += 1
        return f"L_{self.typ}_{s}_{self.nlab}"

    def stamp(self, name):
        if "xstamp" in self.opt:
            return L("s_memrealtime s[4:5]") if name == self.opt["xstamp"] else []
        if not self.opt.get("stamps"): return []
        if self.opt.get("coarse") and name not in ("start", "sync0", "s4", "p0", "p4", "p1end", "mid", "u8", "u28", "ph2end", "end", "FLUSH"): return []
        return [I("@stamp " + name)]

    def expand_stamps(self, ins):
        out, n = [], 0
        self.stamp_names = []
        lines = mf = 0
        half = {f"v{self.names.get('Hg', -1)},", f"v{self.names.get('Hu', -1)},"}
        for x in ins:
            if x.kind == "vmem":
                lines += (16 if x.text.split()[1] in half else 8) if "x4" in x.op else 2
            if x.kind == "mfma": mf += 1
            if x.kind == "pseudo" and x.text.startswith("@stamp"):
                i = (STAMP0, 4)[n % 2]
                if n: out += L(f"v_writelane_b32 {self.V('stamps')}, s{(STAMP0, 4)[(n-1) % 2]}, {n-1}")
                nm = x.text.split()[1]
                if nm != "FLUSH":
                    out += L(f"{'s_memrealtime' if self.opt.get('rt') else 's_memtime'} s[{i}:{i+1}]")
                    self.stamp_names.append(f"{nm}:{lines}:{mf}")
                    n += 1
                    assert n <= 60, n
            else:
                out.append(x)
        return out

    def lds(self, pat, off, p1only=False):
        win, imm = off >> 16, off & 0xFFFF
        if win == 0:
            return self.V(pat, p1only), imm
        name = f"{pat}@{win}"
        if name not in self.names:
            self.setup += L(f"v_add_u32 {self.V(name, p1only)}, {win << 16}, {self.V(pat, p1only)}")
        return self.V(name), imm

    def prologue(self):
        A = self.typ == "A"
        V = self.V
        self.nv = 2
        t = [self.V(f"t{i}") for i in range(8)]
        l, l3, l7, l4, nh, wsw = [self.V(n, True) for n in ("lane", "l3", "l7", "l4", "nh", "wsw")]
        P = lambda n: self.V(n, True)
        self.first = L(f"""
        v_lshrrev_b32 {t[0]}, 6, v0
        v_and_b32 {l}, 63, v0
        s_and_b32 {sT0}, s2, 1
        v_readfirstlane_b32 {sW}, {t[0]}
        s_bfe_u32 {sT2}, s2, 0x30003
        s_lshl3_add_u32 {sR}, {sT0}, {sT2}
        s_bfe_u32 {sT1}, s2, 0x20001
        s_lshr_b32 {sOff}, s2, 7
        s_lshl1_add_u32 {sT}, {sT1}, {sOff}
        s_lshl2_add_u32 {sGW}, {sT0}, {sT1}
        s_lshl_b32 {sGW}, {sGW}, 5
        s_lshr_b32 {sOff}, s2, 3
        s_add_u32 {sGW}, {sGW}, {sOff}
        s_lshl2_add_u32 {sGW}, {sGW}, {sW}
        v_lshrrev_b32 {l3}, 3, {l}
        v_and_b32 {l7}, 7, {l}
        v_lshrrev_b32 {l4}, 4, {l}
        v_lshlrev_b32 v246, 7, {l}
        s_lshl2_add_u32 {sT0}, {sR}, {sW}
        s_lshl_b32 {sT0}, {sT0}, 15
        v_xor_b32 {t[0]}, {l7}, {l4}
        v_lshlrev_b32 {t[0]}, 4, {t[0]}
        v_lshl_add_u32 {t[0]}, {l3}, 10, {t[0]}
        v_add_u32 {P('X0')}, {sT0}, {t[0]}
        v_xor_b32 {t[1]}, 64, {P('X0')}
        v_add_u32 {P('X1')}, {8192-1024}, {t[1]}
        v_add_u32 {P('X2')}, {16384-2048}, {P('X0')}
        v_add_u32 {P('X3')}, {16384-2048}, {P('X1')}
        v_and_b32 {nh}, 1, {l4}
        v_lshlrev_b32 {t[0]}, 2, {nh}
        v_xor_b32 {t[0]}, {t[0]}, {l7}
        v_lshlrev_b32 {wsw}, 4, {t[0]}
        s_lshl_b32 {sCE}, {sT}, 7
        s_bitcmp1_b32 s2, 6
        s_cselect_b32 {sStr}, 7, 6
        s_cselect_b32 {sT1}, 0, 1024
        s_cselect_b32 {sT2}, 32, 0
        s_cselect_b32 {sGrow}, 8, 0
        s_lshl_b32 s{S1+2}, {sStr}, 18
        s_lshl_b32 {sStr}, {sStr}, 9
        s_mov_b32 s{S2+2}, s{S1+2}
        s_mov_b32 s{S1+3}, 0x20000
        s_mov_b32 s{S2+3}, 0x20000
        v_lshl_add_u32 {P('kr')}, {sW}, 4, {l3}
        v_add_u32 {P('wc')}, {sCE}, {wsw}
        v_mad_u32_u24 {t[0]}, {P('kr')}, {sStr}, {P('wc')}
        v_add_u32 {P('W1')}, {sT1}, {t[0]}
        v_add_u32 {t[1]}, {sT1}, {P('W1')}
        v_xor_b32 {P('W2')}, {sT2}, {t[1]}
        s_lshl3_add_u32 {sT1}, {sStr}, -1024
        v_add_u32 {P('W11')}, {sT1}, {P('W1')}
        v_add_u32 {P('W21')}, {sT1}, {P('W2')}
        s_lshl_b32 {sStr}, {sStr}, 6
        s_lshl_b32 {sL4}, {sW}, 12
        s_lshl_b32 {sL2}, {sW}, 11
        s_add_u32 {sGrow}, {sGrow}, {sT}
        s_lshl4_add_u32 {sGrow}, {sR}, {sGrow}
        s_lshl2_add_u32 {sGrow}, {sGrow}, {sW}
        s_lshl_b32 {sGrow}, {sGrow}, 1
        v_lshlrev_b32 {P('l16')}, 4, {l}
        """)
        hi, r4, c3, l31 = [P(n) for n in ("hi", "r4", "c3", "l31")]
        o = L(f"""
        s_and_b32 {sT0}, s2, 7
        s_lshr_b32 {sT1}, s2, 3
        s_and_b32 {sT2}, {sT1}, 7
        s_lshr_b32 {sRH}, {sW}, 1
        s_and_b32 {sJ}, {sW}, 1
        s_and_b32 {sSel}, {sT1}, 3
        s_lshl_b32 {sL1}, {sW}, 10
        v_lshrrev_b32 {hi}, 5, {l}
        v_bfe_u32 {r4}, {l}, 2, 2
        v_and_b32 {c3}, 3, {l}
        v_and_b32 {l31}, 31, {l}
        """)
        m2 = self.opt.get("map2", "8x4")
        if m2 == "8x4t":
            o += L(f"""
            s_lshr_b32 {sR2}, {sT0}, 1
            s_and_b32 {sOff}, {sT1}, 3
            s_lshl3_add_u32 {sR2}, {sR2}, {sOff}
            s_add_u32 {sR2}, {sR2}, {0 if A else 4}
            s_and_b32 {sC2}, {sT0}, 1
            s_lshr_b32 {sOff}, {sT1}, 4
            s_lshl1_add_u32 {sC2}, {sC2}, {sOff}
            s_bfe_u32 {sOff}, {sT1}, 0x10002
            s_lshl1_add_u32 {sC2}, {sC2}, {sOff}
            """)
        elif m2 == "4x8t":
            o += L(f"""
            s_and_b32 {sOff}, {sT1}, 1
            s_lshl2_add_u32 {sR2}, {sT0}, {sOff}
            s_add_u32 {sR2}, {sR2}, {0 if A else 2}
            s_lshr_b32 {sC2}, {sT1}, 4
            s_bfe_u32 {sOff}, {sT1}, 0x20001
            s_lshl2_add_u32 {sC2}, {sC2}, {sOff}
            """)
        elif m2 == "8x4":
            o += L(f"""
            s_lshr_b32 {sR2}, {sT0}, 1
            s_lshl3_add_u32 {sR2}, {sR2}, {sT2}
            s_and_b32 {sC2}, {sT0}, 1
            s_lshr_b32 {sOff}, {sT1}, 3
            s_lshl2_add_u32 {sC2}, {sC2}, {sOff}
            """)
        else:
            o += L(f"""
            s_and_b32 {sOff}, {sT1}, 3
            s_lshl2_add_u32 {sR2}, {sT0}, {sOff}
            s_lshr_b32 {sC2}, {sT1}, 2
            """)
        o += L(f"""
        v_mul_u32_u24 {t[1]}, 3584, {P('kr')}
        v_add_u32 {V('Wg')}, {t[1]}, {P('wc')}
        v_xor_b32 {V('Wu')}, 32, {V('Wg')}
        v_add_u32 {V('Wg1')}, {8*3584-1024}, {V('Wg')}
        v_add_u32 {V('Wu1')}, {8*3584-1024}, {V('Wu')}
        """)
        if A:
            o += L(f"""
            v_add_u32 {V('Wq')}, -1024, {P('W1')}
            v_add_u32 {V('Wq1')}, -1024, {P('W11')}
            """)
        else:
            o += L(f"""
            v_lshrrev_b32 {t[0]}, 2, {l}
            v_lshl_add_u32 {t[0]}, {sW}, 4, {t[0]}
            v_mul_u32_u24 {t[1]}, 3584, {t[0]}
            v_lshl_add_u32 {t[1]}, {c3}, 4, {t[1]}
            s_lshl_b32 {sCH}, {sT}, 6
            v_add_u32 {V('Hg')}, {sCH}, {t[1]}
            v_xor_b32 {V('Hu')}, 32, {V('Hg')}
            """)
        self.v("gx0", 4, True); self.v("gx1", 4, True); self.v("ggw", 4, True)
        o += L(f"""
        v_bfe_u32 {t[0]}, {l}, 1, 3
        v_xor_b32 {t[0]}, {t[0]}, {hi}
        v_lshlrev_b32 {t[0]}, 4, {t[0]}
        v_lshl_add_u32 {t[0]}, {l31}, 7, {t[0]}
        s_lshl_b32 {sT0}, {sRH}, 13
        v_add_u32 {V('XR0', True)}, {sT0}, {t[0]}
        v_xor_b32 {V('XR1', True)}, 32, {V('XR0')}
        v_xor_b32 {V('XR2', True)}, 64, {V('XR0')}
        v_xor_b32 {V('XR3', True)}, 0x60, {V('XR0')}
        v_and_b32 {t[0]}, 2, {r4}
        v_xor_b32 {t[0]}, {t[0]}, {nh}
        s_lshl_b32 {sT0}, {sJ}, 1
        v_xor_b32 {t[0]}, {sT0}, {t[0]}
        v_lshlrev_b32 {t[0]}, 5, {t[0]}
        v_lshl_add_u32 {t[0]}, {c3}, 3, {t[0]}
        v_lshl_add_u32 {t[1]}, {hi}, 3, {r4}
        v_lshl_add_u32 {t[2]}, {t[1]}, 7, {t[0]}
        v_lshl_add_u32 {V('M0')}, {nh}, 13, {t[2]}
        v_xor_b32 {V('M1')}, 32, {V('M0')}
        v_lshl_add_u32 {t[3]}, {hi}, 2, {r4}
        v_lshl_add_u32 {t[3]}, {t[3]}, 7, {t[0]}
        v_add_u32 {V('VR0')}, {sL2}, {t[3]}
        v_xor_b32 {V('VR1')}, 64, {V('VR0')}
        """)
        if A:
            o += L(f"v_mov_b32 {V('Pl')}, {t[2]}")
        else:
            o += L(f"""
            v_xor_b32 {t[0]}, {sJ}, {nh}
            v_lshlrev_b32 {t[0]}, 5, {t[0]}
            v_lshl_add_u32 {t[0]}, {c3}, 3, {t[0]}
            v_lshl_add_u32 {t[0]}, {t[1]}, 6, {t[0]}
            v_lshl_add_u32 {V('Hf')}, {nh}, 12, {t[0]}
            """)
        o += L(f"""
        v_lshl_add_u32 {t[0]}, {l3}, 10, {wsw}
        s_lshl_b32 {sT0}, {sC2}, 7
        s_lshl_b32 {sT1}, {sW}, 16
        s_add_u32 {sT0}, {sT0}, {sT1}
        v_add_u32 {V('V4')}, {sT0}, {t[0]}
        v_add_u32 {V('V8')}, {sT1}, {V('V4')}
        v_add_u32 {V('V41')}, {8192-1024}, {V('V4')}
        v_add_u32 {V('V81')}, {8192-1024}, {V('V8')}
        s_mul_i32 {sT0}, {sR2}, {2*RG_BYTES}
        s_add_u32 {sT0}, {sT0}, {WS_H}
        s_add_u32 {sT0}, {sT0}, {sL4}
        v_add_u32 {t[0]}, {sT0}, {V('l16')}
        s_mul_i32 {sA0}, {sRH}, {RG_BYTES}
        s_sub_u32 {sA1}, {RG_BYTES}, {sA0}
        v_add_u32 {V('A40')}, {sA0}, {t[0]}
        v_add_u32 {V('A41')}, {sA1}, {t[0]}
        v_add_u32 {V('A80')}, {sL4}, {V('A40')}
        v_add_u32 {V('A81')}, {sL4}, {V('A41')}
        s_lshl_b32 {sT0}, {sR}, 1
        s_add_u32 {sT0}, {sT0}, {sRH}
        s_mul_i32 {sT1}, {sT0}, {2*RG_BYTES}
        s_add_u32 {sT1}, {sT1}, {WS_H}
        v_add_u32 {V('HS0')}, {sT1}, {V('l16')}
        v_add_u32 {V('HS1')}, {RG_BYTES}, {V('HS0')}
        s_lshl_b32 {sT1}, {sT0}, 9
        s_add_u32 {sT1}, {sT1}, {WS_G}
        v_lshlrev_b32 {t[0]}, 3, {l31}
        v_add_u32 {V('G', True)}, {sT1}, {t[0]}
        s_lshl_b32 {sT0}, {sT0}, 2
        s_lshr_b32 {sT1}, {sT}, 1
        s_add_u32 {sT0}, {sT0}, {sT1}
        s_lshl_b32 {sT0}, {sT0}, 9
        s_and_b32 {sT1}, {sT}, 1
        s_lshl_b32 {sT1}, {sT1}, 1
        s_add_u32 {sT1}, {sT1}, {sJ}
        s_lshl_b32 {sT1}, {sT1}, 2
        s_add_u32 {sT0}, {sT0}, {sT1}
        s_add_u32 {sFP}, {sT0}, {WS_FL}
        s_lshl_b32 {sT0}, {sR2}, 2
        s_add_u32 {sT0}, {sT0}, {sW}
        s_lshl_b32 {sT0}, {sT0}, 9
        s_add_u32 {sT0}, {sT0}, {WS_FL}
        v_lshlrev_b32 {t[0]}, 2, {c3}
        v_add_u32 {V('F')}, {sT0}, {t[0]}
        s_lshl_b32 {sT0}, {sT}, 2
        s_lshl_b32 {sT1}, {sJ}, 1
        s_add_u32 {sT0}, {sT0}, {sT1}
        s_lshl_b32 {sE}, {sT0}, 10
        s_add_u32 {sL}, {sE}, {(80 if A else 48)*1024}
        v_mov_b32 v{self.v('KK', 2)}, {f32(K0)}
        v_mov_b32 v{self.v('KK', 2) + 1}, {f32(K1)}
        """)
        if A:
            o += L(f"""
            s_add_u32 {sO}, {sE}, {112*1024}
            s_add_u32 {sT0}, {sT0}, {sRH}
            s_lshl_b32 {sT1}, {sT0}, 7
            s_add_u32 {sT1}, {sT1}, {WS_KF}
            s_lshl_b32 {sT2}, {sR}, 2
            s_add_u32 {sKFP}, {sT1}, {sT2}
            v_and_b32 {t[0]}, 15, {l}
            v_lshlrev_b32 {t[0]}, 2, {t[0]}
            v_add_u32 {V('KF')}, {sT1}, {t[0]}
            s_lshl_b32 {sT1}, {sT0}, 14
            s_add_u32 {sT1}, {sT1}, {WS_KP}
            v_add_u32 {V('KG')}, {sT1}, {V('l16')}
            s_lshl_b32 {sKPP}, {sR}, 6
            s_add_u32 {sKB}, {sT1}, {sKPP}
            s_lshr_b32 {sTB}, {sT0}, 1
            s_lshl_b32 {sTB}, {sTB}, 11
            s_add_u32 {sTB}, {sTB}, {WS_KT}
            s_lshl_b32 {sKPP}, {sR}, 10
            s_lshl_b32 {sT1}, {sT0}, 11
            s_add_u32 {sT1}, {sT1}, {WS_ZP}
            v_lshlrev_b32 {t[0]}, 2, {l}
            v_add_u32 {V('ZG')}, {sT1}, {t[0]}
            s_lshl1_add_u32 {sZB}, {sR}, {sRH}
            s_lshl2_add_u32 {sZB}, {sZB}, {sT1}
            s_lshl_b32 {sZPP}, {sR}, 7
            s_mov_b32 s78, 0xffff0000
            s_mov_b32 s79, 0xffff0000
            s_sub_u32 s80, 0, {sRH}
            s_mov_b32 s81, s80
            v_lshlrev_b32 {t[0]}, 4, {hi}
            v_xor_b32 {t[1]}, 1, {nh}
            v_lshl_add_u32 {t[0]}, {t[1]}, 5, {t[0]}
            s_lshl_b32 {sT1}, {sW}, 6
            s_add_u32 {sT1}, {sT1}, {LDS_MISC + 7168}
            v_add_u32 {V('ZR')}, {sT1}, {t[0]}
            v_and_b32 {t[0]}, 0x24, {l}
            v_bfe_u32 {t[1]}, {l}, 3, 1
            v_lshl_add_u32 {t[0]}, {t[1]}, 4, {t[0]}
            v_lshl_add_u32 {t[0]}, {nh}, 3, {t[0]}
            v_add_u32 {V('ZW')}, {sT1}, {t[0]}
            s_add_u32 {sT1}, {sL1}, {LDS_MISC}
            v_add_u32 {V('XW')}, {sT1}, {V('l16')}
            """)
        else:
            o += L(f"""
            s_lshl_b32 {sT0}, {sT}, 1
            s_add_u32 {sT0}, {sT0}, {sJ}
            s_add_u32 {sT0}, {sT0}, 32
            s_lshl_b32 {sEh}, {sT0}, 10
            """)
        o += L(f"""
        s_lshl_b32 {sT0}, {sR2}, 1
        s_add_u32 {sT0}, {sT0}, {sRH}
        s_lshl_b32 {sT0}, {sT0}, 15
        s_lshl_b32 {sT1}, {sC2}, 1
        s_add_u32 {sT1}, {sT1}, {sJ}
        s_lshl_b32 {sT1}, {sT1}, 6
        s_add_u32 {sT0}, {sT0}, {sT1}
        v_lshlrev_b32 {t[0]}, 4, {hi}
        v_lshl_add_u32 {t[0]}, {l31}, 10, {t[0]}
        v_add_u32 {V('OUT')}, {sT0}, {t[0]}
        s_mov_b32 {sSpin}, 0
        """)
        r2 = self.opt.get("rot2", 2)
        if r2 == 0:
            o += L(f"s_mov_b32 {sT0}, 0")
        else:
            o += L(f"s_mul_i32 {sT0}, {sC2}, {r2}\ns_mul_i32 {sT1}, {sR2}, {self.opt.get('rot2r', 1)}\ns_add_u32 {sT0}, {sT0}, {sT1}")
        for i in range(8):
            o += L(f"s_add_u32 {sT1}, {sT0}, {i}\ns_and_b32 {sT1}, {sT1}, 7\ns_lshl_b32 {sTab[i]}, {sT1}, 10")
        self.second = o

    def dma(self, s, vreg, soff, m0=None, off=0, flags=""):
        o = L(f"s_add_u32 m0, {m0[0]}, {m0[1]}") if m0 else []
        return o + L(f"buffer_load_dwordx4 {vreg}, {srd(s)}, {soff} offen offset:{off} {flags} lds")

    def item_loads(self, kind, i):
        A = self.typ == "A"
        V = self.V
        base = self.blk[(kind, i)] * 8192
        wf = self.opt.get("wflags", ""); xf = self.opt.get("xflags", ""); vf = self.opt.get("vflags", "")
        so = lambda c: L(f"s_mov_b32 {sKw}, {i*c[0] + c[1]}")
        def two(sr, nm, c, b):
            return [(so(c) if c is not None else []) + self.dma(sr, V(nm), sKw, (sL2, b), 0, wf), self.dma(sr, V(nm + "1"), sKw, None, 1024, wf)]
        kq, kw = 64 * 3072, 64 * 3584
        if kind == "X":
            g = [self.dma(SX, V(f"X{jj}"), sKw, None if jj else (sL4, base), jj * 1024, xf) for jj in range(4)]
            g[0] = so((128, 0)) + g[0]
        elif kind == "W":
            g = two(S1, "W1", None, base) + two(S2, "W2", None, base + 8192)
            g[0] = L(f"s_mul_i32 {sKw}, {sStr}, {i}") + g[0]
        elif kind == "G":
            g = two(SG, "Wg", (kw, 2560 if A else 1536), base) + two(SU, "Wu", None, base + 8192)
        elif kind == "H":
            g = two(SQ, "Wq", (kq, 0), base) if A else [so((kw, 1024)) + self.dma(SG, V("Hg"), sKw, (sL1, base), 0, wf), self.dma(SU, V("Hu"), sKw, (sL1, base + 4096), 0, wf)]
        else:
            ks, j, mul = self.step(i)
            sr, k = (SD, ks) if ks < 112 else (SO, ks - 112)
            g = [self.dma(sr, V(f"V{mul}"), sKw, (sL2, base), 0, vf), self.dma(sr, V(f"V{mul}1"), sKw, None, 1024, vf)]
            if mul == 8:
                g[0] = L(f"s_lshl4_add_u32 {sKw}, {sTab[j]}, {k*16384}") + g[0]
            else:
                g[0] = L(f"s_and_b32 {sKw}, {sTab[j]}, 0xc00\ns_lshl4_add_u32 {sKw}, {sKw}, {k*16384}") + g[0]
        g[-1][-1].tag = f"{kind}{i}"
        return g

    def v_loads(self, n): return self.item_loads("V", n)

    def plan(self):
        opt = self.opt
        lead1, lead2 = opt.get("lead1", 2), opt.get("lead2", 2)
        must = []
        for s in range(8): must += [("X", s, 2, 4, s, s + 1, lead1), ("W", s, 2, 4, s, s + 1, lead1)]
        for t in range(8):
            must.append(("G", t, 2, 4, 8 + t, 9 + t, lead2 if t < 5 else opt.get("lead3", 2)))
            if t < 4: must += [("H", 2 * t + i, 1, 2, 8 + t, 9 + t, lead2) for i in range(2)]
        b2 = opt.get("b2a", 10) if self.typ == "A" else opt.get("b2", 10)
        budget = {i: opt.get("b1", 8) if i < 8 else b2 for i in range(17)}
        budget[-1], budget[16] = 0, 99
        for i in (12, 13, 14, 15): budget[i] = opt.get("b3", 8)
        for k, v in self.budget_cut.items(): budget[k] -= v
        free_at = [-1] * 19
        self.blk, self.when = {}, {i: [] for i in range(-1, 17)}
        self.parks = {i: [] for i in range(-1, 17)}
        prate = opt.get("parka", 3) if self.typ == "A" else opt.get("parkb", 2)
        nv, npk, issued = 0, 0, {}
        for iv in range(-1, 16):
            left = budget[iv]
            def take(kind, i, nb, fr):
                fb = [b for b in range(19) if free_at[b] <= iv]
                if nb == 2: c = [b for b in fb if b % 2 == 0 and b + 1 in fb]
                elif kind == "V": c = sorted(fb, key=lambda b: (b != 18 and (b ^ 1) in fb, -b))
                else: c = sorted(fb, key=lambda b: (b != 18 and (b ^ 1) in fb, b))
                if not c: return False
                for x in range(nb): free_at[c[0] + x] = fr
                self.blk[(kind, i)] = c[0]
                self.when[iv].append((kind, i))
                return True
            while must and must[0][4] - must[0][6] <= iv:
                kind, i, nb, cost_, need, fr, _ = must[0]
                if not take(kind, i, nb, fr):
                    assert need - 1 > iv, (kind, i, iv)
                    break
                must.pop(0); left -= cost_
            while iv >= opt.get("park0", 99) and len(self.parks[iv]) < prate and npk < 17 and npk < nv and issued[npk] <= iv - opt.get("parklag", 2) and npk <= 4 * (iv - 8) - 2:
                self.parks[iv].append(npk)
                free_at[self.blk[("V", npk)]] = iv + 1
                npk += 1
            live = lambda j: sum(4 if st < 12 else 2 for st in range(max(j, 0), min(16, j + lead2 + 1)))
            owed = max(live(j) for j in range(iv, 17)) + (1 if iv < 10 else 0)
            while left >= 2 and nv < 36 and nv - (npk - len(self.parks[iv])) < 19 - owed and iv >= opt.get("v0", 6):
                if not take("V", nv, 1, 99): break
                issued[nv] = iv
                nv += 1; left -= 2
        assert not must
        fb = [b for b in range(19) if free_at[b] <= 16]
        self.post = []
        while nv < 36:
            if not fb:
                self.post.append(("park", npk)); fb.append(self.blk[("V", npk)]); npk += 1
            self.blk[("V", nv)] = fb.pop(0)
            self.post.append(("load", nv)); nv += 1
        self.npark = npk
        assert npk <= 20

    @staticmethod
    def step(n):
        if n < 8: return 0, n, 8
        if n < 16: return 80, n - 8, 8
        if n < 24: return 48, n - 16, 8
        if n < 28: return 32, n - 24, 4
        return 112, n - 28, 8

    def areg(self, n, sr): return 160 + (n % 12) * 8 + sr * 4

    def a_loads(self, n):
        ks, j, mul = self.step(n)
        g = [L(f"buffer_load_dwordx4 {ar(self.areg(n, sr))}, {self.V(f'A{mul}{sr}')}, {srd(SW)}, {sAo} offen sc1") for sr in range(2)]
        if mul == 8:
            g[0] = L(f"s_add_u32 {sAo}, {sTab[j]}, {ks*1024}") + g[0]
        else:
            g[0] = L(f"s_and_b32 {sAo}, {sTab[j]}, 0xc00\ns_add_u32 {sAo}, {sAo}, {ks*1024}") + g[0]
        return g

    def parked(self, n): return n < self.npark

    def vfrag(self, n, sn):
        if self.parked(n): return "a", n * 8 + sn * 4
        return "v", (64 if n % 2 == 0 else 80) + sn * 4

    def v_reads(self, n):
        base = self.blk[("V", n)] * 8192
        o = []
        for sn in range(2):
            k, b = self.vfrag(n, sn)
            for i in range(2):
                a, imm = self.lds(f"VR{sn}", base + i * 1024)
                o.append(L(f"ds_read_b64_tr_b16 {k}[{b+2*i}:{b+2*i+1}], {a} offset:{imm}"))
        o[-1][-1].tag = f"RV{n}"
        return o

    def poll_issue(self, reg, addr, off, wide=False):
        if wide:
            return L(f"buffer_load_dwordx2 {vr(reg, 2)}, {addr}, {srd(SW)}, 0 offen offset:{off} sc1")
        return L(f"buffer_load_dword v{reg}, {addr}, {srd(SW)}, 0 offen offset:{off} sc1")

    def poll_check(self, reg, addr, off, wide=False):
        ok, again = self.lab("ok"), self.lab("again")
        tr = reg + 1 if wide else reg
        ld = self.poll_issue(reg, addr, off, wide)[0].text
        return self.check(f"v_cmp_ne_u32 vcc, {sTag}, v{tr}", [ld], ok, again)

    def check(self, test, loads, ok, again):
        raw = lambda t: "\n".join("@raw " + x for x in t.split("\n"))
        self.ool += L(f"""
        {again}:
        @raw s_sleep 2
        {raw(chr(10).join(loads))}
        @raw s_add_u32 {sSpin}, {sSpin}, 1
        @raw s_waitcnt vmcnt(0)
        {raw(test)}
        @raw s_cmp_lt_u32 {sSpin}, 0x40000
        @raw s_cbranch_scc0 {ok}
        @raw s_cbranch_vccnz {again}
        @raw s_branch {ok}
        """)
        return L(f"{test}\ns_cbranch_vccnz {again}\n{ok}:")

    def flag_store(self, soff, off, tags):
        return L(f"""
        @vm {' '.join(tags)}
        s_mov_b64 exec, 1
        buffer_store_dword {self.V('tag')}, off, {srd(SW)}, {soff} offset:{off} sc1
        s_mov_b64 exec, -1
        """)

    def gate_loads(self):
        x0, x1, gw = self.v("gx0", 4, True), self.v("gx1", 4, True), self.v("ggw", 4, True)
        return [L(f"""
        s_lshl_b32 {sOff}, {sGrow}, 10
        buffer_load_dwordx4 {vr(x0)}, {self.V('l16')}, {srd(SX)}, {sOff} offen
        buffer_load_dwordx4 {vr(x1)}, {self.V('l16')}, {srd(SX)}, {sOff} offen offset:1024
        buffer_load_dwordx4 {vr(gw)}, {self.V('l16')}, {srd(SGW)}, 0 offen
        """)]

    def gate_compute(self):
        x = [self.v("gx0", 4, True), self.v("gx1", 4, True)]; gw = self.v("ggw", 4, True)
        t = [self.V(f"t{i}") for i in range(8)]
        s = [self.v("gs", 2, True), self.v("gs") + 1]
        one = self.V("gone", True)
        o = L(f"v_mov_b32 {one}, 0x3f803f80\nv_mov_b32 v{s[0]}, 0\nv_mov_b32 v{s[1]}, 0")
        for d in range(4):
            o += L(f"v_lshlrev_b32 {t[0]}, 16, v{gw+d}\nv_and_b32 {t[1]}, 0xffff0000, v{gw+d}")
            for r in range(2):
                o += L(f"""
                v_lshlrev_b32 {t[2+2*r]}, 16, v{x[r]+d}
                v_and_b32 {t[3+2*r]}, 0xffff0000, v{x[r]+d}
                v_mul_f32 {t[2+2*r]}, {t[2+2*r]}, {t[0]}
                v_mul_f32 {t[3+2*r]}, {t[3+2*r]}, {t[1]}
                v_cvt_pk_bf16_f32 {t[2+2*r]}, {t[2+2*r]}, {t[3+2*r]}
                v_lshlrev_b32 {t[6]}, 16, {t[2+2*r]}
                v_and_b32 {t[7]}, 0xffff0000, {t[2+2*r]}
                v_add_f32 v{s[r]}, v{s[r]}, {t[6]}
                v_add_f32 v{s[r]}, v{s[r]}, {t[7]}
                """)
        dpp = "row_mask:0xf bank_mask:0xf"
        o += L(f"""
        v_permlane32_swap_b32 v{s[0]}, v{s[1]}
        v_add_f32 v{s[0]}, v{s[0]}, v{s[1]}
        v_add_f32_dpp v{s[0]}, v{s[0]}, v{s[0]} quad_perm:[1,0,3,2] {dpp}
        v_add_f32_dpp v{s[0]}, v{s[0]}, v{s[0]} quad_perm:[2,3,0,1] {dpp}
        v_add_f32_dpp v{s[0]}, v{s[0]}, v{s[0]} row_half_mirror {dpp}
        v_add_f32_dpp v{s[0]}, v{s[0]}, v{s[0]} row_mirror {dpp}
        v_mov_b32 v{s[1]}, v{s[0]}
        v_permlane16_swap_b32 v{s[0]}, v{s[1]}
        v_add_f32 v{s[0]}, v{s[0]}, v{s[1]}
        v_cvt_pk_bf16_f32 v{s[0]}, v{s[0]}, v{s[0]}
        v_and_b32 v{s[0]}, 0xffff0000, v{s[0]}
        v_mul_f32 v{s[0]}, {f32(-LOG2E)}, v{s[0]}
        v_exp_f32 v{s[0]}, v{s[0]}
        v_add_f32 v{s[0]}, 1.0, v{s[0]}
        v_rcp_f32 v{s[0]}, v{s[0]}
        v_cvt_pk_bf16_f32 v{s[0]}, v{s[0]}, v{s[0]}
        v_and_b32 v{s[0]}, 0xffff0000, v{s[0]}
        v_mov_b32 v{s[1]}, {sTag}
        v_lshlrev_b32 {t[0]}, 3, {self.V('hi')}
        s_lshl_b32 {sOff}, {sGrow}, 3
        s_add_u32 {sOff}, {sOff}, {WS_G}
        """)
        groups = [[i] for i in o]
        groups.append(L(f"""
        s_mov_b32 exec_lo, 1
        s_mov_b32 exec_hi, 1
        buffer_store_dwordx2 {vr(s[0], 2)}, {t[0]}, {srd(SW)}, {sOff} offen sc1
        s_mov_b64 exec, -1
        """))
        groups = groups[:-4] + [sum(groups[-4:], [])]
        return groups

    def gate_fetch(self):
        g0, g1 = self.v("g0", 2), self.v("g1", 2)
        return [self.poll_issue(g0, self.V("G"), 0, True), self.poll_issue(g1, self.V("G"), 256, True)]

    def gate_check(self):
        o = []
        for i, nm in enumerate(("g0", "g1")):
            g = self.v(nm)
            o.append(self.poll_check(g, self.V("G"), 256 * i, True))
            o += [[x] for x in L(f"""
            v_sub_f32 v{g+1}, 1.0, v{g}
            v_cvt_pk_bf16_f32 v{g+1}, v{g+1}, v{g+1}
            v_and_b32 v{g+1}, 0xffff0000, v{g+1}
            v_max_f32 v{g+1}, {f32(1e-30)}, v{g+1}
            v_rcp_f32 v{g+1}, v{g+1}
            """)]
        return o

    def gelu_tile(self, t, rg, soff, off, tag=None):
        a = ACC(t, rg)
        io = f"v{self.v('g%d' % rg) + 1}"
        T = [self.V(f"t{i}") for i in range(8)]
        o = []
        for h in range(2):
            js = range(4 * h, 4 * h + 4)
            for stage in (
                lambda j, x: f"v_mul_f32 {x}, v{a+j}, v{a+j}",
                lambda j, x: f"v_fmaak_f32 {x}, {x}, v{self.v('KK', 2) + 1}, {f32(K0)}",
                lambda j, x: f"v_mul_f32 {x}, {x}, v{a+j}",
                lambda j, x: f"v_exp_f32 {x}, {x}",
                lambda j, x: f"v_mul_f32 v{a+8+j}, v{a+8+j}, v{a+j}",
                lambda j, x: f"v_fma_f32 {x}, {x}, {io}, {io}",
                lambda j, x: f"v_rcp_f32 {x}, {x}",
                lambda j, x: f"v_mul_f32 v{a+8+j}, v{a+8+j}, {x}",
            ):
                o += [L(stage(j, T[j & 3])) for j in js]
            o += [L(f"v_cvt_pk_bf16_f32 v{a+d}, v{a+8+2*d}, v{a+9+2*d}") for d in (2 * h, 2 * h + 1)]
        o.append(L(f"buffer_store_dwordx4 {vr(a)}, {self.V('HS%d' % rg)}, {srd(SW)}, {soff} offen offset:{off} sc1", tag))
        return o

    def gelu_tile_pk(self, t, rg, soff, off, tag=None):
        a = ACC(t, rg)
        g = self.v("g%d" % rg)
        T = self.v("t0")
        kk = self.v("KK", 2)
        p = lambda r: f"v[{r}:{r+1}]"
        o = []
        for st in range(9):
            for q in range(4):
                x, gg, uu = T + 2 * q, a + 2 * q, a + 8 + 2 * q
                if st == 0: o.append(L(f"v_pk_mul_f32 {p(x)}, {p(gg)}, {p(gg)}"))
                if st == 1: o.append(L(f"v_pk_fma_f32 {p(x)}, {p(x)}, {p(kk)}, {p(kk)} op_sel:[0,1,0] op_sel_hi:[1,1,0]"))
                if st == 2: o.append(L(f"v_pk_mul_f32 {p(x)}, {p(x)}, {p(gg)}"))
                if st == 3: o += [L(f"v_exp_f32 v{x}, v{x}"), L(f"v_exp_f32 v{x+1}, v{x+1}")]
                if st == 4: o.append(L(f"v_pk_mul_f32 {p(uu)}, {p(uu)}, {p(gg)}"))
                if st == 5: o.append(L(f"v_pk_fma_f32 {p(x)}, {p(x)}, {p(g)}, {p(g)} op_sel:[0,1,1] op_sel_hi:[1,1,1]"))
                if st == 6: o += [L(f"v_rcp_f32 v{x}, v{x}"), L(f"v_rcp_f32 v{x+1}, v{x+1}")]
                if st == 7: o.append(L(f"v_pk_mul_f32 {p(uu)}, {p(uu)}, {p(x)}"))
                if st == 8: o.append(L(f"v_cvt_pk_bf16_f32 v{a+q}, v{uu}, v{uu+1}"))
        o.append(L(f"buffer_store_dwordx4 {vr(a)}, {self.V('HS%d' % rg)}, {srd(SW)}, {soff} offen offset:{off} sc1", tag))
        return o

    def phi_pack(self, src, dst):
        T = [self.V(f"t{i}") for i in range(8)]
        o = []
        for q in range(4):
            js = range(4 * q, 4 * q + 4)
            for stage in (
                lambda j, x: f"v_mul_f32 {x}, {f32(LOG2E)}, v{src+j}",
                lambda j, x: f"v_exp_f32_e64 {x}, {x} clamp",
                lambda j, x: f"v_max_f32 v{src+j}, {f32(1e-6)}, v{src+j}",
                lambda j, x: f"v_add_f32 {x}, {x}, v{src+j}",
            ):
                o += [L(stage(j, T[j & 3])) for j in js]
            o += [L(f"v_cvt_pk_bf16_f32 v{dst+2*q+d}, {T[2*d]}, {T[2*d+1]}") for d in range(2)]
        return o

    def plain_pack(self, src, dst):
        return [L(f"v_cvt_pk_bf16_f32 v{dst+d}, v{src+2*d}, v{src+2*d+1}") for d in range(8)]

    def build(self):
        A = self.typ == "A"
        opt = self.opt
        V = self.V
        self.prologue()
        self.kvi = opt.get("kvi", 14)
        self.budget_cut = {}
        self.touch2 = lambda k: touch2(self, k)
        self.plan()
        T = [self.v(f"t{i}") for i in range(8)]

        def trs(pat, off, dst, istep):
            r = []
            for i in range(2):
                a, imm = self.lds(pat, off + i * istep)
                r.append(L(f"ds_read_b64_tr_b16 v[{dst+2*i}:{dst+2*i+1}], {a} offset:{imm}"))
            return r

        def mfma(t, rg, wfr, n, swap):
            acc, xfr = vr(ACC(t, rg), 16), ar((n * 2 + rg) * 4)
            a, b = (xfr, wfr) if swap else (wfr, xfr)
            return L(f"v_mfma_f32_32x32x16_bf16 {acc}, {a}, {b}, {acc if n else 0}")

        units = []
        for m in range(16):
            s, half = m >> 1, m & 1
            xb, wbase = self.blk[("X", s)] * 8192, self.blk[("W", s)] * 8192
            wb = 64 if m % 2 == 0 else 80
            rd, mf = [], []
            for kk in range(2):
                k4 = half * 2 + kk
                n = s * 4 + k4
                xr = []
                for rg in range(2):
                    a, imm = self.lds(f"XR{k4}", xb + rg * 4096, True)
                    xr.append(L(f"ds_read_b128 {ar((n*2+rg)*4)}, {a} offset:{imm}"))
                w = [trs("Pl", wbase + t * 8192 + k4 * 2048, wb + kk * 8 + t * 4, 512) if A else
                     trs(f"M{t}", wbase + k4 * 2048, wb + kk * 8 + t * 4, 512) for t in range(2)]
                rd += [xr[0]] + w[0] + [xr[1]] + w[1]
                mf += [mfma(t, rg, vr(wb + kk * 8 + t * 4), n, A) for t in range(2) for rg in range(2)]
            units.append(([f"W{s}"] if half == 0 else None, rd, mf))
        for m in range(24):
            wb = 64 if m % 2 == 0 else 80
            rd, mf = [], []
            def pair(n, dst):
                gb = self.blk[("G", n >> 2)] * 8192 + (n & 3) * 2048
                return trs("M0", gb, dst, 512) + trs("M1", gb, dst + 4, 512), [mfma(t, rg, vr(dst + 4 * i), n, False) for i, t in enumerate((3, 4)) for rg in range(2)]
            def third(n, dst):
                hb = self.blk[("H", n >> 2)] * 8192
                r = trs("Pl", hb + (n & 3) * 2048, dst, 512) if A else trs("Hf", hb + (n & 3) * 1024, dst, 256)
                return r, [mfma(2, rg, vr(dst), n, False) for rg in range(2)]
            if m < 16:
                parts = [third(2 * m, wb), pair(m, wb + 4), third(2 * m + 1, wb + 12)]
                sy = [f"H{2*(m >> 2) + 1}"] if m % 4 == 0 else None
            else:
                n = 16 + 2 * (m - 16)
                parts = [pair(n, wb), pair(n + 1, wb + 8)]
                sy = [f"G{n >> 2}"] if m % 2 == 0 else None
            for r, f in parts: rd += r; mf += f
            units.append((sy, rd, mf))

        gaps, heads, ustart, syncgap = [], [], [], [0]
        for u, (sy, rd, mf) in enumerate(units):
            ustart.append(len(gaps))
            for i, m in enumerate(mf):
                heads.append((L("@lgkm0") if i == 0 and not opt.get("exact", 0) else []) + m)
                gaps.append(Gap())
            g0 = ustart[u]
            if u + 1 < len(units):
                nsy, nrd, _ = units[u + 1]
                if nsy:
                    gaps[g0].pre += L(f"@sync {' '.join(nsy)}\ns_barrier")
                    syncgap.append(g0)
                span = len(mf) - opt.get("rsp", 2)
                for i, r in enumerate(nrd):
                    gaps[g0 + min(span - 1, (i * span) // len(nrd))].ds += r
            else:
                gaps[g0].pre += L("@sync\ns_barrier")
                syncgap.append(g0)
        ustart.append(len(gaps))
        U = lambda n: ustart[16 + n]
        one = lambda ins: [[x] for x in ins]

        def loads_of(iv): return sum((self.item_loads(k, i) for k, i in self.when[iv]), [])
        pro = loads_of(-1)
        pro[8:8] = self.gate_loads()
        self.pro_loads = pro
        pa, pb = self.v("pa"), self.v("pb")
        extra = {iv: [] for iv in range(17)}
        extra[6] += self.gate_fetch()
        for iv in range(16):
            ld = extra[iv] + loads_of(iv)
            if ld: place_mem(gaps, ld, syncgap[iv] + 1, syncgap[iv + 1])
            if self.parks[iv]:
                rd = []
                for n in self.parks[iv]:
                    r = self.v_reads(n)
                    r[0] = L(f"@vm V{n}") + r[0]
                    rd += r
                lo, hi = syncgap[iv] + 1, syncgap[iv + 1]
                cand = sorted(sorted(range(lo, hi), key=lambda g: gaps[g].used())[:len(rd)])
                assert len(cand) == len(rd)
                for g, r in zip(cand, rd): gaps[g].ds += r
            t2 = opt.get("t2", 1)
            if 0 <= t2 <= iv < t2 + opt.get("t2n", 4):
                if opt.get("ool", 0):
                    body2 = touch2(self, iv - t2, True, 0)
                    go, back = self.lab("t2go"), body2[-1].text[:-1]
                    gaps[syncgap[iv + 1] - 1].va += body2[:1] + L(f"s_cmp_eq_u32 {sT0}, {iv - t2}\ns_cbranch_scc1 {go}") + body2[-1:]
                    self.ool += L(f"{go}:") + body2[3:-1] + L(f"s_branch {back}")
                else:
                    gaps[syncgap[iv + 1] - 1].va += touch2(self, iv - t2, True, 1 if opt.get("t3", -1) >= 0 else 0)
            if iv == opt.get("t3", -1): gaps[syncgap[iv + 1] - 1].va += touch2(self, 0, False, 2)
            if iv == opt.get("t4", -1): gaps[syncgap[iv + 1] - 1].va += touch4(self)

        place_valu(gaps, self.gate_compute(), ustart[opt.get("gate0", 1)], ustart[opt.get("gate1", 5)])
        place_valu(gaps, self.gate_check(), ustart[14] + 1, ustart[16] - 1)

        cap = opt.get("cap", 12) / 2
        G0, G3 = U(0), U(16)
        if not A:
            ep = []
            for t in range(2):
                for rg in range(2): ep += self.gelu_tile(t, rg, sE, t * 1024, tag="Est")
            last, c = place_valu(gaps, ep, G0 + 1, G3, cap)
            gaps[last + opt.get("e_lag", 36)].va += self.flag_store(sFP, 0, ["Est"]) + self.stamp("Efl")
            self.note = f"E epilogue ends in gap {last - G0} cap {c}"
            ep = self.gelu_tile(2, 0, sEh, 0, tag="Lst") + self.gelu_tile(2, 1, sEh, 0, tag="Lst")
            last, c = place_valu(gaps, ep, G3 + 2, U(24) - 1, cap)
            self.note += f"; third tile ends in gap {last - G0} cap {c}"
        else:
            ones, za = self.v("ones", 4), self.V("za")
            ep = [L(f"v_mov_b32 v{ones+i}, 0x3f803f80") for i in range(4)]
            ep += self.phi_pack(ACC(0, 0), 96) + self.plain_pack(ACC(1, 0), 128)
            ep += self.phi_pack(ACC(0, 1), 104) + self.plain_pack(ACC(1, 1), 136)
            last, c = place_valu(gaps, ep, G0 + 1, G3, opt.get("kvcap", 14) / 2)
            for f in range(4):
                gaps[last + 1 + f].va += L(f"v_mfma_f32_32x32x16_bf16 v[112:127], {vr(96+4*f)}, {vr(128+4*f)}, {'v[112:127]' if f else 0}")
                gaps[last + 1 + f].va += L(f"v_mfma_f32_32x32x16_bf16 v[144:159], {vr(ones)}, {vr(96+4*f)}, {'v[144:159]' if f else 0}")
            ep = [L(f"v_cndmask_b32 v{112+i}, v{112+i}, v{120+i}, {sMH}") for i in range(8)]
            ep += [L(f"v_cndmask_b32 v{120+i}, v{112+i}, v{116+i}, {sMR}") for i in range(4)]
            ep += [L(f"v_cndmask_b32 v{124+i}, v{116+i}, v{112+i}, {sMR}") for i in range(4)]
            ep += one(L(f"v_lshrrev_b32 {za}, 2, {V('XW')}\nv_add_u32 {za}, {LDS_MISC + 4096 - LDS_MISC//4}, {za}"))
            ep += [L(f"ds_write_b128 {V('XW')}, v[124:127]"), L(f"ds_write_b32 {za}, v144"), L(f"v_xor_b32 {za}, 0x200, {za}"), L(f"v_xor_b32 v{T[4]}, 0x800, {V('XW')}")]
            last, c = place_valu(gaps, ep, last + 7, G3, cap)
            sg = min(x for x in ustart if x > last)
            if sg not in syncgap: gaps[sg].pre += L("@lgkm0\ns_barrier")
            gaps[sg + 1].ds += L(f"ds_read_b128 v[124:127], v{T[4]}\nds_read_b32 v145, {za}")
            ep = [L(f"v_add_f32 v{120+i}, v{120+i}, v{124+i}") for i in range(4)]
            ep.append(L(f"v_add_f32 v144, v144, v145"))
            ep.append(L(f"buffer_store_dwordx4 v[120:123], {V('KG')}, {srd(SW)}, {sKPP} offen sc1"))
            last, c = place_valu(gaps, ep, sg + 5, G3, cap)
            z = L(f"""
            s_mov_b32 exec_hi, 0
            buffer_store_dword v144, {V('ZG')}, {srd(SW)}, {sZPP} offen sc1
            s_mov_b32 exec_hi, -1
            """)
            z[1].tag = "KVst"
            gaps[last + 1].va += z
            fl = last + opt.get("kv_lag", 28)
            gaps[fl].va += self.flag_store(sKFP, 0, ["KVst"]) + self.stamp("KVfl")
            chk = syncgap[self.kvi]
            assert fl < chk - opt.get("kv_pl", 24)
            gaps[chk - opt.get("kv_pl", 24)].vm += self.poll_issue(pa, V("KF"), 0)
            gaps[chk].va += self.stamp("KVq") + self.poll_check(pa, V("KF"), 0) + self.stamp("KVok")
            self.note = f"kv flag in gap {fl - G0}, check in gap {chk - G0}"
            ad = one(L(f"""
            v_mbcnt_lo_u32_b32 v110, -1, 0
            v_mbcnt_hi_u32_b32 v110, -1, v110
            v_lshrrev_b32 v108, 2, v110
            v_and_b32 v109, 3, v110
            v_lshlrev_b32 v109, 4, v109
            v_lshl_add_u32 v109, v108, 10, v109
            v_lshlrev_b32 v108, 7, v108
            v_lshlrev_b32 v110, 4, v110
            """))
            place_valu(gaps, ad, fl + 1, G3, cap)
            gaps[chk + 1].vm += L(f"buffer_load_dwordx4 v[96:99], v109, {srd(SW)}, {sKB} offen sc1")
            gaps[chk + 2].vm += L(f"buffer_load_dword v100, v108, {srd(SW)}, {sZB} offen sc1")
            dpp = "row_mask:0xf bank_mask:0xf"
            red = [L(f"v_add_f32_dpp v{r}, v{r}, v{r} row_ror:{n} {dpp}") for n in (4, 8) for r in range(96, 101)]
            for sw in ("v_permlane16_swap_b32", "v_permlane32_swap_b32"):
                red += [L(f"v_mov_b32 v{r+6}, v{r}") for r in range(96, 101)]
                red += [L(f"{sw} v{r}, v{r+6}") for r in range(96, 101)]
                red += [L(f"v_add_f32 v{r}, v{r}, v{r+6}") for r in range(96, 101)]
            red += one(L(f"""
            v_cvt_pk_bf16_f32 v96, v96, v97
            v_cvt_pk_bf16_f32 v97, v98, v99
            v_mov_b32 v98, v100
            v_mov_b32 v99, {sTag}
            """))
            pub = L(f"""
            s_lshl4_add_u32 {sOff}, {sRH}, {sR}
            s_lshl_b32 {sOff}, {sOff}, 6
            s_add_u32 {sOff}, {sOff}, {sTB}
            s_mov_b64 exec, 15
            buffer_store_dwordx4 v[96:99], v109, {srd(SW)}, {sOff} offen sc1
            s_mov_b64 exec, -1
            """) + self.stamp("KVt")
            r0 = chk + opt.get("kv_rl", 26)
            self.kv_first = []
            if opt.get("kvin", 1):
                last, c = place_valu(gaps, red, r0, U(24) - 2, cap)
                gaps[last + 1].va += pub
                self.note += f"; totals leave in gap {last + 1 - G0} cap {c}"
            else:
                self.kv_first = red + [pub]
            last, c = place_valu(gaps, self.phi_pack(ACC(2, 0), 160) + self.phi_pack(ACC(2, 1), 168), G3 + 2, U(24) - 1, cap)
            self.note += f"; third tile ends in gap {last - G0} cap {c}"
        gaps[U(24) - opt.get("epoll", 14)].vm += self.poll_issue(pb, V("F"), 0)

        body = self.stamp("start")
        ph1 = self.stamp("issued") + L(f"@sync W0\ns_barrier") + self.stamp("sync0")
        for r in units[0][1]: ph1 += r
        for u in range(len(units)):
            for g in range(ustart[u], ustart[u + 1]):
                ph1 += heads[g]
                if g == ustart[u] and u and ((u < 16 and u % (4 if opt.get("fewp1") else 2) == 0) or (u >= 16 and u % 4 == 0)): ph1 += self.stamp(f"s{u//2}" if u < 16 else f"p{(u-16)//4}")
                ph1 += gaps[g].emit()
        ph1 += self.stamp("p1end")

        gt = self.gelu_tile_pk if opt.get("pk", 1) else self.gelu_tile
        main = []
        tiles = []
        for t in range(2):
            for rg in range(2):
                tiles.append(gt(3 + t, rg, sL, t * 1024, tag="Lst"))
                tiles[-1][-1] += self.stamp(f"L{t}{rg}")
        if not A:
            main = sum(tiles, [])
            nL = len(main)
        else:
            kr = opt.get("kvr", 4)
            ld = [f"buffer_load_dwordx4 v[{100+4*h}:{103+4*h}], v110, {srd(SW)}, {sTB} offen offset:{1024*h} sc1" for h in range(2)]
            ok, again = self.lab("ok"), self.lab("again")
            test = f"v_xor_b32 v111, {sTag}, v103\nv_xor_b32 v112, {sTag}, v107\nv_or_b32 v111, v111, v112\nv_cmp_ne_u32 vcc, 0, v111"
            raw = lambda t: "\n".join("@raw " + x for x in t.split("\n"))
            main = self.kv_first + sum(tiles[:kr], []) + [L(ld[0]), L(ld[1])] + sum(tiles[kr:], [])
            nL = len(main)
            self.need_side = 0
            self.burst_at = len(main)
            main.append([])
            main.append(self.stamp("Tq") + self.check(test, ld, ok, again) + self.stamp("Tok"))
            main += one(L(f"""
            v_cvt_pk_bf16_f32 v102, v102, v106
            ds_write_b32 {V('ZW')}, v102
            @lgkm0
            ds_read_b128 v[108:111], {V('ZR')}
            """))
            for i, kvr in enumerate((100, 101, 104, 105)):
                main += [L(f"v_cndmask_b32 v{176+i}, v{kvr}, v{108+i}, {sMH}"), L(f"v_cndmask_b32 v{180+i}, v{108+i}, v{kvr}, {sMH}")]
            for rg in range(2):
                for hh in range(2):
                    main.append(L(f"v_mfma_f32_32x32x16_bf16 {vr(192 + (rg*2+hh)*16, 16)}, {vr(176+4*hh)}, {vr(160 + rg*8 + hh*4)}, 0"))
            dens = []
            for rg in range(2):
                for hh in range(2):
                    b = 192 + (rg * 2 + hh) * 16
                    dens.append((rg, hh, b, b + 8) if hh == 0 else (rg, hh, b + 8, b))
            main += [L(f"v_add_f32 v{d}, {f32(1e-6)}, v{d}") for _, _, _, d in dens]
            main += [L(f"v_rcp_f32 v{d}, v{d}") for _, _, _, d in dens]
            main += [L(f"v_mul_f32 v{d}, v{d}, v{self.v('g%d' % rg)}") for rg, _, _, d in dens]
            osts = []
            for rg, hh, num, den in dens:
                main += [L(f"v_pk_mul_f32 v[{num+j}:{num+j+1}], v[{num+j}:{num+j+1}], v[{den}:{den+1}] op_sel_hi:[1,0]") for j in range(0, 8, 2)]
                d = 160 + (rg * 2 + hh) * 4
                main += [L(f"v_cvt_pk_bf16_f32 v{d+j}, v{num+2*j}, v{num+2*j+1}") for j in range(4)]
                osts.append(L(f"buffer_store_dwordx4 {vr(d)}, {V('HS%d' % rg)}, {srd(SW)}, {sO} offen offset:{hh*1024} sc1", "Ost"))
                if not opt.get("batch", 0): main.append(osts.pop())
            main += osts
            lf = opt.get("lfa", 3)
            lastL = max(j for j, g in enumerate(main) if any(x.tag == "Lst" for x in g))
            main.insert(min(len(main), lastL + 1 + lf), self.flag_store(sFP, 256, ["Lst"]) + self.stamp("Lfl"))
        slots = [list(g) for g in main]
        side = list(extra[16])
        side.append(self.stamp("Eq") + self.poll_check(pb, V("F"), 0) + self.stamp("Eok"))
        for n in range(8): side += self.a_loads(n)
        post = list(self.post)
        seq = []
        for j, (k, n) in enumerate(post):
            if k == "park":
                pos = len(seq) - 1 if seq and seq[-1][0] == "load" and j > 0 else len(seq)
                seq.insert(max(pos, 0), (k, n))
            else:
                seq.append((k, n))
        for k, n in seq:
            if k == "park": side.append(L(f"@vm V{n}") + sum(self.v_reads(n), []))
            else:
                src = [m for m in range(n) if self.blk[("V", m)] == self.blk[("V", n)] and ("park", m) in post]
                if src: side.append(L(f"@rd V{src[-1]}"))
                side += self.v_loads(n)
        every2 = (opt.get("midea2", 30) if A else opt.get("mide2", 60)) / 4.0
        every = (opt.get("midea", 60) if A else opt.get("mide", 45)) / 4.0
        acc, k = opt.get("mid0", 0) / 4.0, 0
        for j, (sl, g) in enumerate(zip(slots, main)):
            if j == nL: every = every2
            if A and j == self.burst_at:
                nb = opt.get("burst", 10)
                while nb > 0 and k < len(side):
                    sl += side[k]
                    if any(x.kind == "vmem" for x in side[k]): nb -= 1
                    k += 1
            if A and j == self.need_side - 1:
                while k < len(extra[16]): sl += side[k]; k += 1
            acc += sum(2 if x.kind == "valu" and x.op.startswith(TRANS) else 1 for x in g)
            if any(x.kind == "vmem" for x in g): acc -= every
            while k < len(side) and acc >= every:
                sl += side[k]
                if any(x.kind == "vmem" for x in side[k]): acc -= every
                k += 1
        rest = side[k:]
        self.note += f"; mid takes {k} of {len(side)} side groups"
        mid = sum(slots, []) + self.stamp("mid")
        nA = max([j + 1 for j, g in enumerate(rest) if any("a[" in x.text and x.kind == "vmem" for x in g)], default=0)
        mid += sum(rest[:nA], [])
        rest = rest[nA:]
        nP = max([j + 1 for j, g in enumerate(rest) if any(x.kind == "ds" and x.tag and int(x.tag[2:]) < 8 for x in g)], default=0)
        pre0 = rest[:nP]
        if not A and opt.get("lflag_at", -20) < 0:
            pre0.insert(min(len(pre0), -opt.get("lflag_at", -20)), self.flag_store(sFP, 128, ["Lst"]) + self.stamp("fl"))
        mid += sum(pre0, [])
        rest = rest[nP:]
        if not self.parked(0):
            mid += L("@vm V0")
            for r in self.v_reads(0): mid += r

        DA = opt.get("da", 4)
        ph2 = []
        for n in range(36):
            mf = []
            for sr in range(2):
                for sn in range(2):
                    k, b = self.vfrag(n, sn)
                    acc = vr(96 + (sr * 2 + sn) * 16, 16)
                    mf.append(L(f"v_mfma_f32_32x32x16_bf16 {acc}, {k}[{b}:{b+3}], {ar(self.areg(n, sr))}, {acc if n else 0}"))
            g = [[] for _ in range(4)]
            if n + 1 < 36 and not self.parked(n + 1):
                g[0] += L(f"@vm V{n+1}")
                rd = self.v_reads(n + 1)
                g[0] += rd[0] + rd[1]; g[1] += rd[2] + rd[3]
            vl = []
            ru = opt.get("restu", 12)
            if n < ru:
                take = -(-len(rest) // (ru - n))
                due = max([j + 1 for j, gg in enumerate(rest) if any(x.kind == "ds" and x.tag and int(x.tag[2:]) <= n + 2 for x in gg)], default=0)
                take = max(take, due)
                split = take < len(rest) and take and len(rest[take]) == 1 and rest[take][0].kind == "vmem" and rest[take][0].lds
                vl = rest[:take]
                rest = rest[take:]
            for i, x in enumerate(vl): g[min(3, 1 + i * 3 // len(vl))] += x
            if n == (opt.get("oflag_at", 6) if A else opt.get("lflag_at", -20)):
                g[3] += (self.flag_store(sFP, 384, ["Ost"]) if A else self.flag_store(sFP, 128, ["Lst"])) + self.stamp("fl")
            m = n + (DA if n >= 8 else 0)
            for first, off in ((8, 256), (16, 128), (28, 384)):
                at = max(first - DA, 7)
                if n == at - (opt.get("pl8", 4) if first == 8 else opt.get("pl", 3)): g[2] += self.poll_issue(pa, V("F"), off)
                if n == at: g[2] += self.stamp(f"q{first}") + self.poll_check(pa, V("F"), off) + self.stamp(f"k{first}")
            if n == 7:
                for mm in range(8, 8 + DA): g[3] += sum(self.a_loads(mm), [])
            if n >= 8 and n + DA < 36: g[3] += sum(self.a_loads(n + DA), [])
            if not opt.get("exact2", 0): ph2 += L("@lgkm0")
            for i in range(4):
                ph2 += mf[i]
                if i == 0 and n % 4 == 0: ph2 += self.stamp(f"u{n}")
                ph2 += g[i]
        assert not rest
        ph2 += self.stamp("ph2end")

        fin = []
        T = [self.v(f"t{i}") for i in range(8)]
        of = opt.get("oflags", "sc1")
        if opt.get("full", 1):
            AD = 160
            rws = L(f"""
            v_mbcnt_lo_u32_b32 v{T[0]}, -1, 0
            v_mbcnt_hi_u32_b32 v{T[0]}, -1, v{T[0]}
            v_and_b32 v{T[1]}, 7, v{T[0]}
            v_lshrrev_b32 v{T[2]}, 5, v{T[0]}
            v_xor_b32 v{T[2]}, v{T[2]}, v{T[1]}
            v_lshlrev_b32 v{T[2]}, 4, v{T[2]}
            v_lshl_add_u32 v{T[2]}, v{T[1]}, 8, v{T[2]}
            v_bfe_u32 v{T[3]}, v{T[0]}, 3, 2
            v_lshl_add_u32 v{T[2]}, v{T[3]}, 13, v{T[2]}
            s_lshl_b32 {sT0}, {sRH}, 15
            s_lshl_b32 {sT1}, {sJ}, 7
            s_add_u32 {sT0}, {sT0}, {sT1}
            s_add_u32 {sT0}, {sT0}, {sL2}
            v_add_u32 v{AD}, {sT0}, v{T[2]}
            """)
            for sg in range(4):
                for q in range(4):
                    if sg or q: rws += L(f"v_xor_b32 v{AD + sg*4 + q}, {q*32 + (sg & 1)*128 + (sg >> 1)*32768}, v{AD}")
            rws += L(f"""
            v_lshrrev_b32 v{T[3]}, 3, v{T[0]}
            v_lshlrev_b32 v{T[4]}, 1, v{T[1]}
            v_xor_b32 v{T[4]}, v{T[4]}, v{T[3]}
            v_lshlrev_b32 v{T[4]}, 4, v{T[4]}
            v_lshl_add_u32 v{T[4]}, v{T[3]}, 8, v{T[4]}
            s_lshl_b32 {sT0}, {sW}, 14
            v_add_u32 v{T[4]}, {sT0}, v{T[4]}
            v_xor_b32 v{T[5]}, 16, v{T[4]}
            v_lshlrev_b32 v{T[1]}, 4, v{T[1]}
            v_lshl_add_u32 v{T[1]}, v{T[3]}, 10, v{T[1]}
            s_lshl2_add_u32 {sT0}, {sR2}, {sW}
            s_lshl_b32 {sT0}, {sT0}, 14
            s_lshl_b32 {sT1}, {sC2}, 7
            s_add_u32 {sT0}, {sT0}, {sT1}
            v_add_u32 v{T[1]}, {sT0}, v{T[1]}
            s_movk_i32 {sT2}, 0x2000
            """)
            k8 = next(i for i, x in enumerate(ph2) if x.kind == "mfma" and "a[160:163]" in x.text and i > 200)
            ph2[k8:k8] = rws
            for sg in range(4):
                for q in range(4):
                    fin += L(f"ds_write_b128 v{AD + sg*4 + q}, {vr(96 + sg*16 + q*4)}")
            fin += L("@lgkm0\ns_barrier") + self.stamp("redbar")
            for h in range(2):
                for sw in range(4):
                    for e in range(2):
                        fin += L(f"ds_read_b128 {vr(96 + h*32 + sw*8 + e*4)}, v{T[4+e]} offset:{h*8192 + sw*2048}")
            for h in range(2):
                b0 = 96 + h * 32
                for i in range(0, 8, 2):
                    fin += L(f"v_pk_add_f32 v[{b0+i}:{b0+i+1}], v[{b0+i}:{b0+i+1}], v[{b0+8+i}:{b0+9+i}]")
                for i in range(0, 8, 2):
                    fin += L(f"v_pk_add_f32 v[{b0+16+i}:{b0+17+i}], v[{b0+16+i}:{b0+17+i}], v[{b0+24+i}:{b0+25+i}]")
                for i in range(0, 8, 2):
                    fin += L(f"v_pk_add_f32 v[{b0+i}:{b0+i+1}], v[{b0+i}:{b0+i+1}], v[{b0+16+i}:{b0+17+i}]")
                d = 176 + h * 4
                for i in range(4): fin += L(f"v_cvt_pk_bf16_f32 v{d+i}, v{b0+2*i}, v{b0+2*i+1}")
                fin += L(f"buffer_store_dwordx4 {vr(d)}, v{T[1]}, {srd(SOUT)}, {sT2 if h else 0} offen {of}")
        else:
            RW = f"v{T[0]}"
            rws = L(f"v_mbcnt_lo_u32_b32 {RW}, -1, 0\nv_mbcnt_hi_u32_b32 {RW}, -1, {RW}\nv_lshl_add_u32 {RW}, {RW}, 4, {sL2}")
            for sg in range(1, 4): rws += L(f"v_xor_b32 v{T[sg]}, {sg*2048}, {RW}")
            mid += rws
            for sg in range(1, 4):
                for q in range(4):
                    fin += L(f"ds_write_b128 {RW}, {vr(96 + sg*16 + q*4)} offset:{((sg-1)*2 + (q >> 1))*8192 + (q & 1)*1024}")
            fin += L("@lgkm0\ns_barrier") + self.stamp("redbar")
            for q in range(4):
                for sg in range(1, 4):
                    fin += L(f"ds_read_b128 {vr(96 + sg*16 + q*4)}, v{T[sg]} offset:{((sg-1)*2 + (q >> 1))*8192 + (q & 1)*1024}")
            of = opt.get("oflags", "sc1")
            for pr in range(2):
                for q in (2 * pr, 2 * pr + 1):
                    for h in range(2):
                        r = 96 + q * 4 + 2 * h
                        fin += L(f"""
                        v_pk_add_f32 v[{r}:{r+1}], v[{r}:{r+1}], v[{r+16}:{r+17}]
                        v_pk_add_f32 v[{r+32}:{r+33}], v[{r+32}:{r+33}], v[{r+48}:{r+49}]
                        v_pk_add_f32 v[{r}:{r+1}], v[{r}:{r+1}], v[{r+32}:{r+33}]
                        """)
                d = 160 + pr * 4
                for i in range(4):
                    r = 96 + pr * 8 + 2 * i
                    fin += L(f"v_cvt_pk_bf16_f32 v{d+i}, v{r}, v{r+1}")
                fin += L(f"""
                v_permlane32_swap_b32 v{d}, v{d+2}
                v_permlane32_swap_b32 v{d+1}, v{d+3}
                buffer_store_dwordx4 {vr(d)}, {V('OUT')}, {srd(SOUT)}, 0 offen offset:{pr*32} {of}
                """)
        skip = self.lab("noep")
        fin += L(f"""
        s_or_b32 {sT0}, s2, {sW}
        s_cmp_eq_u32 {sT0}, 0
        s_cbranch_scc1 {skip}_go
        {skip}:
        """)
        self.ool += L(f"""
        {skip}_go:
        s_mov_b64 exec, 1
        @raw buffer_store_dword {V('tag')}, off, {srd(SW)}, 0 offset:{WS_EPOCH} sc1
        s_branch {skip}
        """)
        if opt.get("padto"):
            lp = self.lab("pad")
            if "xstamp" in opt:
                fin += L("@lgkm0\ns_mov_b32 s3, s4")
            fin += L(f"""
            {lp}:
            @raw s_memrealtime s[82:83]
            @raw s_waitcnt lgkmcnt(0)
            @raw s_sub_u32 s82, s82, s3
            @raw s_cmp_lt_u32 s82, {opt['padto']}
            @raw s_cbranch_scc1 {lp}
            """)
        if opt.get("stamps"):
            st = V("stamps")
            fin += L("s_mov_b64 exec, -1") + self.stamp("stored") + L("@vm0") + self.stamp("end") + self.stamp("FLUSH")
            fin += L(f"""
            s_memrealtime s[4:5]
            v_writelane_b32 {st}, s6, 60
            v_writelane_b32 {st}, {sSpin}, 61
            v_writelane_b32 {st}, s3, 62
            v_writelane_b32 {st}, s4, 63
            s_lshl_b32 {sT0}, s2, 2
            s_add_u32 {sT0}, {sT0}, {sW}
            s_lshl_b32 {sT0}, {sT0}, 8
            s_add_u32 {sT0}, {sT0}, {WS_STAMP}
            v_mbcnt_lo_u32_b32 v96, -1, 0
            v_mbcnt_hi_u32_b32 v96, -1, v96
            v_lshlrev_b32 v96, 2, v96
            buffer_store_dword {st}, v96, {srd(SW)}, {sT0} offen
            """)
        fin += L("s_endpgm")

        fin += L(f"L_stop{self.typ}:") + self.ool + L(f"L_end{self.typ}:")
        loads = self.pro_loads
        t1 = []
        common = common_head(opt) + self.first + L("@lgkm0")
        if opt.get("stamps") or opt.get("padto"): common += L("s_mov_b32 s3, s4")
        p1 = opt.get("t1pos", 0)
        nc = opt.get("nc", 8)
        warm = []
        wat = opt.get("wat", -1)
        if opt.get("isl", 2):
            X = self.typ
            warm = L(f"""
            s_mov_b64 exec, 0
            s_cmp_eq_u32 {sW}, 0
            s_cbranch_scc1 L_isl{X}1
            s_cmp_eq_u32 {sW}, 1
            s_cbranch_scc1 L_isl{X}2
            s_cmp_eq_u32 {sW}, 2
            s_cbranch_scc1 L_isl{X}3
            s_branch L_isl{X}4
            L_ret{X}:
            s_mov_b64 exec, -1
            """)
        common += sum(loads[:p1], []) + t1 + sum(loads[p1:nc], [])
        common += L("s_bitcmp1_b32 s2, 6\ns_cbranch_scc1 L_pathB")
        head = body + L(f"buffer_load_dword {V('tag')}, off, {srd(SW)}, 0 offset:{WS_EPOCH} sc1") + self.second + self.setup + (warm if wat < 0 else []) + sum(loads[nc:], [])
        if opt.get("t2", 1) == -3: head += touch2(self, 0, False)
        tagf = L(f"v_add_u32 {V('tag')}, 0x9e3779b9, {V('tag')}\nv_readfirstlane_b32 {sTag}, {V('tag')}")
        k1 = next(i for i, x in enumerate(ph1) if x.kind == "mfma")
        ph1[k1 + 1:k1 + 1] = tagf
        if wat >= 0:
            k2 = [i for i, x in enumerate(ph1) if x.text.startswith("@sync")][wat]
            ph1[k2:k2] = warm
        if opt.get("nosc1"):
            for x in ph1 + mid:
                if x.kind == "vmem" and "store_dwordx4" in x.op: x.text = x.text.replace(" sc1", "")
        if opt.get("nost") == 2:
            for x in ph1 + mid:
                if x.kind == "vmem" and "store_dwordx4" in x.op: x.text = re.sub(r"(s\[\d+:\d+\]), \S+ offen", r"\1, s35 offen", x.text.replace("s[32:35]", "s[40:43]")).replace(" sc1", "")
        if opt.get("novalu"):
            mid = [x for x in mid if not (x.kind == "valu" and x.op.startswith(("v_pk", "v_exp", "v_rcp", "v_mul", "v_max", "v_add_f32", "v_cvt")))]
        if opt.get("novalu") == 2:
            keep = lambda x: not (x.kind == "valu" and x.op.startswith(("v_pk", "v_exp", "v_rcp", "v_mul", "v_max", "v_add_f32", "v_cvt", "v_fma")))
            k0 = next(i for i, x in enumerate(ph1) if "H1" in x.text)
            ph1 = ph1[:k0 + 200] + [x for x in ph1[k0 + 200:] if keep(x)]
        if opt.get("nost") == 1:
            for x in ph1 + mid:
                if x.kind == "vmem" and "store_dwordx4" in x.op: x.text = x.text.replace("_dwordx4", "_dword").replace(" sc1", ""); x.text = re.sub(r"v\[(\d+):\d+\]", r"v\1", x.text, 1)
        if opt.get("nomfma"): ph1 = [x for x in ph1 if x.kind != "mfma"]; ph2 = [x for x in ph2 if x.kind != "mfma"]
        if opt.get("nods"): ph1 = [x for x in ph1 if not x.op.startswith("ds_read")]; ph2 = [x for x in ph2 if not x.op.startswith("ds_read")]
        if opt.get("nobar"): ph1 = [x for x in ph1 if x.op != "s_barrier"]
        if opt.get("nodma"): ph1 = [x for x in ph1 if not (x.kind == "vmem" and x.lds and not x.tag)]
        return self.expand_stamps(common + head + ph1 + mid + ph2 + fin)


def touch(sr, mask, code, dst, raw=False):
    p = "@raw " if raw else ""
    return L(f"{code}\ns_mov_b64 exec, {mask}\n{p}buffer_load_dword v{dst}, v246, {srd(sr)}, {sOff} offen")


def rowhalf(stride, nbytes, c0):
    return (f"s_lshr_b32 {sOff}, {sGW}, 1\ns_mul_i32 {sOff}, {sOff}, {stride}\ns_and_b32 {sT0}, {sGW}, 1\n"
            f"s_mul_i32 {sT0}, {sT0}, {nbytes}\ns_add_u32 {sOff}, {sOff}, {sT0}" + (f"\ns_add_u32 {sOff}, {sOff}, {c0}" if c0 else ""))


def touch2(g, k, cond=True, part=0):
    skip = g.lab("t2") if cond else None
    n = g.opt.get("t2n", 4) if cond else 1
    o = L(f"s_and_b32 {sT0}, {sSel}, {n-1}\ns_cmp_lg_u32 {sT0}, {k}\ns_cbranch_scc1 {skip}") if cond else []
    p = "@raw " if cond else ""
    if g.opt.get("xt", 1):
        t = [0, 0, 0, 0, 239, 240, 241, 242]
        assert g.hi_next <= 239
        x8 = g.opt.get("map2", "8x4").startswith("8x4")
        o += L(f"""
        v_lshrrev_b32 v{t[4]}, 7, v246
        s_and_b32 {sT0}, {sGW}, 127
        s_bfe_u32 {sT1}, s2, 0x10000
        s_lshl_b32 {sT2}, {sT1}, 7
        s_add_u32 {sT2}, {sT2}, {sT0}
        s_lshl_b32 {sT2}, {sT2}, 1
        s_bfe_u32 {sOff}, s2, 0x20001
        """)
        if part in (0, 1):
            o += L(f"""
            v_bfe_u32 v{t[5]}, v{t[4]}, 1, 1
            v_add_u32 v{t[5]}, {sT2}, v{t[5]}
            v_and_b32 v{t[6]}, 1, v{t[4]}
            v_lshl_add_u32 v{t[6]}, {sOff}, 1, v{t[6]}
            v_lshlrev_b32 v{t[6]}, 7, v{t[6]}
            v_mul_u32_u24 v{t[7]}, 3072, v{t[5]}
            v_add_u32 v{t[7]}, v{t[7]}, v{t[6]}
            s_mov_b64 exec, 15
            {p}buffer_load_dword v248, v{t[7]}, {srd(SQ)}, 0 offen
            s_mov_b64 exec, -1
            v_lshrrev_b32 v{t[7]}, 2, v{t[4]}
            v_lshl_add_u32 v{t[6]}, v{t[7]}, 10, v{t[6]}
            v_add_u32 v{t[6]}, 1536, v{t[6]}
            v_lshlrev_b32 v{t[7]}, 7, {sOff}
            v_add_u32 v{t[7]}, 1024, v{t[7]}
            v_cmp_gt_u32 vcc, 8, v{t[4]}
            v_cndmask_b32 v{t[6]}, v{t[7]}, v{t[6]}, vcc
            v_mul_u32_u24 v{t[5]}, 3584, v{t[5]}
            v_add_u32 v{t[6]}, v{t[6]}, v{t[5]}
            s_mov_b64 exec, 0x5ff
            {p}buffer_load_dword v250, v{t[6]}, {srd(SG)}, 0 offen
            {p}buffer_load_dword v249, v{t[6]}, {srd(SU)}, 0 offen
            s_mov_b64 exec, -1
            """)
        if part in (0, 2) and x8:
            o += L(f"""
            v_lshrrev_b32 v{t[5]}, 2, v{t[4]}
            v_and_b32 v{t[6]}, 3, v{t[4]}
            v_lshlrev_b32 v{t[6]}, 7, v{t[6]}
            v_lshl_add_u32 v{t[6]}, v{t[5]}, 10, v{t[6]}
            s_lshl_b32 {sT1}, {sT1}, 9
            s_lshl_b32 {sT2}, {sOff}, 7
            s_add_u32 {sT2}, {sT2}, {sT0}
            s_lshl_b32 {sOff}, {sT2}, 10
            s_add_u32 {sOff}, {sOff}, {sT1}
            s_mov_b64 exec, 15
            {p}buffer_load_dword v247, v{t[6]}, {srd(SO)}, {sOff} offen
            s_lshl_b32 {sOff}, {sT2}, 12
            s_add_u32 {sOff}, {sOff}, {sT1}
            s_mov_b64 exec, 0xffff
            {p}buffer_load_dword v245, v{t[6]}, {srd(SD)}, {sOff} offen
            """)
        elif part in (0, 2):
            o += touch(SO, "15", f"s_lshl_b32 {sOff}, {sGW}, 9", 247, cond)
            o += touch(SD, "0x3fff", f"s_mul_i32 {sOff}, {sGW}, 1792", 245, cond)
        part = 9
    if part in (0, 1):
        o += touch(SG, "0x3ff", rowhalf(3584, 1280, 1024), 250, cond) + L(p + f"buffer_load_dword v249, v246, {srd(SU)}, {sOff} offen")
        o += touch(SQ, "15", rowhalf(3072, 512, 0), 248, cond)
    if part == 0:
        o += touch(SO, "15", f"s_lshl_b32 {sOff}, {sGW}, 9", 247, cond)
        o += touch(SD, "0x3fff", f"s_mul_i32 {sOff}, {sGW}, 1792", 245, cond)
    if part == 2:
        a, d = g.v("t5"), g.v("t6")
        o += L(f"v_mbcnt_lo_u32_b32 v{a}, -1, 0\nv_mbcnt_hi_u32_b32 v{a}, -1, v{a}\nv_lshlrev_b32 v{a}, 7, v{a}")
        o += L(f"s_lshl_b32 {sOff}, {sGW}, 9\ns_mov_b64 exec, 15\nbuffer_load_dword v{d}, v{a}, {srd(SO)}, {sOff} offen")
        o += L(f"s_mul_i32 {sOff}, {sGW}, 1792\ns_mov_b64 exec, 0x3fff\nbuffer_load_dword v{d+1}, v{a}, {srd(SD)}, {sOff} offen")
    o += L("s_mov_b64 exec, -1")
    if cond: o += L(f"{skip}:")
    return o


def touch4(g):
    a, b, d = g.v("t5"), g.v("t4"), g.v("t6")
    return L(f"""
    v_mbcnt_lo_u32_b32 v{a}, -1, 0
    v_mbcnt_hi_u32_b32 v{a}, -1, v{a}
    v_and_b32 v{b}, 3, v{a}
    v_lshrrev_b32 v{a}, 2, v{a}
    v_lshlrev_b32 v{b}, 7, v{b}
    v_lshl_add_u32 v{a}, v{a}, 10, v{b}
    s_and_b32 {sT0}, {sGW}, 127
    s_bfe_u32 {sT1}, s2, 0x10000
    s_lshl_b32 {sT1}, {sT1}, 9
    s_mul_i32 {sOff}, {sT0}, {14*1024}
    s_add_u32 {sOff}, {sOff}, {sT1}
    s_mov_b32 exec_hi, 0xffffff
    buffer_load_dword v{d}, v{a}, {srd(SD)}, {sOff} offen
    s_lshl_b32 {sOff}, {sT0}, 12
    s_add_u32 {sOff}, {sOff}, {sT1}
    s_mov_b64 exec, 0xffff
    buffer_load_dword v{d+1}, v{a}, {srd(SO)}, {sOff} offen
    s_mov_b64 exec, -1
    """)


def codepf(opt):
    o = L(f"""
    s_getpc_b64 s[82:83]
    L_pc:
    s_bitcmp1_b32 s2, 6
    s_cselect_b32 {sT2}, L_pathB-L_pathA, 0
    s_add_u32 {sT2}, {sT2}, L_pathA-L_pc
    """)
    m = opt.get("codepf", 3)
    if m == 1:
        o += L(f"""
        s_bfe_u32 {sT0}, s2, 0x30003
        s_lshr_b32 {sT1}, s2, 7
        s_lshl3_add_u32 {sT0}, {sT1}, {sT0}
        s_mul_i32 {sT0}, {sT0}, 1536
        s_add_u32 {sT2}, {sT2}, {sT0}
        v_min_u32 v1, 11, v0
        v_lshl_add_u32 v1, v1, 7, {sT2}
        v_min_u32 v1, L_endB-L_pc-4, v1
        global_load_dword v255, v1, s[82:83]
        """)
    elif m == 2:
        o += L(f"""
        v_lshl_add_u32 v1, v0, 7, {sT2}
        v_min_u32 v1, L_endB-L_pc-4, v1
        global_load_dword v255, v1, s[82:83]
        """)
    elif m == 3:
        o += L(f"""
        s_bfe_u32 {sT0}, s2, 0x30003
        s_lshr_b32 {sT1}, s2, 7
        s_lshl3_add_u32 {sT0}, {sT1}, {sT0}
        s_mul_i32 {sT0}, {sT0}, 1536
        s_add_u32 {sT0}, {sT2}, {sT0}
        v_and_b32 v1, 63, v0
        v_lshlrev_b32 v1, 7, v1
        s_mov_b64 exec, 0x1ff
        global_load_dword v244, v1, s[82:83]
        v_add_u32 v2, {sT2}, v1
        global_load_dword v243, v2, s[82:83]
        s_mov_b64 exec, -1
        v_min_u32 v1, 11, v0
        v_lshl_add_u32 v1, v1, 7, {sT0}
        v_min_u32 v1, L_endB-L_pc-4, v1
        global_load_dword v255, v1, s[82:83]
        """)
    return o


T1 = """
        v_lshrrev_b32 v2, 6, v0
        v_lshl_add_u32 v2, s2, 2, v2
        v_and_b32 v1, 63, v0
        v_lshlrev_b32 v1, 7, v1
        v_lshl_add_u32 v3, v2, 11, v1
        v_lshrrev_b32 v4, 1, v2
        v_and_b32 v2, 1, v2
        v_mad_u32_u24 v5, v4, 3, v2
        v_mad_u32_u24 v4, v4, 7, v2
        v_lshl_add_u32 v5, v5, 10, v1
        v_lshl_add_u32 v4, v4, 9, v1
        s_mov_b64 exec, 0xffff
        @lgkm0
        global_load_dword v254, v3, s[44:45]
        s_mov_b64 exec, 0xff
        global_load_dword v253, v5, s[46:47] offset:1024
        s_mov_b64 exec, 15
        global_load_dword v252, v4, s[48:49]
        global_load_dword v251, v4, s[50:51]
"""
T1X = """
        v_lshrrev_b32 v2, 6, v0
        s_lshr_b32 s52, s2, 3
        s_and_b32 s53, s2, 1
        s_bfe_u32 s54, s2, 0x20001
        v_lshl_add_u32 v2, s52, 2, v2
        v_and_b32 v1, 63, v0
        s_lshl2_add_u32 s52, s53, s54
        s_lshl_b32 s52, s52, 18
        v_lshlrev_b32 v3, 11, v2
        v_lshl_add_u32 v3, v1, 7, v3
        v_add_u32 v3, s52, v3
        s_lshl_b32 s53, s53, 8
        v_lshl_add_u32 v2, v2, 1, s53
        v_bfe_u32 v4, v1, 1, 1
        v_add_u32 v2, v2, v4
        v_and_b32 v4, 1, v1
        v_lshl_add_u32 v4, s54, 1, v4
        v_lshlrev_b32 v4, 7, v4
        v_lshrrev_b32 v1, 2, v1
        v_lshl_add_u32 v5, v1, 10, v4
        s_movk_i32 s52, 0xc00
        s_movk_i32 s53, 0xe00
        v_mad_u32_u24 v5, v2, s52, v5
        v_mad_u32_u24 v4, v2, s53, v4
        s_mov_b64 exec, 0xffff
        @lgkm0
        global_load_dword v254, v3, s[44:45]
        s_mov_b64 exec, 0xff
        global_load_dword v253, v5, s[46:47] offset:1024
        s_mov_b64 exec, 15
        global_load_dword v252, v4, s[48:49]
        global_load_dword v251, v4, s[50:51]
"""
T1Z = """
        v_lshrrev_b32 v2, 6, v0
        s_lshr_b32 s52, s2, 3
        s_and_b32 s53, s2, 1
        s_bfe_u32 s54, s2, 0x20001
        v_lshl_add_u32 v2, s52, 2, v2
        v_and_b32 v1, 63, v0
        s_lshl2_add_u32 s52, s53, s54
        s_lshl_b32 s52, s52, 18
        v_lshlrev_b32 v3, 11, v2
        v_lshl_add_u32 v3, v1, 7, v3
        v_add_u32 v3, s52, v3
        s_lshl_b32 s53, s53, 8
        v_lshl_add_u32 v2, v2, 1, s53
        v_bfe_u32 v4, v1, 1, 1
        v_add_u32 v2, v2, v4
        v_and_b32 v4, 1, v1
        v_lshl_add_u32 v4, s54, 1, v4
        v_lshlrev_b32 v4, 7, v4
        v_lshrrev_b32 v1, 2, v1
        v_lshl_add_u32 v5, v1, 10, v4
        s_movk_i32 s52, 0xc00
        s_movk_i32 s53, 0xe00
        v_mad_u32_u24 v5, v2, s52, v5
        v_mad_u32_u24 v4, v2, s53, v4
        s_mov_b64 exec, 0xfefe
        @lgkm0
        global_load_dword v254, v3, s[44:45]
        s_mov_b64 exec, 0xff
        global_load_dword v253, v5, s[46:47] offset:1024
        s_mov_b64 exec, 15
        global_load_dword v252, v4, s[48:49]
        global_load_dword v251, v4, s[50:51]
"""
T1V = """
        v_lshrrev_b32 v2, 6, v0
        s_lshr_b32 s52, s2, 3
        s_and_b32 s53, s2, 1
        s_bfe_u32 s54, s2, 0x20001
        v_lshl_add_u32 v2, s52, 2, v2
        v_and_b32 v1, 63, v0
        s_lshl2_add_u32 s52, s53, s54
        s_lshl_b32 s52, s52, 18
        v_lshlrev_b32 v3, 11, v2
        v_lshl_add_u32 v3, v1, 7, v3
        v_add_u32 v3, s52, v3
        s_lshl_b32 s53, s53, 8
        v_lshl_add_u32 v2, v2, 1, s53
        v_bfe_u32 v4, v1, 1, 1
        v_add_u32 v2, v2, v4
        v_and_b32 v4, 1, v1
        v_lshl_add_u32 v4, s54, 1, v4
        v_lshlrev_b32 v4, 7, v4
        v_lshrrev_b32 v1, 2, v1
        v_lshl_add_u32 v5, v1, 10, v4
        s_movk_i32 s52, 0xc00
        s_movk_i32 s53, 0xe00
        v_mad_u32_u24 v5, v2, s52, v5
        v_mad_u32_u24 v4, v2, s53, v4
        s_mov_b64 exec, 0xfcfc
        @lgkm0
        global_load_dword v254, v3, s[44:45]
        s_mov_b64 exec, 0xff
        global_load_dword v253, v5, s[46:47] offset:1024
        s_mov_b64 exec, 15
        global_load_dword v252, v4, s[48:49]
        global_load_dword v251, v4, s[50:51]
"""
T1W = """
        v_lshrrev_b32 v2, 6, v0
        s_lshr_b32 s52, s2, 3
        s_and_b32 s53, s2, 1
        s_bfe_u32 s54, s2, 0x20001
        v_lshl_add_u32 v2, s52, 2, v2
        v_and_b32 v1, 63, v0
        s_lshl2_add_u32 s52, s53, s54
        s_lshl_b32 s52, s52, 18
        v_lshlrev_b32 v3, 11, v2
        v_lshl_add_u32 v3, v1, 7, v3
        v_add_u32 v3, s52, v3
        v_bfe_u32 v4, v1, 1, 2
        v_lshl_add_u32 v2, v2, 2, v4
        v_and_b32 v4, 1, v1
        v_lshl_add_u32 v4, s54, 1, v4
        v_lshlrev_b32 v4, 7, v4
        v_lshrrev_b32 v1, 3, v1
        v_lshl_add_u32 v5, v1, 10, v4
        s_movk_i32 s52, 0xc00
        s_movk_i32 s53, 0xe00
        v_mad_u32_u24 v5, v2, s52, v5
        v_mad_u32_u24 v4, v2, s53, v4
        s_mov_b64 exec, 0xffff
        @lgkm0
        global_load_dword v254, v3, s[44:45]
        global_load_dword v253, v5, s[46:47] offset:1024
        s_mov_b64 exec, 0xff
        global_load_dword v252, v4, s[48:49]
        global_load_dword v251, v4, s[50:51]
"""
T1Y = """
        v_lshrrev_b32 v2, 6, v0
        s_lshr_b32 s52, s2, 3
        s_and_b32 s53, s2, 1
        s_bfe_u32 s54, s2, 0x20001
        v_lshl_add_u32 v2, s52, 2, v2
        v_and_b32 v1, 63, v0
        s_and_b32 s52, s54, 1
        s_lshl1_add_u32 s52, s53, s52
        s_lshl_b32 s52, s52, 19
        v_lshlrev_b32 v3, 12, v2
        v_lshl_add_u32 v3, v1, 7, v3
        v_add_u32 v3, s52, v3
        s_lshl_b32 s53, s53, 8
        v_lshl_add_u32 v2, v2, 1, s53
        v_bfe_u32 v4, v1, 1, 1
        v_add_u32 v2, v2, v4
        v_and_b32 v4, 1, v1
        v_lshl_add_u32 v4, s54, 1, v4
        v_lshlrev_b32 v4, 7, v4
        v_lshrrev_b32 v1, 2, v1
        v_lshl_add_u32 v5, v1, 10, v4
        s_movk_i32 s52, 0xc00
        s_movk_i32 s53, 0xe00
        v_mad_u32_u24 v5, v2, s52, v5
        v_mad_u32_u24 v4, v2, s53, v4
        s_mov_b32 exec_hi, 0
        @lgkm0
        global_load_dword v254, v3, s[44:45]
        s_mov_b64 exec, 0xff
        global_load_dword v253, v5, s[46:47] offset:1024
        s_mov_b64 exec, 15
        global_load_dword v252, v4, s[48:49]
        global_load_dword v251, v4, s[50:51]
"""


def common_head(opt):
    o = L(f"""
    s_cmp_ge_u32 s2, 0x100
    s_cbranch_scc1 L_end
    """)
    if opt.get("stamps") or opt.get("padto"):
        o += L(("s_memrealtime" if opt.get("rt") else "s_memtime") + " s[6:7]\ns_memrealtime s[4:5]")
    if opt.get("t1", 2) == 2:
        o += L("""
        s_load_dwordx4 s[44:47], s[0:1], 0
        s_load_dwordx4 s[48:51], s[0:1], 32
        """)
    if opt.get("pftop", 1): o += codepf(opt)
    if opt.get("t1", 2) == 2:
        o += L(f"""
        {(T1, T1X, T1W, T1Y, T1Z, T1V)[opt.get("xt", 1)]}
        s_mov_b64 exec, -1
        """)
    o += L(f"""
    s_bitcmp1_b32 s2, 6
    s_cselect_b32 {sT0}, 32, 8
    s_cselect_b32 {sT1}, 40, 8
    s_load_dwordx2 s[{S1}:{S1+1}], s[0:1], {sT0}
    s_load_dwordx2 s[{S2}:{S2+1}], s[0:1], {sT1}
    """)
    for b, slot in ((SX, 0), (SG, 4), (SU, 5), (SQ, 1), (SGW, 7), (SW, 10), (SD, 6), (SO, 2), (SOUT, 8)):
        o += L(f"s_load_dwordx2 s[{b}:{b+1}], s[0:1], {slot*8}")
    if not opt.get("pftop", 1): o += codepf(opt)
    for b, n in ((SX, 2048 * 1024), (SQ, 512 * 3072), (SG, 512 * 3584), (SU, 512 * 3584), (SD, 1792 * 1024),
                 (SO, 512 * 1024), (SW, WS_BYTES), (SOUT, 2048 * 1024), (SGW, 1024)):
        o += L(f"s_mov_b32 s{b+2}, {n}\ns_mov_b32 s{b+3}, 0x20000")
    return o


def assemble_sizes(txt):
    import subprocess, tempfile, os
    d = tempfile.mkdtemp()
    open(d + "/a.s", "w").write('.amdgcn_target "amdgcn-amd-amdhsa--gfx950"\n.text\nk:\n' + txt)
    subprocess.run(["clang", "-x", "assembler", "-target", "amdgcn-amd-amdhsa", "-mcpu=gfx950", "-c", d + "/a.s", "-o", d + "/a.o"], check=True)
    o = subprocess.run(["llvm-objdump", "-d", "--mcpu=gfx950", d + "/a.o"], capture_output=True, text=True).stdout
    sizes = [4 * len(re.match(r".*// [0-9A-F]+: ((?:[0-9A-F]{8} ?)+)", l).group(1).split()) for l in o.split("\n") if re.match(r".*// [0-9A-F]+: [0-9A-F]{8}", l)]
    return sizes


def generate(opt):
    parts = []
    info = []
    names = []
    for typ in "AB":
        g = Gen(typ, opt)
        ins, added = finalize(g.build())
        k = next(i for i, x in enumerate(ins) if x.text.startswith("s_cbranch_scc1 L_pathB"))
        parts.append((ins[:k + 1], ins[k + 1:]))
        info.append((typ, len(ins), added, g.nv, g.hi_next))
        if opt.get("plan"):
            print(typ, g.note)
            for k, v in g.when.items(): print("  ", k, " ".join(f"{a}{b}@{g.blk[(a, b)]}" for a, b in v), "park", g.parks[k])
            print("   post", g.post)
        names.append("; stamps " + typ + ": " + " ".join(g.stamp_names) + "\n" if g.stamp_names else "")
    assert text_of(parts[0][0]) == text_of(parts[1][0])
    isl = opt.get("isl", 2)
    al = ".p2align 12\n" if isl else ""
    txt = text_of(parts[0][0]) + ("    s_branch L_pathA\n" + al if isl == 1 else "") + "L_pathA:\n" + text_of(parts[0][1]) + al + "L_pathB:\n" + text_of(parts[1][1]) + "L_end:\n    s_endpgm\n"
    if opt.get("align", 1):
        stub = "".join(f"L_isl{x}{k}:\n" for x in "AB" for k in range(1, 5)) if isl else ""
        txt, nw, nn, cnt = align8(txt, lambda t: assemble_sizes(t.replace(al, "") + stub) if al else assemble_sizes(t),
                                  {"L_pathA": ("L_stopA", "A"), "L_pathB": ("L_stopB", "B")} if isl == 1 else {"L_pathB": ("L_stopB", "B")} if isl else None,
                                  (0x300, ("L_stopA", "A")) if isl == 2 else None)
        info.append(("align", nw, nn, cnt))
    ref = open("gated_mix__linear_attn_block__geglu_ffn__prompt.s.ref").read()
    hdr = "".join(l + "\n" for l in ref.split("\n") if l.startswith(";") and "@launch" not in l and "Override" not in l and "grid=ceil" not in l)
    out = f"""{hdr}{"".join(names)}; @launch grid=(256,1,1) block=(256,1,1) lds=163840
.amdgcn_target "amdgcn-amd-amdhsa--gfx950"
.text
.globl {KNAME}
.p2align 8
.type {KNAME},@function
{KNAME}:
{txt}.section .rodata,"a"
.p2align 6
.amdhsa_kernel {KNAME}
  .amdhsa_next_free_vgpr 512
  .amdhsa_next_free_sgpr 102
  .amdhsa_accum_offset 256
  .amdhsa_group_segment_fixed_size 0
  .amdhsa_kernarg_size 88
  .amdhsa_user_sgpr_count 2
  .amdhsa_user_sgpr_kernarg_segment_ptr 1
  .amdhsa_system_sgpr_workgroup_id_x 1
  .amdhsa_float_denorm_mode_32 3
.end_amdhsa_kernel
"""
    return out, info


def parse_opts(args):
    opt = {}
    for a in args:
        k, v = a.split("=", 1)
        try: v = int(v)
        except ValueError: v = v.replace("+", " ")
        opt[k] = v
    return opt


if __name__ == "__main__":
    out, info = generate(parse_opts(sys.argv[2:]))
    open(sys.argv[1], "w").write(out)
    print(info)
```

```python
import sys, struct, re
from prog import *

KNAME = "gated_mix__linear_attn_block__geglu_ffn__prompt_kernel"

WS_EPOCH = 0
WS_FL = 0x1000
WS_KF = 0x12000
WS_G = 0x14000
WS_ZP = 0x18000
WS_KP = 0x28000
WS_KT = 0xA8000
WS_H = 0x100000
WS_STAMP = 0x8000000
RG_BYTES = 144 * 1024
WS_BYTES = 268435456

def f32(x): return "0x%08x" % struct.unpack("<I", struct.pack("<f", x))[0]
LOG2E = 1.4426950408889634
K0 = -2.0 * 0.7978845608028654 * LOG2E
K1 = K0 * 0.044715

SX, SQ, SG, SU, SD, SO, SW, SOUT, SGW = 8, 12, 16, 20, 24, 28, 32, 36, 40
srd = lambda b: f"s[{b}:{b+3}]"
(sW, sRH, sJ, sR, sT, sTag, sR2, sC2, sT0, sT1, sT2, sRot, sKx, sKw, sKq, sL4, sL2, sL1, sCE, sCH, sCL,
 sE, sEh, sL, sO, sFP, sKFP, sKPP, sZPP, sA0, sA1, sSpin, sGrow, sOff) = [f"s{i}" for i in range(44, 78)]
sAo = sA0
sMH = "s[78:79]"
sMR = "s[80:81]"
sPC = "s[4:5]"
STAMP0 = 82
sGW = "s92"
sTab = [f"s{i}" for i in range(93, 101)]
sSel = "s101"
sKB, sZB, sTB, sStr = sRot, sKx, sKq, sCL
S1, S2 = 84, 88

ACC = lambda t, rg: 96 + (t * 2 + rg) * 16
vr = lambda b, n=4: f"v[{b}:{b+n-1}]"
ar = lambda b, n=4: f"a[{b}:{b+n-1}]"
LDS_MISC = 19 * 8192


def hoist_m0(groups):
    out = [list(g) for g in groups]
    for i in range(1, len(out)):
        if len(out[i]) == 2 and out[i][0].text.startswith("s_add_u32 m0") and out[i - 1][-1].kind == "vmem":
            out[i - 1].append(out[i].pop(0))
    return out


class Gen:
    def __init__(self, typ, opt):
        self.typ = typ
        self.opt = opt
        self.nv = 1
        self.names = {}
        self.setup = []
        self.hi_next = 192
        self.ool = []
        self.nstamp = 0
        self.nlab = 0

    def v(self, name, n=1, p1only=False):
        if name not in self.names:
            if p1only:
                if n > 1: self.hi_next = (self.hi_next + 1) // 2 * 2
                self.names[name] = self.hi_next; self.hi_next += n
                assert self.hi_next <= 256
            else:
                if n > 1: self.nv = (self.nv + 1) // 2 * 2
                self.names[name] = self.nv; self.nv += n
                assert self.nv <= 64, name
        return self.names[name]

    def V(self, name, p1only=False): return f"v{self.v(name, 1, p1only)}"

    def lab(self, s):
        self.nlab += 1
        return f"L_{self.typ}_{s}_{self.nlab}"

    def stamp(self, name):
        if "xstamp" in self.opt:
            return L("s_memrealtime s[4:5]") if name == self.opt["xstamp"] else []
        if not self.opt.get("stamps"): return []
        if self.opt.get("coarse") and name not in ("start", "sync0", "s4", "p0", "p4", "p1end", "mid", "u8", "u28", "ph2end", "end", "FLUSH"): return []
        return [I("@stamp " + name)]

    def expand_stamps(self, ins):
        out, n = [], 0
        self.stamp_names = []
        lines = mf = 0
        half = {f"v{self.names.get('Hg', -1)},", f"v{self.names.get('Hu', -1)},"}
        for x in ins:
            if x.kind == "vmem":
                lines += (16 if x.text.split()[1] in half else 8) if "x4" in x.op else 2
            if x.kind == "mfma": mf += 1
            if x.kind == "pseudo" and x.text.startswith("@stamp"):
                i = (STAMP0, 4)[n % 2]
                if n: out += L(f"v_writelane_b32 {self.V('stamps')}, s{(STAMP0, 4)[(n-1) % 2]}, {n-1}")
                nm = x.text.split()[1]
                if nm != "FLUSH":
                    out += L(f"{'s_memrealtime' if self.opt.get('rt') else 's_memtime'} s[{i}:{i+1}]")
                    self.stamp_names.append(f"{nm}:{lines}:{mf}")
                    n += 1
                    assert n <= 60, n
            else:
                out.append(x)
        return out

    def lds(self, pat, off, p1only=False):
        win, imm = off >> 16, off & 0xFFFF
        if win == 0:
            return self.V(pat, p1only), imm
        name = f"{pat}@{win}"
        if name not in self.names:
            self.setup += L(f"v_add_u32 {self.V(name, p1only)}, {win << 16}, {self.V(pat, p1only)}")
        return self.V(name), imm

    def prologue(self):
        A = self.typ == "A"
        V = self.V
        self.nv = 2
        t = [self.V(f"t{i}") for i in range(8)]
        l, l3, l7, l4, nh, wsw = [self.V(n, True) for n in ("lane", "l3", "l7", "l4", "nh", "wsw")]
        P = lambda n: self.V(n, True)
        self.first = L(f"""
        v_lshrrev_b32 {t[0]}, 6, v0
        v_and_b32 {l}, 63, v0
        s_and_b32 {sT0}, s2, 1
        v_readfirstlane_b32 {sW}, {t[0]}
        s_bfe_u32 {sT2}, s2, 0x30003
        s_lshl3_add_u32 {sR}, {sT0}, {sT2}
        s_bfe_u32 {sT1}, s2, 0x20001
        s_lshr_b32 {sOff}, s2, 7
        s_lshl1_add_u32 {sT}, {sT1}, {sOff}
        s_lshl2_add_u32 {sGW}, {sT0}, {sT1}
        s_lshl_b32 {sGW}, {sGW}, 5
        s_lshr_b32 {sOff}, s2, 3
        s_add_u32 {sGW}, {sGW}, {sOff}
        s_lshl2_add_u32 {sGW}, {sGW}, {sW}
        v_lshrrev_b32 {l3}, 3, {l}
        v_and_b32 {l7}, 7, {l}
        v_lshrrev_b32 {l4}, 4, {l}
        v_lshlrev_b32 v246, 7, {l}
        s_lshl2_add_u32 {sT0}, {sR}, {sW}
        s_lshl_b32 {sT0}, {sT0}, 15
        v_xor_b32 {t[0]}, {l7}, {l4}
        v_lshlrev_b32 {t[0]}, 4, {t[0]}
        v_lshl_add_u32 {t[0]}, {l3}, 10, {t[0]}
        v_add_u32 {P('X0')}, {sT0}, {t[0]}
        v_xor_b32 {t[1]}, 64, {P('X0')}
        v_add_u32 {P('X1')}, {8192-1024}, {t[1]}
        v_add_u32 {P('X2')}, {16384-2048}, {P('X0')}
        v_add_u32 {P('X3')}, {16384-2048}, {P('X1')}
        v_and_b32 {nh}, 1, {l4}
        v_lshlrev_b32 {t[0]}, 2, {nh}
        v_xor_b32 {t[0]}, {t[0]}, {l7}
        v_lshlrev_b32 {wsw}, 4, {t[0]}
        s_lshl_b32 {sCE}, {sT}, 7
        s_bitcmp1_b32 s2, 6
        s_cselect_b32 {sStr}, 7, 6
        s_cselect_b32 {sT1}, 0, 1024
        s_cselect_b32 {sT2}, 32, 0
        s_cselect_b32 {sGrow}, 8, 0
        s_lshl_b32 s{S1+2}, {sStr}, 18
        s_lshl_b32 {sStr}, {sStr}, 9
        s_mov_b32 s{S2+2}, s{S1+2}
        s_mov_b32 s{S1+3}, 0x20000
        s_mov_b32 s{S2+3}, 0x20000
        v_lshl_add_u32 {P('kr')}, {sW}, 4, {l3}
        v_add_u32 {P('wc')}, {sCE}, {wsw}
        v_mad_u32_u24 {t[0]}, {P('kr')}, {sStr}, {P('wc')}
        v_add_u32 {P('W1')}, {sT1}, {t[0]}
        v_add_u32 {t[1]}, {sT1}, {P('W1')}
        v_xor_b32 {P('W2')}, {sT2}, {t[1]}
        s_lshl3_add_u32 {sT1}, {sStr}, -1024
        v_add_u32 {P('W11')}, {sT1}, {P('W1')}
        v_add_u32 {P('W21')}, {sT1}, {P('W2')}
        s_lshl_b32 {sStr}, {sStr}, 6
        s_lshl_b32 {sL4}, {sW}, 12
        s_lshl_b32 {sL2}, {sW}, 11
        s_add_u32 {sGrow}, {sGrow}, {sT}
        s_lshl4_add_u32 {sGrow}, {sR}, {sGrow}
        s_lshl2_add_u32 {sGrow}, {sGrow}, {sW}
        s_lshl_b32 {sGrow}, {sGrow}, 1
        v_lshlrev_b32 {P('l16')}, 4, {l}
        """)
        hi, r4, c3, l31 = [P(n) for n in ("hi", "r4", "c3", "l31")]
        o = L(f"""
        s_and_b32 {sT0}, s2, 7
        s_lshr_b32 {sT1}, s2, 3
        s_and_b32 {sT2}, {sT1}, 7
        s_lshr_b32 {sRH}, {sW}, 1
        s_and_b32 {sJ}, {sW}, 1
        s_and_b32 {sSel}, {sT1}, 3
        s_lshl_b32 {sL1}, {sW}, 10
        v_lshrrev_b32 {hi}, 5, {l}
        v_bfe_u32 {r4}, {l}, 2, 2
        v_and_b32 {c3}, 3, {l}
        v_and_b32 {l31}, 31, {l}
        """)
        m2 = self.opt.get("map2", "8x4")
        if m2 == "8x4t":
            o += L(f"""
            s_lshr_b32 {sR2}, {sT0}, 1
            s_and_b32 {sOff}, {sT1}, 3
            s_lshl3_add_u32 {sR2}, {sR2}, {sOff}
            s_add_u32 {sR2}, {sR2}, {0 if A else 4}
            s_and_b32 {sC2}, {sT0}, 1
            s_lshr_b32 {sOff}, {sT1}, 4
            s_lshl1_add_u32 {sC2}, {sC2}, {sOff}
            s_bfe_u32 {sOff}, {sT1}, 0x10002
            s_lshl1_add_u32 {sC2}, {sC2}, {sOff}
            """)
        elif m2 == "4x8t":
            o += L(f"""
            s_and_b32 {sOff}, {sT1}, 1
            s_lshl2_add_u32 {sR2}, {sT0}, {sOff}
            s_add_u32 {sR2}, {sR2}, {0 if A else 2}
            s_lshr_b32 {sC2}, {sT1}, 4
            s_bfe_u32 {sOff}, {sT1}, 0x20001
            s_lshl2_add_u32 {sC2}, {sC2}, {sOff}
            """)
        elif m2 == "8x4":
            o += L(f"""
            s_lshr_b32 {sR2}, {sT0}, 1
            s_lshl3_add_u32 {sR2}, {sR2}, {sT2}
            s_and_b32 {sC2}, {sT0}, 1
            s_lshr_b32 {sOff}, {sT1}, 3
            s_lshl2_add_u32 {sC2}, {sC2}, {sOff}
            """)
        else:
            o += L(f"""
            s_and_b32 {sOff}, {sT1}, 3
            s_lshl2_add_u32 {sR2}, {sT0}, {sOff}
            s_lshr_b32 {sC2}, {sT1}, 2
            """)
        o += L(f"""
        v_mul_u32_u24 {t[1]}, 3584, {P('kr')}
        v_add_u32 {V('Wg')}, {t[1]}, {P('wc')}
        v_xor_b32 {V('Wu')}, 32, {V('Wg')}
        v_add_u32 {V('Wg1')}, {8*3584-1024}, {V('Wg')}
        v_add_u32 {V('Wu1')}, {8*3584-1024}, {V('Wu')}
        """)
        if A:
            o += L(f"""
            v_add_u32 {V('Wq')}, -1024, {P('W1')}
            v_add_u32 {V('Wq1')}, -1024, {P('W11')}
            """)
        else:
            o += L(f"""
            v_lshrrev_b32 {t[0]}, 2, {l}
            v_lshl_add_u32 {t[0]}, {sW}, 4, {t[0]}
            v_mul_u32_u24 {t[1]}, 3584, {t[0]}
            v_lshl_add_u32 {t[1]}, {c3}, 4, {t[1]}
            s_lshl_b32 {sCH}, {sT}, 6
            v_add_u32 {V('Hg')}, {sCH}, {t[1]}
            v_xor_b32 {V('Hu')}, 32, {V('Hg')}
            """)
        self.v("gx0", 4, True); self.v("gx1", 4, True); self.v("ggw", 4, True)
        o += L(f"""
        v_bfe_u32 {t[0]}, {l}, 1, 3
        v_xor_b32 {t[0]}, {t[0]}, {hi}
        v_lshlrev_b32 {t[0]}, 4, {t[0]}
        v_lshl_add_u32 {t[0]}, {l31}, 7, {t[0]}
        s_lshl_b32 {sT0}, {sRH}, 13
        v_add_u32 {V('XR0', True)}, {sT0}, {t[0]}
        v_xor_b32 {V('XR1', True)}, 32, {V('XR0')}
        v_xor_b32 {V('XR2', True)}, 64, {V('XR0')}
        v_xor_b32 {V('XR3', True)}, 0x60, {V('XR0')}
        v_and_b32 {t[0]}, 2, {r4}
        v_xor_b32 {t[0]}, {t[0]}, {nh}
        s_lshl_b32 {sT0}, {sJ}, 1
        v_xor_b32 {t[0]}, {sT0}, {t[0]}
        v_lshlrev_b32 {t[0]}, 5, {t[0]}
        v_lshl_add_u32 {t[0]}, {c3}, 3, {t[0]}
        v_lshl_add_u32 {t[1]}, {hi}, 3, {r4}
        v_lshl_add_u32 {t[2]}, {t[1]}, 7, {t[0]}
        v_lshl_add_u32 {V('M0')}, {nh}, 13, {t[2]}
        v_xor_b32 {V('M1')}, 32, {V('M0')}
        v_lshl_add_u32 {t[3]}, {hi}, 2, {r4}
        v_lshl_add_u32 {t[3]}, {t[3]}, 7, {t[0]}
        v_add_u32 {V('VR0')}, {sL2}, {t[3]}
        v_xor_b32 {V('VR1')}, 64, {V('VR0')}
        """)
        if A:
            o += L(f"v_mov_b32 {V('Pl')}, {t[2]}")
        else:
            o += L(f"""
            v_xor_b32 {t[0]}, {sJ}, {nh}
            v_lshlrev_b32 {t[0]}, 5, {t[0]}
            v_lshl_add_u32 {t[0]}, {c3}, 3, {t[0]}
            v_lshl_add_u32 {t[0]}, {t[1]}, 6, {t[0]}
            v_lshl_add_u32 {V('Hf')}, {nh}, 12, {t[0]}
            """)
        o += L(f"""
        v_lshl_add_u32 {t[0]}, {l3}, 10, {wsw}
        s_lshl_b32 {sT0}, {sC2}, 7
        s_lshl_b32 {sT1}, {sW}, 16
        s_add_u32 {sT0}, {sT0}, {sT1}
        v_add_u32 {V('V4')}, {sT0}, {t[0]}
        v_add_u32 {V('V8')}, {sT1}, {V('V4')}
        v_add_u32 {V('V41')}, {8192-1024}, {V('V4')}
        v_add_u32 {V('V81')}, {8192-1024}, {V('V8')}
        s_mul_i32 {sT0}, {sR2}, {2*RG_BYTES}
        s_add_u32 {sT0}, {sT0}, {WS_H}
        s_add_u32 {sT0}, {sT0}, {sL4}
        v_add_u32 {t[0]}, {sT0}, {V('l16')}
        s_mul_i32 {sA0}, {sRH}, {RG_BYTES}
        s_sub_u32 {sA1}, {RG_BYTES}, {sA0}
        v_add_u32 {V('A40')}, {sA0}, {t[0]}
        v_add_u32 {V('A41')}, {sA1}, {t[0]}
        v_add_u32 {V('A80')}, {sL4}, {V('A40')}
        v_add_u32 {V('A81')}, {sL4}, {V('A41')}
        s_lshl_b32 {sT0}, {sR}, 1
        s_add_u32 {sT0}, {sT0}, {sRH}
        s_mul_i32 {sT1}, {sT0}, {2*RG_BYTES}
        s_add_u32 {sT1}, {sT1}, {WS_H}
        v_add_u32 {V('HS0')}, {sT1}, {V('l16')}
        v_add_u32 {V('HS1')}, {RG_BYTES}, {V('HS0')}
        s_lshl_b32 {sT1}, {sT0}, 9
        s_add_u32 {sT1}, {sT1}, {WS_G}
        v_lshlrev_b32 {t[0]}, 3, {l31}
        v_add_u32 {V('G', True)}, {sT1}, {t[0]}
        s_lshl_b32 {sT0}, {sT0}, 2
        s_lshr_b32 {sT1}, {sT}, 1
        s_add_u32 {sT0}, {sT0}, {sT1}
        s_lshl_b32 {sT0}, {sT0}, 9
        s_and_b32 {sT1}, {sT}, 1
        s_lshl_b32 {sT1}, {sT1}, 1
        s_add_u32 {sT1}, {sT1}, {sJ}
        s_lshl_b32 {sT1}, {sT1}, 2
        s_add_u32 {sT0}, {sT0}, {sT1}
        s_add_u32 {sFP}, {sT0}, {WS_FL}
        s_lshl_b32 {sT0}, {sR2}, 2
        s_add_u32 {sT0}, {sT0}, {sW}
        s_lshl_b32 {sT0}, {sT0}, 9
        s_add_u32 {sT0}, {sT0}, {WS_FL}
        v_lshlrev_b32 {t[0]}, 2, {c3}
        v_add_u32 {V('F')}, {sT0}, {t[0]}
        s_lshl_b32 {sT0}, {sT}, 2
        s_lshl_b32 {sT1}, {sJ}, 1
        s_add_u32 {sT0}, {sT0}, {sT1}
        s_lshl_b32 {sE}, {sT0}, 10
        s_add_u32 {sL}, {sE}, {(80 if A else 48)*1024}
        v_mov_b32 v{self.v('KK', 2)}, {f32(K0)}
        v_mov_b32 v{self.v('KK', 2) + 1}, {f32(K1)}
        """)
        if A:
            o += L(f"""
            s_add_u32 {sO}, {sE}, {112*1024}
            s_add_u32 {sT0}, {sT0}, {sRH}
            s_lshl_b32 {sT1}, {sT0}, 7
            s_add_u32 {sT1}, {sT1}, {WS_KF}
            s_lshl_b32 {sT2}, {sR}, 2
            s_add_u32 {sKFP}, {sT1}, {sT2}
            v_and_b32 {t[0]}, 15, {l}
            v_lshlrev_b32 {t[0]}, 2, {t[0]}
            v_add_u32 {V('KF')}, {sT1}, {t[0]}
            s_lshl_b32 {sT1}, {sT0}, 14
            s_add_u32 {sT1}, {sT1}, {WS_KP}
            v_add_u32 {V('KG')}, {sT1}, {V('l16')}
            s_lshl_b32 {sKPP}, {sR}, 6
            s_add_u32 {sKB}, {sT1}, {sKPP}
            s_lshr_b32 {sTB}, {sT0}, 1
            s_lshl_b32 {sTB}, {sTB}, 11
            s_add_u32 {sTB}, {sTB}, {WS_KT}
            s_lshl_b32 {sKPP}, {sR}, 10
            s_lshl_b32 {sT1}, {sT0}, 11
            s_add_u32 {sT1}, {sT1}, {WS_ZP}
            v_lshlrev_b32 {t[0]}, 2, {l}
            v_add_u32 {V('ZG')}, {sT1}, {t[0]}
            s_lshl1_add_u32 {sZB}, {sR}, {sRH}
            s_lshl2_add_u32 {sZB}, {sZB}, {sT1}
            s_lshl_b32 {sZPP}, {sR}, 7
            s_mov_b32 s78, 0xffff0000
            s_mov_b32 s79, 0xffff0000
            s_sub_u32 s80, 0, {sRH}
            s_mov_b32 s81, s80
            v_lshlrev_b32 {t[0]}, 4, {hi}
            v_xor_b32 {t[1]}, 1, {nh}
            v_lshl_add_u32 {t[0]}, {t[1]}, 5, {t[0]}
            s_lshl_b32 {sT1}, {sW}, 6
            s_add_u32 {sT1}, {sT1}, {LDS_MISC + 7168}
            v_add_u32 {V('ZR')}, {sT1}, {t[0]}
            v_and_b32 {t[0]}, 0x24, {l}
            v_bfe_u32 {t[1]}, {l}, 3, 1
            v_lshl_add_u32 {t[0]}, {t[1]}, 4, {t[0]}
            v_lshl_add_u32 {t[0]}, {nh}, 3, {t[0]}
            v_add_u32 {V('ZW')}, {sT1}, {t[0]}
            s_add_u32 {sT1}, {sL1}, {LDS_MISC}
            v_add_u32 {V('XW')}, {sT1}, {V('l16')}
            """)
        else:
            o += L(f"""
            s_lshl_b32 {sT0}, {sT}, 1
            s_add_u32 {sT0}, {sT0}, {sJ}
            s_add_u32 {sT0}, {sT0}, 32
            s_lshl_b32 {sEh}, {sT0}, 10
            """)
        o += L(f"""
        s_lshl_b32 {sT0}, {sR2}, 1
        s_add_u32 {sT0}, {sT0}, {sRH}
        s_lshl_b32 {sT0}, {sT0}, 15
        s_lshl_b32 {sT1}, {sC2}, 1
        s_add_u32 {sT1}, {sT1}, {sJ}
        s_lshl_b32 {sT1}, {sT1}, 6
        s_add_u32 {sT0}, {sT0}, {sT1}
        v_lshlrev_b32 {t[0]}, 4, {hi}
        v_lshl_add_u32 {t[0]}, {l31}, 10, {t[0]}
        v_add_u32 {V('OUT')}, {sT0}, {t[0]}
        s_mov_b32 {sSpin}, 0
        """)
        r2 = self.opt.get("rot2", 2)
        if r2 == 0:
            o += L(f"s_mov_b32 {sT0}, 0")
        else:
            o += L(f"s_mul_i32 {sT0}, {sC2}, {r2}\ns_mul_i32 {sT1}, {sR2}, {self.opt.get('rot2r', 1)}\ns_add_u32 {sT0}, {sT0}, {sT1}")
        for i in range(8):
            o += L(f"s_add_u32 {sT1}, {sT0}, {i}\ns_and_b32 {sT1}, {sT1}, 7\ns_lshl_b32 {sTab[i]}, {sT1}, 10")
        self.second = o

    def dma(self, s, vreg, soff, m0=None, off=0, flags=""):
        o = L(f"s_add_u32 m0, {m0[0]}, {m0[1]}") if m0 else []
        return o + L(f"buffer_load_dwordx4 {vreg}, {srd(s)}, {soff} offen offset:{off} {flags} lds")

    def item_loads(self, kind, i):
        A = self.typ == "A"
        V = self.V
        base = self.blk[(kind, i)] * 8192
        wf = self.opt.get("wflags", ""); xf = self.opt.get("xflags", ""); vf = self.opt.get("vflags", "")
        so = lambda c: L(f"s_mov_b32 {sKw}, {i*c[0] + c[1]}")
        def two(sr, nm, c, b):
            return [(so(c) if c is not None else []) + self.dma(sr, V(nm), sKw, (sL2, b), 0, wf), self.dma(sr, V(nm + "1"), sKw, None, 1024, wf)]
        kq, kw = 64 * 3072, 64 * 3584
        if kind == "X":
            g = [self.dma(SX, V(f"X{jj}"), sKw, None if jj else (sL4, base), jj * 1024, xf) for jj in range(4)]
            g[0] = so((128, 0)) + g[0]
        elif kind == "W":
            g = two(S1, "W1", None, base) + two(S2, "W2", None, base + 8192)
            g[0] = L(f"s_mul_i32 {sKw}, {sStr}, {i}") + g[0]
        elif kind == "G":
            g = two(SG, "Wg", (kw, 2560 if A else 1536), base) + two(SU, "Wu", None, base + 8192)
        elif kind == "H":
            g = two(SQ, "Wq", (kq, 0), base) if A else [so((kw, 1024)) + self.dma(SG, V("Hg"), sKw, (sL1, base), 0, wf), self.dma(SU, V("Hu"), sKw, (sL1, base + 4096), 0, wf)]
        else:
            ks, j, mul = self.step(i)
            sr, k = (SD, ks) if ks < 112 else (SO, ks - 112)
            g = [self.dma(sr, V(f"V{mul}"), sKw, (sL2, base), 0, vf), self.dma(sr, V(f"V{mul}1"), sKw, None, 1024, vf)]
            if mul == 8:
                g[0] = L(f"s_lshl4_add_u32 {sKw}, {sTab[j]}, {k*16384}") + g[0]
            else:
                g[0] = L(f"s_and_b32 {sKw}, {sTab[j]}, 0xc00\ns_lshl4_add_u32 {sKw}, {sKw}, {k*16384}") + g[0]
        g[-1][-1].tag = f"{kind}{i}"
        return g

    def v_loads(self, n): return self.item_loads("V", n)

    def plan(self):
        opt = self.opt
        lead1, lead2 = opt.get("lead1", 2), opt.get("lead2", 2)
        must = []
        for s in range(8): must += [("X", s, 2, 4, s, s + 1, lead1), ("W", s, 2, 4, s, s + 1, lead1)]
        for t in range(8):
            must.append(("G", t, 2, 4, 8 + t, 9 + t, lead2 if t < 5 else opt.get("lead3", 2)))
            if t < 4: must += [("H", 2 * t + i, 1, 2, 8 + t, 9 + t, lead2) for i in range(2)]
        b2 = opt.get("b2a", 10) if self.typ == "A" else opt.get("b2", 10)
        budget = {i: opt.get("b1", 8) if i < 8 else b2 for i in range(17)}
        budget[-1], budget[16] = 0, 99
        for i in (12, 13, 14, 15): budget[i] = opt.get("b3", 8)
        for k, v in self.budget_cut.items(): budget[k] -= v
        free_at = [-1] * 19
        self.blk, self.when = {}, {i: [] for i in range(-1, 17)}
        self.parks = {i: [] for i in range(-1, 17)}
        prate = opt.get("parka", 3) if self.typ == "A" else opt.get("parkb", 2)
        nv, npk, issued = 0, 0, {}
        for iv in range(-1, 16):
            left = budget[iv]
            def take(kind, i, nb, fr):
                fb = [b for b in range(19) if free_at[b] <= iv]
                if nb == 2: c = [b for b in fb if b % 2 == 0 and b + 1 in fb]
                elif kind == "V": c = sorted(fb, key=lambda b: (b != 18 and (b ^ 1) in fb, -b))
                else: c = sorted(fb, key=lambda b: (b != 18 and (b ^ 1) in fb, b))
                if not c: return False
                for x in range(nb): free_at[c[0] + x] = fr
                self.blk[(kind, i)] = c[0]
                self.when[iv].append((kind, i))
                return True
            while must and must[0][4] - must[0][6] <= iv:
                kind, i, nb, cost_, need, fr, _ = must[0]
                if not take(kind, i, nb, fr):
                    assert need - 1 > iv, (kind, i, iv)
                    break
                must.pop(0); left -= cost_
            while iv >= opt.get("park0", 99) and len(self.parks[iv]) < prate and npk < 17 and npk < nv and issued[npk] <= iv - opt.get("parklag", 2) and npk <= 4 * (iv - 8) - 2:
                self.parks[iv].append(npk)
                free_at[self.blk[("V", npk)]] = iv + 1
                npk += 1
            live = lambda j: sum(4 if st < 12 else 2 for st in range(max(j, 0), min(16, j + lead2 + 1)))
            owed = max(live(j) for j in range(iv, 17)) + (1 if iv < 10 else 0)
            while left >= 2 and nv < 36 and nv - (npk - len(self.parks[iv])) < 19 - owed and iv >= opt.get("v0", 6):
                if not take("V", nv, 1, 99): break
                issued[nv] = iv
                nv += 1; left -= 2
        assert not must
        fb = [b for b in range(19) if free_at[b] <= 16]
        self.post = []
        while nv < 36:
            if not fb:
                self.post.append(("park", npk)); fb.append(self.blk[("V", npk)]); npk += 1
            self.blk[("V", nv)] = fb.pop(0)
            self.post.append(("load", nv)); nv += 1
        self.npark = npk
        assert npk <= 20

    @staticmethod
    def step(n):
        if n < 8: return 0, n, 8
        if n < 16: return 80, n - 8, 8
        if n < 24: return 48, n - 16, 8
        if n < 28: return 32, n - 24, 4
        return 112, n - 28, 8

    def areg(self, n, sr): return 160 + (n % 12) * 8 + sr * 4

    def a_loads(self, n):
        ks, j, mul = self.step(n)
        g = [L(f"buffer_load_dwordx4 {ar(self.areg(n, sr))}, {self.V(f'A{mul}{sr}')}, {srd(SW)}, {sAo} offen sc1") for sr in range(2)]
        if mul == 8:
            g[0] = L(f"s_add_u32 {sAo}, {sTab[j]}, {ks*1024}") + g[0]
        else:
            g[0] = L(f"s_and_b32 {sAo}, {sTab[j]}, 0xc00\ns_add_u32 {sAo}, {sAo}, {ks*1024}") + g[0]
        return g

    def parked(self, n): return n < self.npark

    def vfrag(self, n, sn):
        if self.parked(n): return "a", n * 8 + sn * 4
        return "v", (64 if n % 2 == 0 else 80) + sn * 4

    def v_reads(self, n):
        base = self.blk[("V", n)] * 8192
        o = []
        for sn in range(2):
            k, b = self.vfrag(n, sn)
            for i in range(2):
                a, imm = self.lds(f"VR{sn}", base + i * 1024)
                o.append(L(f"ds_read_b64_tr_b16 {k}[{b+2*i}:{b+2*i+1}], {a} offset:{imm}"))
        o[-1][-1].tag = f"RV{n}"
        return o

    def poll_issue(self, reg, addr, off, wide=False):
        if wide:
            return L(f"buffer_load_dwordx2 {vr(reg, 2)}, {addr}, {srd(SW)}, 0 offen offset:{off} sc1")
        return L(f"buffer_load_dword v{reg}, {addr}, {srd(SW)}, 0 offen offset:{off} sc1")

    def poll_check(self, reg, addr, off, wide=False):
        ok, again = self.lab("ok"), self.lab("again")
        tr = reg + 1 if wide else reg
        ld = self.poll_issue(reg, addr, off, wide)[0].text
        return self.check(f"v_cmp_ne_u32 vcc, {sTag}, v{tr}", [ld], ok, again)

    def check(self, test, loads, ok, again):
        raw = lambda t: "\n".join("@raw " + x for x in t.split("\n"))
        self.ool += L(f"""
        {again}:
        @raw s_sleep 2
        {raw(chr(10).join(loads))}
        @raw s_add_u32 {sSpin}, {sSpin}, 1
        @raw s_waitcnt vmcnt(0)
        {raw(test)}
        @raw s_cmp_lt_u32 {sSpin}, 0x40000
        @raw s_cbranch_scc0 {ok}
        @raw s_cbranch_vccnz {again}
        @raw s_branch {ok}
        """)
        return L(f"{test}\ns_cbranch_vccnz {again}\n{ok}:")

    def flag_store(self, soff, off, tags):
        return L(f"""
        @vm {' '.join(tags)}
        s_mov_b64 exec, 1
        buffer_store_dword {self.V('tag')}, off, {srd(SW)}, {soff} offset:{off} sc1
        s_mov_b64 exec, -1
        """)

    def gate_loads(self):
        x0, x1, gw = self.v("gx0", 4, True), self.v("gx1", 4, True), self.v("ggw", 4, True)
        return [L(f"""
        s_lshl_b32 {sOff}, {sGrow}, 10
        buffer_load_dwordx4 {vr(x0)}, {self.V('l16')}, {srd(SX)}, {sOff} offen
        buffer_load_dwordx4 {vr(x1)}, {self.V('l16')}, {srd(SX)}, {sOff} offen offset:1024
        buffer_load_dwordx4 {vr(gw)}, {self.V('l16')}, {srd(SGW)}, 0 offen
        """)]

    def gate_compute(self):
        x = [self.v("gx0", 4, True), self.v("gx1", 4, True)]; gw = self.v("ggw", 4, True)
        t = [self.V(f"t{i}") for i in range(8)]
        s = [self.v("gs", 2, True), self.v("gs") + 1]
        one = self.V("gone", True)
        o = L(f"v_mov_b32 {one}, 0x3f803f80\nv_mov_b32 v{s[0]}, 0\nv_mov_b32 v{s[1]}, 0")
        for d in range(4):
            o += L(f"v_lshlrev_b32 {t[0]}, 16, v{gw+d}\nv_and_b32 {t[1]}, 0xffff0000, v{gw+d}")
            for r in range(2):
                o += L(f"""
                v_lshlrev_b32 {t[2+2*r]}, 16, v{x[r]+d}
                v_and_b32 {t[3+2*r]}, 0xffff0000, v{x[r]+d}
                v_mul_f32 {t[2+2*r]}, {t[2+2*r]}, {t[0]}
                v_mul_f32 {t[3+2*r]}, {t[3+2*r]}, {t[1]}
                v_cvt_pk_bf16_f32 {t[2+2*r]}, {t[2+2*r]}, {t[3+2*r]}
                v_lshlrev_b32 {t[6]}, 16, {t[2+2*r]}
                v_and_b32 {t[7]}, 0xffff0000, {t[2+2*r]}
                v_add_f32 v{s[r]}, v{s[r]}, {t[6]}
                v_add_f32 v{s[r]}, v{s[r]}, {t[7]}
                """)
        dpp = "row_mask:0xf bank_mask:0xf"
        o += L(f"""
        v_permlane32_swap_b32 v{s[0]}, v{s[1]}
        v_add_f32 v{s[0]}, v{s[0]}, v{s[1]}
        v_add_f32_dpp v{s[0]}, v{s[0]}, v{s[0]} quad_perm:[1,0,3,2] {dpp}
        v_add_f32_dpp v{s[0]}, v{s[0]}, v{s[0]} quad_perm:[2,3,0,1] {dpp}
        v_add_f32_dpp v{s[0]}, v{s[0]}, v{s[0]} row_half_mirror {dpp}
        v_add_f32_dpp v{s[0]}, v{s[0]}, v{s[0]} row_mirror {dpp}
        v_mov_b32 v{s[1]}, v{s[0]}
        v_permlane16_swap_b32 v{s[0]}, v{s[1]}
        v_add_f32 v{s[0]}, v{s[0]}, v{s[1]}
        v_cvt_pk_bf16_f32 v{s[0]}, v{s[0]}, v{s[0]}
        v_and_b32 v{s[0]}, 0xffff0000, v{s[0]}
        v_mul_f32 v{s[0]}, {f32(-LOG2E)}, v{s[0]}
        v_exp_f32 v{s[0]}, v{s[0]}
        v_add_f32 v{s[0]}, 1.0, v{s[0]}
        v_rcp_f32 v{s[0]}, v{s[0]}
        v_cvt_pk_bf16_f32 v{s[0]}, v{s[0]}, v{s[0]}
        v_and_b32 v{s[0]}, 0xffff0000, v{s[0]}
        v_mov_b32 v{s[1]}, {sTag}
        v_lshlrev_b32 {t[0]}, 3, {self.V('hi')}
        s_lshl_b32 {sOff}, {sGrow}, 3
        s_add_u32 {sOff}, {sOff}, {WS_G}
        """)
        groups = [[i] for i in o]
        groups.append(L(f"""
        s_mov_b32 exec_lo, 1
        s_mov_b32 exec_hi, 1
        buffer_store_dwordx2 {vr(s[0], 2)}, {t[0]}, {srd(SW)}, {sOff} offen sc1
        s_mov_b64 exec, -1
        """))
        groups = groups[:-4] + [sum(groups[-4:], [])]
        return groups

    def gate_fetch(self):
        g0, g1 = self.v("g0", 2), self.v("g1", 2)
        return [self.poll_issue(g0, self.V("G"), 0, True), self.poll_issue(g1, self.V("G"), 256, True)]

    def gate_check(self):
        o = []
        for i, nm in enumerate(("g0", "g1")):
            g = self.v(nm)
            o.append(self.poll_check(g, self.V("G"), 256 * i, True))
            o += [[x] for x in L(f"""
            v_sub_f32 v{g+1}, 1.0, v{g}
            v_cvt_pk_bf16_f32 v{g+1}, v{g+1}, v{g+1}
            v_and_b32 v{g+1}, 0xffff0000, v{g+1}
            v_max_f32 v{g+1}, {f32(1e-30)}, v{g+1}
            v_rcp_f32 v{g+1}, v{g+1}
            """)]
        return o

    def gelu_tile(self, t, rg, soff, off, tag=None):
        a = ACC(t, rg)
        io = f"v{self.v('g%d' % rg) + 1}"
        T = [self.V(f"t{i}") for i in range(8)]
        o = []
        for h in range(2):
            js = range(4 * h, 4 * h + 4)
            for stage in (
                lambda j, x: f"v_mul_f32 {x}, v{a+j}, v{a+j}",
                lambda j, x: f"v_fmaak_f32 {x}, {x}, v{self.v('KK', 2) + 1}, {f32(K0)}",
                lambda j, x: f"v_mul_f32 {x}, {x}, v{a+j}",
                lambda j, x: f"v_exp_f32 {x}, {x}",
                lambda j, x: f"v_mul_f32 v{a+8+j}, v{a+8+j}, v{a+j}",
                lambda j, x: f"v_fma_f32 {x}, {x}, {io}, {io}",
                lambda j, x: f"v_rcp_f32 {x}, {x}",
                lambda j, x: f"v_mul_f32 v{a+8+j}, v{a+8+j}, {x}",
            ):
                o += [L(stage(j, T[j & 3])) for j in js]
            o += [L(f"v_cvt_pk_bf16_f32 v{a+d}, v{a+8+2*d}, v{a+9+2*d}") for d in (2 * h, 2 * h + 1)]
        o.append(L(f"buffer_store_dwordx4 {vr(a)}, {self.V('HS%d' % rg)}, {srd(SW)}, {soff} offen offset:{off} sc1", tag))
        return o

    def gelu_tile_pk(self, t, rg, soff, off, tag=None):
        a = ACC(t, rg)
        g = self.v("g%d" % rg)
        T = self.v("t0")
        kk = self.v("KK", 2)
        p = lambda r: f"v[{r}:{r+1}]"
        o = []
        for st in range(9):
            for q in range(4):
                x, gg, uu = T + 2 * q, a + 2 * q, a + 8 + 2 * q
                if st == 0: o.append(L(f"v_pk_mul_f32 {p(x)}, {p(gg)}, {p(gg)}"))
                if st == 1: o.append(L(f"v_pk_fma_f32 {p(x)}, {p(x)}, {p(kk)}, {p(kk)} op_sel:[0,1,0] op_sel_hi:[1,1,0]"))
                if st == 2: o.append(L(f"v_pk_mul_f32 {p(x)}, {p(x)}, {p(gg)}"))
                if st == 3: o += [L(f"v_exp_f32 v{x}, v{x}"), L(f"v_exp_f32 v{x+1}, v{x+1}")]
                if st == 4: o.append(L(f"v_pk_mul_f32 {p(uu)}, {p(uu)}, {p(gg)}"))
                if st == 5: o.append(L(f"v_pk_fma_f32 {p(x)}, {p(x)}, {p(g)}, {p(g)} op_sel:[0,1,1] op_sel_hi:[1,1,1]"))
                if st == 6: o += [L(f"v_rcp_f32 v{x}, v{x}"), L(f"v_rcp_f32 v{x+1}, v{x+1}")]
                if st == 7: o.append(L(f"v_pk_mul_f32 {p(uu)}, {p(uu)}, {p(x)}"))
                if st == 8: o.append(L(f"v_cvt_pk_bf16_f32 v{a+q}, v{uu}, v{uu+1}"))
        o.append(L(f"buffer_store_dwordx4 {vr(a)}, {self.V('HS%d' % rg)}, {srd(SW)}, {soff} offen offset:{off} sc1", tag))
        return o

    def phi_pack(self, src, dst):
        T = [self.V(f"t{i}") for i in range(8)]
        o = []
        for q in range(4):
            js = range(4 * q, 4 * q + 4)
            for stage in (
                lambda j, x: f"v_mul_f32 {x}, {f32(LOG2E)}, v{src+j}",
                lambda j, x: f"v_exp_f32_e64 {x}, {x} clamp",
                lambda j, x: f"v_max_f32 v{src+j}, {f32(1e-6)}, v{src+j}",
                lambda j, x: f"v_add_f32 {x}, {x}, v{src+j}",
            ):
                o += [L(stage(j, T[j & 3])) for j in js]
            o += [L(f"v_cvt_pk_bf16_f32 v{dst+2*q+d}, {T[2*d]}, {T[2*d+1]}") for d in range(2)]
        return o

    def plain_pack(self, src, dst):
        return [L(f"v_cvt_pk_bf16_f32 v{dst+d}, v{src+2*d}, v{src+2*d+1}") for d in range(8)]

    def build(self):
        A = self.typ == "A"
        opt = self.opt
        V = self.V
        self.prologue()
        self.kvi = opt.get("kvi", 14)
        self.budget_cut = {}
        self.touch2 = lambda k: touch2(self, k)
        self.plan()
        T = [self.v(f"t{i}") for i in range(8)]

        def trs(pat, off, dst, istep):
            r = []
            for i in range(2):
                a, imm = self.lds(pat, off + i * istep)
                r.append(L(f"ds_read_b64_tr_b16 v[{dst+2*i}:{dst+2*i+1}], {a} offset:{imm}"))
            return r

        def mfma(t, rg, wfr, n, swap):
            acc, xfr = vr(ACC(t, rg), 16), ar((n * 2 + rg) * 4)
            a, b = (xfr, wfr) if swap else (wfr, xfr)
            return L(f"v_mfma_f32_32x32x16_bf16 {acc}, {a}, {b}, {acc if n else 0}")

        units = []
        for m in range(16):
            s, half = m >> 1, m & 1
            xb, wbase = self.blk[("X", s)] * 8192, self.blk[("W", s)] * 8192
            wb = 64 if m % 2 == 0 else 80
            rd, mf = [], []
            for kk in range(2):
                k4 = half * 2 + kk
                n = s * 4 + k4
                xr = []
                for rg in range(2):
                    a, imm = self.lds(f"XR{k4}", xb + rg * 4096, True)
                    xr.append(L(f"ds_read_b128 {ar((n*2+rg)*4)}, {a} offset:{imm}"))
                w = [trs("Pl", wbase + t * 8192 + k4 * 2048, wb + kk * 8 + t * 4, 512) if A else
                     trs(f"M{t}", wbase + k4 * 2048, wb + kk * 8 + t * 4, 512) for t in range(2)]
                rd += [xr[0]] + w[0] + [xr[1]] + w[1]
                mf += [mfma(t, rg, vr(wb + kk * 8 + t * 4), n, A) for t in range(2) for rg in range(2)]
            units.append(([f"W{s}"] if half == 0 else None, rd, mf))
        for m in range(24):
            wb = 64 if m % 2 == 0 else 80
            rd, mf = [], []
            def pair(n, dst):
                gb = self.blk[("G", n >> 2)] * 8192 + (n & 3) * 2048
                return trs("M0", gb, dst, 512) + trs("M1", gb, dst + 4, 512), [mfma(t, rg, vr(dst + 4 * i), n, False) for i, t in enumerate((3, 4)) for rg in range(2)]
            def third(n, dst):
                hb = self.blk[("H", n >> 2)] * 8192
                r = trs("Pl", hb + (n & 3) * 2048, dst, 512) if A else trs("Hf", hb + (n & 3) * 1024, dst, 256)
                return r, [mfma(2, rg, vr(dst), n, False) for rg in range(2)]
            if m < 16:
                parts = [third(2 * m, wb), pair(m, wb + 4), third(2 * m + 1, wb + 12)]
                sy = [f"H{2*(m >> 2) + 1}"] if m % 4 == 0 else None
            else:
                n = 16 + 2 * (m - 16)
                parts = [pair(n, wb), pair(n + 1, wb + 8)]
                sy = [f"G{n >> 2}"] if m % 2 == 0 else None
            for r, f in parts: rd += r; mf += f
            units.append((sy, rd, mf))

        gaps, heads, ustart, syncgap = [], [], [], [0]
        for u, (sy, rd, mf) in enumerate(units):
            ustart.append(len(gaps))
            for i, m in enumerate(mf):
                heads.append((L("@lgkm0") if i == 0 and not opt.get("exact", 0) else []) + m)
                gaps.append(Gap())
            g0 = ustart[u]
            if u + 1 < len(units):
                nsy, nrd, _ = units[u + 1]
                if nsy:
                    gaps[g0].pre += L(f"@sync {' '.join(nsy)}\ns_barrier")
                    syncgap.append(g0)
                span = len(mf) - opt.get("rsp", 2)
                for i, r in enumerate(nrd):
                    gaps[g0 + min(span - 1, (i * span) // len(nrd))].ds += r
            else:
                gaps[g0].pre += L("@sync\ns_barrier")
                syncgap.append(g0)
        ustart.append(len(gaps))
        U = lambda n: ustart[16 + n]
        one = lambda ins: [[x] for x in ins]

        def loads_of(iv): return sum((self.item_loads(k, i) for k, i in self.when[iv]), [])
        pro = loads_of(-1)
        pro[8:8] = self.gate_loads()
        self.pro_loads = pro
        pa, pb = self.v("pa"), self.v("pb")
        extra = {iv: [] for iv in range(17)}
        extra[6] += self.gate_fetch()
        for iv in range(16):
            ld = extra[iv] + loads_of(iv)
            if ld: place_mem(gaps, ld, syncgap[iv] + 1, syncgap[iv + 1])
            if self.parks[iv]:
                rd = []
                for n in self.parks[iv]:
                    r = self.v_reads(n)
                    r[0] = L(f"@vm V{n}") + r[0]
                    rd += r
                lo, hi = syncgap[iv] + 1, syncgap[iv + 1]
                cand = sorted(sorted(range(lo, hi), key=lambda g: gaps[g].used())[:len(rd)])
                assert len(cand) == len(rd)
                for g, r in zip(cand, rd): gaps[g].ds += r
            t2 = opt.get("t2", 1)
            if 0 <= t2 <= iv < t2 + opt.get("t2n", 4):
                if opt.get("ool", 0):
                    body2 = touch2(self, iv - t2, True, 0)
                    go, back = self.lab("t2go"), body2[-1].text[:-1]
                    gaps[syncgap[iv + 1] - 1].va += body2[:1] + L(f"s_cmp_eq_u32 {sT0}, {iv - t2}\ns_cbranch_scc1 {go}") + body2[-1:]
                    self.ool += L(f"{go}:") + body2[3:-1] + L(f"s_branch {back}")
                else:
                    gaps[syncgap[iv + 1] - 1].va += touch2(self, iv - t2, True, 1 if opt.get("t3", -1) >= 0 else 0)
            if iv == opt.get("t3", -1): gaps[syncgap[iv + 1] - 1].va += touch2(self, 0, False, 2)
            if iv == opt.get("t4", -1): gaps[syncgap[iv + 1] - 1].va += touch4(self)

        place_valu(gaps, self.gate_compute(), ustart[opt.get("gate0", 1)], ustart[opt.get("gate1", 5)])
        place_valu(gaps, self.gate_check(), ustart[14] + 1, ustart[16] - 1)

        cap = opt.get("cap", 12) / 2
        G0, G3 = U(0), U(16)
        if not A:
            ep = []
            for t in range(2):
                for rg in range(2): ep += self.gelu_tile(t, rg, sE, t * 1024, tag="Est")
            last, c = place_valu(gaps, ep, G0 + 1, G3, cap)
            gaps[last + opt.get("e_lag", 36)].va += self.flag_store(sFP, 0, ["Est"]) + self.stamp("Efl")
            self.note = f"E epilogue ends in gap {last - G0} cap {c}"
            ep = self.gelu_tile(2, 0, sEh, 0, tag="Lst") + self.gelu_tile(2, 1, sEh, 0, tag="Lst")
            last, c = place_valu(gaps, ep, G3 + 2, U(24) - 1, cap)
            self.note += f"; third tile ends in gap {last - G0} cap {c}"
        else:
            ones, za = self.v("ones", 4), self.V("za")
            ep = [L(f"v_mov_b32 v{ones+i}, 0x3f803f80") for i in range(4)]
            ep += self.phi_pack(ACC(0, 0), 96) + self.plain_pack(ACC(1, 0), 128)
            ep += self.phi_pack(ACC(0, 1), 104) + self.plain_pack(ACC(1, 1), 136)
            last, c = place_valu(gaps, ep, G0 + 1, G3, opt.get("kvcap", 14) / 2)
            for f in range(4):
                gaps[last + 1 + f].va += L(f"v_mfma_f32_32x32x16_bf16 v[112:127], {vr(96+4*f)}, {vr(128+4*f)}, {'v[112:127]' if f else 0}")
                gaps[last + 1 + f].va += L(f"v_mfma_f32_32x32x16_bf16 v[144:159], {vr(ones)}, {vr(96+4*f)}, {'v[144:159]' if f else 0}")
            ep = [L(f"v_cndmask_b32 v{112+i}, v{112+i}, v{120+i}, {sMH}") for i in range(8)]
            ep += [L(f"v_cndmask_b32 v{120+i}, v{112+i}, v{116+i}, {sMR}") for i in range(4)]
            ep += [L(f"v_cndmask_b32 v{124+i}, v{116+i}, v{112+i}, {sMR}") for i in range(4)]
            ep += one(L(f"v_lshrrev_b32 {za}, 2, {V('XW')}\nv_add_u32 {za}, {LDS_MISC + 4096 - LDS_MISC//4}, {za}"))
            ep += [L(f"ds_write_b128 {V('XW')}, v[124:127]"), L(f"ds_write_b32 {za}, v144"), L(f"v_xor_b32 {za}, 0x200, {za}"), L(f"v_xor_b32 v{T[4]}, 0x800, {V('XW')}")]
            last, c = place_valu(gaps, ep, last + 7, G3, cap)
            sg = min(x for x in ustart if x > last)
            if sg not in syncgap: gaps[sg].pre += L("@lgkm0\ns_barrier")
            gaps[sg + 1].ds += L(f"ds_read_b128 v[124:127], v{T[4]}\nds_read_b32 v145, {za}")
            ep = [L(f"v_add_f32 v{120+i}, v{120+i}, v{124+i}") for i in range(4)]
            ep.append(L(f"v_add_f32 v144, v144, v145"))
            ep.append(L(f"buffer_store_dwordx4 v[120:123], {V('KG')}, {srd(SW)}, {sKPP} offen sc1"))
            last, c = place_valu(gaps, ep, sg + 5, G3, cap)
            z = L(f"""
            s_mov_b32 exec_hi, 0
            buffer_store_dword v144, {V('ZG')}, {srd(SW)}, {sZPP} offen sc1
            s_mov_b32 exec_hi, -1
            """)
            z[1].tag = "KVst"
            gaps[last + 1].va += z
            fl = last + opt.get("kv_lag", 28)
            gaps[fl].va += self.flag_store(sKFP, 0, ["KVst"]) + self.stamp("KVfl")
            chk = syncgap[self.kvi]
            assert fl < chk - opt.get("kv_pl", 24)
            gaps[chk - opt.get("kv_pl", 24)].vm += self.poll_issue(pa, V("KF"), 0)
            gaps[chk].va += self.stamp("KVq") + self.poll_check(pa, V("KF"), 0) + self.stamp("KVok")
            self.note = f"kv flag in gap {fl - G0}, check in gap {chk - G0}"
            ad = one(L(f"""
            v_mbcnt_lo_u32_b32 v110, -1, 0
            v_mbcnt_hi_u32_b32 v110, -1, v110
            v_lshrrev_b32 v108, 2, v110
            v_and_b32 v109, 3, v110
            v_lshlrev_b32 v109, 4, v109
            v_lshl_add_u32 v109, v108, 10, v109
            v_lshlrev_b32 v108, 7, v108
            v_lshlrev_b32 v110, 4, v110
            """))
            place_valu(gaps, ad, fl + 1, G3, cap)
            gaps[chk + 1].vm += L(f"buffer_load_dwordx4 v[96:99], v109, {srd(SW)}, {sKB} offen sc1")
            gaps[chk + 2].vm += L(f"buffer_load_dword v100, v108, {srd(SW)}, {sZB} offen sc1")
            dpp = "row_mask:0xf bank_mask:0xf"
            red = [L(f"v_add_f32_dpp v{r}, v{r}, v{r} row_ror:{n} {dpp}") for n in (4, 8) for r in range(96, 101)]
            for sw in ("v_permlane16_swap_b32", "v_permlane32_swap_b32"):
                red += [L(f"v_mov_b32 v{r+6}, v{r}") for r in range(96, 101)]
                red += [L(f"{sw} v{r}, v{r+6}") for r in range(96, 101)]
                red += [L(f"v_add_f32 v{r}, v{r}, v{r+6}") for r in range(96, 101)]
            red += one(L(f"""
            v_cvt_pk_bf16_f32 v96, v96, v97
            v_cvt_pk_bf16_f32 v97, v98, v99
            v_mov_b32 v98, v100
            v_mov_b32 v99, {sTag}
            """))
            pub = L(f"""
            s_lshl4_add_u32 {sOff}, {sRH}, {sR}
            s_lshl_b32 {sOff}, {sOff}, 6
            s_add_u32 {sOff}, {sOff}, {sTB}
            s_mov_b64 exec, 15
            buffer_store_dwordx4 v[96:99], v109, {srd(SW)}, {sOff} offen sc1
            s_mov_b64 exec, -1
            """) + self.stamp("KVt")
            r0 = chk + opt.get("kv_rl", 26)
            self.kv_first = []
            if opt.get("kvin", 1):
                last, c = place_valu(gaps, red, r0, U(24) - 2, cap)
                gaps[last + 1].va += pub
                self.note += f"; totals leave in gap {last + 1 - G0} cap {c}"
            else:
                self.kv_first = red + [pub]
            last, c = place_valu(gaps, self.phi_pack(ACC(2, 0), 160) + self.phi_pack(ACC(2, 1), 168), G3 + 2, U(24) - 1, cap)
            self.note += f"; third tile ends in gap {last - G0} cap {c}"
        gaps[U(24) - opt.get("epoll", 14)].vm += self.poll_issue(pb, V("F"), 0)

        body = self.stamp("start")
        ph1 = self.stamp("issued") + L(f"@sync W0\ns_barrier") + self.stamp("sync0")
        for r in units[0][1]: ph1 += r
        for u in range(len(units)):
            for g in range(ustart[u], ustart[u + 1]):
                ph1 += heads[g]
                if g == ustart[u] and u and ((u < 16 and u % (4 if opt.get("fewp1") else 2) == 0) or (u >= 16 and u % 4 == 0)): ph1 += self.stamp(f"s{u//2}" if u < 16 else f"p{(u-16)//4}")
                ph1 += gaps[g].emit()
        ph1 += self.stamp("p1end")

        gt = self.gelu_tile_pk if opt.get("pk", 1) else self.gelu_tile
        main = []
        tiles = []
        for t in range(2):
            for rg in range(2):
                tiles.append(gt(3 + t, rg, sL, t * 1024, tag="Lst"))
                tiles[-1][-1] += self.stamp(f"L{t}{rg}")
        if not A:
            main = sum(tiles, [])
            nL = len(main)
        else:
            kr = opt.get("kvr", 4)
            ld = [f"buffer_load_dwordx4 v[{100+4*h}:{103+4*h}], v110, {srd(SW)}, {sTB} offen offset:{1024*h} sc1" for h in range(2)]
            ok, again = self.lab("ok"), self.lab("again")
            test = f"v_xor_b32 v111, {sTag}, v103\nv_xor_b32 v112, {sTag}, v107\nv_or_b32 v111, v111, v112\nv_cmp_ne_u32 vcc, 0, v111"
            raw = lambda t: "\n".join("@raw " + x for x in t.split("\n"))
            main = self.kv_first + sum(tiles[:kr], []) + [L(ld[0]), L(ld[1])] + sum(tiles[kr:], [])
            nL = len(main)
            self.need_side = 0
            self.burst_at = len(main)
            main.append([])
            main.append(self.stamp("Tq") + self.check(test, ld, ok, again) + self.stamp("Tok"))
            main += one(L(f"""
            v_cvt_pk_bf16_f32 v102, v102, v106
            ds_write_b32 {V('ZW')}, v102
            @lgkm0
            ds_read_b128 v[108:111], {V('ZR')}
            """))
            for i, kvr in enumerate((100, 101, 104, 105)):
                main += [L(f"v_cndmask_b32 v{176+i}, v{kvr}, v{108+i}, {sMH}"), L(f"v_cndmask_b32 v{180+i}, v{108+i}, v{kvr}, {sMH}")]
            for rg in range(2):
                for hh in range(2):
                    main.append(L(f"v_mfma_f32_32x32x16_bf16 {vr(192 + (rg*2+hh)*16, 16)}, {vr(176+4*hh)}, {vr(160 + rg*8 + hh*4)}, 0"))
            dens = []
            for rg in range(2):
                for hh in range(2):
                    b = 192 + (rg * 2 + hh) * 16
                    dens.append((rg, hh, b, b + 8) if hh == 0 else (rg, hh, b + 8, b))
            main += [L(f"v_add_f32 v{d}, {f32(1e-6)}, v{d}") for _, _, _, d in dens]
            main += [L(f"v_rcp_f32 v{d}, v{d}") for _, _, _, d in dens]
            main += [L(f"v_mul_f32 v{d}, v{d}, v{self.v('g%d' % rg)}") for rg, _, _, d in dens]
            osts = []
            for rg, hh, num, den in dens:
                main += [L(f"v_pk_mul_f32 v[{num+j}:{num+j+1}], v[{num+j}:{num+j+1}], v[{den}:{den+1}] op_sel_hi:[1,0]") for j in range(0, 8, 2)]
                d = 160 + (rg * 2 + hh) * 4
                main += [L(f"v_cvt_pk_bf16_f32 v{d+j}, v{num+2*j}, v{num+2*j+1}") for j in range(4)]
                osts.append(L(f"buffer_store_dwordx4 {vr(d)}, {V('HS%d' % rg)}, {srd(SW)}, {sO} offen offset:{hh*1024} sc1", "Ost"))
                if not opt.get("batch", 0): main.append(osts.pop())
            main += osts
            lf = opt.get("lfa", 3)
            lastL = max(j for j, g in enumerate(main) if any(x.tag == "Lst" for x in g))
            main.insert(min(len(main), lastL + 1 + lf), self.flag_store(sFP, 256, ["Lst"]) + self.stamp("Lfl"))
        slots = [list(g) for g in main]
        side = list(extra[16])
        side.append(self.stamp("Eq") + self.poll_check(pb, V("F"), 0) + self.stamp("Eok"))
        for n in range(8): side += self.a_loads(n)
        post = list(self.post)
        seq = []
        for j, (k, n) in enumerate(post):
            if k == "park":
                pos = len(seq) - 1 if seq and seq[-1][0] == "load" and j > 0 else len(seq)
                seq.insert(max(pos, 0), (k, n))
            else:
                seq.append((k, n))
        for k, n in seq:
            if k == "park": side.append(L(f"@vm V{n}") + sum(self.v_reads(n), []))
            else:
                src = [m for m in range(n) if self.blk[("V", m)] == self.blk[("V", n)] and ("park", m) in post]
                if src: side.append(L(f"@rd V{src[-1]}"))
                side += self.v_loads(n)
        every2 = (opt.get("midea2", 30) if A else opt.get("mide2", 60)) / 4.0
        every = (opt.get("midea", 60) if A else opt.get("mide", 45)) / 4.0
        acc, k = opt.get("mid0", 0) / 4.0, 0
        for j, (sl, g) in enumerate(zip(slots, main)):
            if j == nL: every = every2
            if A and j == self.burst_at:
                nb = opt.get("burst", 10)
                while nb > 0 and k < len(side):
                    sl += side[k]
                    if any(x.kind == "vmem" for x in side[k]): nb -= 1
                    k += 1
            if A and j == self.need_side - 1:
                while k < len(extra[16]): sl += side[k]; k += 1
            acc += sum(2 if x.kind == "valu" and x.op.startswith(TRANS) else 1 for x in g)
            if any(x.kind == "vmem" for x in g): acc -= every
            while k < len(side) and acc >= every:
                sl += side[k]
                if any(x.kind == "vmem" for x in side[k]): acc -= every
                k += 1
        rest = side[k:]
        self.note += f"; mid takes {k} of {len(side)} side groups"
        mid = sum(slots, []) + self.stamp("mid")
        nA = max([j + 1 for j, g in enumerate(rest) if any("a[" in x.text and x.kind == "vmem" for x in g)], default=0)
        mid += sum(rest[:nA], [])
        rest = rest[nA:]
        nP = max([j + 1 for j, g in enumerate(rest) if any(x.kind == "ds" and x.tag and int(x.tag[2:]) < 8 for x in g)], default=0)
        pre0 = rest[:nP]
        if not A and opt.get("lflag_at", -20) < 0:
            pre0.insert(min(len(pre0), -opt.get("lflag_at", -20)), self.flag_store(sFP, 128, ["Lst"]) + self.stamp("fl"))
        mid += sum(pre0, [])
        rest = rest[nP:]
        if not self.parked(0):
            mid += L("@vm V0")
            for r in self.v_reads(0): mid += r

        DA = opt.get("da", 4)
        ph2 = []
        for n in range(36):
            mf = []
            for sr in range(2):
                for sn in range(2):
                    k, b = self.vfrag(n, sn)
                    acc = vr(96 + (sr * 2 + sn) * 16, 16)
                    mf.append(L(f"v_mfma_f32_32x32x16_bf16 {acc}, {k}[{b}:{b+3}], {ar(self.areg(n, sr))}, {acc if n else 0}"))
            g = [[] for _ in range(4)]
            if n + 1 < 36 and not self.parked(n + 1):
                g[0] += L(f"@vm V{n+1}")
                rd = self.v_reads(n + 1)
                g[0] += rd[0] + rd[1]; g[1] += rd[2] + rd[3]
            vl = []
            ru = opt.get("restu", 12)
            if n < ru:
                take = -(-len(rest) // (ru - n))
                due = max([j + 1 for j, gg in enumerate(rest) if any(x.kind == "ds" and x.tag and int(x.tag[2:]) <= n + 2 for x in gg)], default=0)
                take = max(take, due)
                split = take < len(rest) and take and len(rest[take]) == 1 and rest[take][0].kind == "vmem" and rest[take][0].lds
                vl = rest[:take]
                rest = rest[take:]
            for i, x in enumerate(vl): g[min(3, 1 + i * 3 // len(vl))] += x
            if n == (opt.get("oflag_at", 6) if A else opt.get("lflag_at", -20)):
                g[3] += (self.flag_store(sFP, 384, ["Ost"]) if A else self.flag_store(sFP, 128, ["Lst"])) + self.stamp("fl")
            m = n + (DA if n >= 8 else 0)
            for first, off in ((8, 256), (16, 128), (28, 384)):
                at = max(first - DA, 7)
                if n == at - (opt.get("pl8", 4) if first == 8 else opt.get("pl", 3)): g[2] += self.poll_issue(pa, V("F"), off)
                if n == at: g[2] += self.stamp(f"q{first}") + self.poll_check(pa, V("F"), off) + self.stamp(f"k{first}")
            if n == 7:
                for mm in range(8, 8 + DA): g[3] += sum(self.a_loads(mm), [])
            if n >= 8 and n + DA < 36: g[3] += sum(self.a_loads(n + DA), [])
            if not opt.get("exact2", 0): ph2 += L("@lgkm0")
            for i in range(4):
                ph2 += mf[i]
                if i == 0 and n % 4 == 0: ph2 += self.stamp(f"u{n}")
                ph2 += g[i]
        assert not rest
        ph2 += self.stamp("ph2end")

        fin = []
        T = [self.v(f"t{i}") for i in range(8)]
        of = opt.get("oflags", "sc1")
        if opt.get("full", 1):
            AD = 160
            rws = L(f"""
            v_mbcnt_lo_u32_b32 v{T[0]}, -1, 0
            v_mbcnt_hi_u32_b32 v{T[0]}, -1, v{T[0]}
            v_and_b32 v{T[1]}, 7, v{T[0]}
            v_lshrrev_b32 v{T[2]}, 5, v{T[0]}
            v_xor_b32 v{T[2]}, v{T[2]}, v{T[1]}
            v_lshlrev_b32 v{T[2]}, 4, v{T[2]}
            v_lshl_add_u32 v{T[2]}, v{T[1]}, 8, v{T[2]}
            v_bfe_u32 v{T[3]}, v{T[0]}, 3, 2
            v_lshl_add_u32 v{T[2]}, v{T[3]}, 13, v{T[2]}
            s_lshl_b32 {sT0}, {sRH}, 15
            s_lshl_b32 {sT1}, {sJ}, 7
            s_add_u32 {sT0}, {sT0}, {sT1}
            s_add_u32 {sT0}, {sT0}, {sL2}
            v_add_u32 v{AD}, {sT0}, v{T[2]}
            """)
            for sg in range(4):
                for q in range(4):
                    if sg or q: rws += L(f"v_xor_b32 v{AD + sg*4 + q}, {q*32 + (sg & 1)*128 + (sg >> 1)*32768}, v{AD}")
            rws += L(f"""
            v_lshrrev_b32 v{T[3]}, 3, v{T[0]}
            v_lshlrev_b32 v{T[4]}, 1, v{T[1]}
            v_xor_b32 v{T[4]}, v{T[4]}, v{T[3]}
            v_lshlrev_b32 v{T[4]}, 4, v{T[4]}
            v_lshl_add_u32 v{T[4]}, v{T[3]}, 8, v{T[4]}
            s_lshl_b32 {sT0}, {sW}, 14
            v_add_u32 v{T[4]}, {sT0}, v{T[4]}
            v_xor_b32 v{T[5]}, 16, v{T[4]}
            v_lshlrev_b32 v{T[1]}, 4, v{T[1]}
            v_lshl_add_u32 v{T[1]}, v{T[3]}, 10, v{T[1]}
            s_lshl2_add_u32 {sT0}, {sR2}, {sW}
            s_lshl_b32 {sT0}, {sT0}, 14
            s_lshl_b32 {sT1}, {sC2}, 7
            s_add_u32 {sT0}, {sT0}, {sT1}
            v_add_u32 v{T[1]}, {sT0}, v{T[1]}
            s_movk_i32 {sT2}, 0x2000
            """)
            k8 = next(i for i, x in enumerate(ph2) if x.kind == "mfma" and "a[160:163]" in x.text and i > 200)
            ph2[k8:k8] = rws
            for sg in range(4):
                for q in range(4):
                    fin += L(f"ds_write_b128 v{AD + sg*4 + q}, {vr(96 + sg*16 + q*4)}")
            fin += L("@lgkm0\ns_barrier") + self.stamp("redbar")
            for h in range(2):
                for sw in range(4):
                    for e in range(2):
                        fin += L(f"ds_read_b128 {vr(96 + h*32 + sw*8 + e*4)}, v{T[4+e]} offset:{h*8192 + sw*2048}")
            for h in range(2):
                b0 = 96 + h * 32
                for i in range(0, 8, 2):
                    fin += L(f"v_pk_add_f32 v[{b0+i}:{b0+i+1}], v[{b0+i}:{b0+i+1}], v[{b0+8+i}:{b0+9+i}]")
                for i in range(0, 8, 2):
                    fin += L(f"v_pk_add_f32 v[{b0+16+i}:{b0+17+i}], v[{b0+16+i}:{b0+17+i}], v[{b0+24+i}:{b0+25+i}]")
                for i in range(0, 8, 2):
                    fin += L(f"v_pk_add_f32 v[{b0+i}:{b0+i+1}], v[{b0+i}:{b0+i+1}], v[{b0+16+i}:{b0+17+i}]")
                d = 176 + h * 4
                for i in range(4): fin += L(f"v_cvt_pk_bf16_f32 v{d+i}, v{b0+2*i}, v{b0+2*i+1}")
                fin += L(f"buffer_store_dwordx4 {vr(d)}, v{T[1]}, {srd(SOUT)}, {sT2 if h else 0} offen {of}")
        else:
            RW = f"v{T[0]}"
            rws = L(f"v_mbcnt_lo_u32_b32 {RW}, -1, 0\nv_mbcnt_hi_u32_b32 {RW}, -1, {RW}\nv_lshl_add_u32 {RW}, {RW}, 4, {sL2}")
            for sg in range(1, 4): rws += L(f"v_xor_b32 v{T[sg]}, {sg*2048}, {RW}")
            mid += rws
            for sg in range(1, 4):
                for q in range(4):
                    fin += L(f"ds_write_b128 {RW}, {vr(96 + sg*16 + q*4)} offset:{((sg-1)*2 + (q >> 1))*8192 + (q & 1)*1024}")
            fin += L("@lgkm0\ns_barrier") + self.stamp("redbar")
            for q in range(4):
                for sg in range(1, 4):
                    fin += L(f"ds_read_b128 {vr(96 + sg*16 + q*4)}, v{T[sg]} offset:{((sg-1)*2 + (q >> 1))*8192 + (q & 1)*1024}")
            of = opt.get("oflags", "sc1")
            for pr in range(2):
                for q in (2 * pr, 2 * pr + 1):
                    for h in range(2):
                        r = 96 + q * 4 + 2 * h
                        fin += L(f"""
                        v_pk_add_f32 v[{r}:{r+1}], v[{r}:{r+1}], v[{r+16}:{r+17}]
                        v_pk_add_f32 v[{r+32}:{r+33}], v[{r+32}:{r+33}], v[{r+48}:{r+49}]
                        v_pk_add_f32 v[{r}:{r+1}], v[{r}:{r+1}], v[{r+32}:{r+33}]
                        """)
                d = 160 + pr * 4
                for i in range(4):
                    r = 96 + pr * 8 + 2 * i
                    fin += L(f"v_cvt_pk_bf16_f32 v{d+i}, v{r}, v{r+1}")
                fin += L(f"""
                v_permlane32_swap_b32 v{d}, v{d+2}
                v_permlane32_swap_b32 v{d+1}, v{d+3}
                buffer_store_dwordx4 {vr(d)}, {V('OUT')}, {srd(SOUT)}, 0 offen offset:{pr*32} {of}
                """)
        skip = self.lab("noep")
        fin += L(f"""
        s_or_b32 {sT0}, s2, {sW}
        s_cmp_eq_u32 {sT0}, 0
        s_cbranch_scc1 {skip}_go
        {skip}:
        """)
        self.ool += L(f"""
        {skip}_go:
        s_mov_b64 exec, 1
        @raw buffer_store_dword {V('tag')}, off, {srd(SW)}, 0 offset:{WS_EPOCH} sc1
        s_branch {skip}
        """)
        if opt.get("padto"):
            lp = self.lab("pad")
            if "xstamp" in opt:
                fin += L("@lgkm0\ns_mov_b32 s3, s4")
            fin += L(f"""
            {lp}:
            @raw s_memrealtime s[82:83]
            @raw s_waitcnt lgkmcnt(0)
            @raw s_sub_u32 s82, s82, s3
            @raw s_cmp_lt_u32 s82, {opt['padto']}
            @raw s_cbranch_scc1 {lp}
            """)
        if opt.get("stamps"):
            st = V("stamps")
            fin += L("s_mov_b64 exec, -1") + self.stamp("stored") + L("@vm0") + self.stamp("end") + self.stamp("FLUSH")
            fin += L(f"""
            s_memrealtime s[4:5]
            v_writelane_b32 {st}, s6, 60
            v_writelane_b32 {st}, {sSpin}, 61
            v_writelane_b32 {st}, s3, 62
            v_writelane_b32 {st}, s4, 63
            s_lshl_b32 {sT0}, s2, 2
            s_add_u32 {sT0}, {sT0}, {sW}
            s_lshl_b32 {sT0}, {sT0}, 8
            s_add_u32 {sT0}, {sT0}, {WS_STAMP}
            v_mbcnt_lo_u32_b32 v96, -1, 0
            v_mbcnt_hi_u32_b32 v96, -1, v96
            v_lshlrev_b32 v96, 2, v96
            buffer_store_dword {st}, v96, {srd(SW)}, {sT0} offen
            """)
        fin += L("s_endpgm")

        fin += L(f"L_stop{self.typ}:") + self.ool + L(f"L_end{self.typ}:")
        loads = self.pro_loads
        t1 = []
        hs = opt.get("hstamp")
        common = common_head(opt) + (L("s_memtime s[94:95]") if hs else []) + self.first + (L("s_memtime s[96:97]") if hs else []) + L("@lgkm0") + (L("s_memtime s[98:99]") if hs else [])
        if opt.get("stamps") or opt.get("padto"): common += L("s_mov_b32 s3, s4")
        p1 = opt.get("t1pos", 0)
        nc = opt.get("nc", 8)
        tlb = []
        if opt.get("tlb"):
            tlb = L(f"""
            s_mov_b64 exec, 1
            buffer_load_dword v244, {V('HS0')}, {srd(SW)}, 0 offen sc1
            buffer_load_dword v243, {V('A80')}, {srd(SW)}, 0 offen sc1
            """) + (L(f"buffer_load_dword v242, {V('OUT')}, {srd(SOUT)}, 0 offen sc1") if opt["tlb"] == 2 else []) + L("s_mov_b64 exec, -1")
        warm = []
        wat = opt.get("wat", -1)
        if opt.get("isl", 2):
            X = self.typ
            warm = L(f"""
            s_mov_b64 exec, 0
            s_cmp_eq_u32 {sW}, 0
            s_cbranch_scc1 L_isl{X}1
            s_cmp_eq_u32 {sW}, 1
            s_cbranch_scc1 L_isl{X}2
            s_cmp_eq_u32 {sW}, 2
            s_cbranch_scc1 L_isl{X}3
            s_branch L_isl{X}4
            L_ret{X}:
            s_mov_b64 exec, -1
            """)
        common += sum(loads[:p1], []) + t1 + sum(loads[p1:nc], [])
        common += L("s_bitcmp1_b32 s2, 6\ns_cbranch_scc1 L_pathB")
        if hs: body = L("@lgkm0") + sum((L(f"v_writelane_b32 {V('stamps')}, s{r}, {i}") for i, r in ((56, 100), (57, 94), (58, 96), (59, 98))), []) + body
        head = body + L(f"buffer_load_dword {V('tag')}, off, {srd(SW)}, 0 offset:{WS_EPOCH} sc1") + self.second + self.setup + (warm if wat < 0 else []) + sum(loads[nc:], []) + tlb
        if opt.get("t2", 1) == -3: head += touch2(self, 0, False)
        tagf = L(f"v_add_u32 {V('tag')}, 0x9e3779b9, {V('tag')}\nv_readfirstlane_b32 {sTag}, {V('tag')}")
        k1 = next(i for i, x in enumerate(ph1) if x.kind == "mfma")
        ph1[k1 + 1:k1 + 1] = tagf
        if wat >= 0:
            k2 = [i for i, x in enumerate(ph1) if x.text.startswith("@sync")][wat]
            ph1[k2:k2] = warm
        if opt.get("nosc1"):
            for x in ph1 + mid:
                if x.kind == "vmem" and "store_dwordx4" in x.op: x.text = x.text.replace(" sc1", "")
        if opt.get("nost") == 2:
            for x in ph1 + mid:
                if x.kind == "vmem" and "store_dwordx4" in x.op: x.text = re.sub(r"(s\[\d+:\d+\]), \S+ offen", r"\1, s35 offen", x.text.replace("s[32:35]", "s[40:43]")).replace(" sc1", "")
        if opt.get("novalu"):
            mid = [x for x in mid if not (x.kind == "valu" and x.op.startswith(("v_pk", "v_exp", "v_rcp", "v_mul", "v_max", "v_add_f32", "v_cvt")))]
        if opt.get("novalu") == 2:
            keep = lambda x: not (x.kind == "valu" and x.op.startswith(("v_pk", "v_exp", "v_rcp", "v_mul", "v_max", "v_add_f32", "v_cvt", "v_fma")))
            k0 = next(i for i, x in enumerate(ph1) if "H1" in x.text)
            ph1 = ph1[:k0 + 200] + [x for x in ph1[k0 + 200:] if keep(x)]
        if opt.get("nost") == 1:
            for x in ph1 + mid:
                if x.kind == "vmem" and "store_dwordx4" in x.op: x.text = x.text.replace("_dwordx4", "_dword").replace(" sc1", ""); x.text = re.sub(r"v\[(\d+):\d+\]", r"v\1", x.text, 1)
        if opt.get("nomfma"): ph1 = [x for x in ph1 if x.kind != "mfma"]; ph2 = [x for x in ph2 if x.kind != "mfma"]
        if opt.get("nods"): ph1 = [x for x in ph1 if not x.op.startswith("ds_read")]; ph2 = [x for x in ph2 if not x.op.startswith("ds_read")]
        if opt.get("nobar"): ph1 = [x for x in ph1 if x.op != "s_barrier"]
        if opt.get("nodma"): ph1 = [x for x in ph1 if not (x.kind == "vmem" and x.lds and not x.tag)]
        return self.expand_stamps(common + head + ph1 + mid + ph2 + fin)


def touch(sr, mask, code, dst, raw=False):
    p = "@raw " if raw else ""
    return L(f"{code}\ns_mov_b64 exec, {mask}\n{p}buffer_load_dword v{dst}, v246, {srd(sr)}, {sOff} offen")


def rowhalf(stride, nbytes, c0):
    return (f"s_lshr_b32 {sOff}, {sGW}, 1\ns_mul_i32 {sOff}, {sOff}, {stride}\ns_and_b32 {sT0}, {sGW}, 1\n"
            f"s_mul_i32 {sT0}, {sT0}, {nbytes}\ns_add_u32 {sOff}, {sOff}, {sT0}" + (f"\ns_add_u32 {sOff}, {sOff}, {c0}" if c0 else ""))


def touch2(g, k, cond=True, part=0):
    skip = g.lab("t2") if cond else None
    n = g.opt.get("t2n", 4) if cond else 1
    o = L(f"s_and_b32 {sT0}, {sSel}, {n-1}\ns_cmp_lg_u32 {sT0}, {k}\ns_cbranch_scc1 {skip}") if cond else []
    p = "@raw " if cond else ""
    if g.opt.get("xt", 1):
        t = [0, 0, 0, 0, 239, 240, 241, 242]
        assert g.hi_next <= 239
        x8 = g.opt.get("map2", "8x4").startswith("8x4")
        o += L(f"""
        v_lshrrev_b32 v{t[4]}, 7, v246
        s_and_b32 {sT0}, {sGW}, 127
        s_bfe_u32 {sT1}, s2, 0x10000
        s_lshl_b32 {sT2}, {sT1}, 7
        s_add_u32 {sT2}, {sT2}, {sT0}
        s_lshl_b32 {sT2}, {sT2}, 1
        s_bfe_u32 {sOff}, s2, 0x20001
        """)
        if part in (0, 1):
            o += L(f"""
            v_bfe_u32 v{t[5]}, v{t[4]}, 1, 1
            v_add_u32 v{t[5]}, {sT2}, v{t[5]}
            v_and_b32 v{t[6]}, 1, v{t[4]}
            v_lshl_add_u32 v{t[6]}, {sOff}, 1, v{t[6]}
            v_lshlrev_b32 v{t[6]}, 7, v{t[6]}
            v_mul_u32_u24 v{t[7]}, 3072, v{t[5]}
            v_add_u32 v{t[7]}, v{t[7]}, v{t[6]}
            s_mov_b64 exec, 15
            {p}buffer_load_dword v248, v{t[7]}, {srd(SQ)}, 0 offen
            s_mov_b64 exec, -1
            v_lshrrev_b32 v{t[7]}, 2, v{t[4]}
            v_lshl_add_u32 v{t[6]}, v{t[7]}, 10, v{t[6]}
            v_add_u32 v{t[6]}, 1536, v{t[6]}
            v_lshlrev_b32 v{t[7]}, 7, {sOff}
            v_add_u32 v{t[7]}, 1024, v{t[7]}
            v_cmp_gt_u32 vcc, 8, v{t[4]}
            v_cndmask_b32 v{t[6]}, v{t[7]}, v{t[6]}, vcc
            v_mul_u32_u24 v{t[5]}, 3584, v{t[5]}
            v_add_u32 v{t[6]}, v{t[6]}, v{t[5]}
            s_mov_b64 exec, 0x5ff
            {p}buffer_load_dword v250, v{t[6]}, {srd(SG)}, 0 offen
            {p}buffer_load_dword v249, v{t[6]}, {srd(SU)}, 0 offen
            s_mov_b64 exec, -1
            """)
        if part in (0, 2) and x8:
            o += L(f"""
            v_lshrrev_b32 v{t[5]}, 2, v{t[4]}
            v_and_b32 v{t[6]}, 3, v{t[4]}
            v_lshlrev_b32 v{t[6]}, 7, v{t[6]}
            v_lshl_add_u32 v{t[6]}, v{t[5]}, 10, v{t[6]}
            s_lshl_b32 {sT1}, {sT1}, 9
            s_lshl_b32 {sT2}, {sOff}, 7
            s_add_u32 {sT2}, {sT2}, {sT0}
            s_lshl_b32 {sOff}, {sT2}, 10
            s_add_u32 {sOff}, {sOff}, {sT1}
            s_mov_b64 exec, 15
            {p}buffer_load_dword v247, v{t[6]}, {srd(SO)}, {sOff} offen
            s_lshl_b32 {sOff}, {sT2}, 12
            s_add_u32 {sOff}, {sOff}, {sT1}
            s_mov_b64 exec, 0xffff
            {p}buffer_load_dword v245, v{t[6]}, {srd(SD)}, {sOff} offen
            """)
        elif part in (0, 2):
            o += touch(SO, "15", f"s_lshl_b32 {sOff}, {sGW}, 9", 247, cond)
            o += touch(SD, "0x3fff", f"s_mul_i32 {sOff}, {sGW}, 1792", 245, cond)
        part = 9
    if part in (0, 1):
        o += touch(SG, "0x3ff", rowhalf(3584, 1280, 1024), 250, cond) + L(p + f"buffer_load_dword v249, v246, {srd(SU)}, {sOff} offen")
        o += touch(SQ, "15", rowhalf(3072, 512, 0), 248, cond)
    if part == 0:
        o += touch(SO, "15", f"s_lshl_b32 {sOff}, {sGW}, 9", 247, cond)
        o += touch(SD, "0x3fff", f"s_mul_i32 {sOff}, {sGW}, 1792", 245, cond)
    if part == 2:
        a, d = g.v("t5"), g.v("t6")
        o += L(f"v_mbcnt_lo_u32_b32 v{a}, -1, 0\nv_mbcnt_hi_u32_b32 v{a}, -1, v{a}\nv_lshlrev_b32 v{a}, 7, v{a}")
        o += L(f"s_lshl_b32 {sOff}, {sGW}, 9\ns_mov_b64 exec, 15\nbuffer_load_dword v{d}, v{a}, {srd(SO)}, {sOff} offen")
        o += L(f"s_mul_i32 {sOff}, {sGW}, 1792\ns_mov_b64 exec, 0x3fff\nbuffer_load_dword v{d+1}, v{a}, {srd(SD)}, {sOff} offen")
    o += L("s_mov_b64 exec, -1")
    if cond: o += L(f"{skip}:")
    return o


def touch4(g):
    a, b, d = g.v("t5"), g.v("t4"), g.v("t6")
    return L(f"""
    v_mbcnt_lo_u32_b32 v{a}, -1, 0
    v_mbcnt_hi_u32_b32 v{a}, -1, v{a}
    v_and_b32 v{b}, 3, v{a}
    v_lshrrev_b32 v{a}, 2, v{a}
    v_lshlrev_b32 v{b}, 7, v{b}
    v_lshl_add_u32 v{a}, v{a}, 10, v{b}
    s_and_b32 {sT0}, {sGW}, 127
    s_bfe_u32 {sT1}, s2, 0x10000
    s_lshl_b32 {sT1}, {sT1}, 9
    s_mul_i32 {sOff}, {sT0}, {14*1024}
    s_add_u32 {sOff}, {sOff}, {sT1}
    s_mov_b32 exec_hi, 0xffffff
    buffer_load_dword v{d}, v{a}, {srd(SD)}, {sOff} offen
    s_lshl_b32 {sOff}, {sT0}, 12
    s_add_u32 {sOff}, {sOff}, {sT1}
    s_mov_b64 exec, 0xffff
    buffer_load_dword v{d+1}, v{a}, {srd(SO)}, {sOff} offen
    s_mov_b64 exec, -1
    """)


def codepf(opt):
    o = L(f"""
    s_getpc_b64 s[82:83]
    L_pc:
    s_bitcmp1_b32 s2, 6
    s_cselect_b32 {sT2}, L_pathB-L_pathA, 0
    s_add_u32 {sT2}, {sT2}, L_pathA-L_pc
    """)
    m = opt.get("codepf", 3)
    if m == 1:
        o += L(f"""
        s_bfe_u32 {sT0}, s2, 0x30003
        s_lshr_b32 {sT1}, s2, 7
        s_lshl3_add_u32 {sT0}, {sT1}, {sT0}
        s_mul_i32 {sT0}, {sT0}, 1536
        s_add_u32 {sT2}, {sT2}, {sT0}
        v_min_u32 v1, 11, v0
        v_lshl_add_u32 v1, v1, 7, {sT2}
        v_min_u32 v1, L_endB-L_pc-4, v1
        global_load_dword v255, v1, s[82:83]
        """)
    elif m == 2:
        o += L(f"""
        v_lshl_add_u32 v1, v0, 7, {sT2}
        v_min_u32 v1, L_endB-L_pc-4, v1
        global_load_dword v255, v1, s[82:83]
        """)
    elif m == 3:
        o += L(f"""
        s_bfe_u32 {sT0}, s2, 0x30003
        s_lshr_b32 {sT1}, s2, 7
        s_lshl3_add_u32 {sT0}, {sT1}, {sT0}
        s_mul_i32 {sT0}, {sT0}, 1536
        s_add_u32 {sT0}, {sT2}, {sT0}
        v_and_b32 v1, 63, v0
        v_lshlrev_b32 v1, 7, v1
        s_mov_b64 exec, 0x1ff
        global_load_dword v244, v1, s[82:83]
        v_add_u32 v2, {sT2}, v1
        global_load_dword v243, v2, s[82:83]
        s_mov_b64 exec, -1
        v_min_u32 v1, 11, v0
        v_lshl_add_u32 v1, v1, 7, {sT0}
        v_min_u32 v1, L_endB-L_pc-4, v1
        global_load_dword v255, v1, s[82:83]
        """)
    return o


T1 = """
        v_lshrrev_b32 v2, 6, v0
        v_lshl_add_u32 v2, s2, 2, v2
        v_and_b32 v1, 63, v0
        v_lshlrev_b32 v1, 7, v1
        v_lshl_add_u32 v3, v2, 11, v1
        v_lshrrev_b32 v4, 1, v2
        v_and_b32 v2, 1, v2
        v_mad_u32_u24 v5, v4, 3, v2
        v_mad_u32_u24 v4, v4, 7, v2
        v_lshl_add_u32 v5, v5, 10, v1
        v_lshl_add_u32 v4, v4, 9, v1
        s_mov_b64 exec, 0xffff
        @lgkm0
        global_load_dword v254, v3, s[44:45]
        s_mov_b64 exec, 0xff
        global_load_dword v253, v5, s[46:47] offset:1024
        s_mov_b64 exec, 15
        global_load_dword v252, v4, s[48:49]
        global_load_dword v251, v4, s[50:51]
"""
T1X = """
        v_lshrrev_b32 v2, 6, v0
        s_lshr_b32 s52, s2, 3
        s_and_b32 s53, s2, 1
        s_bfe_u32 s54, s2, 0x20001
        v_lshl_add_u32 v2, s52, 2, v2
        v_and_b32 v1, 63, v0
        s_lshl2_add_u32 s52, s53, s54
        s_lshl_b32 s52, s52, 18
        v_lshlrev_b32 v3, 11, v2
        v_lshl_add_u32 v3, v1, 7, v3
        v_add_u32 v3, s52, v3
        s_lshl_b32 s53, s53, 8
        v_lshl_add_u32 v2, v2, 1, s53
        v_bfe_u32 v4, v1, 1, 1
        v_add_u32 v2, v2, v4
        v_and_b32 v4, 1, v1
        v_lshl_add_u32 v4, s54, 1, v4
        v_lshlrev_b32 v4, 7, v4
        v_lshrrev_b32 v1, 2, v1
        v_lshl_add_u32 v5, v1, 10, v4
        s_movk_i32 s52, 0xc00
        s_movk_i32 s53, 0xe00
        v_mad_u32_u24 v5, v2, s52, v5
        v_mad_u32_u24 v4, v2, s53, v4
        s_mov_b64 exec, 0xffff
        @lgkm0
        global_load_dword v254, v3, s[44:45]
        s_mov_b64 exec, 0xff
        global_load_dword v253, v5, s[46:47] offset:1024
        s_mov_b64 exec, 15
        global_load_dword v252, v4, s[48:49]
        global_load_dword v251, v4, s[50:51]
"""
T1Z = """
        v_lshrrev_b32 v2, 6, v0
        s_lshr_b32 s52, s2, 3
        s_and_b32 s53, s2, 1
        s_bfe_u32 s54, s2, 0x20001
        v_lshl_add_u32 v2, s52, 2, v2
        v_and_b32 v1, 63, v0
        s_lshl2_add_u32 s52, s53, s54
        s_lshl_b32 s52, s52, 18
        v_lshlrev_b32 v3, 11, v2
        v_lshl_add_u32 v3, v1, 7, v3
        v_add_u32 v3, s52, v3
        s_lshl_b32 s53, s53, 8
        v_lshl_add_u32 v2, v2, 1, s53
        v_bfe_u32 v4, v1, 1, 1
        v_add_u32 v2, v2, v4
        v_and_b32 v4, 1, v1
        v_lshl_add_u32 v4, s54, 1, v4
        v_lshlrev_b32 v4, 7, v4
        v_lshrrev_b32 v1, 2, v1
        v_lshl_add_u32 v5, v1, 10, v4
        s_movk_i32 s52, 0xc00
        s_movk_i32 s53, 0xe00
        v_mad_u32_u24 v5, v2, s52, v5
        v_mad_u32_u24 v4, v2, s53, v4
        s_mov_b64 exec, 0xfefe
        @lgkm0
        global_load_dword v254, v3, s[44:45]
        s_mov_b64 exec, 0xff
        global_load_dword v253, v5, s[46:47] offset:1024
        s_mov_b64 exec, 15
        global_load_dword v252, v4, s[48:49]
        global_load_dword v251, v4, s[50:51]
"""
T1V = """
        v_lshrrev_b32 v2, 6, v0
        s_lshr_b32 s52, s2, 3
        s_and_b32 s53, s2, 1
        s_bfe_u32 s54, s2, 0x20001
        v_lshl_add_u32 v2, s52, 2, v2
        v_and_b32 v1, 63, v0
        s_lshl2_add_u32 s52, s53, s54
        s_lshl_b32 s52, s52, 18
        v_lshlrev_b32 v3, 11, v2
        v_lshl_add_u32 v3, v1, 7, v3
        v_add_u32 v3, s52, v3
        s_lshl_b32 s53, s53, 8
        v_lshl_add_u32 v2, v2, 1, s53
        v_bfe_u32 v4, v1, 1, 1
        v_add_u32 v2, v2, v4
        v_and_b32 v4, 1, v1
        v_lshl_add_u32 v4, s54, 1, v4
        v_lshlrev_b32 v4, 7, v4
        v_lshrrev_b32 v1, 2, v1
        v_lshl_add_u32 v5, v1, 10, v4
        s_movk_i32 s52, 0xc00
        s_movk_i32 s53, 0xe00
        v_mad_u32_u24 v5, v2, s52, v5
        v_mad_u32_u24 v4, v2, s53, v4
        s_mov_b64 exec, 0xfcfc
        @lgkm0
        global_load_dword v254, v3, s[44:45]
        s_mov_b64 exec, 0xff
        global_load_dword v253, v5, s[46:47] offset:1024
        s_mov_b64 exec, 15
        global_load_dword v252, v4, s[48:49]
        global_load_dword v251, v4, s[50:51]
"""
T1W = """
        v_lshrrev_b32 v2, 6, v0
        s_lshr_b32 s52, s2, 3
        s_and_b32 s53, s2, 1
        s_bfe_u32 s54, s2, 0x20001
        v_lshl_add_u32 v2, s52, 2, v2
        v_and_b32 v1, 63, v0
        s_lshl2_add_u32 s52, s53, s54
        s_lshl_b32 s52, s52, 18
        v_lshlrev_b32 v3, 11, v2
        v_lshl_add_u32 v3, v1, 7, v3
        v_add_u32 v3, s52, v3
        v_bfe_u32 v4, v1, 1, 2
        v_lshl_add_u32 v2, v2, 2, v4
        v_and_b32 v4, 1, v1
        v_lshl_add_u32 v4, s54, 1, v4
        v_lshlrev_b32 v4, 7, v4
        v_lshrrev_b32 v1, 3, v1
        v_lshl_add_u32 v5, v1, 10, v4
        s_movk_i32 s52, 0xc00
        s_movk_i32 s53, 0xe00
        v_mad_u32_u24 v5, v2, s52, v5
        v_mad_u32_u24 v4, v2, s53, v4
        s_mov_b64 exec, 0xffff
        @lgkm0
        global_load_dword v254, v3, s[44:45]
        global_load_dword v253, v5, s[46:47] offset:1024
        s_mov_b64 exec, 0xff
        global_load_dword v252, v4, s[48:49]
        global_load_dword v251, v4, s[50:51]
"""
T1Y = """
        v_lshrrev_b32 v2, 6, v0
        s_lshr_b32 s52, s2, 3
        s_and_b32 s53, s2, 1
        s_bfe_u32 s54, s2, 0x20001
        v_lshl_add_u32 v2, s52, 2, v2
        v_and_b32 v1, 63, v0
        s_and_b32 s52, s54, 1
        s_lshl1_add_u32 s52, s53, s52
        s_lshl_b32 s52, s52, 19
        v_lshlrev_b32 v3, 12, v2
        v_lshl_add_u32 v3, v1, 7, v3
        v_add_u32 v3, s52, v3
        s_lshl_b32 s53, s53, 8
        v_lshl_add_u32 v2, v2, 1, s53
        v_bfe_u32 v4, v1, 1, 1
        v_add_u32 v2, v2, v4
        v_and_b32 v4, 1, v1
        v_lshl_add_u32 v4, s54, 1, v4
        v_lshlrev_b32 v4, 7, v4
        v_lshrrev_b32 v1, 2, v1
        v_lshl_add_u32 v5, v1, 10, v4
        s_movk_i32 s52, 0xc00
        s_movk_i32 s53, 0xe00
        v_mad_u32_u24 v5, v2, s52, v5
        v_mad_u32_u24 v4, v2, s53, v4
        s_mov_b32 exec_hi, 0
        @lgkm0
        global_load_dword v254, v3, s[44:45]
        s_mov_b64 exec, 0xff
        global_load_dword v253, v5, s[46:47] offset:1024
        s_mov_b64 exec, 15
        global_load_dword v252, v4, s[48:49]
        global_load_dword v251, v4, s[50:51]
"""


def common_head(opt):
    o = L(f"""
    s_cmp_ge_u32 s2, 0x100
    s_cbranch_scc1 L_end
    """)
    if opt.get("stamps") or opt.get("padto"):
        o += L(("s_memrealtime" if opt.get("rt") else "s_memtime") + " s[6:7]\ns_memrealtime s[4:5]")
    if opt.get("t1", 2) == 2:
        o += L("""
        s_load_dwordx4 s[44:47], s[0:1], 0
        s_load_dwordx4 s[48:51], s[0:1], 32
        """)
    if opt.get("pftop", 1): o += codepf(opt)
    if opt.get("t1", 2) == 2:
        o += L(f"""
        {(T1, T1X, T1W, T1Y, T1Z, T1V)[opt.get("xt", 1)]}
        {"s_memtime s[100:101]" if opt.get("hstamp") else ""}
        s_mov_b64 exec, -1
        """)
    o += L(f"""
    s_bitcmp1_b32 s2, 6
    s_cselect_b32 {sT0}, 32, 8
    s_cselect_b32 {sT1}, 40, 8
    s_load_dwordx2 s[{S1}:{S1+1}], s[0:1], {sT0}
    s_load_dwordx2 s[{S2}:{S2+1}], s[0:1], {sT1}
    """)
    for b, slot in ((SX, 0), (SG, 4), (SU, 5), (SQ, 1), (SGW, 7), (SW, 10), (SD, 6), (SO, 2), (SOUT, 8)):
        o += L(f"s_load_dwordx2 s[{b}:{b+1}], s[0:1], {slot*8}")
    if not opt.get("pftop", 1): o += codepf(opt)
    for b, n in ((SX, 2048 * 1024), (SQ, 512 * 3072), (SG, 512 * 3584), (SU, 512 * 3584), (SD, 1792 * 1024),
                 (SO, 512 * 1024), (SW, WS_BYTES), (SOUT, 2048 * 1024), (SGW, 1024)):
        o += L(f"s_mov_b32 s{b+2}, {n}\ns_mov_b32 s{b+3}, 0x20000")
    return o


def assemble_sizes(txt):
    import subprocess, tempfile, os
    d = tempfile.mkdtemp()
    open(d + "/a.s", "w").write('.amdgcn_target "amdgcn-amd-amdhsa--gfx950"\n.text\nk:\n' + txt)
    subprocess.run(["clang", "-x", "assembler", "-target", "amdgcn-amd-amdhsa", "-mcpu=gfx950", "-c", d + "/a.s", "-o", d + "/a.o"], check=True)
    o = subprocess.run(["llvm-objdump", "-d", "--mcpu=gfx950", d + "/a.o"], capture_output=True, text=True).stdout
    sizes = [4 * len(re.match(r".*// [0-9A-F]+: ((?:[0-9A-F]{8} ?)+)", l).group(1).split()) for l in o.split("\n") if re.match(r".*// [0-9A-F]+: [0-9A-F]{8}", l)]
    return sizes


def generate(opt):
    parts = []
    info = []
    names = []
    for typ in "AB":
        g = Gen(typ, opt)
        ins, added = finalize(g.build())
        k = next(i for i, x in enumerate(ins) if x.text.startswith("s_cbranch_scc1 L_pathB"))
        parts.append((ins[:k + 1], ins[k + 1:]))
        info.append((typ, len(ins), added, g.nv, g.hi_next))
        if opt.get("plan"):
            print(typ, g.note)
            for k, v in g.when.items(): print("  ", k, " ".join(f"{a}{b}@{g.blk[(a, b)]}" for a, b in v), "park", g.parks[k])
            print("   post", g.post)
        names.append("; stamps " + typ + ": " + " ".join(g.stamp_names) + "\n" if g.stamp_names else "")
    assert text_of(parts[0][0]) == text_of(parts[1][0])
    isl = opt.get("isl", 2)
    al = ".p2align 12\n" if isl else ""
    txt = text_of(parts[0][0]) + ("    s_branch L_pathA\n" + al if isl == 1 else "") + "L_pathA:\n" + text_of(parts[0][1]) + al + "L_pathB:\n" + text_of(parts[1][1]) + "L_end:\n    s_endpgm\n"
    if opt.get("align", 1):
        stub = "".join(f"L_isl{x}{k}:\n" for x in "AB" for k in range(1, 5)) if isl else ""
        txt, nw, nn, cnt = align8(txt, lambda t: assemble_sizes(t.replace(al, "") + stub) if al else assemble_sizes(t),
                                  {"L_pathA": ("L_stopA", "A"), "L_pathB": ("L_stopB", "B")} if isl == 1 else {"L_pathB": ("L_stopB", "B")} if isl else None,
                                  (0x300, ("L_stopA", "A")) if isl == 2 else None)
        info.append(("align", nw, nn, cnt))
    ref = open("gated_mix__linear_attn_block__geglu_ffn__prompt.s.ref").read()
    hdr = "".join(l + "\n" for l in ref.split("\n") if l.startswith(";") and "@launch" not in l and "Override" not in l and "grid=ceil" not in l)
    out = f"""{hdr}{"".join(names)}; @launch grid=(256,1,1) block=(256,1,1) lds=163840
.amdgcn_target "amdgcn-amd-amdhsa--gfx950"
.text
.globl {KNAME}
.p2align 8
.type {KNAME},@function
{KNAME}:
{txt}.section .rodata,"a"
.p2align 6
.amdhsa_kernel {KNAME}
  .amdhsa_next_free_vgpr 512
  .amdhsa_next_free_sgpr 102
  .amdhsa_accum_offset 256
  .amdhsa_group_segment_fixed_size 0
  .amdhsa_kernarg_size 88
  .amdhsa_user_sgpr_count 2
  .amdhsa_user_sgpr_kernarg_segment_ptr 1
  .amdhsa_system_sgpr_workgroup_id_x 1
  .amdhsa_float_denorm_mode_32 3
.end_amdhsa_kernel
"""
    return out, info


def parse_opts(args):
    opt = {}
    for a in args:
        k, v = a.split("=", 1)
        try: v = int(v)
        except ValueError: v = v.replace("+", " ")
        opt[k] = v
    return opt


if __name__ == "__main__":
    out, info = generate(parse_opts(sys.argv[2:]))
    open(sys.argv[1], "w").write(out)
    print(info)
```

```python
import sys, struct, re
from prog import *

KNAME = "gated_mix__linear_attn_block__geglu_ffn__prompt_kernel"

WS_EPOCH = 0
WS_FL = 0x1000
WS_KF = 0x12000
WS_G = 0x14000
WS_ZP = 0x18000
WS_KP = 0x28000
WS_KT = 0xA8000
WS_H = 0x100000
WS_STAMP = 0x8000000
RG_BYTES = 144 * 1024
WS_BYTES = 268435456

def f32(x): return "0x%08x" % struct.unpack("<I", struct.pack("<f", x))[0]
LOG2E = 1.4426950408889634
K0 = -2.0 * 0.7978845608028654 * LOG2E
K1 = K0 * 0.044715

SX, SQ, SG, SU, SD, SO, SW, SOUT, SGW = 8, 12, 16, 20, 24, 28, 32, 36, 40
srd = lambda b: f"s[{b}:{b+3}]"
(sW, sRH, sJ, sR, sT, sTag, sR2, sC2, sT0, sT1, sT2, sRot, sKx, sKw, sKq, sL4, sL2, sL1, sCE, sCH, sCL,
 sE, sEh, sL, sO, sFP, sKFP, sKPP, sZPP, sA0, sA1, sSpin, sGrow, sOff) = [f"s{i}" for i in range(44, 78)]
sAo = sA0
sMH = "s[78:79]"
sMR = "s[80:81]"
sPC = "s[4:5]"
STAMP0 = 82
sGW = "s92"
sTab = [f"s{i}" for i in range(93, 101)]
sSel = "s101"
sKB, sZB, sTB, sStr = sRot, sKx, sKq, sCL
S1, S2 = 84, 88

ACC = lambda t, rg: 96 + (t * 2 + rg) * 16
vr = lambda b, n=4: f"v[{b}:{b+n-1}]"
ar = lambda b, n=4: f"a[{b}:{b+n-1}]"
LDS_MISC = 19 * 8192


def hoist_m0(groups):
    out = [list(g) for g in groups]
    for i in range(1, len(out)):
        if len(out[i]) == 2 and out[i][0].text.startswith("s_add_u32 m0") and out[i - 1][-1].kind == "vmem":
            out[i - 1].append(out[i].pop(0))
    return out


class Gen:
    def __init__(self, typ, opt):
        self.typ = typ
        self.opt = opt
        self.nv = 1
        self.names = {}
        self.setup = []
        self.hi_next = 192
        self.ool = []
        self.nstamp = 0
        self.nlab = 0

    def v(self, name, n=1, p1only=False):
        if name not in self.names:
            if p1only:
                if n > 1: self.hi_next = (self.hi_next + 1) // 2 * 2
                self.names[name] = self.hi_next; self.hi_next += n
                assert self.hi_next <= 256
            else:
                if n > 1: self.nv = (self.nv + 1) // 2 * 2
                self.names[name] = self.nv; self.nv += n
                assert self.nv <= 64, name
        return self.names[name]

    def V(self, name, p1only=False): return f"v{self.v(name, 1, p1only)}"

    def lab(self, s):
        self.nlab += 1
        return f"L_{self.typ}_{s}_{self.nlab}"

    def stamp(self, name):
        if "xstamp" in self.opt:
            return L("s_memrealtime s[4:5]") if name == self.opt["xstamp"] else []
        if not self.opt.get("stamps"): return []
        if self.opt.get("coarse") and name not in ("start", "sync0", "s4", "p0", "p4", "p1end", "mid", "u8", "u28", "ph2end", "end", "FLUSH"): return []
        return [I("@stamp " + name)]

    def expand_stamps(self, ins):
        out, n = [], 0
        self.stamp_names = []
        lines = mf = 0
        half = {f"v{self.names.get('Hg', -1)},", f"v{self.names.get('Hu', -1)},"}
        for x in ins:
            if x.kind == "vmem":
                lines += (16 if x.text.split()[1] in half else 8) if "x4" in x.op else 2
            if x.kind == "mfma": mf += 1
            if x.kind == "pseudo" and x.text.startswith("@stamp"):
                i = (STAMP0, 4)[n % 2]
                if n: out += L(f"v_writelane_b32 {self.V('stamps')}, s{(STAMP0, 4)[(n-1) % 2]}, {n-1}")
                nm = x.text.split()[1]
                if nm != "FLUSH":
                    out += L(f"{'s_memrealtime' if self.opt.get('rt') else 's_memtime'} s[{i}:{i+1}]")
                    self.stamp_names.append(f"{nm}:{lines}:{mf}")
                    n += 1
                    assert n <= 60, n
            else:
                out.append(x)
        return out

    def lds(self, pat, off, p1only=False):
        win, imm = off >> 16, off & 0xFFFF
        if win == 0:
            return self.V(pat, p1only), imm
        name = f"{pat}@{win}"
        if name not in self.names:
            self.setup += L(f"v_add_u32 {self.V(name, p1only)}, {win << 16}, {self.V(pat, p1only)}")
        return self.V(name), imm

    def prologue(self):
        A = self.typ == "A"
        V = self.V
        self.nv = 2
        t = [self.V(f"t{i}") for i in range(8)]
        l, l3, l7, l4, nh, wsw = [self.V(n, True) for n in ("lane", "l3", "l7", "l4", "nh", "wsw")]
        P = lambda n: self.V(n, True)
        self.first = L(f"""
        v_lshrrev_b32 {t[0]}, 6, v0
        v_and_b32 {l}, 63, v0
        s_and_b32 {sT0}, s2, 1
        v_readfirstlane_b32 {sW}, {t[0]}
        s_bfe_u32 {sT2}, s2, 0x30003
        s_lshl3_add_u32 {sR}, {sT0}, {sT2}
        s_bfe_u32 {sT1}, s2, 0x20001
        s_lshr_b32 {sOff}, s2, 7
        s_lshl1_add_u32 {sT}, {sT1}, {sOff}
        s_lshl2_add_u32 {sGW}, {sT0}, {sT1}
        s_lshl_b32 {sGW}, {sGW}, 5
        s_lshr_b32 {sOff}, s2, 3
        s_add_u32 {sGW}, {sGW}, {sOff}
        s_lshl2_add_u32 {sGW}, {sGW}, {sW}
        v_lshrrev_b32 {l3}, 3, {l}
        v_and_b32 {l7}, 7, {l}
        v_lshrrev_b32 {l4}, 4, {l}
        v_lshlrev_b32 v246, 7, {l}
        s_lshl2_add_u32 {sT0}, {sR}, {sW}
        s_lshl_b32 {sT0}, {sT0}, 15
        v_xor_b32 {t[0]}, {l7}, {l4}
        v_lshlrev_b32 {t[0]}, 4, {t[0]}
        v_lshl_add_u32 {t[0]}, {l3}, 10, {t[0]}
        v_add_u32 {P('X0')}, {sT0}, {t[0]}
        v_xor_b32 {t[1]}, 64, {P('X0')}
        v_add_u32 {P('X1')}, {8192-1024}, {t[1]}
        v_add_u32 {P('X2')}, {16384-2048}, {P('X0')}
        v_add_u32 {P('X3')}, {16384-2048}, {P('X1')}
        v_and_b32 {nh}, 1, {l4}
        v_lshlrev_b32 {t[0]}, 2, {nh}
        v_xor_b32 {t[0]}, {t[0]}, {l7}
        v_lshlrev_b32 {wsw}, 4, {t[0]}
        s_lshl_b32 {sCE}, {sT}, 7
        s_bitcmp1_b32 s2, 6
        s_cselect_b32 {sStr}, 7, 6
        s_cselect_b32 {sT1}, 0, 1024
        s_cselect_b32 {sT2}, 32, 0
        s_cselect_b32 {sGrow}, 8, 0
        s_lshl_b32 s{S1+2}, {sStr}, 18
        s_lshl_b32 {sStr}, {sStr}, 9
        s_mov_b32 s{S2+2}, s{S1+2}
        s_mov_b32 s{S1+3}, 0x20000
        s_mov_b32 s{S2+3}, 0x20000
        v_lshl_add_u32 {P('kr')}, {sW}, 4, {l3}
        v_add_u32 {P('wc')}, {sCE}, {wsw}
        v_mad_u32_u24 {t[0]}, {P('kr')}, {sStr}, {P('wc')}
        v_add_u32 {P('W1')}, {sT1}, {t[0]}
        v_add_u32 {t[1]}, {sT1}, {P('W1')}
        v_xor_b32 {P('W2')}, {sT2}, {t[1]}
        s_lshl3_add_u32 {sT1}, {sStr}, -1024
        v_add_u32 {P('W11')}, {sT1}, {P('W1')}
        v_add_u32 {P('W21')}, {sT1}, {P('W2')}
        s_lshl_b32 {sStr}, {sStr}, 6
        s_lshl_b32 {sL4}, {sW}, 12
        s_lshl_b32 {sL2}, {sW}, 11
        s_add_u32 {sGrow}, {sGrow}, {sT}
        s_lshl4_add_u32 {sGrow}, {sR}, {sGrow}
        s_lshl2_add_u32 {sGrow}, {sGrow}, {sW}
        s_lshl_b32 {sGrow}, {sGrow}, 1
        v_lshlrev_b32 {P('l16')}, 4, {l}
        """)
        hi, r4, c3, l31 = [P(n) for n in ("hi", "r4", "c3", "l31")]
        o = L(f"""
        s_and_b32 {sT0}, s2, 7
        s_lshr_b32 {sT1}, s2, 3
        s_and_b32 {sT2}, {sT1}, 7
        s_lshr_b32 {sRH}, {sW}, 1
        s_and_b32 {sJ}, {sW}, 1
        s_and_b32 {sSel}, {sT1}, 3
        s_lshl_b32 {sL1}, {sW}, 10
        v_lshrrev_b32 {hi}, 5, {l}
        v_bfe_u32 {r4}, {l}, 2, 2
        v_and_b32 {c3}, 3, {l}
        v_and_b32 {l31}, 31, {l}
        """)
        m2 = self.opt.get("map2", "8x4")
        if m2 == "8x4t":
            o += L(f"""
            s_lshr_b32 {sR2}, {sT0}, 1
            s_and_b32 {sOff}, {sT1}, 3
            s_lshl3_add_u32 {sR2}, {sR2}, {sOff}
            s_add_u32 {sR2}, {sR2}, {0 if A else 4}
            s_and_b32 {sC2}, {sT0}, 1
            s_lshr_b32 {sOff}, {sT1}, 4
            s_lshl1_add_u32 {sC2}, {sC2}, {sOff}
            s_bfe_u32 {sOff}, {sT1}, 0x10002
            s_lshl1_add_u32 {sC2}, {sC2}, {sOff}
            """)
        elif m2 == "4x8t":
            o += L(f"""
            s_and_b32 {sOff}, {sT1}, 1
            s_lshl2_add_u32 {sR2}, {sT0}, {sOff}
            s_add_u32 {sR2}, {sR2}, {0 if A else 2}
            s_lshr_b32 {sC2}, {sT1}, 4
            s_bfe_u32 {sOff}, {sT1}, 0x20001
            s_lshl2_add_u32 {sC2}, {sC2}, {sOff}
            """)
        elif m2 == "8x4":
            o += L(f"""
            s_lshr_b32 {sR2}, {sT0}, 1
            s_lshl3_add_u32 {sR2}, {sR2}, {sT2}
            s_and_b32 {sC2}, {sT0}, 1
            s_lshr_b32 {sOff}, {sT1}, 3
            s_lshl2_add_u32 {sC2}, {sC2}, {sOff}
            """)
        else:
            o += L(f"""
            s_and_b32 {sOff}, {sT1}, 3
            s_lshl2_add_u32 {sR2}, {sT0}, {sOff}
            s_lshr_b32 {sC2}, {sT1}, 2
            """)
        o += L(f"""
        v_mul_u32_u24 {t[1]}, 3584, {P('kr')}
        v_add_u32 {V('Wg')}, {t[1]}, {P('wc')}
        v_xor_b32 {V('Wu')}, 32, {V('Wg')}
        v_add_u32 {V('Wg1')}, {8*3584-1024}, {V('Wg')}
        v_add_u32 {V('Wu1')}, {8*3584-1024}, {V('Wu')}
        """)
        if A:
            o += L(f"""
            v_add_u32 {V('Wq')}, -1024, {P('W1')}
            v_add_u32 {V('Wq1')}, -1024, {P('W11')}
            """)
        else:
            o += L(f"""
            v_lshrrev_b32 {t[0]}, 2, {l}
            v_lshl_add_u32 {t[0]}, {sW}, 4, {t[0]}
            v_mul_u32_u24 {t[1]}, 3584, {t[0]}
            v_lshl_add_u32 {t[1]}, {c3}, 4, {t[1]}
            s_lshl_b32 {sCH}, {sT}, 6
            v_add_u32 {V('Hg')}, {sCH}, {t[1]}
            v_xor_b32 {V('Hu')}, 32, {V('Hg')}
            """)
        self.v("gx0", 4, True); self.v("gx1", 4, True); self.v("ggw", 4, True)
        o += L(f"""
        v_bfe_u32 {t[0]}, {l}, 1, 3
        v_xor_b32 {t[0]}, {t[0]}, {hi}
        v_lshlrev_b32 {t[0]}, 4, {t[0]}
        v_lshl_add_u32 {t[0]}, {l31}, 7, {t[0]}
        s_lshl_b32 {sT0}, {sRH}, 13
        v_add_u32 {V('XR0', True)}, {sT0}, {t[0]}
        v_xor_b32 {V('XR1', True)}, 32, {V('XR0')}
        v_xor_b32 {V('XR2', True)}, 64, {V('XR0')}
        v_xor_b32 {V('XR3', True)}, 0x60, {V('XR0')}
        v_and_b32 {t[0]}, 2, {r4}
        v_xor_b32 {t[0]}, {t[0]}, {nh}
        s_lshl_b32 {sT0}, {sJ}, 1
        v_xor_b32 {t[0]}, {sT0}, {t[0]}
        v_lshlrev_b32 {t[0]}, 5, {t[0]}
        v_lshl_add_u32 {t[0]}, {c3}, 3, {t[0]}
        v_lshl_add_u32 {t[1]}, {hi}, 3, {r4}
        v_lshl_add_u32 {t[2]}, {t[1]}, 7, {t[0]}
        v_lshl_add_u32 {V('M0')}, {nh}, 13, {t[2]}
        v_xor_b32 {V('M1')}, 32, {V('M0')}
        v_lshl_add_u32 {t[3]}, {hi}, 2, {r4}
        v_lshl_add_u32 {t[3]}, {t[3]}, 7, {t[0]}
        v_add_u32 {V('VR0')}, {sL2}, {t[3]}
        v_xor_b32 {V('VR1')}, 64, {V('VR0')}
        """)
        if A:
            o += L(f"v_mov_b32 {V('Pl')}, {t[2]}")
        else:
            o += L(f"""
            v_xor_b32 {t[0]}, {sJ}, {nh}
            v_lshlrev_b32 {t[0]}, 5, {t[0]}
            v_lshl_add_u32 {t[0]}, {c3}, 3, {t[0]}
            v_lshl_add_u32 {t[0]}, {t[1]}, 6, {t[0]}
            v_lshl_add_u32 {V('Hf')}, {nh}, 12, {t[0]}
            """)
        o += L(f"""
        v_lshl_add_u32 {t[0]}, {l3}, 10, {wsw}
        s_lshl_b32 {sT0}, {sC2}, 7
        s_lshl_b32 {sT1}, {sW}, 16
        s_add_u32 {sT0}, {sT0}, {sT1}
        v_add_u32 {V('V4')}, {sT0}, {t[0]}
        v_add_u32 {V('V8')}, {sT1}, {V('V4')}
        v_add_u32 {V('V41')}, {8192-1024}, {V('V4')}
        v_add_u32 {V('V81')}, {8192-1024}, {V('V8')}
        s_mul_i32 {sT0}, {sR2}, {2*RG_BYTES}
        s_add_u32 {sT0}, {sT0}, {WS_H}
        s_add_u32 {sT0}, {sT0}, {sL4}
        v_add_u32 {t[0]}, {sT0}, {V('l16')}
        s_mul_i32 {sA0}, {sRH}, {RG_BYTES}
        s_sub_u32 {sA1}, {RG_BYTES}, {sA0}
        v_add_u32 {V('A40')}, {sA0}, {t[0]}
        v_add_u32 {V('A41')}, {sA1}, {t[0]}
        v_add_u32 {V('A80')}, {sL4}, {V('A40')}
        v_add_u32 {V('A81')}, {sL4}, {V('A41')}
        s_lshl_b32 {sT0}, {sR}, 1
        s_add_u32 {sT0}, {sT0}, {sRH}
        s_mul_i32 {sT1}, {sT0}, {2*RG_BYTES}
        s_add_u32 {sT1}, {sT1}, {WS_H}
        v_add_u32 {V('HS0')}, {sT1}, {V('l16')}
        v_add_u32 {V('HS1')}, {RG_BYTES}, {V('HS0')}
        s_lshl_b32 {sT1}, {sT0}, 9
        s_add_u32 {sT1}, {sT1}, {WS_G}
        v_lshlrev_b32 {t[0]}, 3, {l31}
        v_add_u32 {V('G', True)}, {sT1}, {t[0]}
        s_lshl_b32 {sT0}, {sT0}, 2
        s_lshr_b32 {sT1}, {sT}, 1
        s_add_u32 {sT0}, {sT0}, {sT1}
        s_lshl_b32 {sT0}, {sT0}, 9
        s_and_b32 {sT1}, {sT}, 1
        s_lshl_b32 {sT1}, {sT1}, 1
        s_add_u32 {sT1}, {sT1}, {sJ}
        s_lshl_b32 {sT1}, {sT1}, 2
        s_add_u32 {sT0}, {sT0}, {sT1}
        s_add_u32 {sFP}, {sT0}, {WS_FL}
        s_lshl_b32 {sT0}, {sR2}, 2
        s_add_u32 {sT0}, {sT0}, {sW}
        s_lshl_b32 {sT0}, {sT0}, 9
        s_add_u32 {sT0}, {sT0}, {WS_FL}
        v_lshlrev_b32 {t[0]}, 2, {c3}
        v_add_u32 {V('F')}, {sT0}, {t[0]}
        s_lshl_b32 {sT0}, {sT}, 2
        s_lshl_b32 {sT1}, {sJ}, 1
        s_add_u32 {sT0}, {sT0}, {sT1}
        s_lshl_b32 {sE}, {sT0}, 10
        s_add_u32 {sL}, {sE}, {(80 if A else 48)*1024}
        v_mov_b32 v{self.v('KK', 2)}, {f32(K0)}
        v_mov_b32 v{self.v('KK', 2) + 1}, {f32(K1)}
        """)
        if A:
            o += L(f"""
            s_add_u32 {sO}, {sE}, {112*1024}
            s_add_u32 {sT0}, {sT0}, {sRH}
            s_lshl_b32 {sT1}, {sT0}, 7
            s_add_u32 {sT1}, {sT1}, {WS_KF}
            s_lshl_b32 {sT2}, {sR}, 2
            s_add_u32 {sKFP}, {sT1}, {sT2}
            v_and_b32 {t[0]}, 15, {l}
            v_lshlrev_b32 {t[0]}, 2, {t[0]}
            v_add_u32 {V('KF')}, {sT1}, {t[0]}
            s_lshl_b32 {sT1}, {sT0}, 14
            s_add_u32 {sT1}, {sT1}, {WS_KP}
            v_add_u32 {V('KG')}, {sT1}, {V('l16')}
            s_lshl_b32 {sKPP}, {sR}, 6
            s_add_u32 {sKB}, {sT1}, {sKPP}
            s_lshr_b32 {sTB}, {sT0}, 1
            s_lshl_b32 {sTB}, {sTB}, 11
            s_add_u32 {sTB}, {sTB}, {WS_KT}
            s_lshl_b32 {sKPP}, {sR}, 10
            s_lshl_b32 {sT1}, {sT0}, 11
            s_add_u32 {sT1}, {sT1}, {WS_ZP}
            v_lshlrev_b32 {t[0]}, 2, {l}
            v_add_u32 {V('ZG')}, {sT1}, {t[0]}
            s_lshl1_add_u32 {sZB}, {sR}, {sRH}
            s_lshl2_add_u32 {sZB}, {sZB}, {sT1}
            s_lshl_b32 {sZPP}, {sR}, 7
            s_mov_b32 s78, 0xffff0000
            s_mov_b32 s79, 0xffff0000
            s_sub_u32 s80, 0, {sRH}
            s_mov_b32 s81, s80
            v_lshlrev_b32 {t[0]}, 4, {hi}
            v_xor_b32 {t[1]}, 1, {nh}
            v_lshl_add_u32 {t[0]}, {t[1]}, 5, {t[0]}
            s_lshl_b32 {sT1}, {sW}, 6
            s_add_u32 {sT1}, {sT1}, {LDS_MISC + 7168}
            v_add_u32 {V('ZR')}, {sT1}, {t[0]}
            v_and_b32 {t[0]}, 0x24, {l}
            v_bfe_u32 {t[1]}, {l}, 3, 1
            v_lshl_add_u32 {t[0]}, {t[1]}, 4, {t[0]}
            v_lshl_add_u32 {t[0]}, {nh}, 3, {t[0]}
            v_add_u32 {V('ZW')}, {sT1}, {t[0]}
            s_add_u32 {sT1}, {sL1}, {LDS_MISC}
            v_add_u32 {V('XW')}, {sT1}, {V('l16')}
            """)
        else:
            o += L(f"""
            s_lshl_b32 {sT0}, {sT}, 1
            s_add_u32 {sT0}, {sT0}, {sJ}
            s_add_u32 {sT0}, {sT0}, 32
            s_lshl_b32 {sEh}, {sT0}, 10
            """)
        o += L(f"""
        s_lshl_b32 {sT0}, {sR2}, 1
        s_add_u32 {sT0}, {sT0}, {sRH}
        s_lshl_b32 {sT0}, {sT0}, 15
        s_lshl_b32 {sT1}, {sC2}, 1
        s_add_u32 {sT1}, {sT1}, {sJ}
        s_lshl_b32 {sT1}, {sT1}, 6
        s_add_u32 {sT0}, {sT0}, {sT1}
        v_lshlrev_b32 {t[0]}, 4, {hi}
        v_lshl_add_u32 {t[0]}, {l31}, 10, {t[0]}
        v_add_u32 {V('OUT')}, {sT0}, {t[0]}
        s_mov_b32 {sSpin}, 0
        """)
        r2 = self.opt.get("rot2", 2)
        if r2 == 0:
            o += L(f"s_mov_b32 {sT0}, 0")
        else:
            o += L(f"s_mul_i32 {sT0}, {sC2}, {r2}\ns_mul_i32 {sT1}, {sR2}, {self.opt.get('rot2r', 1)}\ns_add_u32 {sT0}, {sT0}, {sT1}")
        for i in range(8):
            o += L(f"s_add_u32 {sT1}, {sT0}, {i}\ns_and_b32 {sT1}, {sT1}, 7\ns_lshl_b32 {sTab[i]}, {sT1}, 10")
        self.second = o

    def dma(self, s, vreg, soff, m0=None, off=0, flags=""):
        o = L(f"s_add_u32 m0, {m0[0]}, {m0[1]}") if m0 else []
        return o + L(f"buffer_load_dwordx4 {vreg}, {srd(s)}, {soff} offen offset:{off} {flags} lds")

    def item_loads(self, kind, i):
        A = self.typ == "A"
        V = self.V
        base = self.blk[(kind, i)] * 8192
        wf = self.opt.get("wflags", ""); xf = self.opt.get("xflags", ""); vf = self.opt.get("vflags", "")
        so = lambda c: L(f"s_mov_b32 {sKw}, {i*c[0] + c[1]}")
        def two(sr, nm, c, b):
            return [(so(c) if c is not None else []) + self.dma(sr, V(nm), sKw, (sL2, b), 0, wf), self.dma(sr, V(nm + "1"), sKw, None, 1024, wf)]
        kq, kw = 64 * 3072, 64 * 3584
        if kind == "X":
            g = [self.dma(SX, V(f"X{jj}"), sKw, None if jj else (sL4, base), jj * 1024, xf) for jj in range(4)]
            g[0] = so((128, 0)) + g[0]
        elif kind == "W":
            g = two(S1, "W1", None, base) + two(S2, "W2", None, base + 8192)
            g[0] = L(f"s_mul_i32 {sKw}, {sStr}, {i}") + g[0]
        elif kind == "G":
            g = two(SG, "Wg", (kw, 2560 if A else 1536), base) + two(SU, "Wu", None, base + 8192)
        elif kind == "H":
            g = two(SQ, "Wq", (kq, 0), base) if A else [so((kw, 1024)) + self.dma(SG, V("Hg"), sKw, (sL1, base), 0, wf), self.dma(SU, V("Hu"), sKw, (sL1, base + 4096), 0, wf)]
        else:
            ks, j, mul = self.step(i)
            sr, k = (SD, ks) if ks < 112 else (SO, ks - 112)
            g = [self.dma(sr, V(f"V{mul}"), sKw, (sL2, base), 0, vf), self.dma(sr, V(f"V{mul}1"), sKw, None, 1024, vf)]
            if mul == 8:
                g[0] = L(f"s_lshl4_add_u32 {sKw}, {sTab[j]}, {k*16384}") + g[0]
            else:
                g[0] = L(f"s_and_b32 {sKw}, {sTab[j]}, 0xc00\ns_lshl4_add_u32 {sKw}, {sKw}, {k*16384}") + g[0]
        g[-1][-1].tag = f"{kind}{i}"
        return g

    def v_loads(self, n): return self.item_loads("V", n)

    def plan(self):
        opt = self.opt
        lead1, lead2 = opt.get("lead1", 2), opt.get("lead2", 2)
        must = []
        for s in range(8): must += [("X", s, 2, 4, s, s + 1, lead1), ("W", s, 2, 4, s, s + 1, lead1)]
        for t in range(8):
            must.append(("G", t, 2, 4, 8 + t, 9 + t, lead2 if t < 5 else opt.get("lead3", 2)))
            if t < 4: must += [("H", 2 * t + i, 1, 2, 8 + t, 9 + t, lead2) for i in range(2)]
        b2 = opt.get("b2a", 10) if self.typ == "A" else opt.get("b2", 10)
        budget = {i: opt.get("b1", 8) if i < 8 else b2 for i in range(17)}
        budget[-1], budget[16] = 0, 99
        for i in (12, 13, 14, 15): budget[i] = opt.get("b3", 8)
        for k, v in self.budget_cut.items(): budget[k] -= v
        free_at = [-1] * 19
        self.blk, self.when = {}, {i: [] for i in range(-1, 17)}
        self.parks = {i: [] for i in range(-1, 17)}
        prate = opt.get("parka", 3) if self.typ == "A" else opt.get("parkb", 2)
        nv, npk, issued = 0, 0, {}
        for iv in range(-1, 16):
            left = budget[iv]
            def take(kind, i, nb, fr):
                fb = [b for b in range(19) if free_at[b] <= iv]
                if nb == 2: c = [b for b in fb if b % 2 == 0 and b + 1 in fb]
                elif kind == "V": c = sorted(fb, key=lambda b: (b != 18 and (b ^ 1) in fb, -b))
                else: c = sorted(fb, key=lambda b: (b != 18 and (b ^ 1) in fb, b))
                if not c: return False
                for x in range(nb): free_at[c[0] + x] = fr
                self.blk[(kind, i)] = c[0]
                self.when[iv].append((kind, i))
                return True
            while must and must[0][4] - must[0][6] <= iv:
                kind, i, nb, cost_, need, fr, _ = must[0]
                if not take(kind, i, nb, fr):
                    assert need - 1 > iv, (kind, i, iv)
                    break
                must.pop(0); left -= cost_
            while iv >= opt.get("park0", 99) and len(self.parks[iv]) < prate and npk < 17 and npk < nv and issued[npk] <= iv - opt.get("parklag", 2) and npk <= 4 * (iv - 8) - 2:
                self.parks[iv].append(npk)
                free_at[self.blk[("V", npk)]] = iv + 1
                npk += 1
            live = lambda j: sum(4 if st < 12 else 2 for st in range(max(j, 0), min(16, j + lead2 + 1)))
            owed = max(live(j) for j in range(iv, 17)) + (1 if iv < 10 else 0)
            while left >= 2 and nv < 36 and nv - (npk - len(self.parks[iv])) < 19 - owed and iv >= opt.get("v0", 6):
                if not take("V", nv, 1, 99): break
                issued[nv] = iv
                nv += 1; left -= 2
        assert not must
        fb = [b for b in range(19) if free_at[b] <= 16]
        self.post = []
        while nv < 36:
            if not fb:
                self.post.append(("park", npk)); fb.append(self.blk[("V", npk)]); npk += 1
            self.blk[("V", nv)] = fb.pop(0)
            self.post.append(("load", nv)); nv += 1
        self.npark = npk
        assert npk <= 20

    @staticmethod
    def step(n):
        if n < 8: return 0, n, 8
        if n < 16: return 80, n - 8, 8
        if n < 24: return 48, n - 16, 8
        if n < 28: return 32, n - 24, 4
        return 112, n - 28, 8

    def areg(self, n, sr): return 160 + (n % 12) * 8 + sr * 4

    def a_loads(self, n):
        ks, j, mul = self.step(n)
        g = [L(f"buffer_load_dwordx4 {ar(self.areg(n, sr))}, {self.V(f'A{mul}{sr}')}, {srd(SW)}, {sAo} offen sc1") for sr in range(2)]
        if mul == 8:
            g[0] = L(f"s_add_u32 {sAo}, {sTab[j]}, {ks*1024}") + g[0]
        else:
            g[0] = L(f"s_and_b32 {sAo}, {sTab[j]}, 0xc00\ns_add_u32 {sAo}, {sAo}, {ks*1024}") + g[0]
        return g

    def parked(self, n): return n < self.npark

    def vfrag(self, n, sn):
        if self.parked(n): return "a", n * 8 + sn * 4
        return "v", (64 if n % 2 == 0 else 80) + sn * 4

    def v_reads(self, n):
        base = self.blk[("V", n)] * 8192
        o = []
        for sn in range(2):
            k, b = self.vfrag(n, sn)
            for i in range(2):
                a, imm = self.lds(f"VR{sn}", base + i * 1024)
                o.append(L(f"ds_read_b64_tr_b16 {k}[{b+2*i}:{b+2*i+1}], {a} offset:{imm}"))
        o[-1][-1].tag = f"RV{n}"
        return o

    def poll_issue(self, reg, addr, off, wide=False):
        if wide:
            return L(f"buffer_load_dwordx2 {vr(reg, 2)}, {addr}, {srd(SW)}, 0 offen offset:{off} sc1")
        return L(f"buffer_load_dword v{reg}, {addr}, {srd(SW)}, 0 offen offset:{off} sc1")

    def poll_check(self, reg, addr, off, wide=False):
        ok, again = self.lab("ok"), self.lab("again")
        tr = reg + 1 if wide else reg
        ld = self.poll_issue(reg, addr, off, wide)[0].text
        return self.check(f"v_cmp_ne_u32 vcc, {sTag}, v{tr}", [ld], ok, again)

    def check(self, test, loads, ok, again):
        raw = lambda t: "\n".join("@raw " + x for x in t.split("\n"))
        self.ool += L(f"""
        {again}:
        @raw s_sleep 2
        {raw(chr(10).join(loads))}
        @raw s_add_u32 {sSpin}, {sSpin}, 1
        @raw s_waitcnt vmcnt(0)
        {raw(test)}
        @raw s_cmp_lt_u32 {sSpin}, 0x40000
        @raw s_cbranch_scc0 {ok}
        @raw s_cbranch_vccnz {again}
        @raw s_branch {ok}
        """)
        return L(f"{test}\ns_cbranch_vccnz {again}\n{ok}:")

    def flag_store(self, soff, off, tags):
        return L(f"""
        @vm {' '.join(tags)}
        s_mov_b64 exec, 1
        buffer_store_dword {self.V('tag')}, off, {srd(SW)}, {soff} offset:{off} sc1
        s_mov_b64 exec, -1
        """)

    def gate_loads(self):
        x0, x1, gw = self.v("gx0", 4, True), self.v("gx1", 4, True), self.v("ggw", 4, True)
        return [L(f"""
        s_lshl_b32 {sOff}, {sGrow}, 10
        buffer_load_dwordx4 {vr(x0)}, {self.V('l16')}, {srd(SX)}, {sOff} offen
        buffer_load_dwordx4 {vr(x1)}, {self.V('l16')}, {srd(SX)}, {sOff} offen offset:1024
        buffer_load_dwordx4 {vr(gw)}, {self.V('l16')}, {srd(SGW)}, 0 offen
        """)]

    def gate_compute(self):
        x = [self.v("gx0", 4, True), self.v("gx1", 4, True)]; gw = self.v("ggw", 4, True)
        t = [self.V(f"t{i}") for i in range(8)]
        s = [self.v("gs", 2, True), self.v("gs") + 1]
        one = self.V("gone", True)
        o = L(f"v_mov_b32 {one}, 0x3f803f80\nv_mov_b32 v{s[0]}, 0\nv_mov_b32 v{s[1]}, 0")
        for d in range(4):
            o += L(f"v_lshlrev_b32 {t[0]}, 16, v{gw+d}\nv_and_b32 {t[1]}, 0xffff0000, v{gw+d}")
            for r in range(2):
                o += L(f"""
                v_lshlrev_b32 {t[2+2*r]}, 16, v{x[r]+d}
                v_and_b32 {t[3+2*r]}, 0xffff0000, v{x[r]+d}
                v_mul_f32 {t[2+2*r]}, {t[2+2*r]}, {t[0]}
                v_mul_f32 {t[3+2*r]}, {t[3+2*r]}, {t[1]}
                v_cvt_pk_bf16_f32 {t[2+2*r]}, {t[2+2*r]}, {t[3+2*r]}
                v_lshlrev_b32 {t[6]}, 16, {t[2+2*r]}
                v_and_b32 {t[7]}, 0xffff0000, {t[2+2*r]}
                v_add_f32 v{s[r]}, v{s[r]}, {t[6]}
                v_add_f32 v{s[r]}, v{s[r]}, {t[7]}
                """)
        dpp = "row_mask:0xf bank_mask:0xf"
        o += L(f"""
        v_permlane32_swap_b32 v{s[0]}, v{s[1]}
        v_add_f32 v{s[0]}, v{s[0]}, v{s[1]}
        v_add_f32_dpp v{s[0]}, v{s[0]}, v{s[0]} quad_perm:[1,0,3,2] {dpp}
        v_add_f32_dpp v{s[0]}, v{s[0]}, v{s[0]} quad_perm:[2,3,0,1] {dpp}
        v_add_f32_dpp v{s[0]}, v{s[0]}, v{s[0]} row_half_mirror {dpp}
        v_add_f32_dpp v{s[0]}, v{s[0]}, v{s[0]} row_mirror {dpp}
        v_mov_b32 v{s[1]}, v{s[0]}
        v_permlane16_swap_b32 v{s[0]}, v{s[1]}
        v_add_f32 v{s[0]}, v{s[0]}, v{s[1]}
        v_cvt_pk_bf16_f32 v{s[0]}, v{s[0]}, v{s[0]}
        v_and_b32 v{s[0]}, 0xffff0000, v{s[0]}
        v_mul_f32 v{s[0]}, {f32(-LOG2E)}, v{s[0]}
        v_exp_f32 v{s[0]}, v{s[0]}
        v_add_f32 v{s[0]}, 1.0, v{s[0]}
        v_rcp_f32 v{s[0]}, v{s[0]}
        v_cvt_pk_bf16_f32 v{s[0]}, v{s[0]}, v{s[0]}
        v_and_b32 v{s[0]}, 0xffff0000, v{s[0]}
        v_mov_b32 v{s[1]}, {sTag}
        v_lshlrev_b32 {t[0]}, 3, {self.V('hi')}
        s_lshl_b32 {sOff}, {sGrow}, 3
        s_add_u32 {sOff}, {sOff}, {WS_G}
        """)
        groups = [[i] for i in o]
        groups.append(L(f"""
        s_mov_b32 exec_lo, 1
        s_mov_b32 exec_hi, 1
        buffer_store_dwordx2 {vr(s[0], 2)}, {t[0]}, {srd(SW)}, {sOff} offen sc1
        s_mov_b64 exec, -1
        """))
        groups = groups[:-4] + [sum(groups[-4:], [])]
        return groups

    def gate_fetch(self):
        g0, g1 = self.v("g0", 2), self.v("g1", 2)
        return [self.poll_issue(g0, self.V("G"), 0, True), self.poll_issue(g1, self.V("G"), 256, True)]

    def gate_check(self):
        o = []
        for i, nm in enumerate(("g0", "g1")):
            g = self.v(nm)
            o.append(self.poll_check(g, self.V("G"), 256 * i, True))
            o += [[x] for x in L(f"""
            v_sub_f32 v{g+1}, 1.0, v{g}
            v_cvt_pk_bf16_f32 v{g+1}, v{g+1}, v{g+1}
            v_and_b32 v{g+1}, 0xffff0000, v{g+1}
            v_max_f32 v{g+1}, {f32(1e-30)}, v{g+1}
            v_rcp_f32 v{g+1}, v{g+1}
            """)]
        return o

    def gelu_tile(self, t, rg, soff, off, tag=None):
        a = ACC(t, rg)
        io = f"v{self.v('g%d' % rg) + 1}"
        T = [self.V(f"t{i}") for i in range(8)]
        o = []
        for h in range(2):
            js = range(4 * h, 4 * h + 4)
            for stage in (
                lambda j, x: f"v_mul_f32 {x}, v{a+j}, v{a+j}",
                lambda j, x: f"v_fmaak_f32 {x}, {x}, v{self.v('KK', 2) + 1}, {f32(K0)}",
                lambda j, x: f"v_mul_f32 {x}, {x}, v{a+j}",
                lambda j, x: f"v_exp_f32 {x}, {x}",
                lambda j, x: f"v_mul_f32 v{a+8+j}, v{a+8+j}, v{a+j}",
                lambda j, x: f"v_fma_f32 {x}, {x}, {io}, {io}",
                lambda j, x: f"v_rcp_f32 {x}, {x}",
                lambda j, x: f"v_mul_f32 v{a+8+j}, v{a+8+j}, {x}",
            ):
                o += [L(stage(j, T[j & 3])) for j in js]
            o += [L(f"v_cvt_pk_bf16_f32 v{a+d}, v{a+8+2*d}, v{a+9+2*d}") for d in (2 * h, 2 * h + 1)]
        o.append(L(f"buffer_store_dwordx4 {vr(a)}, {self.V('HS%d' % rg)}, {srd(SW)}, {soff} offen offset:{off} sc1", tag))
        return o

    def gelu_tile_pk(self, t, rg, soff, off, tag=None):
        a = ACC(t, rg)
        g = self.v("g%d" % rg)
        T = self.v("t0")
        kk = self.v("KK", 2)
        p = lambda r: f"v[{r}:{r+1}]"
        o = []
        for st in range(9):
            for q in range(4):
                x, gg, uu = T + 2 * q, a + 2 * q, a + 8 + 2 * q
                if st == 0: o.append(L(f"v_pk_mul_f32 {p(x)}, {p(gg)}, {p(gg)}"))
                if st == 1: o.append(L(f"v_pk_fma_f32 {p(x)}, {p(x)}, {p(kk)}, {p(kk)} op_sel:[0,1,0] op_sel_hi:[1,1,0]"))
                if st == 2: o.append(L(f"v_pk_mul_f32 {p(x)}, {p(x)}, {p(gg)}"))
                if st == 3: o += [L(f"v_exp_f32 v{x}, v{x}"), L(f"v_exp_f32 v{x+1}, v{x+1}")]
                if st == 4: o.append(L(f"v_pk_mul_f32 {p(uu)}, {p(uu)}, {p(gg)}"))
                if st == 5: o.append(L(f"v_pk_fma_f32 {p(x)}, {p(x)}, {p(g)}, {p(g)} op_sel:[0,1,1] op_sel_hi:[1,1,1]"))
                if st == 6: o += [L(f"v_rcp_f32 v{x}, v{x}"), L(f"v_rcp_f32 v{x+1}, v{x+1}")]
                if st == 7: o.append(L(f"v_pk_mul_f32 {p(uu)}, {p(uu)}, {p(x)}"))
                if st == 8: o.append(L(f"v_cvt_pk_bf16_f32 v{a+q}, v{uu}, v{uu+1}"))
        o.append(L(f"buffer_store_dwordx4 {vr(a)}, {self.V('HS%d' % rg)}, {srd(SW)}, {soff} offen offset:{off} sc1", tag))
        return o

    def phi_pack(self, src, dst):
        T = [self.V(f"t{i}") for i in range(8)]
        o = []
        for q in range(4):
            js = range(4 * q, 4 * q + 4)
            for stage in (
                lambda j, x: f"v_mul_f32 {x}, {f32(LOG2E)}, v{src+j}",
                lambda j, x: f"v_exp_f32_e64 {x}, {x} clamp",
                lambda j, x: f"v_max_f32 v{src+j}, {f32(1e-6)}, v{src+j}",
                lambda j, x: f"v_add_f32 {x}, {x}, v{src+j}",
            ):
                o += [L(stage(j, T[j & 3])) for j in js]
            o += [L(f"v_cvt_pk_bf16_f32 v{dst+2*q+d}, {T[2*d]}, {T[2*d+1]}") for d in range(2)]
        return o

    def plain_pack(self, src, dst):
        return [L(f"v_cvt_pk_bf16_f32 v{dst+d}, v{src+2*d}, v{src+2*d+1}") for d in range(8)]

    def build(self):
        A = self.typ == "A"
        opt = self.opt
        V = self.V
        self.prologue()
        self.kvi = opt.get("kvi", 14)
        self.budget_cut = {}
        self.touch2 = lambda k: touch2(self, k)
        self.plan()
        T = [self.v(f"t{i}") for i in range(8)]

        def trs(pat, off, dst, istep):
            r = []
            for i in range(2):
                a, imm = self.lds(pat, off + i * istep)
                r.append(L(f"ds_read_b64_tr_b16 v[{dst+2*i}:{dst+2*i+1}], {a} offset:{imm}"))
            return r

        def mfma(t, rg, wfr, n, swap):
            acc, xfr = vr(ACC(t, rg), 16), ar((n * 2 + rg) * 4)
            a, b = (xfr, wfr) if swap else (wfr, xfr)
            return L(f"v_mfma_f32_32x32x16_bf16 {acc}, {a}, {b}, {acc if n else 0}")

        units = []
        for m in range(16):
            s, half = m >> 1, m & 1
            xb, wbase = self.blk[("X", s)] * 8192, self.blk[("W", s)] * 8192
            wb = 64 if m % 2 == 0 else 80
            rd, mf = [], []
            for kk in range(2):
                k4 = half * 2 + kk
                n = s * 4 + k4
                xr = []
                for rg in range(2):
                    a, imm = self.lds(f"XR{k4}", xb + rg * 4096, True)
                    xr.append(L(f"ds_read_b128 {ar((n*2+rg)*4)}, {a} offset:{imm}"))
                w = [trs("Pl", wbase + t * 8192 + k4 * 2048, wb + kk * 8 + t * 4, 512) if A else
                     trs(f"M{t}", wbase + k4 * 2048, wb + kk * 8 + t * 4, 512) for t in range(2)]
                rd += [xr[0]] + w[0] + [xr[1]] + w[1]
                mf += [mfma(t, rg, vr(wb + kk * 8 + t * 4), n, A) for t in range(2) for rg in range(2)]
            units.append(([f"W{s}"] if half == 0 else None, rd, mf))
        for m in range(24):
            wb = 64 if m % 2 == 0 else 80
            rd, mf = [], []
            def pair(n, dst):
                gb = self.blk[("G", n >> 2)] * 8192 + (n & 3) * 2048
                return trs("M0", gb, dst, 512) + trs("M1", gb, dst + 4, 512), [mfma(t, rg, vr(dst + 4 * i), n, False) for i, t in enumerate((3, 4)) for rg in range(2)]
            def third(n, dst):
                hb = self.blk[("H", n >> 2)] * 8192
                r = trs("Pl", hb + (n & 3) * 2048, dst, 512) if A else trs("Hf", hb + (n & 3) * 1024, dst, 256)
                return r, [mfma(2, rg, vr(dst), n, False) for rg in range(2)]
            if m < 16:
                parts = [third(2 * m, wb), pair(m, wb + 4), third(2 * m + 1, wb + 12)]
                sy = [f"H{2*(m >> 2) + 1}"] if m % 4 == 0 else None
            else:
                n = 16 + 2 * (m - 16)
                parts = [pair(n, wb), pair(n + 1, wb + 8)]
                sy = [f"G{n >> 2}"] if m % 2 == 0 else None
            for r, f in parts: rd += r; mf += f
            units.append((sy, rd, mf))

        gaps, heads, ustart, syncgap = [], [], [], [0]
        for u, (sy, rd, mf) in enumerate(units):
            ustart.append(len(gaps))
            for i, m in enumerate(mf):
                heads.append((L("@lgkm0") if i == 0 and not opt.get("exact", 0) else []) + m)
                gaps.append(Gap())
            g0 = ustart[u]
            if u + 1 < len(units):
                nsy, nrd, _ = units[u + 1]
                if nsy:
                    gaps[g0].pre += L(f"@sync {' '.join(nsy)}\ns_barrier")
                    syncgap.append(g0)
                span = len(mf) - opt.get("rsp", 2)
                for i, r in enumerate(nrd):
                    gaps[g0 + min(span - 1, (i * span) // len(nrd))].ds += r
            else:
                gaps[g0].pre += L("@sync\ns_barrier")
                syncgap.append(g0)
        ustart.append(len(gaps))
        U = lambda n: ustart[16 + n]
        one = lambda ins: [[x] for x in ins]

        def loads_of(iv): return sum((self.item_loads(k, i) for k, i in self.when[iv]), [])
        pro = loads_of(-1)
        pro[8:8] = self.gate_loads()
        self.pro_loads = pro
        pa, pb = self.v("pa"), self.v("pb")
        extra = {iv: [] for iv in range(17)}
        extra[6] += self.gate_fetch()
        for iv in range(16):
            ld = extra[iv] + loads_of(iv)
            if ld: place_mem(gaps, ld, syncgap[iv] + 1, syncgap[iv + 1])
            if self.parks[iv]:
                rd = []
                for n in self.parks[iv]:
                    r = self.v_reads(n)
                    r[0] = L(f"@vm V{n}") + r[0]
                    rd += r
                lo, hi = syncgap[iv] + 1, syncgap[iv + 1]
                cand = sorted(sorted(range(lo, hi), key=lambda g: gaps[g].used())[:len(rd)])
                assert len(cand) == len(rd)
                for g, r in zip(cand, rd): gaps[g].ds += r
            t2 = opt.get("t2", 1)
            if 0 <= t2 <= iv < t2 + opt.get("t2n", 4):
                if opt.get("ool", 0):
                    body2 = touch2(self, iv - t2, True, 0)
                    go, back = self.lab("t2go"), body2[-1].text[:-1]
                    gaps[syncgap[iv + 1] - 1].va += body2[:1] + L(f"s_cmp_eq_u32 {sT0}, {iv - t2}\ns_cbranch_scc1 {go}") + body2[-1:]
                    self.ool += L(f"{go}:") + body2[3:-1] + L(f"s_branch {back}")
                else:
                    gaps[syncgap[iv + 1] - 1].va += touch2(self, iv - t2, True, 1 if opt.get("t3", -1) >= 0 else 0)
            if iv == opt.get("t3", -1): gaps[syncgap[iv + 1] - 1].va += touch2(self, 0, False, 2)
            if iv == opt.get("t4", -1): gaps[syncgap[iv + 1] - 1].va += touch4(self)

        place_valu(gaps, self.gate_compute(), ustart[opt.get("gate0", 1)], ustart[opt.get("gate1", 5)])
        place_valu(gaps, self.gate_check(), ustart[14] + 1, ustart[16] - 1)

        cap = opt.get("cap", 12) / 2
        G0, G3 = U(0), U(16)
        if not A:
            ep = []
            for t in range(2):
                for rg in range(2): ep += self.gelu_tile(t, rg, sE, t * 1024, tag="Est")
            last, c = place_valu(gaps, ep, G0 + 1, G3, cap)
            gaps[last + opt.get("e_lag", 36)].va += self.flag_store(sFP, 0, ["Est"]) + self.stamp("Efl")
            self.note = f"E epilogue ends in gap {last - G0} cap {c}"
            ep = self.gelu_tile(2, 0, sEh, 0, tag="Lst") + self.gelu_tile(2, 1, sEh, 0, tag="Lst")
            last, c = place_valu(gaps, ep, G3 + 2, U(24) - 1, cap)
            self.note += f"; third tile ends in gap {last - G0} cap {c}"
        else:
            ones, za = self.v("ones", 4), self.V("za")
            ep = [L(f"v_mov_b32 v{ones+i}, 0x3f803f80") for i in range(4)]
            ep += self.phi_pack(ACC(0, 0), 96) + self.plain_pack(ACC(1, 0), 128)
            ep += self.phi_pack(ACC(0, 1), 104) + self.plain_pack(ACC(1, 1), 136)
            last, c = place_valu(gaps, ep, G0 + 1, G3, opt.get("kvcap", 14) / 2)
            for f in range(4):
                gaps[last + 1 + f].va += L(f"v_mfma_f32_32x32x16_bf16 v[112:127], {vr(96+4*f)}, {vr(128+4*f)}, {'v[112:127]' if f else 0}")
                gaps[last + 1 + f].va += L(f"v_mfma_f32_32x32x16_bf16 v[144:159], {vr(ones)}, {vr(96+4*f)}, {'v[144:159]' if f else 0}")
            ep = [L(f"v_cndmask_b32 v{112+i}, v{112+i}, v{120+i}, {sMH}") for i in range(8)]
            ep += [L(f"v_cndmask_b32 v{120+i}, v{112+i}, v{116+i}, {sMR}") for i in range(4)]
            ep += [L(f"v_cndmask_b32 v{124+i}, v{116+i}, v{112+i}, {sMR}") for i in range(4)]
            ep += one(L(f"v_lshrrev_b32 {za}, 2, {V('XW')}\nv_add_u32 {za}, {LDS_MISC + 4096 - LDS_MISC//4}, {za}"))
            ep += [L(f"ds_write_b128 {V('XW')}, v[124:127]"), L(f"ds_write_b32 {za}, v144"), L(f"v_xor_b32 {za}, 0x200, {za}"), L(f"v_xor_b32 v{T[4]}, 0x800, {V('XW')}")]
            last, c = place_valu(gaps, ep, last + 7, G3, cap)
            sg = min(x for x in ustart if x > last)
            if sg not in syncgap: gaps[sg].pre += L("@lgkm0\ns_barrier")
            gaps[sg + 1].ds += L(f"ds_read_b128 v[124:127], v{T[4]}\nds_read_b32 v145, {za}")
            ep = [L(f"v_add_f32 v{120+i}, v{120+i}, v{124+i}") for i in range(4)]
            ep.append(L(f"v_add_f32 v144, v144, v145"))
            ep.append(L(f"buffer_store_dwordx4 v[120:123], {V('KG')}, {srd(SW)}, {sKPP} offen sc1"))
            last, c = place_valu(gaps, ep, sg + 5, G3, cap)
            z = L(f"""
            s_mov_b32 exec_hi, 0
            buffer_store_dword v144, {V('ZG')}, {srd(SW)}, {sZPP} offen sc1
            s_mov_b32 exec_hi, -1
            """)
            z[1].tag = "KVst"
            gaps[last + 1].va += z
            fl = last + opt.get("kv_lag", 28)
            gaps[fl].va += self.flag_store(sKFP, 0, ["KVst"]) + self.stamp("KVfl")
            chk = syncgap[self.kvi]
            assert fl < chk - opt.get("kv_pl", 24)
            gaps[chk - opt.get("kv_pl", 24)].vm += self.poll_issue(pa, V("KF"), 0)
            gaps[chk].va += self.stamp("KVq") + self.poll_check(pa, V("KF"), 0) + self.stamp("KVok")
            self.note = f"kv flag in gap {fl - G0}, check in gap {chk - G0}"
            ad = one(L(f"""
            v_mbcnt_lo_u32_b32 v110, -1, 0
            v_mbcnt_hi_u32_b32 v110, -1, v110
            v_lshrrev_b32 v108, 2, v110
            v_and_b32 v109, 3, v110
            v_lshlrev_b32 v109, 4, v109
            v_lshl_add_u32 v109, v108, 10, v109
            v_lshlrev_b32 v108, 7, v108
            v_lshlrev_b32 v110, 4, v110
            """))
            place_valu(gaps, ad, fl + 1, G3, cap)
            gaps[chk + 1].vm += L(f"buffer_load_dwordx4 v[96:99], v109, {srd(SW)}, {sKB} offen sc1")
            gaps[chk + 2].vm += L(f"buffer_load_dword v100, v108, {srd(SW)}, {sZB} offen sc1")
            dpp = "row_mask:0xf bank_mask:0xf"
            red = [L(f"v_add_f32_dpp v{r}, v{r}, v{r} row_ror:{n} {dpp}") for n in (4, 8) for r in range(96, 101)]
            for sw in ("v_permlane16_swap_b32", "v_permlane32_swap_b32"):
                red += [L(f"v_mov_b32 v{r+6}, v{r}") for r in range(96, 101)]
                red += [L(f"{sw} v{r}, v{r+6}") for r in range(96, 101)]
                red += [L(f"v_add_f32 v{r}, v{r}, v{r+6}") for r in range(96, 101)]
            red += one(L(f"""
            v_cvt_pk_bf16_f32 v96, v96, v97
            v_cvt_pk_bf16_f32 v97, v98, v99
            v_mov_b32 v98, v100
            v_mov_b32 v99, {sTag}
            """))
            pub = L(f"""
            s_lshl4_add_u32 {sOff}, {sRH}, {sR}
            s_lshl_b32 {sOff}, {sOff}, 6
            s_add_u32 {sOff}, {sOff}, {sTB}
            s_mov_b64 exec, 15
            buffer_store_dwordx4 v[96:99], v109, {srd(SW)}, {sOff} offen sc1
            s_mov_b64 exec, -1
            """) + self.stamp("KVt")
            r0 = chk + opt.get("kv_rl", 26)
            self.kv_first = []
            if opt.get("kvin", 1):
                last, c = place_valu(gaps, red, r0, U(24) - 2, cap)
                gaps[last + 1].va += pub
                self.note += f"; totals leave in gap {last + 1 - G0} cap {c}"
            else:
                self.kv_first = red + [pub]
            last, c = place_valu(gaps, self.phi_pack(ACC(2, 0), 160) + self.phi_pack(ACC(2, 1), 168), G3 + 2, U(24) - 1, cap)
            self.note += f"; third tile ends in gap {last - G0} cap {c}"
        gaps[U(24) - opt.get("epoll", 14)].vm += self.poll_issue(pb, V("F"), 0)

        body = self.stamp("start")
        ph1 = self.stamp("issued") + L(f"@sync W0\ns_barrier") + self.stamp("sync0")
        for r in units[0][1]: ph1 += r
        for u in range(len(units)):
            for g in range(ustart[u], ustart[u + 1]):
                ph1 += heads[g]
                if g == ustart[u] and u and ((u < 16 and u % (4 if opt.get("fewp1") else 2) == 0) or (u >= 16 and u % 4 == 0)): ph1 += self.stamp(f"s{u//2}" if u < 16 else f"p{(u-16)//4}")
                ph1 += gaps[g].emit()
        ph1 += self.stamp("p1end")

        gt = self.gelu_tile_pk if opt.get("pk", 1) else self.gelu_tile
        main = []
        tiles = []
        for t in range(2):
            for rg in range(2):
                tiles.append(gt(3 + t, rg, sL, t * 1024, tag="Lst"))
                tiles[-1][-1] += self.stamp(f"L{t}{rg}")
        if not A:
            main = sum(tiles, [])
            nL = len(main)
        else:
            kr = opt.get("kvr", 4)
            ld = [f"buffer_load_dwordx4 v[{100+4*h}:{103+4*h}], v110, {srd(SW)}, {sTB} offen offset:{1024*h} sc1" for h in range(2)]
            ok, again = self.lab("ok"), self.lab("again")
            test = f"v_xor_b32 v111, {sTag}, v103\nv_xor_b32 v112, {sTag}, v107\nv_or_b32 v111, v111, v112\nv_cmp_ne_u32 vcc, 0, v111"
            raw = lambda t: "\n".join("@raw " + x for x in t.split("\n"))
            main = self.kv_first + sum(tiles[:kr], []) + [L(ld[0]), L(ld[1])] + sum(tiles[kr:], [])
            nL = len(main)
            self.need_side = 0
            self.burst_at = len(main)
            main.append([])
            main.append(self.stamp("Tq") + self.check(test, ld, ok, again) + self.stamp("Tok"))
            main += one(L(f"""
            v_cvt_pk_bf16_f32 v102, v102, v106
            ds_write_b32 {V('ZW')}, v102
            @lgkm0
            ds_read_b128 v[108:111], {V('ZR')}
            """))
            for i, kvr in enumerate((100, 101, 104, 105)):
                main += [L(f"v_cndmask_b32 v{176+i}, v{kvr}, v{108+i}, {sMH}"), L(f"v_cndmask_b32 v{180+i}, v{108+i}, v{kvr}, {sMH}")]
            for rg in range(2):
                for hh in range(2):
                    main.append(L(f"v_mfma_f32_32x32x16_bf16 {vr(192 + (rg*2+hh)*16, 16)}, {vr(176+4*hh)}, {vr(160 + rg*8 + hh*4)}, 0"))
            dens = []
            for rg in range(2):
                for hh in range(2):
                    b = 192 + (rg * 2 + hh) * 16
                    dens.append((rg, hh, b, b + 8) if hh == 0 else (rg, hh, b + 8, b))
            main += [L(f"v_add_f32 v{d}, {f32(1e-6)}, v{d}") for _, _, _, d in dens]
            main += [L(f"v_rcp_f32 v{d}, v{d}") for _, _, _, d in dens]
            main += [L(f"v_mul_f32 v{d}, v{d}, v{self.v('g%d' % rg)}") for rg, _, _, d in dens]
            osts = []
            for rg, hh, num, den in dens:
                main += [L(f"v_pk_mul_f32 v[{num+j}:{num+j+1}], v[{num+j}:{num+j+1}], v[{den}:{den+1}] op_sel_hi:[1,0]") for j in range(0, 8, 2)]
                d = 160 + (rg * 2 + hh) * 4
                main += [L(f"v_cvt_pk_bf16_f32 v{d+j}, v{num+2*j}, v{num+2*j+1}") for j in range(4)]
                osts.append(L(f"buffer_store_dwordx4 {vr(d)}, {V('HS%d' % rg)}, {srd(SW)}, {sO} offen offset:{hh*1024} sc1", "Ost"))
                if not opt.get("batch", 0): main.append(osts.pop())
            main += osts
            lf = opt.get("lfa", 3)
            lastL = max(j for j, g in enumerate(main) if any(x.tag == "Lst" for x in g))
            main.insert(min(len(main), lastL + 1 + lf), self.flag_store(sFP, 256, ["Lst"]) + self.stamp("Lfl"))
        slots = [list(g) for g in main]
        side = list(extra[16])
        side.append(self.stamp("Eq") + self.poll_check(pb, V("F"), 0) + self.stamp("Eok"))
        for n in range(8): side += self.a_loads(n)
        post = list(self.post)
        seq = []
        for j, (k, n) in enumerate(post):
            if k == "park":
                pos = len(seq) - 1 if seq and seq[-1][0] == "load" and j > 0 else len(seq)
                seq.insert(max(pos, 0), (k, n))
            else:
                seq.append((k, n))
        for k, n in seq:
            if k == "park": side.append(L(f"@vm V{n}") + sum(self.v_reads(n), []))
            else:
                src = [m for m in range(n) if self.blk[("V", m)] == self.blk[("V", n)] and ("park", m) in post]
                if src: side.append(L(f"@rd V{src[-1]}"))
                side += self.v_loads(n)
        every2 = (opt.get("midea2", 30) if A else opt.get("mide2", 60)) / 4.0
        every = (opt.get("midea", 60) if A else opt.get("mide", 45)) / 4.0
        acc, k = opt.get("mid0", 0) / 4.0, 0
        for j, (sl, g) in enumerate(zip(slots, main)):
            if j == nL: every = every2
            if A and j == self.burst_at:
                nb = opt.get("burst", 10)
                while nb > 0 and k < len(side):
                    sl += side[k]
                    if any(x.kind == "vmem" for x in side[k]): nb -= 1
                    k += 1
            if A and j == self.need_side - 1:
                while k < len(extra[16]): sl += side[k]; k += 1
            acc += sum(2 if x.kind == "valu" and x.op.startswith(TRANS) else 1 for x in g)
            if any(x.kind == "vmem" for x in g): acc -= every
            while k < len(side) and acc >= every:
                sl += side[k]
                if any(x.kind == "vmem" for x in side[k]): acc -= every
                k += 1
        rest = side[k:]
        self.note += f"; mid takes {k} of {len(side)} side groups"
        mid = sum(slots, []) + self.stamp("mid")
        nA = max([j + 1 for j, g in enumerate(rest) if any("a[" in x.text and x.kind == "vmem" for x in g)], default=0)
        mid += sum(rest[:nA], [])
        rest = rest[nA:]
        nP = max([j + 1 for j, g in enumerate(rest) if any(x.kind == "ds" and x.tag and int(x.tag[2:]) < 8 for x in g)], default=0)
        pre0 = rest[:nP]
        if not A and opt.get("lflag_at", -20) < 0:
            pre0.insert(min(len(pre0), -opt.get("lflag_at", -20)), self.flag_store(sFP, 128, ["Lst"]) + self.stamp("fl"))
        mid += sum(pre0, [])
        rest = rest[nP:]
        if not self.parked(0):
            mid += L("@vm V0")
            for r in self.v_reads(0): mid += r

        DA = opt.get("da", 4)
        ph2 = []
        for n in range(36):
            mf = []
            for sr in range(2):
                for sn in range(2):
                    k, b = self.vfrag(n, sn)
                    acc = vr(96 + (sr * 2 + sn) * 16, 16)
                    mf.append(L(f"v_mfma_f32_32x32x16_bf16 {acc}, {k}[{b}:{b+3}], {ar(self.areg(n, sr))}, {acc if n else 0}"))
            g = [[] for _ in range(4)]
            if n + 1 < 36 and not self.parked(n + 1):
                g[0] += L(f"@vm V{n+1}")
                rd = self.v_reads(n + 1)
                g[0] += rd[0] + rd[1]; g[1] += rd[2] + rd[3]
            vl = []
            ru = opt.get("restu", 12)
            if n < ru:
                take = -(-len(rest) // (ru - n))
                due = max([j + 1 for j, gg in enumerate(rest) if any(x.kind == "ds" and x.tag and int(x.tag[2:]) <= n + 2 for x in gg)], default=0)
                take = max(take, due)
                split = take < len(rest) and take and len(rest[take]) == 1 and rest[take][0].kind == "vmem" and rest[take][0].lds
                vl = rest[:take]
                rest = rest[take:]
            for i, x in enumerate(vl): g[min(3, 1 + i * 3 // len(vl))] += x
            if n == (opt.get("oflag_at", 6) if A else opt.get("lflag_at", -20)):
                g[3] += (self.flag_store(sFP, 384, ["Ost"]) if A else self.flag_store(sFP, 128, ["Lst"])) + self.stamp("fl")
            m = n + (DA if n >= 8 else 0)
            for first, off in ((8, 256), (16, 128), (28, 384)):
                at = max(first - DA, 7)
                if n == at - (opt.get("pl8", 4) if first == 8 else opt.get("pl", 3)): g[2] += self.poll_issue(pa, V("F"), off)
                if n == at: g[2] += self.stamp(f"q{first}") + self.poll_check(pa, V("F"), off) + self.stamp(f"k{first}")
            if n == 7:
                for mm in range(8, 8 + DA): g[3] += sum(self.a_loads(mm), [])
            if n >= 8 and n + DA < 36: g[3] += sum(self.a_loads(n + DA), [])
            if not opt.get("exact2", 0): ph2 += L("@lgkm0")
            for i in range(4):
                ph2 += mf[i]
                if i == 0 and n % 4 == 0: ph2 += self.stamp(f"u{n}")
                ph2 += g[i]
        assert not rest
        ph2 += self.stamp("ph2end")

        fin = []
        T = [self.v(f"t{i}") for i in range(8)]
        of = opt.get("oflags", "sc1")
        if opt.get("full", 1):
            AD = 160
            rws = L(f"""
            v_mbcnt_lo_u32_b32 v{T[0]}, -1, 0
            v_mbcnt_hi_u32_b32 v{T[0]}, -1, v{T[0]}
            v_and_b32 v{T[1]}, 7, v{T[0]}
            v_lshrrev_b32 v{T[2]}, 5, v{T[0]}
            v_xor_b32 v{T[2]}, v{T[2]}, v{T[1]}
            v_lshlrev_b32 v{T[2]}, 4, v{T[2]}
            v_lshl_add_u32 v{T[2]}, v{T[1]}, 8, v{T[2]}
            v_bfe_u32 v{T[3]}, v{T[0]}, 3, 2
            v_lshl_add_u32 v{T[2]}, v{T[3]}, 13, v{T[2]}
            s_lshl_b32 {sT0}, {sRH}, 15
            s_lshl_b32 {sT1}, {sJ}, 7
            s_add_u32 {sT0}, {sT0}, {sT1}
            s_add_u32 {sT0}, {sT0}, {sL2}
            v_add_u32 v{AD}, {sT0}, v{T[2]}
            """)
            for sg in range(4):
                for q in range(4):
                    if sg or q: rws += L(f"v_xor_b32 v{AD + sg*4 + q}, {q*32 + (sg & 1)*128 + (sg >> 1)*32768}, v{AD}")
            rws += L(f"""
            v_lshrrev_b32 v{T[3]}, 3, v{T[0]}
            v_lshlrev_b32 v{T[4]}, 1, v{T[1]}
            v_xor_b32 v{T[4]}, v{T[4]}, v{T[3]}
            v_lshlrev_b32 v{T[4]}, 4, v{T[4]}
            v_lshl_add_u32 v{T[4]}, v{T[3]}, 8, v{T[4]}
            s_lshl_b32 {sT0}, {sW}, 14
            v_add_u32 v{T[4]}, {sT0}, v{T[4]}
            v_xor_b32 v{T[5]}, 16, v{T[4]}
            v_lshlrev_b32 v{T[1]}, 4, v{T[1]}
            v_lshl_add_u32 v{T[1]}, v{T[3]}, 10, v{T[1]}
            s_lshl2_add_u32 {sT0}, {sR2}, {sW}
            s_lshl_b32 {sT0}, {sT0}, 14
            s_lshl_b32 {sT1}, {sC2}, 7
            s_add_u32 {sT0}, {sT0}, {sT1}
            v_add_u32 v{T[1]}, {sT0}, v{T[1]}
            s_movk_i32 {sT2}, 0x2000
            """)
            k8 = next(i for i, x in enumerate(ph2) if x.kind == "mfma" and "a[160:163]" in x.text and i > 200)
            ph2[k8:k8] = rws
            for sg in range(4):
                for q in range(4):
                    fin += L(f"ds_write_b128 v{AD + sg*4 + q}, {vr(96 + sg*16 + q*4)}")
            fin += L("@lgkm0\ns_barrier") + self.stamp("redbar")
            for h in range(2):
                for sw in range(4):
                    for e in range(2):
                        fin += L(f"ds_read_b128 {vr(96 + h*32 + sw*8 + e*4)}, v{T[4+e]} offset:{h*8192 + sw*2048}")
            for h in range(2):
                b0 = 96 + h * 32
                for i in range(0, 8, 2):
                    fin += L(f"v_pk_add_f32 v[{b0+i}:{b0+i+1}], v[{b0+i}:{b0+i+1}], v[{b0+8+i}:{b0+9+i}]")
                for i in range(0, 8, 2):
                    fin += L(f"v_pk_add_f32 v[{b0+16+i}:{b0+17+i}], v[{b0+16+i}:{b0+17+i}], v[{b0+24+i}:{b0+25+i}]")
                for i in range(0, 8, 2):
                    fin += L(f"v_pk_add_f32 v[{b0+i}:{b0+i+1}], v[{b0+i}:{b0+i+1}], v[{b0+16+i}:{b0+17+i}]")
                d = 176 + h * 4
                for i in range(4): fin += L(f"v_cvt_pk_bf16_f32 v{d+i}, v{b0+2*i}, v{b0+2*i+1}")
                fin += L(f"buffer_store_dwordx4 {vr(d)}, v{T[1]}, {srd(SOUT)}, {sT2 if h else 0} offen {of}")
        else:
            RW = f"v{T[0]}"
            rws = L(f"v_mbcnt_lo_u32_b32 {RW}, -1, 0\nv_mbcnt_hi_u32_b32 {RW}, -1, {RW}\nv_lshl_add_u32 {RW}, {RW}, 4, {sL2}")
            for sg in range(1, 4): rws += L(f"v_xor_b32 v{T[sg]}, {sg*2048}, {RW}")
            mid += rws
            for sg in range(1, 4):
                for q in range(4):
                    fin += L(f"ds_write_b128 {RW}, {vr(96 + sg*16 + q*4)} offset:{((sg-1)*2 + (q >> 1))*8192 + (q & 1)*1024}")
            fin += L("@lgkm0\ns_barrier") + self.stamp("redbar")
            for q in range(4):
                for sg in range(1, 4):
                    fin += L(f"ds_read_b128 {vr(96 + sg*16 + q*4)}, v{T[sg]} offset:{((sg-1)*2 + (q >> 1))*8192 + (q & 1)*1024}")
            of = opt.get("oflags", "sc1")
            for pr in range(2):
                for q in (2 * pr, 2 * pr + 1):
                    for h in range(2):
                        r = 96 + q * 4 + 2 * h
                        fin += L(f"""
                        v_pk_add_f32 v[{r}:{r+1}], v[{r}:{r+1}], v[{r+16}:{r+17}]
                        v_pk_add_f32 v[{r+32}:{r+33}], v[{r+32}:{r+33}], v[{r+48}:{r+49}]
                        v_pk_add_f32 v[{r}:{r+1}], v[{r}:{r+1}], v[{r+32}:{r+33}]
                        """)
                d = 160 + pr * 4
                for i in range(4):
                    r = 96 + pr * 8 + 2 * i
                    fin += L(f"v_cvt_pk_bf16_f32 v{d+i}, v{r}, v{r+1}")
                fin += L(f"""
                v_permlane32_swap_b32 v{d}, v{d+2}
                v_permlane32_swap_b32 v{d+1}, v{d+3}
                buffer_store_dwordx4 {vr(d)}, {V('OUT')}, {srd(SOUT)}, 0 offen offset:{pr*32} {of}
                """)
        skip = self.lab("noep")
        fin += L(f"""
        s_or_b32 {sT0}, s2, {sW}
        s_cmp_eq_u32 {sT0}, 0
        s_cbranch_scc1 {skip}_go
        {skip}:
        """)
        self.ool += L(f"""
        {skip}_go:
        s_mov_b64 exec, 1
        @raw buffer_store_dword {V('tag')}, off, {srd(SW)}, 0 offset:{WS_EPOCH} sc1
        s_branch {skip}
        """)
        if opt.get("padto"):
            lp = self.lab("pad")
            if "xstamp" in opt:
                fin += L("@lgkm0\ns_mov_b32 s3, s4")
            fin += L(f"""
            {lp}:
            @raw s_memrealtime s[82:83]
            @raw s_waitcnt lgkmcnt(0)
            @raw s_sub_u32 s82, s82, s3
            @raw s_cmp_lt_u32 s82, {opt['padto']}
            @raw s_cbranch_scc1 {lp}
            """)
        if opt.get("stamps"):
            st = V("stamps")
            fin += L("s_mov_b64 exec, -1") + self.stamp("stored") + L("@vm0") + self.stamp("end") + self.stamp("FLUSH")
            fin += L(f"""
            s_memrealtime s[4:5]
            v_writelane_b32 {st}, s6, 60
            v_writelane_b32 {st}, {sSpin}, 61
            v_writelane_b32 {st}, s3, 62
            v_writelane_b32 {st}, s4, 63
            s_lshl_b32 {sT0}, s2, 2
            s_add_u32 {sT0}, {sT0}, {sW}
            s_lshl_b32 {sT0}, {sT0}, 8
            s_add_u32 {sT0}, {sT0}, {WS_STAMP}
            v_mbcnt_lo_u32_b32 v96, -1, 0
            v_mbcnt_hi_u32_b32 v96, -1, v96
            v_lshlrev_b32 v96, 2, v96
            buffer_store_dword {st}, v96, {srd(SW)}, {sT0} offen
            """)
        fin += L("s_endpgm")

        fin += L(f"L_stop{self.typ}:") + self.ool + L(f"L_end{self.typ}:")
        loads = self.pro_loads
        t1 = []
        hs = opt.get("hstamp")
        if opt.get("early"):
            o2 = dict(opt); o2["t1"] = 0
            t1 = L(T1X.replace("s[44:45]", f"s[{SX}:{SX+1}]").replace("s[46:47]", f"s[{SQ}:{SQ+1}]").replace("s[48:49]", f"s[{SG}:{SG+1}]").replace("s[50:51]", f"s[{SU}:{SU+1}]") + "s_mov_b64 exec, -1")
            common = common_head(o2) + self.first + t1
            t1 = []
        else:
          common = common_head(opt) + (L("s_memtime s[94:95]") if hs else []) + self.first + (L("s_memtime s[96:97]") if hs else []) + L("@lgkm0") + (L("s_memtime s[98:99]") if hs else [])
        if opt.get("stamps") or opt.get("padto"): common += L("s_mov_b32 s3, s4")
        p1 = opt.get("t1pos", 0)
        nc = opt.get("nc", 8)
        tlb = []
        if opt.get("tlb"):
            tlb = L(f"""
            s_mov_b64 exec, 1
            buffer_load_dword v244, {V('HS0')}, {srd(SW)}, 0 offen sc1
            buffer_load_dword v243, {V('A80')}, {srd(SW)}, 0 offen sc1
            """) + (L(f"buffer_load_dword v242, {V('OUT')}, {srd(SOUT)}, 0 offen sc1") if opt["tlb"] == 2 else []) + L("s_mov_b64 exec, -1")
        warm = []
        wat = opt.get("wat", -1)
        if opt.get("isl", 2):
            X = self.typ
            warm = L(f"""
            s_mov_b64 exec, 0
            s_cmp_eq_u32 {sW}, 0
            s_cbranch_scc1 L_isl{X}1
            s_cmp_eq_u32 {sW}, 1
            s_cbranch_scc1 L_isl{X}2
            s_cmp_eq_u32 {sW}, 2
            s_cbranch_scc1 L_isl{X}3
            s_branch L_isl{X}4
            L_ret{X}:
            s_mov_b64 exec, -1
            """)
        common += sum(loads[:p1], []) + t1 + sum(loads[p1:nc], [])
        common += L("s_bitcmp1_b32 s2, 6\ns_cbranch_scc1 L_pathB")
        if hs: body = L("@lgkm0") + sum((L(f"v_writelane_b32 {V('stamps')}, s{r}, {i}") for i, r in ((56, 100), (57, 94), (58, 96), (59, 98))), []) + body
        head = body + L(f"buffer_load_dword {V('tag')}, off, {srd(SW)}, 0 offset:{WS_EPOCH} sc1") + self.second + self.setup + (warm if wat < 0 else []) + sum(loads[nc:], []) + tlb
        if opt.get("t2", 1) == -3: head += touch2(self, 0, False)
        tagf = L(f"v_add_u32 {V('tag')}, 0x9e3779b9, {V('tag')}\nv_readfirstlane_b32 {sTag}, {V('tag')}")
        k1 = next(i for i, x in enumerate(ph1) if x.kind == "mfma")
        ph1[k1 + 1:k1 + 1] = tagf
        if wat >= 0:
            k2 = [i for i, x in enumerate(ph1) if x.text.startswith("@sync")][wat]
            ph1[k2:k2] = warm
        if opt.get("nosc1"):
            for x in ph1 + mid:
                if x.kind == "vmem" and "store_dwordx4" in x.op: x.text = x.text.replace(" sc1", "")
        if opt.get("nost") == 2:
            for x in ph1 + mid:
                if x.kind == "vmem" and "store_dwordx4" in x.op: x.text = re.sub(r"(s\[\d+:\d+\]), \S+ offen", r"\1, s35 offen", x.text.replace("s[32:35]", "s[40:43]")).replace(" sc1", "")
        if opt.get("novalu"):
            mid = [x for x in mid if not (x.kind == "valu" and x.op.startswith(("v_pk", "v_exp", "v_rcp", "v_mul", "v_max", "v_add_f32", "v_cvt")))]
        if opt.get("novalu") == 2:
            keep = lambda x: not (x.kind == "valu" and x.op.startswith(("v_pk", "v_exp", "v_rcp", "v_mul", "v_max", "v_add_f32", "v_cvt", "v_fma")))
            k0 = next(i for i, x in enumerate(ph1) if "H1" in x.text)
            ph1 = ph1[:k0 + 200] + [x for x in ph1[k0 + 200:] if keep(x)]
        if opt.get("nost") == 1:
            for x in ph1 + mid:
                if x.kind == "vmem" and "store_dwordx4" in x.op: x.text = x.text.replace("_dwordx4", "_dword").replace(" sc1", ""); x.text = re.sub(r"v\[(\d+):\d+\]", r"v\1", x.text, 1)
        if opt.get("nomfma"): ph1 = [x for x in ph1 if x.kind != "mfma"]; ph2 = [x for x in ph2 if x.kind != "mfma"]
        if opt.get("nods"): ph1 = [x for x in ph1 if not x.op.startswith("ds_read")]; ph2 = [x for x in ph2 if not x.op.startswith("ds_read")]
        if opt.get("nobar"): ph1 = [x for x in ph1 if x.op != "s_barrier"]
        if opt.get("nodma"): ph1 = [x for x in ph1 if not (x.kind == "vmem" and x.lds and not x.tag)]
        return self.expand_stamps(common + head + ph1 + mid + ph2 + fin)


def touch(sr, mask, code, dst, raw=False):
    p = "@raw " if raw else ""
    return L(f"{code}\ns_mov_b64 exec, {mask}\n{p}buffer_load_dword v{dst}, v246, {srd(sr)}, {sOff} offen")


def rowhalf(stride, nbytes, c0):
    return (f"s_lshr_b32 {sOff}, {sGW}, 1\ns_mul_i32 {sOff}, {sOff}, {stride}\ns_and_b32 {sT0}, {sGW}, 1\n"
            f"s_mul_i32 {sT0}, {sT0}, {nbytes}\ns_add_u32 {sOff}, {sOff}, {sT0}" + (f"\ns_add_u32 {sOff}, {sOff}, {c0}" if c0 else ""))


def touch2(g, k, cond=True, part=0):
    skip = g.lab("t2") if cond else None
    n = g.opt.get("t2n", 4) if cond else 1
    o = L(f"s_and_b32 {sT0}, {sSel}, {n-1}\ns_cmp_lg_u32 {sT0}, {k}\ns_cbranch_scc1 {skip}") if cond else []
    p = "@raw " if cond else ""
    if g.opt.get("xt", 1):
        t = [0, 0, 0, 0, 239, 240, 241, 242]
        assert g.hi_next <= 239
        x8 = g.opt.get("map2", "8x4").startswith("8x4")
        o += L(f"""
        v_lshrrev_b32 v{t[4]}, 7, v246
        s_and_b32 {sT0}, {sGW}, 127
        s_bfe_u32 {sT1}, s2, 0x10000
        s_lshl_b32 {sT2}, {sT1}, 7
        s_add_u32 {sT2}, {sT2}, {sT0}
        s_lshl_b32 {sT2}, {sT2}, 1
        s_bfe_u32 {sOff}, s2, 0x20001
        """)
        if part in (0, 1):
            o += L(f"""
            v_bfe_u32 v{t[5]}, v{t[4]}, 1, 1
            v_add_u32 v{t[5]}, {sT2}, v{t[5]}
            v_and_b32 v{t[6]}, 1, v{t[4]}
            v_lshl_add_u32 v{t[6]}, {sOff}, 1, v{t[6]}
            v_lshlrev_b32 v{t[6]}, 7, v{t[6]}
            v_mul_u32_u24 v{t[7]}, 3072, v{t[5]}
            v_add_u32 v{t[7]}, v{t[7]}, v{t[6]}
            s_mov_b64 exec, 15
            {p}buffer_load_dword v248, v{t[7]}, {srd(SQ)}, 0 offen
            s_mov_b64 exec, -1
            v_lshrrev_b32 v{t[7]}, 2, v{t[4]}
            v_lshl_add_u32 v{t[6]}, v{t[7]}, 10, v{t[6]}
            v_add_u32 v{t[6]}, 1536, v{t[6]}
            v_lshlrev_b32 v{t[7]}, 7, {sOff}
            v_add_u32 v{t[7]}, 1024, v{t[7]}
            v_cmp_gt_u32 vcc, 8, v{t[4]}
            v_cndmask_b32 v{t[6]}, v{t[7]}, v{t[6]}, vcc
            v_mul_u32_u24 v{t[5]}, 3584, v{t[5]}
            v_add_u32 v{t[6]}, v{t[6]}, v{t[5]}
            s_mov_b64 exec, 0x5ff
            {p}buffer_load_dword v250, v{t[6]}, {srd(SG)}, 0 offen
            {p}buffer_load_dword v249, v{t[6]}, {srd(SU)}, 0 offen
            s_mov_b64 exec, -1
            """)
        if part in (0, 2) and x8:
            o += L(f"""
            v_lshrrev_b32 v{t[5]}, 2, v{t[4]}
            v_and_b32 v{t[6]}, 3, v{t[4]}
            v_lshlrev_b32 v{t[6]}, 7, v{t[6]}
            v_lshl_add_u32 v{t[6]}, v{t[5]}, 10, v{t[6]}
            s_lshl_b32 {sT1}, {sT1}, 9
            s_lshl_b32 {sT2}, {sOff}, 7
            s_add_u32 {sT2}, {sT2}, {sT0}
            s_lshl_b32 {sOff}, {sT2}, 10
            s_add_u32 {sOff}, {sOff}, {sT1}
            s_mov_b64 exec, 15
            {p}buffer_load_dword v247, v{t[6]}, {srd(SO)}, {sOff} offen
            s_lshl_b32 {sOff}, {sT2}, 12
            s_add_u32 {sOff}, {sOff}, {sT1}
            s_mov_b64 exec, 0xffff
            {p}buffer_load_dword v245, v{t[6]}, {srd(SD)}, {sOff} offen
            """)
        elif part in (0, 2):
            o += touch(SO, "15", f"s_lshl_b32 {sOff}, {sGW}, 9", 247, cond)
            o += touch(SD, "0x3fff", f"s_mul_i32 {sOff}, {sGW}, 1792", 245, cond)
        part = 9
    if part in (0, 1):
        o += touch(SG, "0x3ff", rowhalf(3584, 1280, 1024), 250, cond) + L(p + f"buffer_load_dword v249, v246, {srd(SU)}, {sOff} offen")
        o += touch(SQ, "15", rowhalf(3072, 512, 0), 248, cond)
    if part == 0:
        o += touch(SO, "15", f"s_lshl_b32 {sOff}, {sGW}, 9", 247, cond)
        o += touch(SD, "0x3fff", f"s_mul_i32 {sOff}, {sGW}, 1792", 245, cond)
    if part == 2:
        a, d = g.v("t5"), g.v("t6")
        o += L(f"v_mbcnt_lo_u32_b32 v{a}, -1, 0\nv_mbcnt_hi_u32_b32 v{a}, -1, v{a}\nv_lshlrev_b32 v{a}, 7, v{a}")
        o += L(f"s_lshl_b32 {sOff}, {sGW}, 9\ns_mov_b64 exec, 15\nbuffer_load_dword v{d}, v{a}, {srd(SO)}, {sOff} offen")
        o += L(f"s_mul_i32 {sOff}, {sGW}, 1792\ns_mov_b64 exec, 0x3fff\nbuffer_load_dword v{d+1}, v{a}, {srd(SD)}, {sOff} offen")
    o += L("s_mov_b64 exec, -1")
    if cond: o += L(f"{skip}:")
    return o


def touch4(g):
    a, b, d = g.v("t5"), g.v("t4"), g.v("t6")
    return L(f"""
    v_mbcnt_lo_u32_b32 v{a}, -1, 0
    v_mbcnt_hi_u32_b32 v{a}, -1, v{a}
    v_and_b32 v{b}, 3, v{a}
    v_lshrrev_b32 v{a}, 2, v{a}
    v_lshlrev_b32 v{b}, 7, v{b}
    v_lshl_add_u32 v{a}, v{a}, 10, v{b}
    s_and_b32 {sT0}, {sGW}, 127
    s_bfe_u32 {sT1}, s2, 0x10000
    s_lshl_b32 {sT1}, {sT1}, 9
    s_mul_i32 {sOff}, {sT0}, {14*1024}
    s_add_u32 {sOff}, {sOff}, {sT1}
    s_mov_b32 exec_hi, 0xffffff
    buffer_load_dword v{d}, v{a}, {srd(SD)}, {sOff} offen
    s_lshl_b32 {sOff}, {sT0}, 12
    s_add_u32 {sOff}, {sOff}, {sT1}
    s_mov_b64 exec, 0xffff
    buffer_load_dword v{d+1}, v{a}, {srd(SO)}, {sOff} offen
    s_mov_b64 exec, -1
    """)


def codepf(opt):
    o = L(f"""
    s_getpc_b64 s[82:83]
    L_pc:
    s_bitcmp1_b32 s2, 6
    s_cselect_b32 {sT2}, L_pathB-L_pathA, 0
    s_add_u32 {sT2}, {sT2}, L_pathA-L_pc
    """)
    m = opt.get("codepf", 1)
    if m == 1:
        o += L(f"""
        s_bfe_u32 {sT0}, s2, 0x30003
        s_lshr_b32 {sT1}, s2, 7
        s_lshl3_add_u32 {sT0}, {sT1}, {sT0}
        s_mul_i32 {sT0}, {sT0}, 1536
        s_add_u32 {sT2}, {sT2}, {sT0}
        v_min_u32 v1, 11, v0
        v_lshl_add_u32 v1, v1, 7, {sT2}
        v_min_u32 v1, L_endB-L_pc-4, v1
        global_load_dword v255, v1, s[82:83]
        """)
    elif m == 2:
        o += L(f"""
        v_lshl_add_u32 v1, v0, 7, {sT2}
        v_min_u32 v1, L_endB-L_pc-4, v1
        global_load_dword v255, v1, s[82:83]
        """)
    elif m == 3:
        o += L(f"""
        s_bfe_u32 {sT0}, s2, 0x30003
        s_lshr_b32 {sT1}, s2, 7
        s_lshl3_add_u32 {sT0}, {sT1}, {sT0}
        s_mul_i32 {sT0}, {sT0}, 1536
        s_add_u32 {sT0}, {sT2}, {sT0}
        v_and_b32 v1, 63, v0
        v_lshlrev_b32 v1, 7, v1
        s_mov_b64 exec, 0x1ff
        global_load_dword v244, v1, s[82:83]
        v_add_u32 v2, {sT2}, v1
        global_load_dword v243, v2, s[82:83]
        s_mov_b64 exec, -1
        v_min_u32 v1, 11, v0
        v_lshl_add_u32 v1, v1, 7, {sT0}
        v_min_u32 v1, L_endB-L_pc-4, v1
        global_load_dword v255, v1, s[82:83]
        """)
    return o


T1 = """
        v_lshrrev_b32 v2, 6, v0
        v_lshl_add_u32 v2, s2, 2, v2
        v_and_b32 v1, 63, v0
        v_lshlrev_b32 v1, 7, v1
        v_lshl_add_u32 v3, v2, 11, v1
        v_lshrrev_b32 v4, 1, v2
        v_and_b32 v2, 1, v2
        v_mad_u32_u24 v5, v4, 3, v2
        v_mad_u32_u24 v4, v4, 7, v2
        v_lshl_add_u32 v5, v5, 10, v1
        v_lshl_add_u32 v4, v4, 9, v1
        s_mov_b64 exec, 0xffff
        @lgkm0
        global_load_dword v254, v3, s[44:45]
        s_mov_b64 exec, 0xff
        global_load_dword v253, v5, s[46:47] offset:1024
        s_mov_b64 exec, 15
        global_load_dword v252, v4, s[48:49]
        global_load_dword v251, v4, s[50:51]
"""
T1X = """
        v_lshrrev_b32 v2, 6, v0
        s_lshr_b32 s52, s2, 3
        s_and_b32 s53, s2, 1
        s_bfe_u32 s54, s2, 0x20001
        v_lshl_add_u32 v2, s52, 2, v2
        v_and_b32 v1, 63, v0
        s_lshl2_add_u32 s52, s53, s54
        s_lshl_b32 s52, s52, 18
        v_lshlrev_b32 v3, 11, v2
        v_lshl_add_u32 v3, v1, 7, v3
        v_add_u32 v3, s52, v3
        s_lshl_b32 s53, s53, 8
        v_lshl_add_u32 v2, v2, 1, s53
        v_bfe_u32 v4, v1, 1, 1
        v_add_u32 v2, v2, v4
        v_and_b32 v4, 1, v1
        v_lshl_add_u32 v4, s54, 1, v4
        v_lshlrev_b32 v4, 7, v4
        v_lshrrev_b32 v1, 2, v1
        v_lshl_add_u32 v5, v1, 10, v4
        s_movk_i32 s52, 0xc00
        s_movk_i32 s53, 0xe00
        v_mad_u32_u24 v5, v2, s52, v5
        v_mad_u32_u24 v4, v2, s53, v4
        s_mov_b64 exec, 0xffff
        @lgkm0
        global_load_dword v254, v3, s[44:45]
        s_mov_b64 exec, 0xff
        global_load_dword v253, v5, s[46:47] offset:1024
        s_mov_b64 exec, 15
        global_load_dword v252, v4, s[48:49]
        global_load_dword v251, v4, s[50:51]
"""
T1Z = """
        v_lshrrev_b32 v2, 6, v0
        s_lshr_b32 s52, s2, 3
        s_and_b32 s53, s2, 1
        s_bfe_u32 s54, s2, 0x20001
        v_lshl_add_u32 v2, s52, 2, v2
        v_and_b32 v1, 63, v0
        s_lshl2_add_u32 s52, s53, s54
        s_lshl_b32 s52, s52, 18
        v_lshlrev_b32 v3, 11, v2
        v_lshl_add_u32 v3, v1, 7, v3
        v_add_u32 v3, s52, v3
        s_lshl_b32 s53, s53, 8
        v_lshl_add_u32 v2, v2, 1, s53
        v_bfe_u32 v4, v1, 1, 1
        v_add_u32 v2, v2, v4
        v_and_b32 v4, 1, v1
        v_lshl_add_u32 v4, s54, 1, v4
        v_lshlrev_b32 v4, 7, v4
        v_lshrrev_b32 v1, 2, v1
        v_lshl_add_u32 v5, v1, 10, v4
        s_movk_i32 s52, 0xc00
        s_movk_i32 s53, 0xe00
        v_mad_u32_u24 v5, v2, s52, v5
        v_mad_u32_u24 v4, v2, s53, v4
        s_mov_b64 exec, 0xfefe
        @lgkm0
        global_load_dword v254, v3, s[44:45]
        s_mov_b64 exec, 0xff
        global_load_dword v253, v5, s[46:47] offset:1024
        s_mov_b64 exec, 15
        global_load_dword v252, v4, s[48:49]
        global_load_dword v251, v4, s[50:51]
"""
T1V = """
        v_lshrrev_b32 v2, 6, v0
        s_lshr_b32 s52, s2, 3
        s_and_b32 s53, s2, 1
        s_bfe_u32 s54, s2, 0x20001
        v_lshl_add_u32 v2, s52, 2, v2
        v_and_b32 v1, 63, v0
        s_lshl2_add_u32 s52, s53, s54
        s_lshl_b32 s52, s52, 18
        v_lshlrev_b32 v3, 11, v2
        v_lshl_add_u32 v3, v1, 7, v3
        v_add_u32 v3, s52, v3
        s_lshl_b32 s53, s53, 8
        v_lshl_add_u32 v2, v2, 1, s53
        v_bfe_u32 v4, v1, 1, 1
        v_add_u32 v2, v2, v4
        v_and_b32 v4, 1, v1
        v_lshl_add_u32 v4, s54, 1, v4
        v_lshlrev_b32 v4, 7, v4
        v_lshrrev_b32 v1, 2, v1
        v_lshl_add_u32 v5, v1, 10, v4
        s_movk_i32 s52, 0xc00
        s_movk_i32 s53, 0xe00
        v_mad_u32_u24 v5, v2, s52, v5
        v_mad_u32_u24 v4, v2, s53, v4
        s_mov_b64 exec, 0xfcfc
        @lgkm0
        global_load_dword v254, v3, s[44:45]
        s_mov_b64 exec, 0xff
        global_load_dword v253, v5, s[46:47] offset:1024
        s_mov_b64 exec, 15
        global_load_dword v252, v4, s[48:49]
        global_load_dword v251, v4, s[50:51]
"""
T1W = """
        v_lshrrev_b32 v2, 6, v0
        s_lshr_b32 s52, s2, 3
        s_and_b32 s53, s2, 1
        s_bfe_u32 s54, s2, 0x20001
        v_lshl_add_u32 v2, s52, 2, v2
        v_and_b32 v1, 63, v0
        s_lshl2_add_u32 s52, s53, s54
        s_lshl_b32 s52, s52, 18
        v_lshlrev_b32 v3, 11, v2
        v_lshl_add_u32 v3, v1, 7, v3
        v_add_u32 v3, s52, v3
        v_bfe_u32 v4, v1, 1, 2
        v_lshl_add_u32 v2, v2, 2, v4
        v_and_b32 v4, 1, v1
        v_lshl_add_u32 v4, s54, 1, v4
        v_lshlrev_b32 v4, 7, v4
        v_lshrrev_b32 v1, 3, v1
        v_lshl_add_u32 v5, v1, 10, v4
        s_movk_i32 s52, 0xc00
        s_movk_i32 s53, 0xe00
        v_mad_u32_u24 v5, v2, s52, v5
        v_mad_u32_u24 v4, v2, s53, v4
        s_mov_b64 exec, 0xffff
        @lgkm0
        global_load_dword v254, v3, s[44:45]
        global_load_dword v253, v5, s[46:47] offset:1024
        s_mov_b64 exec, 0xff
        global_load_dword v252, v4, s[48:49]
        global_load_dword v251, v4, s[50:51]
"""
T1Y = """
        v_lshrrev_b32 v2, 6, v0
        s_lshr_b32 s52, s2, 3
        s_and_b32 s53, s2, 1
        s_bfe_u32 s54, s2, 0x20001
        v_lshl_add_u32 v2, s52, 2, v2
        v_and_b32 v1, 63, v0
        s_and_b32 s52, s54, 1
        s_lshl1_add_u32 s52, s53, s52
        s_lshl_b32 s52, s52, 19
        v_lshlrev_b32 v3, 12, v2
        v_lshl_add_u32 v3, v1, 7, v3
        v_add_u32 v3, s52, v3
        s_lshl_b32 s53, s53, 8
        v_lshl_add_u32 v2, v2, 1, s53
        v_bfe_u32 v4, v1, 1, 1
        v_add_u32 v2, v2, v4
        v_and_b32 v4, 1, v1
        v_lshl_add_u32 v4, s54, 1, v4
        v_lshlrev_b32 v4, 7, v4
        v_lshrrev_b32 v1, 2, v1
        v_lshl_add_u32 v5, v1, 10, v4
        s_movk_i32 s52, 0xc00
        s_movk_i32 s53, 0xe00
        v_mad_u32_u24 v5, v2, s52, v5
        v_mad_u32_u24 v4, v2, s53, v4
        s_mov_b32 exec_hi, 0
        @lgkm0
        global_load_dword v254, v3, s[44:45]
        s_mov_b64 exec, 0xff
        global_load_dword v253, v5, s[46:47] offset:1024
        s_mov_b64 exec, 15
        global_load_dword v252, v4, s[48:49]
        global_load_dword v251, v4, s[50:51]
"""


def common_head(opt):
    o = L(f"""
    s_cmp_ge_u32 s2, 0x100
    s_cbranch_scc1 L_end
    """)
    if opt.get("stamps") or opt.get("padto"):
        o += L(("s_memrealtime" if opt.get("rt") else "s_memtime") + " s[6:7]\ns_memrealtime s[4:5]")
    if opt.get("t1", 2) == 2:
        o += L("""
        s_load_dwordx4 s[44:47], s[0:1], 0
        s_load_dwordx4 s[48:51], s[0:1], 32
        """)
    if opt.get("pftop", 1) == 1 and not opt.get("early"): o += codepf(opt)
    if opt.get("t1", 2) == 2:
        o += L(f"""
        {(T1, T1X, T1W, T1Y, T1Z, T1V)[opt.get("xt", 1)]}
        {"s_memtime s[100:101]" if opt.get("hstamp") else ""}
        s_mov_b64 exec, -1
        """)
    if opt.get("pftop", 1) == 2: o += codepf(opt)
    o += L(f"""
    s_bitcmp1_b32 s2, 6
    s_cselect_b32 {sT0}, 32, 8
    s_cselect_b32 {sT1}, 40, 8
    s_load_dwordx2 s[{S1}:{S1+1}], s[0:1], {sT0}
    s_load_dwordx2 s[{S2}:{S2+1}], s[0:1], {sT1}
    """)
    for b, slot in ((SX, 0), (SG, 4), (SU, 5), (SQ, 1), (SGW, 7), (SW, 10), (SD, 6), (SO, 2), (SOUT, 8)):
        o += L(f"s_load_dwordx2 s[{b}:{b+1}], s[0:1], {slot*8}")
    if not opt.get("pftop", 1) or opt.get("early"): o += codepf(opt)
    for b, n in ((SX, 2048 * 1024), (SQ, 512 * 3072), (SG, 512 * 3584), (SU, 512 * 3584), (SD, 1792 * 1024),
                 (SO, 512 * 1024), (SW, WS_BYTES), (SOUT, 2048 * 1024), (SGW, 1024)):
        o += L(f"s_mov_b32 s{b+2}, {n}\ns_mov_b32 s{b+3}, 0x20000")
    return o


def assemble_sizes(txt):
    import subprocess, tempfile, os
    d = tempfile.mkdtemp()
    open(d + "/a.s", "w").write('.amdgcn_target "amdgcn-amd-amdhsa--gfx950"\n.text\nk:\n' + txt)
    subprocess.run(["clang", "-x", "assembler", "-target", "amdgcn-amd-amdhsa", "-mcpu=gfx950", "-c", d + "/a.s", "-o", d + "/a.o"], check=True)
    o = subprocess.run(["llvm-objdump", "-d", "--mcpu=gfx950", d + "/a.o"], capture_output=True, text=True).stdout
    sizes = [4 * len(re.match(r".*// [0-9A-F]+: ((?:[0-9A-F]{8} ?)+)", l).group(1).split()) for l in o.split("\n") if re.match(r".*// [0-9A-F]+: [0-9A-F]{8}", l)]
    return sizes


def generate(opt):
    parts = []
    info = []
    names = []
    for typ in "AB":
        g = Gen(typ, opt)
        ins, added = finalize(g.build())
        k = next(i for i, x in enumerate(ins) if x.text.startswith("s_cbranch_scc1 L_pathB"))
        parts.append((ins[:k + 1], ins[k + 1:]))
        info.append((typ, len(ins), added, g.nv, g.hi_next))
        if opt.get("plan"):
            print(typ, g.note)
            for k, v in g.when.items(): print("  ", k, " ".join(f"{a}{b}@{g.blk[(a, b)]}" for a, b in v), "park", g.parks[k])
            print("   post", g.post)
        names.append("; stamps " + typ + ": " + " ".join(g.stamp_names) + "\n" if g.stamp_names else "")
    assert text_of(parts[0][0]) == text_of(parts[1][0])
    isl = opt.get("isl", 2)
    al = ".p2align 12\n" if isl else ""
    txt = text_of(parts[0][0]) + ("    s_branch L_pathA\n" + al if isl == 1 else "") + "L_pathA:\n" + text_of(parts[0][1]) + al + "L_pathB:\n" + text_of(parts[1][1]) + "L_end:\n    s_endpgm\n"
    if opt.get("align", 1):
        stub = "".join(f"L_isl{x}{k}:\n" for x in "AB" for k in range(1, 5)) if isl else ""
        txt, nw, nn, cnt = align8(txt, lambda t: assemble_sizes(t.replace(al, "") + stub) if al else assemble_sizes(t),
                                  {"L_pathA": ("L_stopA", "A"), "L_pathB": ("L_stopB", "B")} if isl == 1 else {"L_pathB": ("L_stopB", "B")} if isl else None,
                                  (0x300, ("L_stopA", "A")) if isl == 2 else None)
        info.append(("align", nw, nn, cnt))
    ref = open("gated_mix__linear_attn_block__geglu_ffn__prompt.s.ref").read()
    hdr = "".join(l + "\n" for l in ref.split("\n") if l.startswith(";") and "@launch" not in l and "Override" not in l and "grid=ceil" not in l)
    out = f"""{hdr}{"".join(names)}; @launch grid=(256,1,1) block=(256,1,1) lds=163840
.amdgcn_target "amdgcn-amd-amdhsa--gfx950"
.text
.globl {KNAME}
.p2align 8
.type {KNAME},@function
{KNAME}:
{txt}.section .rodata,"a"
.p2align 6
.amdhsa_kernel {KNAME}
  .amdhsa_next_free_vgpr 512
  .amdhsa_next_free_sgpr 102
  .amdhsa_accum_offset 256
  .amdhsa_group_segment_fixed_size 0
  .amdhsa_kernarg_size 88
  .amdhsa_user_sgpr_count 2
  .amdhsa_user_sgpr_kernarg_segment_ptr 1
  .amdhsa_system_sgpr_workgroup_id_x 1
  .amdhsa_float_denorm_mode_32 3
.end_amdhsa_kernel
"""
    return out, info


def parse_opts(args):
    opt = {}
    for a in args:
        k, v = a.split("=", 1)
        try: v = int(v)
        except ValueError: v = v.replace("+", " ")
        opt[k] = v
    return opt


if __name__ == "__main__":
    out, info = generate(parse_opts(sys.argv[2:]))
    open(sys.argv[1], "w").write(out)
    print(info)
```

```python
import sys, struct, re
from prog import *

KNAME = "gated_mix__linear_attn_block__geglu_ffn__prompt_kernel"

WS_EPOCH = 0
WS_FL = 0x1000
WS_KF = 0x12000
WS_G = 0x14000
WS_ZP = 0x18000
WS_KP = 0x28000
WS_KT = 0xA8000
WS_H = 0x100000
WS_STAMP = 0x8000000
RG_BYTES = 144 * 1024
WS_BYTES = 268435456

def f32(x): return "0x%08x" % struct.unpack("<I", struct.pack("<f", x))[0]
LOG2E = 1.4426950408889634
K0 = -2.0 * 0.7978845608028654 * LOG2E
K1 = K0 * 0.044715

SX, SQ, SG, SU, SD, SO, SW, SOUT, SGW = 8, 12, 16, 20, 24, 28, 32, 36, 40
srd = lambda b: f"s[{b}:{b+3}]"
(sW, sRH, sJ, sR, sT, sTag, sR2, sC2, sT0, sT1, sT2, sRot, sKx, sKw, sKq, sL4, sL2, sL1, sCE, sCH, sCL,
 sE, sEh, sL, sO, sFP, sKFP, sKPP, sZPP, sA0, sA1, sSpin, sGrow, sOff) = [f"s{i}" for i in range(44, 78)]
sAo = sA0
sMH = "s[78:79]"
sMR = "s[80:81]"
sPC = "s[4:5]"
STAMP0 = 82
sGW = "s92"
sTab = [f"s{i}" for i in range(93, 101)]
sSel = "s101"
sKB, sZB, sTB, sStr = sRot, sKx, sKq, sCL
S1, S2 = 84, 88

ACC = lambda t, rg: 96 + (t * 2 + rg) * 16
vr = lambda b, n=4: f"v[{b}:{b+n-1}]"
ar = lambda b, n=4: f"a[{b}:{b+n-1}]"
LDS_MISC = 19 * 8192


def hoist_m0(groups):
    out = [list(g) for g in groups]
    for i in range(1, len(out)):
        if len(out[i]) == 2 and out[i][0].text.startswith("s_add_u32 m0") and out[i - 1][-1].kind == "vmem":
            out[i - 1].append(out[i].pop(0))
    return out


class Gen:
    def __init__(self, typ, opt):
        self.typ = typ
        self.opt = opt
        self.nv = 1
        self.names = {}
        self.setup = []
        self.hi_next = 192
        self.ool = []
        self.nstamp = 0
        self.nlab = 0

    def v(self, name, n=1, p1only=False):
        if name not in self.names:
            if p1only:
                if n > 1: self.hi_next = (self.hi_next + 1) // 2 * 2
                self.names[name] = self.hi_next; self.hi_next += n
                assert self.hi_next <= 256
            else:
                if n > 1: self.nv = (self.nv + 1) // 2 * 2
                self.names[name] = self.nv; self.nv += n
                assert self.nv <= 64, name
        return self.names[name]

    def V(self, name, p1only=False): return f"v{self.v(name, 1, p1only)}"

    def lab(self, s):
        self.nlab += 1
        return f"L_{self.typ}_{s}_{self.nlab}"

    def stamp(self, name):
        if "xstamp" in self.opt:
            return L("s_memrealtime s[4:5]") if name == self.opt["xstamp"] else []
        if not self.opt.get("stamps"): return []
        if self.opt.get("coarse") and name not in ("start", "sync0", "s4", "p0", "p4", "p1end", "mid", "u8", "u28", "ph2end", "end", "FLUSH"): return []
        return [I("@stamp " + name)]

    def expand_stamps(self, ins):
        out, n = [], 0
        self.stamp_names = []
        lines = mf = 0
        half = {f"v{self.names.get('Hg', -1)},", f"v{self.names.get('Hu', -1)},"}
        for x in ins:
            if x.kind == "vmem":
                lines += (16 if x.text.split()[1] in half else 8) if "x4" in x.op else 2
            if x.kind == "mfma": mf += 1
            if x.kind == "pseudo" and x.text.startswith("@stamp"):
                i = (STAMP0, 4)[n % 2]
                if n: out += L(f"v_writelane_b32 {self.V('stamps')}, s{(STAMP0, 4)[(n-1) % 2]}, {n-1}")
                nm = x.text.split()[1]
                if nm != "FLUSH":
                    out += L(f"{'s_memrealtime' if self.opt.get('rt') else 's_memtime'} s[{i}:{i+1}]")
                    self.stamp_names.append(f"{nm}:{lines}:{mf}")
                    n += 1
                    assert n <= 60, n
            else:
                out.append(x)
        return out

    def lds(self, pat, off, p1only=False):
        win, imm = off >> 16, off & 0xFFFF
        if win == 0:
            return self.V(pat, p1only), imm
        name = f"{pat}@{win}"
        if name not in self.names:
            self.setup += L(f"v_add_u32 {self.V(name, p1only)}, {win << 16}, {self.V(pat, p1only)}")
        return self.V(name), imm

    def prologue(self):
        A = self.typ == "A"
        V = self.V
        self.nv = 2
        t = [self.V(f"t{i}") for i in range(8)]
        l, l3, l7, l4, nh, wsw = [self.V(n, True) for n in ("lane", "l3", "l7", "l4", "nh", "wsw")]
        P = lambda n: self.V(n, True)
        self.first = L(f"""
        v_lshrrev_b32 {t[0]}, 6, v0
        v_and_b32 {l}, 63, v0
        s_and_b32 {sT0}, s2, 1
        v_readfirstlane_b32 {sW}, {t[0]}
        s_bfe_u32 {sT2}, s2, 0x30003
        s_lshl3_add_u32 {sR}, {sT0}, {sT2}
        s_bfe_u32 {sT1}, s2, 0x20001
        s_lshr_b32 {sOff}, s2, 7
        s_lshl1_add_u32 {sT}, {sT1}, {sOff}
        s_lshl2_add_u32 {sGW}, {sT0}, {sT1}
        s_lshl_b32 {sGW}, {sGW}, 5
        s_lshr_b32 {sOff}, s2, 3
        s_add_u32 {sGW}, {sGW}, {sOff}
        s_lshl2_add_u32 {sGW}, {sGW}, {sW}
        v_lshrrev_b32 {l3}, 3, {l}
        v_and_b32 {l7}, 7, {l}
        v_lshrrev_b32 {l4}, 4, {l}
        v_lshlrev_b32 v246, 7, {l}
        s_lshl2_add_u32 {sT0}, {sR}, {sW}
        s_lshl_b32 {sT0}, {sT0}, 15
        v_xor_b32 {t[0]}, {l7}, {l4}
        v_lshlrev_b32 {t[0]}, 4, {t[0]}
        v_lshl_add_u32 {t[0]}, {l3}, 10, {t[0]}
        v_add_u32 {P('X0')}, {sT0}, {t[0]}
        v_xor_b32 {t[1]}, 64, {P('X0')}
        v_add_u32 {P('X1')}, {8192-1024}, {t[1]}
        v_add_u32 {P('X2')}, {16384-2048}, {P('X0')}
        v_add_u32 {P('X3')}, {16384-2048}, {P('X1')}
        v_and_b32 {nh}, 1, {l4}
        v_lshlrev_b32 {t[0]}, 2, {nh}
        v_xor_b32 {t[0]}, {t[0]}, {l7}
        v_lshlrev_b32 {wsw}, 4, {t[0]}
        s_lshl_b32 {sCE}, {sT}, 7
        {f's_mul_i32 {sA1}, s2, {self.opt["rotx"]}' if self.opt.get("rotx") else ''}
        s_bitcmp1_b32 s2, 6
        s_cselect_b32 {sStr}, 7, 6
        s_cselect_b32 {sT1}, 0, 1024
        s_cselect_b32 {sT2}, 32, 0
        s_cselect_b32 {sGrow}, 8, 0
        s_lshl_b32 s{S1+2}, {sStr}, 18
        s_lshl_b32 {sStr}, {sStr}, 9
        s_mov_b32 s{S2+2}, s{S1+2}
        s_mov_b32 s{S1+3}, 0x20000
        s_mov_b32 s{S2+3}, 0x20000
        v_lshl_add_u32 {P('kr')}, {sW}, 4, {l3}
        v_add_u32 {P('wc')}, {sCE}, {wsw}
        v_mad_u32_u24 {t[0]}, {P('kr')}, {sStr}, {P('wc')}
        v_add_u32 {P('W1')}, {sT1}, {t[0]}
        v_add_u32 {t[1]}, {sT1}, {P('W1')}
        v_xor_b32 {P('W2')}, {sT2}, {t[1]}
        s_lshl3_add_u32 {sT1}, {sStr}, -1024
        v_add_u32 {P('W11')}, {sT1}, {P('W1')}
        v_add_u32 {P('W21')}, {sT1}, {P('W2')}
        s_lshl_b32 {sStr}, {sStr}, 6
        s_lshl_b32 {sL4}, {sW}, 12
        s_lshl_b32 {sL2}, {sW}, 11
        s_add_u32 {sGrow}, {sGrow}, {sT}
        s_lshl4_add_u32 {sGrow}, {sR}, {sGrow}
        s_lshl2_add_u32 {sGrow}, {sGrow}, {sW}
        s_lshl_b32 {sGrow}, {sGrow}, 1
        v_lshlrev_b32 {P('l16')}, 4, {l}
        """)
        hi, r4, c3, l31 = [P(n) for n in ("hi", "r4", "c3", "l31")]
        o = L(f"""
        s_and_b32 {sT0}, s2, 7
        s_lshr_b32 {sT1}, s2, 3
        s_and_b32 {sT2}, {sT1}, 7
        s_lshr_b32 {sRH}, {sW}, 1
        s_and_b32 {sJ}, {sW}, 1
        s_and_b32 {sSel}, {sT1}, 3
        s_lshl_b32 {sL1}, {sW}, 10
        v_lshrrev_b32 {hi}, 5, {l}
        v_bfe_u32 {r4}, {l}, 2, 2
        v_and_b32 {c3}, 3, {l}
        v_and_b32 {l31}, 31, {l}
        """)
        m2 = self.opt.get("map2", "8x4")
        if m2 == "8x4t":
            o += L(f"""
            s_lshr_b32 {sR2}, {sT0}, 1
            s_and_b32 {sOff}, {sT1}, 3
            s_lshl3_add_u32 {sR2}, {sR2}, {sOff}
            s_add_u32 {sR2}, {sR2}, {0 if A else 4}
            s_and_b32 {sC2}, {sT0}, 1
            s_lshr_b32 {sOff}, {sT1}, 4
            s_lshl1_add_u32 {sC2}, {sC2}, {sOff}
            s_bfe_u32 {sOff}, {sT1}, 0x10002
            s_lshl1_add_u32 {sC2}, {sC2}, {sOff}
            """)
        elif m2 == "4x8t":
            o += L(f"""
            s_and_b32 {sOff}, {sT1}, 1
            s_lshl2_add_u32 {sR2}, {sT0}, {sOff}
            s_add_u32 {sR2}, {sR2}, {0 if A else 2}
            s_lshr_b32 {sC2}, {sT1}, 4
            s_bfe_u32 {sOff}, {sT1}, 0x20001
            s_lshl2_add_u32 {sC2}, {sC2}, {sOff}
            """)
        elif m2 == "8x4":
            o += L(f"""
            s_lshr_b32 {sR2}, {sT0}, 1
            s_lshl3_add_u32 {sR2}, {sR2}, {sT2}
            s_and_b32 {sC2}, {sT0}, 1
            s_lshr_b32 {sOff}, {sT1}, 3
            s_lshl2_add_u32 {sC2}, {sC2}, {sOff}
            """)
        else:
            o += L(f"""
            s_and_b32 {sOff}, {sT1}, 3
            s_lshl2_add_u32 {sR2}, {sT0}, {sOff}
            s_lshr_b32 {sC2}, {sT1}, 2
            """)
        oa, o = o, []
        o += L(f"""
        v_mul_u32_u24 {t[1]}, 3584, {P('kr')}
        v_add_u32 {V('Wg')}, {t[1]}, {P('wc')}
        v_xor_b32 {V('Wu')}, 32, {V('Wg')}
        v_add_u32 {V('Wg1')}, {8*3584-1024}, {V('Wg')}
        v_add_u32 {V('Wu1')}, {8*3584-1024}, {V('Wu')}
        """)
        if A:
            o += L(f"""
            v_add_u32 {V('Wq')}, -1024, {P('W1')}
            v_add_u32 {V('Wq1')}, -1024, {P('W11')}
            """)
        else:
            o += L(f"""
            v_lshrrev_b32 {t[0]}, 2, {l}
            v_lshl_add_u32 {t[0]}, {sW}, 4, {t[0]}
            v_mul_u32_u24 {t[1]}, 3584, {t[0]}
            v_lshl_add_u32 {t[1]}, {c3}, 4, {t[1]}
            s_lshl_b32 {sCH}, {sT}, 6
            v_add_u32 {V('Hg')}, {sCH}, {t[1]}
            v_xor_b32 {V('Hu')}, 32, {V('Hg')}
            """)
        self.v("gx0", 4, True); self.v("gx1", 4, True); self.v("ggw", 4, True)
        ob, o = o, oa
        o += L(f"""
        v_bfe_u32 {t[0]}, {l}, 1, 3
        v_xor_b32 {t[0]}, {t[0]}, {hi}
        v_lshlrev_b32 {t[0]}, 4, {t[0]}
        v_lshl_add_u32 {t[0]}, {l31}, 7, {t[0]}
        s_lshl_b32 {sT0}, {sRH}, 13
        v_add_u32 {V('XR0', True)}, {sT0}, {t[0]}
        v_xor_b32 {V('XR1', True)}, 32, {V('XR0')}
        v_xor_b32 {V('XR2', True)}, 64, {V('XR0')}
        v_xor_b32 {V('XR3', True)}, 0x60, {V('XR0')}
        v_and_b32 {t[0]}, 2, {r4}
        v_xor_b32 {t[0]}, {t[0]}, {nh}
        s_lshl_b32 {sT0}, {sJ}, 1
        v_xor_b32 {t[0]}, {sT0}, {t[0]}
        v_lshlrev_b32 {t[0]}, 5, {t[0]}
        v_lshl_add_u32 {t[0]}, {c3}, 3, {t[0]}
        v_lshl_add_u32 {t[1]}, {hi}, 3, {r4}
        v_lshl_add_u32 {t[2]}, {t[1]}, 7, {t[0]}
        v_lshl_add_u32 {V('M0')}, {nh}, 13, {t[2]}
        v_xor_b32 {V('M1')}, 32, {V('M0')}
        v_lshl_add_u32 {t[3]}, {hi}, 2, {r4}
        v_lshl_add_u32 {t[3]}, {t[3]}, 7, {t[0]}
        v_add_u32 {V('VR0')}, {sL2}, {t[3]}
        v_xor_b32 {V('VR1')}, 64, {V('VR0')}
        """)
        if A:
            o += L(f"v_mov_b32 {V('Pl')}, {t[2]}")
        else:
            o += L(f"""
            v_xor_b32 {t[0]}, {sJ}, {nh}
            v_lshlrev_b32 {t[0]}, 5, {t[0]}
            v_lshl_add_u32 {t[0]}, {c3}, 3, {t[0]}
            v_lshl_add_u32 {t[0]}, {t[1]}, 6, {t[0]}
            v_lshl_add_u32 {V('Hf')}, {nh}, 12, {t[0]}
            """)
        self.second_a, o = o, ob
        o += L(f"""
        v_lshl_add_u32 {t[0]}, {l3}, 10, {wsw}
        s_lshl_b32 {sT0}, {sC2}, 7
        s_lshl_b32 {sT1}, {sW}, 16
        s_add_u32 {sT0}, {sT0}, {sT1}
        v_add_u32 {V('V4')}, {sT0}, {t[0]}
        v_add_u32 {V('V8')}, {sT1}, {V('V4')}
        v_add_u32 {V('V41')}, {8192-1024}, {V('V4')}
        v_add_u32 {V('V81')}, {8192-1024}, {V('V8')}
        s_mul_i32 {sT0}, {sR2}, {2*RG_BYTES}
        s_add_u32 {sT0}, {sT0}, {WS_H}
        s_add_u32 {sT0}, {sT0}, {sL4}
        v_add_u32 {t[0]}, {sT0}, {V('l16')}
        s_mul_i32 {sA0}, {sRH}, {RG_BYTES}
        s_sub_u32 {sT2}, {RG_BYTES}, {sA0}
        v_add_u32 {V('A40')}, {sA0}, {t[0]}
        v_add_u32 {V('A41')}, {sT2}, {t[0]}
        v_add_u32 {V('A80')}, {sL4}, {V('A40')}
        v_add_u32 {V('A81')}, {sL4}, {V('A41')}
        s_lshl_b32 {sT0}, {sR}, 1
        s_add_u32 {sT0}, {sT0}, {sRH}
        s_mul_i32 {sT1}, {sT0}, {2*RG_BYTES}
        s_add_u32 {sT1}, {sT1}, {WS_H}
        v_add_u32 {V('HS0')}, {sT1}, {V('l16')}
        v_add_u32 {V('HS1')}, {RG_BYTES}, {V('HS0')}
        s_lshl_b32 {sT1}, {sT0}, 9
        s_add_u32 {sT1}, {sT1}, {WS_G}
        v_lshlrev_b32 {t[0]}, 3, {l31}
        v_add_u32 {V('G', True)}, {sT1}, {t[0]}
        s_lshl_b32 {sT0}, {sT0}, 2
        s_lshr_b32 {sT1}, {sT}, 1
        s_add_u32 {sT0}, {sT0}, {sT1}
        s_lshl_b32 {sT0}, {sT0}, 9
        s_and_b32 {sT1}, {sT}, 1
        s_lshl_b32 {sT1}, {sT1}, 1
        s_add_u32 {sT1}, {sT1}, {sJ}
        s_lshl_b32 {sT1}, {sT1}, 2
        s_add_u32 {sT0}, {sT0}, {sT1}
        s_add_u32 {sFP}, {sT0}, {WS_FL}
        s_lshl_b32 {sT0}, {sR2}, 2
        s_add_u32 {sT0}, {sT0}, {sW}
        s_lshl_b32 {sT0}, {sT0}, 9
        s_add_u32 {sT0}, {sT0}, {WS_FL}
        v_lshlrev_b32 {t[0]}, 2, {c3}
        v_add_u32 {V('F')}, {sT0}, {t[0]}
        s_lshl_b32 {sT0}, {sT}, 2
        s_lshl_b32 {sT1}, {sJ}, 1
        s_add_u32 {sT0}, {sT0}, {sT1}
        s_lshl_b32 {sE}, {sT0}, 10
        s_add_u32 {sL}, {sE}, {(80 if A else 48)*1024}
        v_mov_b32 v{self.v('KK', 2)}, {f32(K0)}
        v_mov_b32 v{self.v('KK', 2) + 1}, {f32(K1)}
        """)
        if A:
            o += L(f"""
            s_add_u32 {sO}, {sE}, {112*1024}
            s_add_u32 {sT0}, {sT0}, {sRH}
            s_lshl_b32 {sT1}, {sT0}, 7
            s_add_u32 {sT1}, {sT1}, {WS_KF}
            s_lshl_b32 {sT2}, {sR}, 2
            s_add_u32 {sKFP}, {sT1}, {sT2}
            v_and_b32 {t[0]}, 15, {l}
            v_lshlrev_b32 {t[0]}, 2, {t[0]}
            v_add_u32 {V('KF')}, {sT1}, {t[0]}
            s_lshl_b32 {sT1}, {sT0}, 14
            s_add_u32 {sT1}, {sT1}, {WS_KP}
            v_add_u32 {V('KG')}, {sT1}, {V('l16')}
            s_lshl_b32 {sKPP}, {sR}, 6
            s_add_u32 {sKB}, {sT1}, {sKPP}
            s_lshr_b32 {sTB}, {sT0}, 1
            s_lshl_b32 {sTB}, {sTB}, 11
            s_add_u32 {sTB}, {sTB}, {WS_KT}
            s_lshl_b32 {sKPP}, {sR}, 10
            s_lshl_b32 {sT1}, {sT0}, 11
            s_add_u32 {sT1}, {sT1}, {WS_ZP}
            v_lshlrev_b32 {t[0]}, 2, {l}
            v_add_u32 {V('ZG')}, {sT1}, {t[0]}
            s_lshl1_add_u32 {sZB}, {sR}, {sRH}
            s_lshl2_add_u32 {sZB}, {sZB}, {sT1}
            s_lshl_b32 {sZPP}, {sR}, 7
            s_mov_b32 s78, 0xffff0000
            s_mov_b32 s79, 0xffff0000
            s_sub_u32 s80, 0, {sRH}
            s_mov_b32 s81, s80
            v_lshlrev_b32 {t[0]}, 4, {hi}
            v_xor_b32 {t[1]}, 1, {nh}
            v_lshl_add_u32 {t[0]}, {t[1]}, 5, {t[0]}
            s_lshl_b32 {sT1}, {sW}, 6
            s_add_u32 {sT1}, {sT1}, {LDS_MISC + 7168}
            v_add_u32 {V('ZR')}, {sT1}, {t[0]}
            v_and_b32 {t[0]}, 0x24, {l}
            v_bfe_u32 {t[1]}, {l}, 3, 1
            v_lshl_add_u32 {t[0]}, {t[1]}, 4, {t[0]}
            v_lshl_add_u32 {t[0]}, {nh}, 3, {t[0]}
            v_add_u32 {V('ZW')}, {sT1}, {t[0]}
            s_add_u32 {sT1}, {sL1}, {LDS_MISC}
            v_add_u32 {V('XW')}, {sT1}, {V('l16')}
            """)
        else:
            o += L(f"""
            s_lshl_b32 {sT0}, {sT}, 1
            s_add_u32 {sT0}, {sT0}, {sJ}
            s_add_u32 {sT0}, {sT0}, 32
            s_lshl_b32 {sEh}, {sT0}, 10
            """)
        o += L(f"""
        s_lshl_b32 {sT0}, {sR2}, 1
        s_add_u32 {sT0}, {sT0}, {sRH}
        s_lshl_b32 {sT0}, {sT0}, 15
        s_lshl_b32 {sT1}, {sC2}, 1
        s_add_u32 {sT1}, {sT1}, {sJ}
        s_lshl_b32 {sT1}, {sT1}, 6
        s_add_u32 {sT0}, {sT0}, {sT1}
        v_lshlrev_b32 {t[0]}, 4, {hi}
        v_lshl_add_u32 {t[0]}, {l31}, 10, {t[0]}
        v_add_u32 {V('OUT')}, {sT0}, {t[0]}
        s_mov_b32 {sSpin}, 0
        """)
        r2 = self.opt.get("rot2", 2)
        if r2 == 0:
            o += L(f"s_mov_b32 {sT0}, 0")
        else:
            o += L(f"s_mul_i32 {sT0}, {sC2}, {r2}\ns_mul_i32 {sT1}, {sR2}, {self.opt.get('rot2r', 1)}\ns_add_u32 {sT0}, {sT0}, {sT1}")
        for i in range(8):
            o += L(f"s_add_u32 {sT1}, {sT0}, {i}\ns_and_b32 {sT1}, {sT1}, 7\ns_lshl_b32 {sTab[i]}, {sT1}, 10")
        self.second = o

    def dma(self, s, vreg, soff, m0=None, off=0, flags=""):
        o = L(f"s_add_u32 m0, {m0[0]}, {m0[1]}") if m0 else []
        return o + L(f"buffer_load_dwordx4 {vreg}, {srd(s)}, {soff} offen offset:{off} {flags} lds")

    def item_loads(self, kind, i):
        A = self.typ == "A"
        V = self.V
        base = self.blk[(kind, i)] * 8192
        wf = self.opt.get("wflags", ""); xf = self.opt.get("xflags", ""); vf = self.opt.get("vflags", "")
        rx = self.opt.get("rotx")
        kbx = lambda: L(f"s_add_u32 {sKw}, {sA1}, {i}\ns_and_b32 {sKw}, {sKw}, 7")
        so = lambda c: (kbx() + L(f"s_mul_i32 {sKw}, {sKw}, {c[0]}") + (L(f"s_add_u32 {sKw}, {sKw}, {c[1]}") if c[1] else [])) if rx else L(f"s_mov_b32 {sKw}, {i*c[0] + c[1]}")
        def two(sr, nm, c, b):
            return [(so(c) if c is not None else []) + self.dma(sr, V(nm), sKw, (sL2, b), 0, wf), self.dma(sr, V(nm + "1"), sKw, None, 1024, wf)]
        kq, kw = 64 * 3072, 64 * 3584
        if kind == "X":
            g = [self.dma(SX, V(f"X{jj}"), sKw, None if jj else (sL4, base), jj * 1024, xf) for jj in range(4)]
            g[0] = so((128, 0)) + g[0]
        elif kind == "W":
            g = two(S1, "W1", None, base) + two(S2, "W2", None, base + 8192)
            g[0] = (kbx() + L(f"s_mul_i32 {sKw}, {sKw}, {sStr}") if rx else L(f"s_mul_i32 {sKw}, {sStr}, {i}")) + g[0]
        elif kind == "G":
            g = two(SG, "Wg", (kw, 2560 if A else 1536), base) + two(SU, "Wu", None, base + 8192)
        elif kind == "H":
            g = two(SQ, "Wq", (kq, 0), base) if A else [so((kw, 1024)) + self.dma(SG, V("Hg"), sKw, (sL1, base), 0, wf), self.dma(SU, V("Hu"), sKw, (sL1, base + 4096), 0, wf)]
        else:
            ks, j, mul = self.step(i)
            sr, k = (SD, ks) if ks < 112 else (SO, ks - 112)
            g = [self.dma(sr, V(f"V{mul}"), sKw, (sL2, base), 0, vf), self.dma(sr, V(f"V{mul}1"), sKw, None, 1024, vf)]
            if mul == 8:
                g[0] = L(f"s_lshl4_add_u32 {sKw}, {sTab[j]}, {k*16384}") + g[0]
            else:
                g[0] = L(f"s_and_b32 {sKw}, {sTab[j]}, 0xc00\ns_lshl4_add_u32 {sKw}, {sKw}, {k*16384}") + g[0]
        g[-1][-1].tag = f"{kind}{i}"
        return g

    def v_loads(self, n): return self.item_loads("V", n)

    def plan(self):
        opt = self.opt
        lead1, lead2 = opt.get("lead1", 2), opt.get("lead2", 2)
        must = []
        for s in range(8): must += [("X", s, 2, 4, s, s + 1, lead1), ("W", s, 2, 4, s, s + 1, lead1)]
        for t in range(8):
            must.append(("G", t, 2, 4, 8 + t, 9 + t, lead2 if t < 5 else opt.get("lead3", 2)))
            if t < 4: must += [("H", 2 * t + i, 1, 2, 8 + t, 9 + t, lead2) for i in range(2)]
        b2 = opt.get("b2a", 10) if self.typ == "A" else opt.get("b2", 10)
        budget = {i: opt.get("b1", 8) if i < 8 else b2 for i in range(17)}
        budget[-1], budget[16] = 0, 99
        for i in (12, 13, 14, 15): budget[i] = opt.get("b3", 8)
        for k, v in self.budget_cut.items(): budget[k] -= v
        free_at = [-1] * 19
        self.blk, self.when = {}, {i: [] for i in range(-1, 17)}
        self.parks = {i: [] for i in range(-1, 17)}
        prate = opt.get("parka", 3) if self.typ == "A" else opt.get("parkb", 2)
        nv, npk, issued = 0, 0, {}
        for iv in range(-1, 16):
            left = budget[iv]
            def take(kind, i, nb, fr):
                fb = [b for b in range(19) if free_at[b] <= iv]
                if nb == 2: c = [b for b in fb if b % 2 == 0 and b + 1 in fb]
                elif kind == "V": c = sorted(fb, key=lambda b: (b != 18 and (b ^ 1) in fb, -b))
                else: c = sorted(fb, key=lambda b: (b != 18 and (b ^ 1) in fb, b))
                if not c: return False
                for x in range(nb): free_at[c[0] + x] = fr
                self.blk[(kind, i)] = c[0]
                self.when[iv].append((kind, i))
                return True
            while must and must[0][4] - must[0][6] <= iv:
                kind, i, nb, cost_, need, fr, _ = must[0]
                if not take(kind, i, nb, fr):
                    assert need - 1 > iv, (kind, i, iv)
                    break
                must.pop(0); left -= cost_
            while iv >= opt.get("park0", 99) and len(self.parks[iv]) < prate and npk < 17 and npk < nv and issued[npk] <= iv - opt.get("parklag", 2) and npk <= 4 * (iv - 8) - 2:
                self.parks[iv].append(npk)
                free_at[self.blk[("V", npk)]] = iv + 1
                npk += 1
            live = lambda j: sum(4 if st < 12 else 2 for st in range(max(j, 0), min(16, j + lead2 + 1)))
            owed = max(live(j) for j in range(iv, 17)) + (1 if iv < 10 else 0)
            while left >= 2 and nv < 36 and nv - (npk - len(self.parks[iv])) < 19 - owed and iv >= opt.get("v0", 6):
                if not take("V", nv, 1, 99): break
                issued[nv] = iv
                nv += 1; left -= 2
        assert not must
        fb = [b for b in range(19) if free_at[b] <= 16]
        self.post = []
        while nv < 36:
            if not fb:
                self.post.append(("park", npk)); fb.append(self.blk[("V", npk)]); npk += 1
            self.blk[("V", nv)] = fb.pop(0)
            self.post.append(("load", nv)); nv += 1
        self.npark = npk
        assert npk <= 20

    @staticmethod
    def step(n):
        if n < 8: return 0, n, 8
        if n < 16: return 80, n - 8, 8
        if n < 24: return 48, n - 16, 8
        if n < 28: return 32, n - 24, 4
        return 112, n - 28, 8

    def areg(self, n, sr): return 160 + (n % 12) * 8 + sr * 4

    def a_loads(self, n):
        ks, j, mul = self.step(n)
        g = [L(f"buffer_load_dwordx4 {ar(self.areg(n, sr))}, {self.V(f'A{mul}{sr}')}, {srd(SW)}, {sAo} offen sc1") for sr in range(2)]
        if mul == 8:
            g[0] = L(f"s_add_u32 {sAo}, {sTab[j]}, {ks*1024}") + g[0]
        else:
            g[0] = L(f"s_and_b32 {sAo}, {sTab[j]}, 0xc00\ns_add_u32 {sAo}, {sAo}, {ks*1024}") + g[0]
        return g

    def parked(self, n): return n < self.npark

    def vfrag(self, n, sn):
        if self.parked(n): return "a", n * 8 + sn * 4
        return "v", (64 if n % 2 == 0 else 80) + sn * 4

    def v_reads(self, n):
        base = self.blk[("V", n)] * 8192
        o = []
        for sn in range(2):
            k, b = self.vfrag(n, sn)
            for i in range(2):
                a, imm = self.lds(f"VR{sn}", base + i * 1024)
                o.append(L(f"ds_read_b64_tr_b16 {k}[{b+2*i}:{b+2*i+1}], {a} offset:{imm}"))
        o[-1][-1].tag = f"RV{n}"
        return o

    def poll_issue(self, reg, addr, off, wide=False):
        if wide:
            return L(f"buffer_load_dwordx2 {vr(reg, 2)}, {addr}, {srd(SW)}, 0 offen offset:{off} sc1")
        return L(f"buffer_load_dword v{reg}, {addr}, {srd(SW)}, 0 offen offset:{off} sc1")

    def poll_check(self, reg, addr, off, wide=False):
        ok, again = self.lab("ok"), self.lab("again")
        tr = reg + 1 if wide else reg
        ld = self.poll_issue(reg, addr, off, wide)[0].text
        return self.check(f"v_cmp_ne_u32 vcc, {sTag}, v{tr}", [ld], ok, again)

    def check(self, test, loads, ok, again):
        raw = lambda t: "\n".join("@raw " + x for x in t.split("\n"))
        self.ool += L(f"""
        {again}:
        @raw s_sleep 2
        {raw(chr(10).join(loads))}
        @raw s_add_u32 {sSpin}, {sSpin}, 1
        @raw s_waitcnt vmcnt(0)
        {raw(test)}
        @raw s_cmp_lt_u32 {sSpin}, 0x40000
        @raw s_cbranch_scc0 {ok}
        @raw s_cbranch_vccnz {again}
        @raw s_branch {ok}
        """)
        return L(f"{test}\ns_cbranch_vccnz {again}\n{ok}:")

    def flag_store(self, soff, off, tags):
        return L(f"""
        @vm {' '.join(tags)}
        s_mov_b64 exec, 1
        buffer_store_dword {self.V('tag')}, off, {srd(SW)}, {soff} offset:{off} sc1
        s_mov_b64 exec, -1
        """)

    def gate_loads(self):
        x0, x1, gw = self.v("gx0", 4, True), self.v("gx1", 4, True), self.v("ggw", 4, True)
        return [L(f"""
        s_lshl_b32 {sOff}, {sGrow}, 10
        buffer_load_dwordx4 {vr(x0)}, {self.V('l16')}, {srd(SX)}, {sOff} offen
        buffer_load_dwordx4 {vr(x1)}, {self.V('l16')}, {srd(SX)}, {sOff} offen offset:1024
        buffer_load_dwordx4 {vr(gw)}, {self.V('l16')}, {srd(SGW)}, 0 offen
        """)]

    def gate_compute(self):
        x = [self.v("gx0", 4, True), self.v("gx1", 4, True)]; gw = self.v("ggw", 4, True)
        t = [self.V(f"t{i}") for i in range(8)]
        s = [self.v("gs", 2, True), self.v("gs") + 1]
        one = self.V("gone", True)
        o = L(f"v_mov_b32 {one}, 0x3f803f80\nv_mov_b32 v{s[0]}, 0\nv_mov_b32 v{s[1]}, 0")
        for d in range(4):
            o += L(f"v_lshlrev_b32 {t[0]}, 16, v{gw+d}\nv_and_b32 {t[1]}, 0xffff0000, v{gw+d}")
            for r in range(2):
                o += L(f"""
                v_lshlrev_b32 {t[2+2*r]}, 16, v{x[r]+d}
                v_and_b32 {t[3+2*r]}, 0xffff0000, v{x[r]+d}
                v_mul_f32 {t[2+2*r]}, {t[2+2*r]}, {t[0]}
                v_mul_f32 {t[3+2*r]}, {t[3+2*r]}, {t[1]}
                v_cvt_pk_bf16_f32 {t[2+2*r]}, {t[2+2*r]}, {t[3+2*r]}
                v_lshlrev_b32 {t[6]}, 16, {t[2+2*r]}
                v_and_b32 {t[7]}, 0xffff0000, {t[2+2*r]}
                v_add_f32 v{s[r]}, v{s[r]}, {t[6]}
                v_add_f32 v{s[r]}, v{s[r]}, {t[7]}
                """)
        dpp = "row_mask:0xf bank_mask:0xf"
        o += L(f"""
        v_permlane32_swap_b32 v{s[0]}, v{s[1]}
        v_add_f32 v{s[0]}, v{s[0]}, v{s[1]}
        v_add_f32_dpp v{s[0]}, v{s[0]}, v{s[0]} quad_perm:[1,0,3,2] {dpp}
        v_add_f32_dpp v{s[0]}, v{s[0]}, v{s[0]} quad_perm:[2,3,0,1] {dpp}
        v_add_f32_dpp v{s[0]}, v{s[0]}, v{s[0]} row_half_mirror {dpp}
        v_add_f32_dpp v{s[0]}, v{s[0]}, v{s[0]} row_mirror {dpp}
        v_mov_b32 v{s[1]}, v{s[0]}
        v_permlane16_swap_b32 v{s[0]}, v{s[1]}
        v_add_f32 v{s[0]}, v{s[0]}, v{s[1]}
        v_cvt_pk_bf16_f32 v{s[0]}, v{s[0]}, v{s[0]}
        v_and_b32 v{s[0]}, 0xffff0000, v{s[0]}
        v_mul_f32 v{s[0]}, {f32(-LOG2E)}, v{s[0]}
        v_exp_f32 v{s[0]}, v{s[0]}
        v_add_f32 v{s[0]}, 1.0, v{s[0]}
        v_rcp_f32 v{s[0]}, v{s[0]}
        v_cvt_pk_bf16_f32 v{s[0]}, v{s[0]}, v{s[0]}
        v_and_b32 v{s[0]}, 0xffff0000, v{s[0]}
        v_mov_b32 v{s[1]}, {sTag}
        v_lshlrev_b32 {t[0]}, 3, {self.V('hi')}
        s_lshl_b32 {sOff}, {sGrow}, 3
        s_add_u32 {sOff}, {sOff}, {WS_G}
        """)
        groups = [[i] for i in o]
        groups.append(L(f"""
        s_mov_b32 exec_lo, 1
        s_mov_b32 exec_hi, 1
        buffer_store_dwordx2 {vr(s[0], 2)}, {t[0]}, {srd(SW)}, {sOff} offen sc1
        s_mov_b64 exec, -1
        """))
        groups = groups[:-4] + [sum(groups[-4:], [])]
        return groups

    def gate_fetch(self):
        g0, g1 = self.v("g0", 2), self.v("g1", 2)
        return [self.poll_issue(g0, self.V("G"), 0, True), self.poll_issue(g1, self.V("G"), 256, True)]

    def gate_check(self):
        o = []
        for i, nm in enumerate(("g0", "g1")):
            g = self.v(nm)
            o.append(self.poll_check(g, self.V("G"), 256 * i, True))
            o += [[x] for x in L(f"""
            v_sub_f32 v{g+1}, 1.0, v{g}
            v_cvt_pk_bf16_f32 v{g+1}, v{g+1}, v{g+1}
            v_and_b32 v{g+1}, 0xffff0000, v{g+1}
            v_max_f32 v{g+1}, {f32(1e-30)}, v{g+1}
            v_rcp_f32 v{g+1}, v{g+1}
            """)]
        return o

    def gelu_tile(self, t, rg, soff, off, tag=None):
        a = ACC(t, rg)
        io = f"v{self.v('g%d' % rg) + 1}"
        T = [self.V(f"t{i}") for i in range(8)]
        o = []
        for h in range(2):
            js = range(4 * h, 4 * h + 4)
            for stage in (
                lambda j, x: f"v_mul_f32 {x}, v{a+j}, v{a+j}",
                lambda j, x: f"v_fmaak_f32 {x}, {x}, v{self.v('KK', 2) + 1}, {f32(K0)}",
                lambda j, x: f"v_mul_f32 {x}, {x}, v{a+j}",
                lambda j, x: f"v_exp_f32 {x}, {x}",
                lambda j, x: f"v_mul_f32 v{a+8+j}, v{a+8+j}, v{a+j}",
                lambda j, x: f"v_fma_f32 {x}, {x}, {io}, {io}",
                lambda j, x: f"v_rcp_f32 {x}, {x}",
                lambda j, x: f"v_mul_f32 v{a+8+j}, v{a+8+j}, {x}",
            ):
                o += [L(stage(j, T[j & 3])) for j in js]
            o += [L(f"v_cvt_pk_bf16_f32 v{a+d}, v{a+8+2*d}, v{a+9+2*d}") for d in (2 * h, 2 * h + 1)]
        o.append(L(f"buffer_store_dwordx4 {vr(a)}, {self.V('HS%d' % rg)}, {srd(SW)}, {soff} offen offset:{off} sc1", tag))
        return o

    def gelu_tile_pk(self, t, rg, soff, off, tag=None):
        a = ACC(t, rg)
        g = self.v("g%d" % rg)
        T = self.v("t0")
        kk = self.v("KK", 2)
        p = lambda r: f"v[{r}:{r+1}]"
        o = []
        for st in range(9):
            for q in range(4):
                x, gg, uu = T + 2 * q, a + 2 * q, a + 8 + 2 * q
                if st == 0: o.append(L(f"v_pk_mul_f32 {p(x)}, {p(gg)}, {p(gg)}"))
                if st == 1: o.append(L(f"v_pk_fma_f32 {p(x)}, {p(x)}, {p(kk)}, {p(kk)} op_sel:[0,1,0] op_sel_hi:[1,1,0]"))
                if st == 2: o.append(L(f"v_pk_mul_f32 {p(x)}, {p(x)}, {p(gg)}"))
                if st == 3: o += [L(f"v_exp_f32 v{x}, v{x}"), L(f"v_exp_f32 v{x+1}, v{x+1}")]
                if st == 4: o.append(L(f"v_pk_mul_f32 {p(uu)}, {p(uu)}, {p(gg)}"))
                if st == 5: o.append(L(f"v_pk_fma_f32 {p(x)}, {p(x)}, {p(g)}, {p(g)} op_sel:[0,1,1] op_sel_hi:[1,1,1]"))
                if st == 6: o += [L(f"v_rcp_f32 v{x}, v{x}"), L(f"v_rcp_f32 v{x+1}, v{x+1}")]
                if st == 7: o.append(L(f"v_pk_mul_f32 {p(uu)}, {p(uu)}, {p(x)}"))
                if st == 8: o.append(L(f"v_cvt_pk_bf16_f32 v{a+q}, v{uu}, v{uu+1}"))
        o.append(L(f"buffer_store_dwordx4 {vr(a)}, {self.V('HS%d' % rg)}, {srd(SW)}, {soff} offen offset:{off} sc1", tag))
        return o

    def phi_pack(self, src, dst):
        T = [self.V(f"t{i}") for i in range(8)]
        o = []
        for q in range(4):
            js = range(4 * q, 4 * q + 4)
            for stage in (
                lambda j, x: f"v_mul_f32 {x}, {f32(LOG2E)}, v{src+j}",
                lambda j, x: f"v_exp_f32_e64 {x}, {x} clamp",
                lambda j, x: f"v_max_f32 v{src+j}, {f32(1e-6)}, v{src+j}",
                lambda j, x: f"v_add_f32 {x}, {x}, v{src+j}",
            ):
                o += [L(stage(j, T[j & 3])) for j in js]
            o += [L(f"v_cvt_pk_bf16_f32 v{dst+2*q+d}, {T[2*d]}, {T[2*d+1]}") for d in range(2)]
        return o

    def plain_pack(self, src, dst):
        return [L(f"v_cvt_pk_bf16_f32 v{dst+d}, v{src+2*d}, v{src+2*d+1}") for d in range(8)]

    def build(self):
        A = self.typ == "A"
        opt = self.opt
        V = self.V
        self.prologue()
        self.kvi = opt.get("kvi", 14)
        self.budget_cut = {}
        self.touch2 = lambda k: touch2(self, k)
        self.plan()
        T = [self.v(f"t{i}") for i in range(8)]

        def trs(pat, off, dst, istep):
            r = []
            for i in range(2):
                a, imm = self.lds(pat, off + i * istep)
                r.append(L(f"ds_read_b64_tr_b16 v[{dst+2*i}:{dst+2*i+1}], {a} offset:{imm}"))
            return r

        def mfma(t, rg, wfr, n, swap):
            acc, xfr = vr(ACC(t, rg), 16), ar((n * 2 + rg) * 4)
            a, b = (xfr, wfr) if swap else (wfr, xfr)
            return L(f"v_mfma_f32_32x32x16_bf16 {acc}, {a}, {b}, {acc if n else 0}")

        units = []
        for m in range(16):
            s, half = m >> 1, m & 1
            xb, wbase = self.blk[("X", s)] * 8192, self.blk[("W", s)] * 8192
            wb = 64 if m % 2 == 0 else 80
            rd, mf = [], []
            for kk in range(2):
                k4 = half * 2 + kk
                n = s * 4 + k4
                xr = []
                for rg in range(2):
                    a, imm = self.lds(f"XR{k4}", xb + rg * 4096, True)
                    xr.append(L(f"ds_read_b128 {ar((n*2+rg)*4)}, {a} offset:{imm}"))
                w = [trs("Pl", wbase + t * 8192 + k4 * 2048, wb + kk * 8 + t * 4, 512) if A else
                     trs(f"M{t}", wbase + k4 * 2048, wb + kk * 8 + t * 4, 512) for t in range(2)]
                rd += [xr[0]] + w[0] + [xr[1]] + w[1]
                mf += [mfma(t, rg, vr(wb + kk * 8 + t * 4), n, A) for t in range(2) for rg in range(2)]
            units.append(([f"W{s}"] if half == 0 else None, rd, mf))
        for m in range(24):
            wb = 64 if m % 2 == 0 else 80
            rd, mf = [], []
            def pair(n, dst):
                gb = self.blk[("G", n >> 2)] * 8192 + (n & 3) * 2048
                return trs("M0", gb, dst, 512) + trs("M1", gb, dst + 4, 512), [mfma(t, rg, vr(dst + 4 * i), n, False) for i, t in enumerate((3, 4)) for rg in range(2)]
            def third(n, dst):
                hb = self.blk[("H", n >> 2)] * 8192
                r = trs("Pl", hb + (n & 3) * 2048, dst, 512) if A else trs("Hf", hb + (n & 3) * 1024, dst, 256)
                return r, [mfma(2, rg, vr(dst), n, False) for rg in range(2)]
            if m < 16:
                parts = [third(2 * m, wb), pair(m, wb + 4), third(2 * m + 1, wb + 12)]
                sy = [f"H{2*(m >> 2) + 1}"] if m % 4 == 0 else None
            else:
                n = 16 + 2 * (m - 16)
                parts = [pair(n, wb), pair(n + 1, wb + 8)]
                sy = [f"G{n >> 2}"] if m % 2 == 0 else None
            for r, f in parts: rd += r; mf += f
            units.append((sy, rd, mf))

        gaps, heads, ustart, syncgap = [], [], [], [0]
        for u, (sy, rd, mf) in enumerate(units):
            ustart.append(len(gaps))
            for i, m in enumerate(mf):
                heads.append((L("@lgkm0") if i == 0 and not opt.get("exact", 0) else []) + m)
                gaps.append(Gap())
            g0 = ustart[u]
            if u + 1 < len(units):
                nsy, nrd, _ = units[u + 1]
                if nsy:
                    gaps[g0].pre += L(f"@sync {' '.join(nsy)}\ns_barrier")
                    syncgap.append(g0)
                span = len(mf) - opt.get("rsp", 2)
                for i, r in enumerate(nrd):
                    gaps[g0 + min(span - 1, (i * span) // len(nrd))].ds += r
            else:
                gaps[g0].pre += L("@sync\ns_barrier")
                syncgap.append(g0)
        ustart.append(len(gaps))
        U = lambda n: ustart[16 + n]
        one = lambda ins: [[x] for x in ins]

        def loads_of(iv): return sum((self.item_loads(k, i) for k, i in self.when[iv]), [])
        pro = loads_of(-1)
        pro[8:8] = self.gate_loads()
        self.pro_loads = pro
        pa, pb = self.v("pa"), self.v("pb")
        extra = {iv: [] for iv in range(17)}
        extra[6] += self.gate_fetch()
        for iv in range(16):
            ld = extra[iv] + loads_of(iv)
            if ld: place_mem(gaps, ld, syncgap[iv] + 1, syncgap[iv + 1])
            if self.parks[iv]:
                rd = []
                for n in self.parks[iv]:
                    r = self.v_reads(n)
                    r[0] = L(f"@vm V{n}") + r[0]
                    rd += r
                lo, hi = syncgap[iv] + 1, syncgap[iv + 1]
                cand = sorted(sorted(range(lo, hi), key=lambda g: gaps[g].used())[:len(rd)])
                assert len(cand) == len(rd)
                for g, r in zip(cand, rd): gaps[g].ds += r
            t2 = opt.get("t2", 2)
            if 0 <= t2 <= iv < t2 + opt.get("t2n", 4):
                if opt.get("ool", 0):
                    body2 = touch2(self, iv - t2, True, 0)
                    go, back = self.lab("t2go"), body2[-1].text[:-1]
                    gaps[syncgap[iv + 1] - 1].va += body2[:1] + L(f"s_cmp_eq_u32 {sT0}, {iv - t2}\ns_cbranch_scc1 {go}") + body2[-1:]
                    self.ool += L(f"{go}:") + body2[3:-1] + L(f"s_branch {back}")
                else:
                    gaps[syncgap[iv + 1] - 1].va += touch2(self, iv - t2, True, 1 if opt.get("t3", -1) >= 0 else 0)
            if iv == opt.get("t3", -1): gaps[syncgap[iv + 1] - 1].va += touch2(self, 0, False, 2)
            if iv == opt.get("t4", -1): gaps[syncgap[iv + 1] - 1].va += touch4(self)

        self.defer_at = (1, ustart[opt.get("defu", 3)])
        place_valu(gaps, self.gate_compute(), ustart[opt.get("gate0", 3 if opt.get("defer", 0) else 1)], ustart[opt.get("gate1", 7 if opt.get("defer", 0) else 5)])
        place_valu(gaps, self.gate_check(), ustart[14] + 1, ustart[16] - 1)

        cap = opt.get("cap", 12) / 2
        G0, G3 = U(0), U(16)
        if not A:
            ep = []
            for t in range(2):
                for rg in range(2): ep += self.gelu_tile(t, rg, sE, t * 1024, tag="Est")
            last, c = place_valu(gaps, ep, G0 + 1, G3, cap)
            gaps[last + opt.get("e_lag", 36)].va += self.flag_store(sFP, 0, ["Est"]) + self.stamp("Efl")
            self.note = f"E epilogue ends in gap {last - G0} cap {c}"
            ep = self.gelu_tile(2, 0, sEh, 0, tag="Lst") + self.gelu_tile(2, 1, sEh, 0, tag="Lst")
            last, c = place_valu(gaps, ep, G3 + 2, U(24) - 1, cap)
            self.note += f"; third tile ends in gap {last - G0} cap {c}"
        else:
            ones, za = self.v("ones", 4), self.V("za")
            ep = [L(f"v_mov_b32 v{ones+i}, 0x3f803f80") for i in range(4)]
            ep += self.phi_pack(ACC(0, 0), 96) + self.plain_pack(ACC(1, 0), 128)
            ep += self.phi_pack(ACC(0, 1), 104) + self.plain_pack(ACC(1, 1), 136)
            last, c = place_valu(gaps, ep, G0 + 1, G3, opt.get("kvcap", 14) / 2)
            for f in range(4):
                gaps[last + 1 + f].va += L(f"v_mfma_f32_32x32x16_bf16 v[112:127], {vr(96+4*f)}, {vr(128+4*f)}, {'v[112:127]' if f else 0}")
                gaps[last + 1 + f].va += L(f"v_mfma_f32_32x32x16_bf16 v[144:159], {vr(ones)}, {vr(96+4*f)}, {'v[144:159]' if f else 0}")
            ep = [L(f"v_cndmask_b32 v{112+i}, v{112+i}, v{120+i}, {sMH}") for i in range(8)]
            ep += [L(f"v_cndmask_b32 v{120+i}, v{112+i}, v{116+i}, {sMR}") for i in range(4)]
            ep += [L(f"v_cndmask_b32 v{124+i}, v{116+i}, v{112+i}, {sMR}") for i in range(4)]
            ep += one(L(f"v_lshrrev_b32 {za}, 2, {V('XW')}\nv_add_u32 {za}, {LDS_MISC + 4096 - LDS_MISC//4}, {za}"))
            ep += [L(f"ds_write_b128 {V('XW')}, v[124:127]"), L(f"ds_write_b32 {za}, v144"), L(f"v_xor_b32 {za}, 0x200, {za}"), L(f"v_xor_b32 v{T[4]}, 0x800, {V('XW')}")]
            last, c = place_valu(gaps, ep, last + 7, G3, cap)
            sg = min(x for x in ustart if x > last)
            if sg not in syncgap: gaps[sg].pre += L("@lgkm0\ns_barrier")
            gaps[sg + 1].ds += L(f"ds_read_b128 v[124:127], v{T[4]}\nds_read_b32 v145, {za}")
            ep = [L(f"v_add_f32 v{120+i}, v{120+i}, v{124+i}") for i in range(4)]
            ep.append(L(f"v_add_f32 v144, v144, v145"))
            ep.append(L(f"buffer_store_dwordx4 v[120:123], {V('KG')}, {srd(SW)}, {sKPP} offen sc1"))
            last, c = place_valu(gaps, ep, sg + 5, G3, cap)
            z = L(f"""
            s_mov_b32 exec_hi, 0
            buffer_store_dword v144, {V('ZG')}, {srd(SW)}, {sZPP} offen sc1
            s_mov_b32 exec_hi, -1
            """)
            z[1].tag = "KVst"
            gaps[last + 1].va += z
            fl = last + opt.get("kv_lag", 28)
            gaps[fl].va += self.flag_store(sKFP, 0, ["KVst"]) + self.stamp("KVfl")
            chk = syncgap[self.kvi]
            assert fl < chk - opt.get("kv_pl", 24)
            gaps[chk - opt.get("kv_pl", 24)].vm += self.poll_issue(pa, V("KF"), 0)
            gaps[chk].va += self.stamp("KVq") + self.poll_check(pa, V("KF"), 0) + self.stamp("KVok")
            self.note = f"kv flag in gap {fl - G0}, check in gap {chk - G0}"
            ad = one(L(f"""
            v_mbcnt_lo_u32_b32 v110, -1, 0
            v_mbcnt_hi_u32_b32 v110, -1, v110
            v_lshrrev_b32 v108, 2, v110
            v_and_b32 v109, 3, v110
            v_lshlrev_b32 v109, 4, v109
            v_lshl_add_u32 v109, v108, 10, v109
            v_lshlrev_b32 v108, 7, v108
            v_lshlrev_b32 v110, 4, v110
            """))
            place_valu(gaps, ad, fl + 1, G3, cap)
            gaps[chk + 1].vm += L(f"buffer_load_dwordx4 v[96:99], v109, {srd(SW)}, {sKB} offen sc1")
            gaps[chk + 2].vm += L(f"buffer_load_dword v100, v108, {srd(SW)}, {sZB} offen sc1")
            dpp = "row_mask:0xf bank_mask:0xf"
            red = [L(f"v_add_f32_dpp v{r}, v{r}, v{r} row_ror:{n} {dpp}") for n in (4, 8) for r in range(96, 101)]
            for sw in ("v_permlane16_swap_b32", "v_permlane32_swap_b32"):
                red += [L(f"v_mov_b32 v{r+6}, v{r}") for r in range(96, 101)]
                red += [L(f"{sw} v{r}, v{r+6}") for r in range(96, 101)]
                red += [L(f"v_add_f32 v{r}, v{r}, v{r+6}") for r in range(96, 101)]
            red += one(L(f"""
            v_cvt_pk_bf16_f32 v96, v96, v97
            v_cvt_pk_bf16_f32 v97, v98, v99
            v_mov_b32 v98, v100
            v_mov_b32 v99, {sTag}
            """))
            pub = L(f"""
            s_lshl4_add_u32 {sOff}, {sRH}, {sR}
            s_lshl_b32 {sOff}, {sOff}, 6
            s_add_u32 {sOff}, {sOff}, {sTB}
            s_mov_b64 exec, 15
            buffer_store_dwordx4 v[96:99], v109, {srd(SW)}, {sOff} offen sc1
            s_mov_b64 exec, -1
            """) + self.stamp("KVt")
            r0 = chk + opt.get("kv_rl", 26)
            self.kv_first = []
            if opt.get("kvin", 1):
                last, c = place_valu(gaps, red, r0, U(24) - 2, cap)
                gaps[last + 1].va += pub
                self.note += f"; totals leave in gap {last + 1 - G0} cap {c}"
            else:
                self.kv_first = red + [pub]
            last, c = place_valu(gaps, self.phi_pack(ACC(2, 0), 160) + self.phi_pack(ACC(2, 1), 168), G3 + 2, U(24) - 1, cap)
            self.note += f"; third tile ends in gap {last - G0} cap {c}"
        gaps[U(24) - opt.get("epoll", 14)].vm += self.poll_issue(pb, V("F"), 0)

        if opt.get("defer", 0):
            for n in range(36): self.v_reads(n)
            nset = len(self.setup)
            place_valu(gaps, one(self.setup + self.second), *self.defer_at)
        body = self.stamp("start")
        ph1 = self.stamp("issued") + L(f"@sync W0\ns_barrier") + self.stamp("sync0")
        for r in units[0][1]: ph1 += r
        for u in range(len(units)):
            for g in range(ustart[u], ustart[u + 1]):
                ph1 += heads[g]
                if g == ustart[u] and u and ((u < 16 and u % (4 if opt.get("fewp1") else 2) == 0) or (u >= 16 and u % 4 == 0)): ph1 += self.stamp(f"s{u//2}" if u < 16 else f"p{(u-16)//4}")
                ph1 += gaps[g].emit()
        ph1 += self.stamp("p1end")

        gt = self.gelu_tile_pk if opt.get("pk", 1) else self.gelu_tile
        main = []
        tiles = []
        for t in range(2):
            for rg in range(2):
                tiles.append(gt(3 + t, rg, sL, t * 1024, tag="Lst"))
                tiles[-1][-1] += self.stamp(f"L{t}{rg}")
        if not A:
            main = sum(tiles, [])
            nL = len(main)
        else:
            kr = opt.get("kvr", 4)
            ld = [f"buffer_load_dwordx4 v[{100+4*h}:{103+4*h}], v110, {srd(SW)}, {sTB} offen offset:{1024*h} sc1" for h in range(2)]
            ok, again = self.lab("ok"), self.lab("again")
            test = f"v_xor_b32 v111, {sTag}, v103\nv_xor_b32 v112, {sTag}, v107\nv_or_b32 v111, v111, v112\nv_cmp_ne_u32 vcc, 0, v111"
            raw = lambda t: "\n".join("@raw " + x for x in t.split("\n"))
            main = self.kv_first + sum(tiles[:kr], []) + [L(ld[0]), L(ld[1])] + sum(tiles[kr:], [])
            nL = len(main)
            self.need_side = 0
            self.burst_at = len(main)
            main.append([])
            main.append(self.stamp("Tq") + self.check(test, ld, ok, again) + self.stamp("Tok"))
            main += one(L(f"""
            v_cvt_pk_bf16_f32 v102, v102, v106
            ds_write_b32 {V('ZW')}, v102
            @lgkm0
            ds_read_b128 v[108:111], {V('ZR')}
            """))
            for i, kvr in enumerate((100, 101, 104, 105)):
                main += [L(f"v_cndmask_b32 v{176+i}, v{kvr}, v{108+i}, {sMH}"), L(f"v_cndmask_b32 v{180+i}, v{108+i}, v{kvr}, {sMH}")]
            for rg in range(2):
                for hh in range(2):
                    main.append(L(f"v_mfma_f32_32x32x16_bf16 {vr(192 + (rg*2+hh)*16, 16)}, {vr(176+4*hh)}, {vr(160 + rg*8 + hh*4)}, 0"))
            dens = []
            for rg in range(2):
                for hh in range(2):
                    b = 192 + (rg * 2 + hh) * 16
                    dens.append((rg, hh, b, b + 8) if hh == 0 else (rg, hh, b + 8, b))
            main += [L(f"v_add_f32 v{d}, {f32(1e-6)}, v{d}") for _, _, _, d in dens]
            main += [L(f"v_rcp_f32 v{d}, v{d}") for _, _, _, d in dens]
            main += [L(f"v_mul_f32 v{d}, v{d}, v{self.v('g%d' % rg)}") for rg, _, _, d in dens]
            osts = []
            for rg, hh, num, den in dens:
                main += [L(f"v_pk_mul_f32 v[{num+j}:{num+j+1}], v[{num+j}:{num+j+1}], v[{den}:{den+1}] op_sel_hi:[1,0]") for j in range(0, 8, 2)]
                d = 160 + (rg * 2 + hh) * 4
                main += [L(f"v_cvt_pk_bf16_f32 v{d+j}, v{num+2*j}, v{num+2*j+1}") for j in range(4)]
                osts.append(L(f"buffer_store_dwordx4 {vr(d)}, {V('HS%d' % rg)}, {srd(SW)}, {sO} offen offset:{hh*1024} sc1", "Ost"))
                if not opt.get("batch", 0): main.append(osts.pop())
            main += osts
            lf = opt.get("lfa", 3)
            lastL = max(j for j, g in enumerate(main) if any(x.tag == "Lst" for x in g))
            main.insert(min(len(main), lastL + 1 + lf), self.flag_store(sFP, 256, ["Lst"]) + self.stamp("Lfl"))
        slots = [list(g) for g in main]
        side = list(extra[16])
        side.append(self.stamp("Eq") + self.poll_check(pb, V("F"), 0) + self.stamp("Eok"))
        for n in range(8): side += self.a_loads(n)
        post = list(self.post)
        seq = []
        for j, (k, n) in enumerate(post):
            if k == "park":
                pos = len(seq) - 1 if seq and seq[-1][0] == "load" and j > 0 else len(seq)
                seq.insert(max(pos, 0), (k, n))
            else:
                seq.append((k, n))
        for k, n in seq:
            if k == "park": side.append(L(f"@vm V{n}") + sum(self.v_reads(n), []))
            else:
                src = [m for m in range(n) if self.blk[("V", m)] == self.blk[("V", n)] and ("park", m) in post]
                if src: side.append(L(f"@rd V{src[-1]}"))
                side += self.v_loads(n)
        every2 = (opt.get("midea2", 30) if A else opt.get("mide2", 60)) / 4.0
        every = (opt.get("midea", 60) if A else opt.get("mide", 45)) / 4.0
        acc, k = opt.get("mid0", 0) / 4.0, 0
        for j, (sl, g) in enumerate(zip(slots, main)):
            if j == nL: every = every2
            if A and j == self.burst_at:
                nb = opt.get("burst", 10)
                while nb > 0 and k < len(side):
                    sl += side[k]
                    if any(x.kind == "vmem" for x in side[k]): nb -= 1
                    k += 1
            if A and j == self.need_side - 1:
                while k < len(extra[16]): sl += side[k]; k += 1
            acc += sum(2 if x.kind == "valu" and x.op.startswith(TRANS) else 1 for x in g)
            if any(x.kind == "vmem" for x in g): acc -= every
            while k < len(side) and acc >= every:
                sl += side[k]
                if any(x.kind == "vmem" for x in side[k]): acc -= every
                k += 1
        rest = side[k:]
        self.note += f"; mid takes {k} of {len(side)} side groups"
        mid = sum(slots, []) + self.stamp("mid")
        nA = max([j + 1 for j, g in enumerate(rest) if any("a[" in x.text and x.kind == "vmem" for x in g)], default=0)
        mid += sum(rest[:nA], [])
        rest = rest[nA:]
        nP = max([j + 1 for j, g in enumerate(rest) if any(x.kind == "ds" and x.tag and int(x.tag[2:]) < 8 for x in g)], default=0)
        pre0 = rest[:nP]
        if not A and opt.get("lflag_at", -20) < 0:
            pre0.insert(min(len(pre0), -opt.get("lflag_at", -20)), self.flag_store(sFP, 128, ["Lst"]) + self.stamp("fl"))
        mid += sum(pre0, [])
        rest = rest[nP:]
        if not self.parked(0):
            mid += L("@vm V0")
            for r in self.v_reads(0): mid += r

        DA = opt.get("da", 4)
        ph2 = []
        for n in range(36):
            mf = []
            for sr in range(2):
                for sn in range(2):
                    k, b = self.vfrag(n, sn)
                    acc = vr(96 + (sr * 2 + sn) * 16, 16)
                    mf.append(L(f"v_mfma_f32_32x32x16_bf16 {acc}, {k}[{b}:{b+3}], {ar(self.areg(n, sr))}, {acc if n else 0}"))
            g = [[] for _ in range(4)]
            if n + 1 < 36 and not self.parked(n + 1):
                g[0] += L(f"@vm V{n+1}")
                rd = self.v_reads(n + 1)
                g[0] += rd[0] + rd[1]; g[1] += rd[2] + rd[3]
            vl = []
            ru = opt.get("restu", 12)
            if n < ru:
                take = -(-len(rest) // (ru - n))
                due = max([j + 1 for j, gg in enumerate(rest) if any(x.kind == "ds" and x.tag and int(x.tag[2:]) <= n + 2 for x in gg)], default=0)
                take = max(take, due)
                split = take < len(rest) and take and len(rest[take]) == 1 and rest[take][0].kind == "vmem" and rest[take][0].lds
                vl = rest[:take]
                rest = rest[take:]
            for i, x in enumerate(vl): g[min(3, 1 + i * 3 // len(vl))] += x
            if n == (opt.get("oflag_at", 6) if A else opt.get("lflag_at", -20)):
                g[3] += (self.flag_store(sFP, 384, ["Ost"]) if A else self.flag_store(sFP, 128, ["Lst"])) + self.stamp("fl")
            m = n + (DA if n >= 8 else 0)
            for first, off in ((8, 256), (16, 128), (28, 384)):
                at = max(first - DA, 7)
                if n == at - (opt.get("pl8", 4) if first == 8 else opt.get("pl", 3)): g[2] += self.poll_issue(pa, V("F"), off)
                if n == at: g[2] += self.stamp(f"q{first}") + self.poll_check(pa, V("F"), off) + self.stamp(f"k{first}")
            if n == 7:
                for mm in range(8, 8 + DA): g[3] += sum(self.a_loads(mm), [])
            if n >= 8 and n + DA < 36: g[3] += sum(self.a_loads(n + DA), [])
            if not opt.get("exact2", 0): ph2 += L("@lgkm0")
            for i in range(4):
                ph2 += mf[i]
                if i == 0 and n % 4 == 0: ph2 += self.stamp(f"u{n}")
                ph2 += g[i]
        assert not rest
        ph2 += self.stamp("ph2end")

        fin = []
        T = [self.v(f"t{i}") for i in range(8)]
        of = opt.get("oflags", "sc1")
        if opt.get("full", 1):
            AD = 160
            rws = L(f"""
            v_mbcnt_lo_u32_b32 v{T[0]}, -1, 0
            v_mbcnt_hi_u32_b32 v{T[0]}, -1, v{T[0]}
            v_and_b32 v{T[1]}, 7, v{T[0]}
            v_lshrrev_b32 v{T[2]}, 5, v{T[0]}
            v_xor_b32 v{T[2]}, v{T[2]}, v{T[1]}
            v_lshlrev_b32 v{T[2]}, 4, v{T[2]}
            v_lshl_add_u32 v{T[2]}, v{T[1]}, 8, v{T[2]}
            v_bfe_u32 v{T[3]}, v{T[0]}, 3, 2
            v_lshl_add_u32 v{T[2]}, v{T[3]}, 13, v{T[2]}
            s_lshl_b32 {sT0}, {sRH}, 15
            s_lshl_b32 {sT1}, {sJ}, 7
            s_add_u32 {sT0}, {sT0}, {sT1}
            s_add_u32 {sT0}, {sT0}, {sL2}
            v_add_u32 v{AD}, {sT0}, v{T[2]}
            """)
            for sg in range(4):
                for q in range(4):
                    if sg or q: rws += L(f"v_xor_b32 v{AD + sg*4 + q}, {q*32 + (sg & 1)*128 + (sg >> 1)*32768}, v{AD}")
            rws += L(f"""
            v_lshrrev_b32 v{T[3]}, 3, v{T[0]}
            v_lshlrev_b32 v{T[4]}, 1, v{T[1]}
            v_xor_b32 v{T[4]}, v{T[4]}, v{T[3]}
            v_lshlrev_b32 v{T[4]}, 4, v{T[4]}
            v_lshl_add_u32 v{T[4]}, v{T[3]}, 8, v{T[4]}
            s_lshl_b32 {sT0}, {sW}, 14
            v_add_u32 v{T[4]}, {sT0}, v{T[4]}
            v_xor_b32 v{T[5]}, 16, v{T[4]}
            v_lshlrev_b32 v{T[1]}, 4, v{T[1]}
            v_lshl_add_u32 v{T[1]}, v{T[3]}, 10, v{T[1]}
            s_lshl2_add_u32 {sT0}, {sR2}, {sW}
            s_lshl_b32 {sT0}, {sT0}, 14
            s_lshl_b32 {sT1}, {sC2}, 7
            s_add_u32 {sT0}, {sT0}, {sT1}
            v_add_u32 v{T[1]}, {sT0}, v{T[1]}
            s_movk_i32 {sT2}, 0x2000
            """)
            k8 = next(i for i, x in enumerate(ph2) if x.kind == "mfma" and "a[160:163]" in x.text and i > 200)
            ph2[k8:k8] = rws
            for sg in range(4):
                for q in range(4):
                    fin += L(f"ds_write_b128 v{AD + sg*4 + q}, {vr(96 + sg*16 + q*4)}")
            fin += L("@lgkm0\ns_barrier") + self.stamp("redbar")
            for h in range(2):
                for sw in range(4):
                    for e in range(2):
                        fin += L(f"ds_read_b128 {vr(96 + h*32 + sw*8 + e*4)}, v{T[4+e]} offset:{h*8192 + sw*2048}")
            for h in range(2):
                b0 = 96 + h * 32
                for i in range(0, 8, 2):
                    fin += L(f"v_pk_add_f32 v[{b0+i}:{b0+i+1}], v[{b0+i}:{b0+i+1}], v[{b0+8+i}:{b0+9+i}]")
                for i in range(0, 8, 2):
                    fin += L(f"v_pk_add_f32 v[{b0+16+i}:{b0+17+i}], v[{b0+16+i}:{b0+17+i}], v[{b0+24+i}:{b0+25+i}]")
                for i in range(0, 8, 2):
                    fin += L(f"v_pk_add_f32 v[{b0+i}:{b0+i+1}], v[{b0+i}:{b0+i+1}], v[{b0+16+i}:{b0+17+i}]")
                d = 176 + h * 4
                for i in range(4): fin += L(f"v_cvt_pk_bf16_f32 v{d+i}, v{b0+2*i}, v{b0+2*i+1}")
                fin += L(f"buffer_store_dwordx4 {vr(d)}, v{T[1]}, {srd(SOUT)}, {sT2 if h else 0} offen {of}")
        else:
            RW = f"v{T[0]}"
            rws = L(f"v_mbcnt_lo_u32_b32 {RW}, -1, 0\nv_mbcnt_hi_u32_b32 {RW}, -1, {RW}\nv_lshl_add_u32 {RW}, {RW}, 4, {sL2}")
            for sg in range(1, 4): rws += L(f"v_xor_b32 v{T[sg]}, {sg*2048}, {RW}")
            mid += rws
            for sg in range(1, 4):
                for q in range(4):
                    fin += L(f"ds_write_b128 {RW}, {vr(96 + sg*16 + q*4)} offset:{((sg-1)*2 + (q >> 1))*8192 + (q & 1)*1024}")
            fin += L("@lgkm0\ns_barrier") + self.stamp("redbar")
            for q in range(4):
                for sg in range(1, 4):
                    fin += L(f"ds_read_b128 {vr(96 + sg*16 + q*4)}, v{T[sg]} offset:{((sg-1)*2 + (q >> 1))*8192 + (q & 1)*1024}")
            of = opt.get("oflags", "sc1")
            for pr in range(2):
                for q in (2 * pr, 2 * pr + 1):
                    for h in range(2):
                        r = 96 + q * 4 + 2 * h
                        fin += L(f"""
                        v_pk_add_f32 v[{r}:{r+1}], v[{r}:{r+1}], v[{r+16}:{r+17}]
                        v_pk_add_f32 v[{r+32}:{r+33}], v[{r+32}:{r+33}], v[{r+48}:{r+49}]
                        v_pk_add_f32 v[{r}:{r+1}], v[{r}:{r+1}], v[{r+32}:{r+33}]
                        """)
                d = 160 + pr * 4
                for i in range(4):
                    r = 96 + pr * 8 + 2 * i
                    fin += L(f"v_cvt_pk_bf16_f32 v{d+i}, v{r}, v{r+1}")
                fin += L(f"""
                v_permlane32_swap_b32 v{d}, v{d+2}
                v_permlane32_swap_b32 v{d+1}, v{d+3}
                buffer_store_dwordx4 {vr(d)}, {V('OUT')}, {srd(SOUT)}, 0 offen offset:{pr*32} {of}
                """)
        skip = self.lab("noep")
        fin += L(f"""
        s_or_b32 {sT0}, s2, {sW}
        s_cmp_eq_u32 {sT0}, 0
        s_cbranch_scc1 {skip}_go
        {skip}:
        """)
        self.ool += L(f"""
        {skip}_go:
        s_mov_b64 exec, 1
        @raw buffer_store_dword {V('tag')}, off, {srd(SW)}, 0 offset:{WS_EPOCH} sc1
        s_branch {skip}
        """)
        if opt.get("padto"):
            lp = self.lab("pad")
            if "xstamp" in opt:
                fin += L("@lgkm0\ns_mov_b32 s3, s4")
            fin += L(f"""
            {lp}:
            @raw s_memrealtime s[82:83]
            @raw s_waitcnt lgkmcnt(0)
            @raw s_sub_u32 s82, s82, s3
            @raw s_cmp_lt_u32 s82, {opt['padto']}
            @raw s_cbranch_scc1 {lp}
            """)
        if opt.get("stamps"):
            st = V("stamps")
            fin += L("s_mov_b64 exec, -1") + self.stamp("stored") + L("@vm0") + self.stamp("end") + self.stamp("FLUSH")
            fin += L(f"""
            s_memrealtime s[4:5]
            v_writelane_b32 {st}, s6, 60
            v_writelane_b32 {st}, {sSpin}, 61
            v_writelane_b32 {st}, s3, 62
            v_writelane_b32 {st}, s4, 63
            s_lshl_b32 {sT0}, s2, 2
            s_add_u32 {sT0}, {sT0}, {sW}
            s_lshl_b32 {sT0}, {sT0}, 8
            s_add_u32 {sT0}, {sT0}, {WS_STAMP}
            v_mbcnt_lo_u32_b32 v96, -1, 0
            v_mbcnt_hi_u32_b32 v96, -1, v96
            v_lshlrev_b32 v96, 2, v96
            buffer_store_dword {st}, v96, {srd(SW)}, {sT0} offen
            """)
        fin += L("s_endpgm")

        assert not opt.get("defer", 0) or len(self.setup) == nset
        fin += L(f"L_stop{self.typ}:") + self.ool + L(f"L_end{self.typ}:")
        loads = self.pro_loads
        t1 = []
        hs = opt.get("hstamp")
        if opt.get("early"):
            o2 = dict(opt); o2["t1"] = 0
            t1 = L(T1X.replace("s[44:45]", f"s[{SX}:{SX+1}]").replace("s[46:47]", f"s[{SQ}:{SQ+1}]").replace("s[48:49]", f"s[{SG}:{SG+1}]").replace("s[50:51]", f"s[{SU}:{SU+1}]") + "s_mov_b64 exec, -1")
            k = next(i for i, x in enumerate(t1) if "exec" in x.text)
            common = common_head(o2) + self.first + t1[:k] + L("@lgkm0")
            t1 = t1[k:]
        else:
          common = common_head(opt) + (L("s_memtime s[94:95]") if hs else []) + self.first + (L("s_memtime s[96:97]") if hs else []) + L("@lgkm0") + (L("s_memtime s[98:99]") if hs else [])
        if opt.get("stamps") or opt.get("padto"): common += L("s_mov_b32 s3, s4")
        p1 = opt.get("t1pos", 0)
        nc = opt.get("nc", 8)
        tlb = []
        if opt.get("tlb"):
            tlb = L(f"""
            s_mov_b64 exec, 1
            buffer_load_dword v244, {V('HS0')}, {srd(SW)}, 0 offen sc1
            buffer_load_dword v243, {V('A80')}, {srd(SW)}, 0 offen sc1
            """) + (L(f"buffer_load_dword v242, {V('OUT')}, {srd(SOUT)}, 0 offen sc1") if opt["tlb"] == 2 else []) + L("s_mov_b64 exec, -1")
        warm = []
        wat = opt.get("wat", -1)
        if opt.get("isl", 2):
            X = self.typ
            warm = L(f"""
            s_mov_b64 exec, 0
            s_cmp_eq_u32 {sW}, 0
            s_cbranch_scc1 L_isl{X}1
            s_cmp_eq_u32 {sW}, 1
            s_cbranch_scc1 L_isl{X}2
            s_cmp_eq_u32 {sW}, 2
            s_cbranch_scc1 L_isl{X}3
            s_branch L_isl{X}4
            L_ret{X}:
            s_mov_b64 exec, -1
            """)
        common += sum(loads[:p1], []) + t1 + sum(loads[p1:nc], [])
        common += L("s_bitcmp1_b32 s2, 6\ns_cbranch_scc1 L_pathB")
        if hs: body = L("@lgkm0") + sum((L(f"v_writelane_b32 {V('stamps')}, s{r}, {i}") for i, r in ((56, 100), (57, 94), (58, 96), (59, 98))), []) + body
        head = body + L(f"buffer_load_dword {V('tag')}, off, {srd(SW)}, 0 offset:{WS_EPOCH} sc1") + self.second_a + ([] if opt.get("defer", 0) else self.second + self.setup)
        nd = opt.get("nd", 8)
        head += sum(loads[nc:nd], []) + (warm if wat < 0 else []) + sum(loads[nd:], []) + tlb
        if opt.get("t2", 2) == -3: head += touch2(self, 0, False)
        tagf = L(f"v_add_u32 {V('tag')}, 0x9e3779b9, {V('tag')}\nv_readfirstlane_b32 {sTag}, {V('tag')}")
        k1 = next(i for i, x in enumerate(ph1) if x.kind == "mfma")
        ph1[k1 + 1:k1 + 1] = tagf
        if wat >= 0:
            k2 = [i for i, x in enumerate(ph1) if x.text.startswith("@sync")][wat]
            ph1[k2:k2] = warm
        if opt.get("nosc1"):
            for x in ph1 + mid:
                if x.kind == "vmem" and "store_dwordx4" in x.op: x.text = x.text.replace(" sc1", "")
        if opt.get("nost") == 2:
            for x in ph1 + mid:
                if x.kind == "vmem" and "store_dwordx4" in x.op: x.text = re.sub(r"(s\[\d+:\d+\]), \S+ offen", r"\1, s35 offen", x.text.replace("s[32:35]", "s[40:43]")).replace(" sc1", "")
        if opt.get("novalu"):
            mid = [x for x in mid if not (x.kind == "valu" and x.op.startswith(("v_pk", "v_exp", "v_rcp", "v_mul", "v_max", "v_add_f32", "v_cvt")))]
        if opt.get("novalu") == 2:
            keep = lambda x: not (x.kind == "valu" and x.op.startswith(("v_pk", "v_exp", "v_rcp", "v_mul", "v_max", "v_add_f32", "v_cvt", "v_fma")))
            k0 = next(i for i, x in enumerate(ph1) if "H1" in x.text)
            ph1 = ph1[:k0 + 200] + [x for x in ph1[k0 + 200:] if keep(x)]
        if opt.get("nost") == 1:
            for x in ph1 + mid:
                if x.kind == "vmem" and "store_dwordx4" in x.op: x.text = x.text.replace("_dwordx4", "_dword").replace(" sc1", ""); x.text = re.sub(r"v\[(\d+):\d+\]", r"v\1", x.text, 1)
        if opt.get("nomfma"): ph1 = [x for x in ph1 if x.kind != "mfma"]; ph2 = [x for x in ph2 if x.kind != "mfma"]
        if opt.get("nods"): ph1 = [x for x in ph1 if not x.op.startswith("ds_read")]; ph2 = [x for x in ph2 if not x.op.startswith("ds_read")]
        if opt.get("nobar"): ph1 = [x for x in ph1 if x.op != "s_barrier"]
        if opt.get("nodma"): ph1 = [x for x in ph1 if not (x.kind == "vmem" and x.lds and not x.tag)]
        return self.expand_stamps(common + head + ph1 + mid + ph2 + fin)


def touch(sr, mask, code, dst, raw=False):
    p = "@raw " if raw else ""
    return L(f"{code}\ns_mov_b64 exec, {mask}\n{p}buffer_load_dword v{dst}, v246, {srd(sr)}, {sOff} offen")


def rowhalf(stride, nbytes, c0):
    return (f"s_lshr_b32 {sOff}, {sGW}, 1\ns_mul_i32 {sOff}, {sOff}, {stride}\ns_and_b32 {sT0}, {sGW}, 1\n"
            f"s_mul_i32 {sT0}, {sT0}, {nbytes}\ns_add_u32 {sOff}, {sOff}, {sT0}" + (f"\ns_add_u32 {sOff}, {sOff}, {c0}" if c0 else ""))


def touch2(g, k, cond=True, part=0):
    skip = g.lab("t2") if cond else None
    n = g.opt.get("t2n", 4) if cond else 1
    o = L(f"s_and_b32 {sT0}, {sSel}, {n-1}\ns_cmp_lg_u32 {sT0}, {k}\ns_cbranch_scc1 {skip}") if cond else []
    p = "@raw " if cond else ""
    if g.opt.get("xt", 1):
        t = [0, 0, 0, 0, 239, 240, 241, 242]
        assert g.hi_next <= 239
        x8 = g.opt.get("map2", "8x4").startswith("8x4")
        o += L(f"""
        v_lshrrev_b32 v{t[4]}, 7, v246
        s_and_b32 {sT0}, {sGW}, 127
        s_bfe_u32 {sT1}, s2, 0x10000
        s_lshl_b32 {sT2}, {sT1}, 7
        s_add_u32 {sT2}, {sT2}, {sT0}
        s_lshl_b32 {sT2}, {sT2}, 1
        s_bfe_u32 {sOff}, s2, 0x20001
        """)
        if part in (0, 1):
            o += L(f"""
            v_bfe_u32 v{t[5]}, v{t[4]}, 1, 1
            v_add_u32 v{t[5]}, {sT2}, v{t[5]}
            v_and_b32 v{t[6]}, 1, v{t[4]}
            v_lshl_add_u32 v{t[6]}, {sOff}, 1, v{t[6]}
            v_lshlrev_b32 v{t[6]}, 7, v{t[6]}
            v_mul_u32_u24 v{t[7]}, 3072, v{t[5]}
            v_add_u32 v{t[7]}, v{t[7]}, v{t[6]}
            s_mov_b64 exec, 15
            {p}buffer_load_dword v248, v{t[7]}, {srd(SQ)}, 0 offen
            s_mov_b64 exec, -1
            v_lshrrev_b32 v{t[7]}, 2, v{t[4]}
            v_lshl_add_u32 v{t[6]}, v{t[7]}, 10, v{t[6]}
            v_add_u32 v{t[6]}, 1536, v{t[6]}
            v_lshlrev_b32 v{t[7]}, 7, {sOff}
            v_add_u32 v{t[7]}, 1024, v{t[7]}
            v_cmp_gt_u32 vcc, 8, v{t[4]}
            v_cndmask_b32 v{t[6]}, v{t[7]}, v{t[6]}, vcc
            v_mul_u32_u24 v{t[5]}, 3584, v{t[5]}
            v_add_u32 v{t[6]}, v{t[6]}, v{t[5]}
            s_mov_b64 exec, 0x5ff
            {p}buffer_load_dword v250, v{t[6]}, {srd(SG)}, 0 offen
            {p}buffer_load_dword v249, v{t[6]}, {srd(SU)}, 0 offen
            s_mov_b64 exec, -1
            """)
        if part in (0, 2) and x8:
            o += L(f"""
            v_lshrrev_b32 v{t[5]}, 2, v{t[4]}
            v_and_b32 v{t[6]}, 3, v{t[4]}
            v_lshlrev_b32 v{t[6]}, 7, v{t[6]}
            v_lshl_add_u32 v{t[6]}, v{t[5]}, 10, v{t[6]}
            s_lshl_b32 {sT1}, {sT1}, 9
            s_lshl_b32 {sT2}, {sOff}, 7
            s_add_u32 {sT2}, {sT2}, {sT0}
            s_lshl_b32 {sOff}, {sT2}, 10
            s_add_u32 {sOff}, {sOff}, {sT1}
            s_mov_b64 exec, 15
            {p}buffer_load_dword v247, v{t[6]}, {srd(SO)}, {sOff} offen
            s_lshl_b32 {sOff}, {sT2}, 12
            s_add_u32 {sOff}, {sOff}, {sT1}
            s_mov_b64 exec, 0xffff
            {p}buffer_load_dword v245, v{t[6]}, {srd(SD)}, {sOff} offen
            """)
        elif part in (0, 2):
            o += touch(SO, "15", f"s_lshl_b32 {sOff}, {sGW}, 9", 247, cond)
            o += touch(SD, "0x3fff", f"s_mul_i32 {sOff}, {sGW}, 1792", 245, cond)
        part = 9
    if part in (0, 1):
        o += touch(SG, "0x3ff", rowhalf(3584, 1280, 1024), 250, cond) + L(p + f"buffer_load_dword v249, v246, {srd(SU)}, {sOff} offen")
        o += touch(SQ, "15", rowhalf(3072, 512, 0), 248, cond)
    if part == 0:
        o += touch(SO, "15", f"s_lshl_b32 {sOff}, {sGW}, 9", 247, cond)
        o += touch(SD, "0x3fff", f"s_mul_i32 {sOff}, {sGW}, 1792", 245, cond)
    if part == 2:
        a, d = g.v("t5"), g.v("t6")
        o += L(f"v_mbcnt_lo_u32_b32 v{a}, -1, 0\nv_mbcnt_hi_u32_b32 v{a}, -1, v{a}\nv_lshlrev_b32 v{a}, 7, v{a}")
        o += L(f"s_lshl_b32 {sOff}, {sGW}, 9\ns_mov_b64 exec, 15\nbuffer_load_dword v{d}, v{a}, {srd(SO)}, {sOff} offen")
        o += L(f"s_mul_i32 {sOff}, {sGW}, 1792\ns_mov_b64 exec, 0x3fff\nbuffer_load_dword v{d+1}, v{a}, {srd(SD)}, {sOff} offen")
    o += L("s_mov_b64 exec, -1")
    if cond: o += L(f"{skip}:")
    return o


def touch4(g):
    a, b, d = g.v("t5"), g.v("t4"), g.v("t6")
    return L(f"""
    v_mbcnt_lo_u32_b32 v{a}, -1, 0
    v_mbcnt_hi_u32_b32 v{a}, -1, v{a}
    v_and_b32 v{b}, 3, v{a}
    v_lshrrev_b32 v{a}, 2, v{a}
    v_lshlrev_b32 v{b}, 7, v{b}
    v_lshl_add_u32 v{a}, v{a}, 10, v{b}
    s_and_b32 {sT0}, {sGW}, 127
    s_bfe_u32 {sT1}, s2, 0x10000
    s_lshl_b32 {sT1}, {sT1}, 9
    s_mul_i32 {sOff}, {sT0}, {14*1024}
    s_add_u32 {sOff}, {sOff}, {sT1}
    s_mov_b32 exec_hi, 0xffffff
    buffer_load_dword v{d}, v{a}, {srd(SD)}, {sOff} offen
    s_lshl_b32 {sOff}, {sT0}, 12
    s_add_u32 {sOff}, {sOff}, {sT1}
    s_mov_b64 exec, 0xffff
    buffer_load_dword v{d+1}, v{a}, {srd(SO)}, {sOff} offen
    s_mov_b64 exec, -1
    """)


def codepf(opt):
    o = L(f"""
    s_getpc_b64 s[82:83]
    L_pc:
    s_bitcmp1_b32 s2, 6
    s_cselect_b32 {sT2}, L_pathB-L_pathA, 0
    s_add_u32 {sT2}, {sT2}, L_pathA-L_pc
    """)
    m = opt.get("codepf", 1)
    if m == 1:
        o += L(f"""
        s_bfe_u32 {sT0}, s2, 0x30003
        s_lshr_b32 {sT1}, s2, 7
        s_lshl3_add_u32 {sT0}, {sT1}, {sT0}
        s_mul_i32 {sT0}, {sT0}, 1536
        s_add_u32 {sT2}, {sT2}, {sT0}
        v_min_u32 v1, 11, v0
        v_lshl_add_u32 v1, v1, 7, {sT2}
        v_min_u32 v1, L_endB-L_pc-4, v1
        global_load_dword v255, v1, s[82:83]
        """)
    elif m == 2:
        o += L(f"""
        v_lshl_add_u32 v1, v0, 7, {sT2}
        v_min_u32 v1, L_endB-L_pc-4, v1
        global_load_dword v255, v1, s[82:83]
        """)
    elif m == 3:
        o += L(f"""
        s_bfe_u32 {sT0}, s2, 0x30003
        s_lshr_b32 {sT1}, s2, 7
        s_lshl3_add_u32 {sT0}, {sT1}, {sT0}
        s_mul_i32 {sT0}, {sT0}, 1536
        s_add_u32 {sT0}, {sT2}, {sT0}
        v_and_b32 v1, 63, v0
        v_lshlrev_b32 v1, 7, v1
        s_mov_b64 exec, 0x1ff
        global_load_dword v244, v1, s[82:83]
        v_add_u32 v2, {sT2}, v1
        global_load_dword v243, v2, s[82:83]
        s_mov_b64 exec, -1
        v_min_u32 v1, 11, v0
        v_lshl_add_u32 v1, v1, 7, {sT0}
        v_min_u32 v1, L_endB-L_pc-4, v1
        global_load_dword v255, v1, s[82:83]
        """)
    return o


T1 = """
        v_lshrrev_b32 v2, 6, v0
        v_lshl_add_u32 v2, s2, 2, v2
        v_and_b32 v1, 63, v0
        v_lshlrev_b32 v1, 7, v1
        v_lshl_add_u32 v3, v2, 11, v1
        v_lshrrev_b32 v4, 1, v2
        v_and_b32 v2, 1, v2
        v_mad_u32_u24 v5, v4, 3, v2
        v_mad_u32_u24 v4, v4, 7, v2
        v_lshl_add_u32 v5, v5, 10, v1
        v_lshl_add_u32 v4, v4, 9, v1
        s_mov_b64 exec, 0xffff
        @lgkm0
        global_load_dword v254, v3, s[44:45]
        s_mov_b64 exec, 0xff
        global_load_dword v253, v5, s[46:47] offset:1024
        s_mov_b64 exec, 15
        global_load_dword v252, v4, s[48:49]
        global_load_dword v251, v4, s[50:51]
"""
T1X = """
        v_lshrrev_b32 v2, 6, v0
        s_lshr_b32 s52, s2, 3
        s_and_b32 s53, s2, 1
        s_bfe_u32 s54, s2, 0x20001
        v_lshl_add_u32 v2, s52, 2, v2
        v_and_b32 v1, 63, v0
        s_lshl2_add_u32 s52, s53, s54
        s_lshl_b32 s52, s52, 18
        v_lshlrev_b32 v3, 11, v2
        v_lshl_add_u32 v3, v1, 7, v3
        v_add_u32 v3, s52, v3
        s_lshl_b32 s53, s53, 8
        v_lshl_add_u32 v2, v2, 1, s53
        v_bfe_u32 v4, v1, 1, 1
        v_add_u32 v2, v2, v4
        v_and_b32 v4, 1, v1
        v_lshl_add_u32 v4, s54, 1, v4
        v_lshlrev_b32 v4, 7, v4
        v_lshrrev_b32 v1, 2, v1
        v_lshl_add_u32 v5, v1, 10, v4
        s_movk_i32 s52, 0xc00
        s_movk_i32 s53, 0xe00
        v_mad_u32_u24 v5, v2, s52, v5
        v_mad_u32_u24 v4, v2, s53, v4
        s_mov_b64 exec, 0xffff
        @lgkm0
        global_load_dword v254, v3, s[44:45]
        s_mov_b64 exec, 0xff
        global_load_dword v253, v5, s[46:47] offset:1024
        s_mov_b64 exec, 15
        global_load_dword v252, v4, s[48:49]
        global_load_dword v251, v4, s[50:51]
"""
T1Z = """
        v_lshrrev_b32 v2, 6, v0
        s_lshr_b32 s52, s2, 3
        s_and_b32 s53, s2, 1
        s_bfe_u32 s54, s2, 0x20001
        v_lshl_add_u32 v2, s52, 2, v2
        v_and_b32 v1, 63, v0
        s_lshl2_add_u32 s52, s53, s54
        s_lshl_b32 s52, s52, 18
        v_lshlrev_b32 v3, 11, v2
        v_lshl_add_u32 v3, v1, 7, v3
        v_add_u32 v3, s52, v3
        s_lshl_b32 s53, s53, 8
        v_lshl_add_u32 v2, v2, 1, s53
        v_bfe_u32 v4, v1, 1, 1
        v_add_u32 v2, v2, v4
        v_and_b32 v4, 1, v1
        v_lshl_add_u32 v4, s54, 1, v4
        v_lshlrev_b32 v4, 7, v4
        v_lshrrev_b32 v1, 2, v1
        v_lshl_add_u32 v5, v1, 10, v4
        s_movk_i32 s52, 0xc00
        s_movk_i32 s53, 0xe00
        v_mad_u32_u24 v5, v2, s52, v5
        v_mad_u32_u24 v4, v2, s53, v4
        s_mov_b64 exec, 0xfefe
        @lgkm0
        global_load_dword v254, v3, s[44:45]
        s_mov_b64 exec, 0xff
        global_load_dword v253, v5, s[46:47] offset:1024
        s_mov_b64 exec, 15
        global_load_dword v252, v4, s[48:49]
        global_load_dword v251, v4, s[50:51]
"""
T1V = """
        v_lshrrev_b32 v2, 6, v0
        s_lshr_b32 s52, s2, 3
        s_and_b32 s53, s2, 1
        s_bfe_u32 s54, s2, 0x20001
        v_lshl_add_u32 v2, s52, 2, v2
        v_and_b32 v1, 63, v0
        s_lshl2_add_u32 s52, s53, s54
        s_lshl_b32 s52, s52, 18
        v_lshlrev_b32 v3, 11, v2
        v_lshl_add_u32 v3, v1, 7, v3
        v_add_u32 v3, s52, v3
        s_lshl_b32 s53, s53, 8
        v_lshl_add_u32 v2, v2, 1, s53
        v_bfe_u32 v4, v1, 1, 1
        v_add_u32 v2, v2, v4
        v_and_b32 v4, 1, v1
        v_lshl_add_u32 v4, s54, 1, v4
        v_lshlrev_b32 v4, 7, v4
        v_lshrrev_b32 v1, 2, v1
        v_lshl_add_u32 v5, v1, 10, v4
        s_movk_i32 s52, 0xc00
        s_movk_i32 s53, 0xe00
        v_mad_u32_u24 v5, v2, s52, v5
        v_mad_u32_u24 v4, v2, s53, v4
        s_mov_b64 exec, 0xfcfc
        @lgkm0
        global_load_dword v254, v3, s[44:45]
        s_mov_b64 exec, 0xff
        global_load_dword v253, v5, s[46:47] offset:1024
        s_mov_b64 exec, 15
        global_load_dword v252, v4, s[48:49]
        global_load_dword v251, v4, s[50:51]
"""
T1W = """
        v_lshrrev_b32 v2, 6, v0
        s_lshr_b32 s52, s2, 3
        s_and_b32 s53, s2, 1
        s_bfe_u32 s54, s2, 0x20001
        v_lshl_add_u32 v2, s52, 2, v2
        v_and_b32 v1, 63, v0
        s_lshl2_add_u32 s52, s53, s54
        s_lshl_b32 s52, s52, 18
        v_lshlrev_b32 v3, 11, v2
        v_lshl_add_u32 v3, v1, 7, v3
        v_add_u32 v3, s52, v3
        v_bfe_u32 v4, v1, 1, 2
        v_lshl_add_u32 v2, v2, 2, v4
        v_and_b32 v4, 1, v1
        v_lshl_add_u32 v4, s54, 1, v4
        v_lshlrev_b32 v4, 7, v4
        v_lshrrev_b32 v1, 3, v1
        v_lshl_add_u32 v5, v1, 10, v4
        s_movk_i32 s52, 0xc00
        s_movk_i32 s53, 0xe00
        v_mad_u32_u24 v5, v2, s52, v5
        v_mad_u32_u24 v4, v2, s53, v4
        s_mov_b64 exec, 0xffff
        @lgkm0
        global_load_dword v254, v3, s[44:45]
        global_load_dword v253, v5, s[46:47] offset:1024
        s_mov_b64 exec, 0xff
        global_load_dword v252, v4, s[48:49]
        global_load_dword v251, v4, s[50:51]
"""
T1Y = """
        v_lshrrev_b32 v2, 6, v0
        s_lshr_b32 s52, s2, 3
        s_and_b32 s53, s2, 1
        s_bfe_u32 s54, s2, 0x20001
        v_lshl_add_u32 v2, s52, 2, v2
        v_and_b32 v1, 63, v0
        s_and_b32 s52, s54, 1
        s_lshl1_add_u32 s52, s53, s52
        s_lshl_b32 s52, s52, 19
        v_lshlrev_b32 v3, 12, v2
        v_lshl_add_u32 v3, v1, 7, v3
        v_add_u32 v3, s52, v3
        s_lshl_b32 s53, s53, 8
        v_lshl_add_u32 v2, v2, 1, s53
        v_bfe_u32 v4, v1, 1, 1
        v_add_u32 v2, v2, v4
        v_and_b32 v4, 1, v1
        v_lshl_add_u32 v4, s54, 1, v4
        v_lshlrev_b32 v4, 7, v4
        v_lshrrev_b32 v1, 2, v1
        v_lshl_add_u32 v5, v1, 10, v4
        s_movk_i32 s52, 0xc00
        s_movk_i32 s53, 0xe00
        v_mad_u32_u24 v5, v2, s52, v5
        v_mad_u32_u24 v4, v2, s53, v4
        s_mov_b32 exec_hi, 0
        @lgkm0
        global_load_dword v254, v3, s[44:45]
        s_mov_b64 exec, 0xff
        global_load_dword v253, v5, s[46:47] offset:1024
        s_mov_b64 exec, 15
        global_load_dword v252, v4, s[48:49]
        global_load_dword v251, v4, s[50:51]
"""


def common_head(opt):
    o = L(f"""
    s_cmp_ge_u32 s2, 0x100
    s_cbranch_scc1 L_end
    """)
    if opt.get("stamps") or opt.get("padto"):
        o += L(("s_memrealtime" if opt.get("rt") else "s_memtime") + " s[6:7]\ns_memrealtime s[4:5]")
    if opt.get("t1", 2) == 2:
        o += L("""
        s_load_dwordx4 s[44:47], s[0:1], 0
        s_load_dwordx4 s[48:51], s[0:1], 32
        """)
    if opt.get("pftop", 1) == 1 and not opt.get("early"): o += codepf(opt)
    if opt.get("t1", 2) == 2:
        o += L(f"""
        {(T1, T1X, T1W, T1Y, T1Z, T1V)[opt.get("xt", 1)]}
        {"s_memtime s[100:101]" if opt.get("hstamp") else ""}
        s_mov_b64 exec, -1
        """)
    if opt.get("pftop", 1) == 2: o += codepf(opt)
    o += L(f"""
    s_bitcmp1_b32 s2, 6
    s_cselect_b32 {sT0}, 32, 8
    s_cselect_b32 {sT1}, 40, 8
    s_load_dwordx2 s[{S1}:{S1+1}], s[0:1], {sT0}
    s_load_dwordx2 s[{S2}:{S2+1}], s[0:1], {sT1}
    """)
    for b, slot in ((SX, 0), (SG, 4), (SU, 5), (SQ, 1), (SGW, 7), (SW, 10), (SD, 6), (SO, 2), (SOUT, 8)):
        o += L(f"s_load_dwordx2 s[{b}:{b+1}], s[0:1], {slot*8}")
    if not opt.get("pftop", 1) or opt.get("early"): o += codepf(opt)
    for b, n in ((SX, 2048 * 1024), (SQ, 512 * 3072), (SG, 512 * 3584), (SU, 512 * 3584), (SD, 1792 * 1024),
                 (SO, 512 * 1024), (SW, WS_BYTES), (SOUT, 2048 * 1024), (SGW, 1024)):
        o += L(f"s_mov_b32 s{b+2}, {n}\ns_mov_b32 s{b+3}, 0x20000")
    return o


def assemble_sizes(txt):
    import subprocess, tempfile, os
    d = tempfile.mkdtemp()
    open(d + "/a.s", "w").write('.amdgcn_target "amdgcn-amd-amdhsa--gfx950"\n.text\nk:\n' + txt)
    subprocess.run(["clang", "-x", "assembler", "-target", "amdgcn-amd-amdhsa", "-mcpu=gfx950", "-c", d + "/a.s", "-o", d + "/a.o"], check=True)
    o = subprocess.run(["llvm-objdump", "-d", "--mcpu=gfx950", d + "/a.o"], capture_output=True, text=True).stdout
    sizes = [4 * len(re.match(r".*// [0-9A-F]+: ((?:[0-9A-F]{8} ?)+)", l).group(1).split()) for l in o.split("\n") if re.match(r".*// [0-9A-F]+: [0-9A-F]{8}", l)]
    return sizes


def generate(opt):
    parts = []
    info = []
    names = []
    for typ in "AB":
        g = Gen(typ, opt)
        ins, added = finalize(g.build())
        k = next(i for i, x in enumerate(ins) if x.text.startswith("s_cbranch_scc1 L_pathB"))
        parts.append((ins[:k + 1], ins[k + 1:]))
        info.append((typ, len(ins), added, g.nv, g.hi_next))
        if opt.get("plan"):
            print(typ, g.note)
            for k, v in g.when.items(): print("  ", k, " ".join(f"{a}{b}@{g.blk[(a, b)]}" for a, b in v), "park", g.parks[k])
            print("   post", g.post)
        names.append("; stamps " + typ + ": " + " ".join(g.stamp_names) + "\n" if g.stamp_names else "")
    assert text_of(parts[0][0]) == text_of(parts[1][0])
    isl = opt.get("isl", 2)
    al = ".p2align 12\n" if isl else ""
    txt = text_of(parts[0][0]) + ("    s_branch L_pathA\n" + al if isl == 1 else "") + "L_pathA:\n" + text_of(parts[0][1]) + al + "L_pathB:\n" + text_of(parts[1][1]) + "L_end:\n    s_endpgm\n"
    if opt.get("align", 1):
        stub = "".join(f"L_isl{x}{k}:\n" for x in "AB" for k in range(1, 5)) if isl else ""
        txt, nw, nn, cnt = align8(txt, lambda t: assemble_sizes(t.replace(al, "") + stub) if al else assemble_sizes(t),
                                  {"L_pathA": ("L_stopA", "A"), "L_pathB": ("L_stopB", "B")} if isl == 1 else {"L_pathB": ("L_stopB", "B")} if isl else None,
                                  (0x300, ("L_stopA", "A")) if isl == 2 else None)
        info.append(("align", nw, nn, cnt))
    ref = open("gated_mix__linear_attn_block__geglu_ffn__prompt.s.ref").read()
    hdr = "".join(l + "\n" for l in ref.split("\n") if l.startswith(";") and "@launch" not in l and "Override" not in l and "grid=ceil" not in l)
    out = f"""{hdr}{"".join(names)}; @launch grid=(256,1,1) block=(256,1,1) lds=163840
.amdgcn_target "amdgcn-amd-amdhsa--gfx950"
.text
.globl {KNAME}
.p2align 8
.type {KNAME},@function
{KNAME}:
{txt}.section .rodata,"a"
.p2align 6
.amdhsa_kernel {KNAME}
  .amdhsa_next_free_vgpr 512
  .amdhsa_next_free_sgpr 102
  .amdhsa_accum_offset 256
  .amdhsa_group_segment_fixed_size 0
  .amdhsa_kernarg_size 88
  .amdhsa_user_sgpr_count 2
  .amdhsa_user_sgpr_kernarg_segment_ptr 1
  .amdhsa_system_sgpr_workgroup_id_x 1
  .amdhsa_float_denorm_mode_32 3
.end_amdhsa_kernel
"""
    return out, info


def parse_opts(args):
    opt = {}
    for a in args:
        k, v = a.split("=", 1)
        try: v = int(v)
        except ValueError: v = v.replace("+", " ")
        opt[k] = v
    return opt


if __name__ == "__main__":
    out, info = generate(parse_opts(sys.argv[2:]))
    open(sys.argv[1], "w").write(out)
    print(info)
```

```python
import sys, struct, re
from prog import *

KNAME = "gated_mix__linear_attn_block__geglu_ffn__prompt_kernel"

WS_EPOCH = 0
WS_FL = 0x1000
WS_KF = 0x12000
WS_G = 0x14000
WS_ZP = 0x18000
WS_KP = 0x28000
WS_KT = 0xA8000
WS_H = 0x100000
WS_STAMP = 0x8000000
RG_BYTES = 144 * 1024
WS_BYTES = 268435456

def f32(x): return "0x%08x" % struct.unpack("<I", struct.pack("<f", x))[0]
LOG2E = 1.4426950408889634
K0 = -2.0 * 0.7978845608028654 * LOG2E
K1 = K0 * 0.044715

SX, SQ, SG, SU, SD, SO, SW, SOUT, SGW = 8, 12, 16, 20, 24, 28, 32, 36, 40
srd = lambda b: f"s[{b}:{b+3}]"
(sW, sRH, sJ, sR, sT, sTag, sR2, sC2, sT0, sT1, sT2, sRot, sKx, sKw, sKq, sL4, sL2, sL1, sCE, sCH, sCL,
 sE, sEh, sL, sO, sFP, sKFP, sKPP, sZPP, sA0, sA1, sSpin, sGrow, sOff) = [f"s{i}" for i in range(44, 78)]
sAo = sA0
sMH = "s[78:79]"
sMR = "s[80:81]"
sPC = "s[4:5]"
STAMP0 = 82
sGW = "s92"
sTab = [f"s{i}" for i in range(93, 101)]
sSel = "s101"
sKB, sZB, sTB, sStr = sRot, sKx, sKq, sCL
S1, S2 = 84, 88

ACC = lambda t, rg: 96 + (t * 2 + rg) * 16
vr = lambda b, n=4: f"v[{b}:{b+n-1}]"
ar = lambda b, n=4: f"a[{b}:{b+n-1}]"
LDS_MISC = 19 * 8192


def hoist_m0(groups):
    out = [list(g) for g in groups]
    for i in range(1, len(out)):
        if len(out[i]) == 2 and out[i][0].text.startswith("s_add_u32 m0") and out[i - 1][-1].kind == "vmem":
            out[i - 1].append(out[i].pop(0))
    return out


class Gen:
    def __init__(self, typ, opt):
        self.typ = typ
        self.opt = opt
        self.nv = 1
        self.names = {}
        self.setup = []
        self.hi_next = 192
        self.ool = []
        self.nstamp = 0
        self.nlab = 0

    def v(self, name, n=1, p1only=False):
        if name not in self.names:
            if p1only:
                if n > 1: self.hi_next = (self.hi_next + 1) // 2 * 2
                self.names[name] = self.hi_next; self.hi_next += n
                assert self.hi_next <= 256
            else:
                if n > 1: self.nv = (self.nv + 1) // 2 * 2
                self.names[name] = self.nv; self.nv += n
                assert self.nv <= 64, name
        return self.names[name]

    def V(self, name, p1only=False): return f"v{self.v(name, 1, p1only)}"

    def lab(self, s):
        self.nlab += 1
        return f"L_{self.typ}_{s}_{self.nlab}"

    def stamp(self, name):
        if "xstamp" in self.opt:
            return L("s_memrealtime s[4:5]") if name == self.opt["xstamp"] else []
        if not self.opt.get("stamps"): return []
        if self.opt.get("coarse") and name not in ("start", "sync0", "s4", "p0", "p4", "p1end", "mid", "u8", "u28", "ph2end", "end", "FLUSH"): return []
        return [I("@stamp " + name)]

    def expand_stamps(self, ins):
        out, n = [], 0
        self.stamp_names = []
        lines = mf = 0
        half = {f"v{self.names.get('Hg', -1)},", f"v{self.names.get('Hu', -1)},"}
        for x in ins:
            if x.kind == "vmem":
                lines += (16 if x.text.split()[1] in half else 8) if "x4" in x.op else 2
            if x.kind == "mfma": mf += 1
            if x.kind == "pseudo" and x.text.startswith("@stamp"):
                i = (STAMP0, 4)[n % 2]
                if n: out += L(f"v_writelane_b32 {self.V('stamps')}, s{(STAMP0, 4)[(n-1) % 2]}, {n-1}")
                nm = x.text.split()[1]
                if nm != "FLUSH":
                    out += L(f"{'s_memrealtime' if self.opt.get('rt') else 's_memtime'} s[{i}:{i+1}]")
                    self.stamp_names.append(f"{nm}:{lines}:{mf}")
                    n += 1
                    assert n <= 60, n
            else:
                out.append(x)
        return out

    def lds(self, pat, off, p1only=False):
        win, imm = off >> 16, off & 0xFFFF
        if win == 0:
            return self.V(pat, p1only), imm
        name = f"{pat}@{win}"
        if name not in self.names:
            self.setup += L(f"v_add_u32 {self.V(name, p1only)}, {win << 16}, {self.V(pat, p1only)}")
        return self.V(name), imm

    def prologue(self):
        A = self.typ == "A"
        V = self.V
        self.nv = 2
        t = [self.V(f"t{i}") for i in range(8)]
        l, l3, l7, l4, nh, wsw = [self.V(n, True) for n in ("lane", "l3", "l7", "l4", "nh", "wsw")]
        P = lambda n: self.V(n, True)
        self.first = L(f"""
        v_lshrrev_b32 {t[0]}, 6, v0
        v_and_b32 {l}, 63, v0
        s_and_b32 {sT0}, s2, 1
        v_readfirstlane_b32 {sW}, {t[0]}
        s_bfe_u32 {sT2}, s2, 0x30003
        s_lshl3_add_u32 {sR}, {sT0}, {sT2}
        s_bfe_u32 {sT1}, s2, 0x20001
        s_lshr_b32 {sOff}, s2, 7
        s_lshl1_add_u32 {sT}, {sT1}, {sOff}
        s_lshl2_add_u32 {sGW}, {sT0}, {sT1}
        s_lshl_b32 {sGW}, {sGW}, 5
        s_lshr_b32 {sOff}, s2, 3
        s_add_u32 {sGW}, {sGW}, {sOff}
        s_lshl2_add_u32 {sGW}, {sGW}, {sW}
        v_lshrrev_b32 {l3}, 3, {l}
        v_and_b32 {l7}, 7, {l}
        v_lshrrev_b32 {l4}, 4, {l}
        v_lshlrev_b32 v246, 7, {l}
        s_lshl2_add_u32 {sT0}, {sR}, {sW}
        s_lshl_b32 {sT0}, {sT0}, 15
        v_xor_b32 {t[0]}, {l7}, {l4}
        v_lshlrev_b32 {t[0]}, 4, {t[0]}
        v_lshl_add_u32 {t[0]}, {l3}, 10, {t[0]}
        v_add_u32 {P('X0')}, {sT0}, {t[0]}
        v_xor_b32 {t[1]}, 64, {P('X0')}
        v_add_u32 {P('X1')}, {8192-1024}, {t[1]}
        v_add_u32 {P('X2')}, {16384-2048}, {P('X0')}
        v_add_u32 {P('X3')}, {16384-2048}, {P('X1')}
        v_and_b32 {nh}, 1, {l4}
        v_lshlrev_b32 {t[0]}, 2, {nh}
        v_xor_b32 {t[0]}, {t[0]}, {l7}
        v_lshlrev_b32 {wsw}, 4, {t[0]}
        s_lshl_b32 {sCE}, {sT}, 7
        {f's_mul_i32 {sA1}, s2, {self.opt["rotx"]}' if self.opt.get("rotx") else ''}
        s_bitcmp1_b32 s2, 6
        s_cselect_b32 {sStr}, 7, 6
        s_cselect_b32 {sT1}, 0, 1024
        s_cselect_b32 {sT2}, 32, 0
        s_cselect_b32 {sGrow}, 8, 0
        s_lshl_b32 s{S1+2}, {sStr}, 18
        s_lshl_b32 {sStr}, {sStr}, 9
        s_mov_b32 s{S2+2}, s{S1+2}
        s_mov_b32 s{S1+3}, 0x20000
        s_mov_b32 s{S2+3}, 0x20000
        v_lshl_add_u32 {P('kr')}, {sW}, 4, {l3}
        v_add_u32 {P('wc')}, {sCE}, {wsw}
        v_mad_u32_u24 {t[0]}, {P('kr')}, {sStr}, {P('wc')}
        v_add_u32 {P('W1')}, {sT1}, {t[0]}
        v_add_u32 {t[1]}, {sT1}, {P('W1')}
        v_xor_b32 {P('W2')}, {sT2}, {t[1]}
        s_lshl3_add_u32 {sT1}, {sStr}, -1024
        v_add_u32 {P('W11')}, {sT1}, {P('W1')}
        v_add_u32 {P('W21')}, {sT1}, {P('W2')}
        s_lshl_b32 {sStr}, {sStr}, 6
        s_lshl_b32 {sL4}, {sW}, 12
        s_lshl_b32 {sL2}, {sW}, 11
        s_add_u32 {sGrow}, {sGrow}, {sT}
        s_lshl4_add_u32 {sGrow}, {sR}, {sGrow}
        s_lshl2_add_u32 {sGrow}, {sGrow}, {sW}
        s_lshl_b32 {sGrow}, {sGrow}, 1
        v_lshlrev_b32 {P('l16')}, 4, {l}
        """)
        hi, r4, c3, l31 = [P(n) for n in ("hi", "r4", "c3", "l31")]
        o = L(f"""
        s_and_b32 {sT0}, s2, 7
        s_lshr_b32 {sT1}, s2, 3
        s_and_b32 {sT2}, {sT1}, 7
        s_lshr_b32 {sRH}, {sW}, 1
        s_and_b32 {sJ}, {sW}, 1
        s_and_b32 {sSel}, {sT1}, 3
        s_lshl_b32 {sL1}, {sW}, 10
        v_lshrrev_b32 {hi}, 5, {l}
        v_bfe_u32 {r4}, {l}, 2, 2
        v_and_b32 {c3}, 3, {l}
        v_and_b32 {l31}, 31, {l}
        """)
        m2 = self.opt.get("map2", "8x4")
        if m2 == "8x4t":
            o += L(f"""
            s_lshr_b32 {sR2}, {sT0}, 1
            s_and_b32 {sOff}, {sT1}, 3
            s_lshl3_add_u32 {sR2}, {sR2}, {sOff}
            s_add_u32 {sR2}, {sR2}, {0 if A else 4}
            s_and_b32 {sC2}, {sT0}, 1
            s_lshr_b32 {sOff}, {sT1}, 4
            s_lshl1_add_u32 {sC2}, {sC2}, {sOff}
            s_bfe_u32 {sOff}, {sT1}, 0x10002
            s_lshl1_add_u32 {sC2}, {sC2}, {sOff}
            """)
        elif m2 == "4x8t":
            o += L(f"""
            s_and_b32 {sOff}, {sT1}, 1
            s_lshl2_add_u32 {sR2}, {sT0}, {sOff}
            s_add_u32 {sR2}, {sR2}, {0 if A else 2}
            s_lshr_b32 {sC2}, {sT1}, 4
            s_bfe_u32 {sOff}, {sT1}, 0x20001
            s_lshl2_add_u32 {sC2}, {sC2}, {sOff}
            """)
        elif m2 == "8x4":
            o += L(f"""
            s_lshr_b32 {sR2}, {sT0}, 1
            s_lshl3_add_u32 {sR2}, {sR2}, {sT2}
            s_and_b32 {sC2}, {sT0}, 1
            s_lshr_b32 {sOff}, {sT1}, 3
            s_lshl2_add_u32 {sC2}, {sC2}, {sOff}
            """)
        else:
            o += L(f"""
            s_and_b32 {sOff}, {sT1}, 3
            s_lshl2_add_u32 {sR2}, {sT0}, {sOff}
            s_lshr_b32 {sC2}, {sT1}, 2
            """)
        oa, o = o, []
        o += L(f"""
        v_mul_u32_u24 {t[1]}, 3584, {P('kr')}
        v_add_u32 {V('Wg')}, {t[1]}, {P('wc')}
        v_xor_b32 {V('Wu')}, 32, {V('Wg')}
        v_add_u32 {V('Wg1')}, {8*3584-1024}, {V('Wg')}
        v_add_u32 {V('Wu1')}, {8*3584-1024}, {V('Wu')}
        """)
        if A:
            o += L(f"""
            v_add_u32 {V('Wq')}, -1024, {P('W1')}
            v_add_u32 {V('Wq1')}, -1024, {P('W11')}
            """)
        else:
            o += L(f"""
            v_lshrrev_b32 {t[0]}, 2, {l}
            v_lshl_add_u32 {t[0]}, {sW}, 4, {t[0]}
            v_mul_u32_u24 {t[1]}, 3584, {t[0]}
            v_lshl_add_u32 {t[1]}, {c3}, 4, {t[1]}
            s_lshl_b32 {sCH}, {sT}, 6
            v_add_u32 {V('Hg')}, {sCH}, {t[1]}
            v_xor_b32 {V('Hu')}, 32, {V('Hg')}
            """)
        self.v("gx0", 4, True); self.v("gx1", 4, True); self.v("ggw", 4, True)
        ob, o = o, oa
        o += L(f"""
        v_bfe_u32 {t[0]}, {l}, 1, 3
        v_xor_b32 {t[0]}, {t[0]}, {hi}
        v_lshlrev_b32 {t[0]}, 4, {t[0]}
        v_lshl_add_u32 {t[0]}, {l31}, 7, {t[0]}
        s_lshl_b32 {sT0}, {sRH}, 13
        v_add_u32 {V('XR0', True)}, {sT0}, {t[0]}
        v_xor_b32 {V('XR1', True)}, 32, {V('XR0')}
        v_xor_b32 {V('XR2', True)}, 64, {V('XR0')}
        v_xor_b32 {V('XR3', True)}, 0x60, {V('XR0')}
        v_and_b32 {t[0]}, 2, {r4}
        v_xor_b32 {t[0]}, {t[0]}, {nh}
        s_lshl_b32 {sT0}, {sJ}, 1
        v_xor_b32 {t[0]}, {sT0}, {t[0]}
        v_lshlrev_b32 {t[0]}, 5, {t[0]}
        v_lshl_add_u32 {t[0]}, {c3}, 3, {t[0]}
        v_lshl_add_u32 {t[1]}, {hi}, 3, {r4}
        v_lshl_add_u32 {t[2]}, {t[1]}, 7, {t[0]}
        v_lshl_add_u32 {V('M0')}, {nh}, 13, {t[2]}
        v_xor_b32 {V('M1')}, 32, {V('M0')}
        v_lshl_add_u32 {t[3]}, {hi}, 2, {r4}
        v_lshl_add_u32 {t[3]}, {t[3]}, 7, {t[0]}
        v_add_u32 {V('VR0')}, {sL2}, {t[3]}
        v_xor_b32 {V('VR1')}, 64, {V('VR0')}
        """)
        if A:
            o += L(f"v_mov_b32 {V('Pl')}, {t[2]}")
        else:
            o += L(f"""
            v_xor_b32 {t[0]}, {sJ}, {nh}
            v_lshlrev_b32 {t[0]}, 5, {t[0]}
            v_lshl_add_u32 {t[0]}, {c3}, 3, {t[0]}
            v_lshl_add_u32 {t[0]}, {t[1]}, 6, {t[0]}
            v_lshl_add_u32 {V('Hf')}, {nh}, 12, {t[0]}
            """)
        self.second_a, o = o, ob
        o += L(f"""
        v_lshl_add_u32 {t[0]}, {l3}, 10, {wsw}
        s_lshl_b32 {sT0}, {sC2}, 7
        s_lshl_b32 {sT1}, {sW}, 16
        s_add_u32 {sT0}, {sT0}, {sT1}
        v_add_u32 {V('V4')}, {sT0}, {t[0]}
        v_add_u32 {V('V8')}, {sT1}, {V('V4')}
        v_add_u32 {V('V41')}, {8192-1024}, {V('V4')}
        v_add_u32 {V('V81')}, {8192-1024}, {V('V8')}
        s_mul_i32 {sT0}, {sR2}, {2*RG_BYTES}
        s_add_u32 {sT0}, {sT0}, {WS_H}
        s_add_u32 {sT0}, {sT0}, {sL4}
        v_add_u32 {t[0]}, {sT0}, {V('l16')}
        s_mul_i32 {sA0}, {sRH}, {0 if self.opt.get("ts", 1) == 2 else RG_BYTES}
        s_sub_u32 {sT2}, {RG_BYTES}, {sA0}
        v_add_u32 {V('A40')}, {sA0}, {t[0]}
        v_add_u32 {V('A41')}, {sT2}, {t[0]}
        v_add_u32 {V('A80')}, {sL4}, {V('A40')}
        v_add_u32 {V('A81')}, {sL4}, {V('A41')}
        s_lshl_b32 {sT0}, {sR}, 1
        s_add_u32 {sT0}, {sT0}, {sRH}
        s_mul_i32 {sT1}, {sT0}, {2*RG_BYTES}
        s_add_u32 {sT1}, {sT1}, {WS_H}
        v_add_u32 {V('HS0')}, {sT1}, {V('l16')}
        v_add_u32 {V('HS1')}, {RG_BYTES}, {V('HS0')}
        """)
        if self.opt.get("back"):
            o += L(f"""
            v_and_b32 {t[0]}, 15, {l}
            v_lshlrev_b32 {t[0]}, 7, {t[0]}
            v_mul_u32_u24 {t[1]}, {RG_BYTES}, {nh}
            v_add3_u32 {V('HT')}, {t[0]}, {t[1]}, {sT1}
            """)
        o += L(f"""
        s_lshl_b32 {sT1}, {sT0}, 9
        s_add_u32 {sT1}, {sT1}, {WS_G}
        v_lshlrev_b32 {t[0]}, 3, {l31}
        v_add_u32 {V('G', True)}, {sT1}, {t[0]}
        s_lshl_b32 {sT0}, {sT0}, 2
        s_lshr_b32 {sT1}, {sT}, 1
        s_add_u32 {sT0}, {sT0}, {sT1}
        s_lshl_b32 {sT0}, {sT0}, 9
        s_and_b32 {sT1}, {sT}, 1
        s_lshl_b32 {sT1}, {sT1}, 1
        s_add_u32 {sT1}, {sT1}, {sJ}
        s_lshl_b32 {sT1}, {sT1}, 2
        s_add_u32 {sT0}, {sT0}, {sT1}
        s_add_u32 {sFP}, {sT0}, {WS_FL}
        s_lshl_b32 {sT0}, {sR2}, 2
        s_add_u32 {sT0}, {sT0}, {sW}
        s_lshl_b32 {sT0}, {sT0}, 9
        s_add_u32 {sT0}, {sT0}, {WS_FL}
        v_lshlrev_b32 {t[0]}, 2, {c3}
        v_add_u32 {V('F')}, {sT0}, {t[0]}
        s_lshl_b32 {sT0}, {sT}, 2
        s_lshl_b32 {sT1}, {sJ}, 1
        s_add_u32 {sT0}, {sT0}, {sT1}
        s_lshl_b32 {sE}, {sT0}, 10
        s_add_u32 {sL}, {sE}, {(80 if A else 48)*1024}
        v_mov_b32 v{self.v('KK', 2)}, {f32(K0)}
        v_mov_b32 v{self.v('KK', 2) + 1}, {f32(K1)}
        """)
        if A:
            o += L(f"""
            s_add_u32 {sO}, {sE}, {112*1024}
            s_add_u32 {sT0}, {sT0}, {sRH}
            s_lshl_b32 {sT1}, {sT0}, 7
            s_add_u32 {sT1}, {sT1}, {WS_KF}
            s_lshl_b32 {sT2}, {sR}, 2
            s_add_u32 {sKFP}, {sT1}, {sT2}
            v_and_b32 {t[0]}, 15, {l}
            v_lshlrev_b32 {t[0]}, 2, {t[0]}
            v_add_u32 {V('KF')}, {sT1}, {t[0]}
            s_lshl_b32 {sT1}, {sT0}, 14
            s_add_u32 {sT1}, {sT1}, {WS_KP}
            v_add_u32 {V('KG')}, {sT1}, {V('l16')}
            s_lshl_b32 {sKPP}, {sR}, 6
            s_add_u32 {sKB}, {sT1}, {sKPP}
            s_lshr_b32 {sTB}, {sT0}, 1
            s_lshl_b32 {sTB}, {sTB}, 11
            s_add_u32 {sTB}, {sTB}, {WS_KT}
            s_lshl_b32 {sKPP}, {sR}, 10
            s_lshl_b32 {sT1}, {sT0}, 11
            s_add_u32 {sT1}, {sT1}, {WS_ZP}
            v_lshlrev_b32 {t[0]}, 2, {l}
            v_add_u32 {V('ZG')}, {sT1}, {t[0]}
            s_lshl1_add_u32 {sZB}, {sR}, {sRH}
            s_lshl2_add_u32 {sZB}, {sZB}, {sT1}
            s_lshl_b32 {sZPP}, {sR}, 7
            s_mov_b32 s78, 0xffff0000
            s_mov_b32 s79, 0xffff0000
            s_sub_u32 s80, 0, {sRH}
            s_mov_b32 s81, s80
            v_lshlrev_b32 {t[0]}, 4, {hi}
            v_xor_b32 {t[1]}, 1, {nh}
            v_lshl_add_u32 {t[0]}, {t[1]}, 5, {t[0]}
            s_lshl_b32 {sT1}, {sW}, 6
            s_add_u32 {sT1}, {sT1}, {LDS_MISC + 7168}
            v_add_u32 {V('ZR')}, {sT1}, {t[0]}
            v_and_b32 {t[0]}, 0x24, {l}
            v_bfe_u32 {t[1]}, {l}, 3, 1
            v_lshl_add_u32 {t[0]}, {t[1]}, 4, {t[0]}
            v_lshl_add_u32 {t[0]}, {nh}, 3, {t[0]}
            v_add_u32 {V('ZW')}, {sT1}, {t[0]}
            s_add_u32 {sT1}, {sL1}, {LDS_MISC}
            v_add_u32 {V('XW')}, {sT1}, {V('l16')}
            """)
        else:
            o += L(f"""
            s_lshl_b32 {sT0}, {sT}, 1
            s_add_u32 {sT0}, {sT0}, {sJ}
            s_add_u32 {sT0}, {sT0}, 32
            s_lshl_b32 {sEh}, {sT0}, 10
            """)
        o += L(f"""
        s_mov_b32 {sSpin}, 0
        """)
        r2 = self.opt.get("rot2", 2)
        if r2 == 0:
            o += L(f"s_mov_b32 {sT0}, 0")
        else:
            o += L(f"s_mul_i32 {sT0}, {sC2}, {r2}\ns_mul_i32 {sT1}, {sR2}, {self.opt.get('rot2r', 1)}\ns_add_u32 {sT0}, {sT0}, {sT1}")
        for i in range(8):
            o += L(f"s_add_u32 {sT1}, {sT0}, {i}\ns_and_b32 {sT1}, {sT1}, 7\ns_lshl_b32 {sTab[i]}, {sT1}, 10")
        self.second = o

    def dma(self, s, vreg, soff, m0=None, off=0, flags=""):
        o = L(f"s_add_u32 m0, {m0[0]}, {m0[1]}") if m0 else []
        return o + L(f"buffer_load_dwordx4 {vreg}, {srd(s)}, {soff} offen offset:{off} {flags} lds")

    def item_loads(self, kind, i):
        A = self.typ == "A"
        V = self.V
        base = self.blk[(kind, i)] * 8192
        wf = self.opt.get("wflags", ""); xf = self.opt.get("xflags", ""); vf = self.opt.get("vflags", "")
        rx = self.opt.get("rotx")
        kbx = lambda: L(f"s_add_u32 {sKw}, {sA1}, {i}\ns_and_b32 {sKw}, {sKw}, 7")
        so = lambda c: (kbx() + L(f"s_mul_i32 {sKw}, {sKw}, {c[0]}") + (L(f"s_add_u32 {sKw}, {sKw}, {c[1]}") if c[1] else [])) if rx else L(f"s_mov_b32 {sKw}, {i*c[0] + c[1]}")
        def two(sr, nm, c, b):
            return [(so(c) if c is not None else []) + self.dma(sr, V(nm), sKw, (sL2, b), 0, wf), self.dma(sr, V(nm + "1"), sKw, None, 1024, wf)]
        kq, kw = 64 * 3072, 64 * 3584
        if kind == "X":
            g = [self.dma(SX, V(f"X{jj}"), sKw, None if jj else (sL4, base), jj * 1024, xf) for jj in range(4)]
            g[0] = so((128, 0)) + g[0]
        elif kind == "W":
            g = two(S1, "W1", None, base) + two(S2, "W2", None, base + 8192)
            g[0] = (kbx() + L(f"s_mul_i32 {sKw}, {sKw}, {sStr}") if rx else L(f"s_mul_i32 {sKw}, {sStr}, {i}")) + g[0]
        elif kind == "G":
            g = two(SG, "Wg", (kw, 2560 if A else 1536), base) + two(SU, "Wu", None, base + 8192)
        elif kind == "H":
            g = two(SQ, "Wq", (kq, 0), base) if A else [so((kw, 1024)) + self.dma(SG, V("Hg"), sKw, (sL1, base), 0, wf), self.dma(SU, V("Hu"), sKw, (sL1, base + 4096), 0, wf)]
        else:
            ks, j, mul = self.step(i)
            sr, k = (SD, ks) if ks < 112 else (SO, ks - 112)
            g = [self.dma(sr, V(f"V{mul}"), sKw, (sL2, base), 0, vf), self.dma(sr, V(f"V{mul}1"), sKw, None, 1024, vf)]
            if mul == 8:
                g[0] = L(f"s_lshl4_add_u32 {sKw}, {sTab[j]}, {k*16384}") + g[0]
            else:
                g[0] = L(f"s_and_b32 {sKw}, {sTab[j]}, 0xc00\ns_lshl4_add_u32 {sKw}, {sKw}, {k*16384}") + g[0]
        g[-1][-1].tag = f"{kind}{i}"
        return g

    def v_loads(self, n): return self.item_loads("V", n)

    def plan(self):
        opt = self.opt
        lead1, lead2 = opt.get("lead1", 2), opt.get("lead2", 2)
        must = []
        for s in range(8): must += [("X", s, 2, 4, s, s + 1, lead1), ("W", s, 2, 4, s, s + 1, lead1)]
        for t in range(8):
            must.append(("G", t, 2, 4, 8 + t, 9 + t, lead2 if t < 5 else opt.get("lead3", 2)))
            if t < 4: must += [("H", 2 * t + i, 1, 2, 8 + t, 9 + t, lead2) for i in range(2)]
        b2 = opt.get("b2a", 10) if self.typ == "A" else opt.get("b2", 10)
        budget = {i: opt.get("b1", 8) if i < 8 else b2 for i in range(17)}
        budget[-1], budget[16] = 0, 99
        for i in (12, 13, 14, 15): budget[i] = opt.get("b3", 8)
        for k, v in self.budget_cut.items(): budget[k] -= v
        free_at = [-1] * 19
        self.blk, self.when = {}, {i: [] for i in range(-1, 17)}
        self.parks = {i: [] for i in range(-1, 17)}
        prate = opt.get("parka", 3) if self.typ == "A" else opt.get("parkb", 2)
        nv, npk, issued = 0, 0, {}
        for iv in range(-1, 16):
            left = budget[iv]
            def take(kind, i, nb, fr):
                fb = [b for b in range(19) if free_at[b] <= iv]
                if nb == 2: c = [b for b in fb if b % 2 == 0 and b + 1 in fb]
                elif kind == "V": c = sorted(fb, key=lambda b: (b != 18 and (b ^ 1) in fb, -b))
                else: c = sorted(fb, key=lambda b: (b != 18 and (b ^ 1) in fb, b))
                if not c: return False
                for x in range(nb): free_at[c[0] + x] = fr
                self.blk[(kind, i)] = c[0]
                self.when[iv].append((kind, i))
                return True
            while must and must[0][4] - must[0][6] <= iv:
                kind, i, nb, cost_, need, fr, _ = must[0]
                if not take(kind, i, nb, fr):
                    assert need - 1 > iv, (kind, i, iv)
                    break
                must.pop(0); left -= cost_
            while iv >= opt.get("park0", 99) and len(self.parks[iv]) < prate and npk < 17 and npk < nv and issued[npk] <= iv - opt.get("parklag", 2) and npk <= 4 * (iv - 8) - 2:
                self.parks[iv].append(npk)
                free_at[self.blk[("V", npk)]] = iv + 1
                npk += 1
            live = lambda j: sum(4 if st < 12 else 2 for st in range(max(j, 0), min(16, j + lead2 + 1)))
            owed = max(live(j) for j in range(iv, 17)) + (1 if iv < 10 else 0)
            while left >= 2 and nv < 36 and nv - (npk - len(self.parks[iv])) < 19 - owed and iv >= opt.get("v0", 6):
                if not take("V", nv, 1, 99): break
                issued[nv] = iv
                nv += 1; left -= 2
        assert not must
        fb = [b for b in range(19) if free_at[b] <= 16]
        self.post = []
        while nv < 36:
            if not fb:
                self.post.append(("park", npk)); fb.append(self.blk[("V", npk)]); npk += 1
            self.blk[("V", nv)] = fb.pop(0)
            self.post.append(("load", nv)); nv += 1
        self.npark = npk
        assert npk <= 20

    @staticmethod
    def step(n):
        if n < 8: return 0, n, 8
        if n < 16: return 80, n - 8, 8
        if n < 24: return 48, n - 16, 8
        if n < 28: return 32, n - 24, 4
        return 112, n - 28, 8

    def areg(self, n, sr): return 160 + (n % 12) * 8 + sr * 4

    def a_loads(self, n):
        ks, j, mul = self.step(n)
        g = [L(f"buffer_load_dwordx4 {ar(self.areg(n, sr))}, {self.V(f'A{mul}{sr}')}, {srd(SW)}, {sAo} offen sc1") for sr in range(2)]
        if mul == 8:
            g[0] = L(f"s_add_u32 {sAo}, {sTab[j]}, {ks*1024}") + g[0]
        else:
            g[0] = L(f"s_and_b32 {sAo}, {sTab[j]}, 0xc00\ns_add_u32 {sAo}, {sAo}, {ks*1024}") + g[0]
        return g

    def parked(self, n): return n < self.npark

    def vfrag(self, n, sn):
        if n >= 28 and self.opt.get("ts", 1): return "a", (n - 28) * 8 + sn * 4
        if self.parked(n): return "a", n * 8 + sn * 4
        return "v", (64 if n % 2 == 0 else 80) + sn * 4

    def v_reads(self, n):
        base = self.blk[("V", n)] * 8192
        o = []
        for sn in range(2):
            k, b = self.vfrag(n, sn)
            for i in range(2):
                a, imm = self.lds(f"VR{sn}", base + i * 1024)
                o.append(L(f"ds_read_b64_tr_b16 {k}[{b+2*i}:{b+2*i+1}], {a} offset:{imm}"))
        o[-1][-1].tag = f"RV{n}"
        return o

    def poll_issue(self, reg, addr, off, wide=False):
        if wide:
            return L(f"buffer_load_dwordx2 {vr(reg, 2)}, {addr}, {srd(SW)}, 0 offen offset:{off} sc1")
        return L(f"buffer_load_dword v{reg}, {addr}, {srd(SW)}, 0 offen offset:{off} sc1")

    def poll_check(self, reg, addr, off, wide=False):
        ok, again = self.lab("ok"), self.lab("again")
        tr = reg + 1 if wide else reg
        ld = self.poll_issue(reg, addr, off, wide)[0].text
        return self.check(f"v_cmp_ne_u32 vcc, {sTag}, v{tr}", [ld], ok, again)

    def check(self, test, loads, ok, again):
        raw = lambda t: "\n".join("@raw " + x for x in t.split("\n"))
        self.ool += L(f"""
        {again}:
        @raw s_sleep 2
        {raw(chr(10).join(loads))}
        @raw s_add_u32 {sSpin}, {sSpin}, 1
        @raw s_waitcnt vmcnt(0)
        {raw(test)}
        @raw s_cmp_lt_u32 {sSpin}, 0x40000
        @raw s_cbranch_scc0 {ok}
        @raw s_cbranch_vccnz {again}
        @raw s_branch {ok}
        """)
        return L(f"{test}\ns_cbranch_vccnz {again}\n{ok}:")

    def flag_store(self, soff, off, tags):
        o = L(f"""
        @vm {' '.join(tags)}
        s_mov_b64 exec, 1
        buffer_store_dword {self.V('tag')}, off, {srd(SW)}, {soff} offset:{off} sc1
        """)
        back = {"Lst": [sL] + ([sEh] if self.typ == "B" else []), "Ost": [sO], "Est": [sE]}.get(tags[0])
        if back and tags[0][0] in str(self.opt.get("back", "")):
            for i, b in enumerate(back):
                o += L(f"s_mov_b32 exec_lo, {'0x00ff00ff' if i else -1}\nbuffer_load_dword {self.V('junk')}, {self.V('HT')}, {srd(SW)}, {b} offen sc1")
        return o + L("s_mov_b64 exec, -1")

    def gate_loads(self):
        x0, x1, gw = self.v("gx0", 4, True), self.v("gx1", 4, True), self.v("ggw", 4, True)
        return [L(f"""
        s_lshl_b32 {sOff}, {sGrow}, 10
        buffer_load_dwordx4 {vr(x0)}, {self.V('l16')}, {srd(SX)}, {sOff} offen
        buffer_load_dwordx4 {vr(x1)}, {self.V('l16')}, {srd(SX)}, {sOff} offen offset:1024
        buffer_load_dwordx4 {vr(gw)}, {self.V('l16')}, {srd(SGW)}, 0 offen
        """)]

    def gate_compute(self):
        x = [self.v("gx0", 4, True), self.v("gx1", 4, True)]; gw = self.v("ggw", 4, True)
        t = [self.V(f"t{i}") for i in range(8)]
        s = [self.v("gs", 2, True), self.v("gs") + 1]
        one = self.V("gone", True)
        o = L(f"v_mov_b32 {one}, 0x3f803f80\nv_mov_b32 v{s[0]}, 0\nv_mov_b32 v{s[1]}, 0")
        for d in range(4):
            o += L(f"v_lshlrev_b32 {t[0]}, 16, v{gw+d}\nv_and_b32 {t[1]}, 0xffff0000, v{gw+d}")
            for r in range(2):
                o += L(f"""
                v_lshlrev_b32 {t[2+2*r]}, 16, v{x[r]+d}
                v_and_b32 {t[3+2*r]}, 0xffff0000, v{x[r]+d}
                v_mul_f32 {t[2+2*r]}, {t[2+2*r]}, {t[0]}
                v_mul_f32 {t[3+2*r]}, {t[3+2*r]}, {t[1]}
                v_cvt_pk_bf16_f32 {t[2+2*r]}, {t[2+2*r]}, {t[3+2*r]}
                v_lshlrev_b32 {t[6]}, 16, {t[2+2*r]}
                v_and_b32 {t[7]}, 0xffff0000, {t[2+2*r]}
                v_add_f32 v{s[r]}, v{s[r]}, {t[6]}
                v_add_f32 v{s[r]}, v{s[r]}, {t[7]}
                """)
        dpp = "row_mask:0xf bank_mask:0xf"
        o += L(f"""
        v_permlane32_swap_b32 v{s[0]}, v{s[1]}
        v_add_f32 v{s[0]}, v{s[0]}, v{s[1]}
        v_add_f32_dpp v{s[0]}, v{s[0]}, v{s[0]} quad_perm:[1,0,3,2] {dpp}
        v_add_f32_dpp v{s[0]}, v{s[0]}, v{s[0]} quad_perm:[2,3,0,1] {dpp}
        v_add_f32_dpp v{s[0]}, v{s[0]}, v{s[0]} row_half_mirror {dpp}
        v_add_f32_dpp v{s[0]}, v{s[0]}, v{s[0]} row_mirror {dpp}
        v_mov_b32 v{s[1]}, v{s[0]}
        v_permlane16_swap_b32 v{s[0]}, v{s[1]}
        v_add_f32 v{s[0]}, v{s[0]}, v{s[1]}
        v_cvt_pk_bf16_f32 v{s[0]}, v{s[0]}, v{s[0]}
        v_and_b32 v{s[0]}, 0xffff0000, v{s[0]}
        v_mul_f32 v{s[0]}, {f32(-LOG2E)}, v{s[0]}
        v_exp_f32 v{s[0]}, v{s[0]}
        v_add_f32 v{s[0]}, 1.0, v{s[0]}
        v_rcp_f32 v{s[0]}, v{s[0]}
        v_cvt_pk_bf16_f32 v{s[0]}, v{s[0]}, v{s[0]}
        v_and_b32 v{s[0]}, 0xffff0000, v{s[0]}
        v_mov_b32 v{s[1]}, {sTag}
        v_lshlrev_b32 {t[0]}, 3, {self.V('hi')}
        s_lshl_b32 {sOff}, {sGrow}, 3
        s_add_u32 {sOff}, {sOff}, {WS_G}
        """)
        groups = [[i] for i in o]
        groups.append(L(f"""
        s_mov_b32 exec_lo, 1
        s_mov_b32 exec_hi, 1
        buffer_store_dwordx2 {vr(s[0], 2)}, {t[0]}, {srd(SW)}, {sOff} offen sc1
        s_mov_b64 exec, -1
        """))
        groups = groups[:-4] + [sum(groups[-4:], [])]
        return groups

    def gate_fetch(self):
        g0, g1 = self.v("g0", 2), self.v("g1", 2)
        return [self.poll_issue(g0, self.V("G"), 0, True), self.poll_issue(g1, self.V("G"), 256, True)]

    def gate_check(self):
        o = []
        for i, nm in enumerate(("g0", "g1")):
            g = self.v(nm)
            o.append(self.poll_check(g, self.V("G"), 256 * i, True))
            o += [[x] for x in L(f"""
            v_sub_f32 v{g+1}, 1.0, v{g}
            v_cvt_pk_bf16_f32 v{g+1}, v{g+1}, v{g+1}
            v_and_b32 v{g+1}, 0xffff0000, v{g+1}
            v_max_f32 v{g+1}, {f32(1e-30)}, v{g+1}
            v_rcp_f32 v{g+1}, v{g+1}
            """)]
        return o

    def gelu_tile(self, t, rg, soff, off, tag=None):
        a = ACC(t, rg)
        io = f"v{self.v('g%d' % rg) + 1}"
        T = [self.V(f"t{i}") for i in range(8)]
        o = []
        for h in range(2):
            js = range(4 * h, 4 * h + 4)
            for stage in (
                lambda j, x: f"v_mul_f32 {x}, v{a+j}, v{a+j}",
                lambda j, x: f"v_fmaak_f32 {x}, {x}, v{self.v('KK', 2) + 1}, {f32(K0)}",
                lambda j, x: f"v_mul_f32 {x}, {x}, v{a+j}",
                lambda j, x: f"v_exp_f32 {x}, {x}",
                lambda j, x: f"v_mul_f32 v{a+8+j}, v{a+8+j}, v{a+j}",
                lambda j, x: f"v_fma_f32 {x}, {x}, {io}, {io}",
                lambda j, x: f"v_rcp_f32 {x}, {x}",
                lambda j, x: f"v_mul_f32 v{a+8+j}, v{a+8+j}, {x}",
            ):
                o += [L(stage(j, T[j & 3])) for j in js]
            o += [L(f"v_cvt_pk_bf16_f32 v{a+d}, v{a+8+2*d}, v{a+9+2*d}") for d in (2 * h, 2 * h + 1)]
        o.append(L(f"buffer_store_dwordx4 {vr(a)}, {self.V('HS%d' % rg)}, {srd(SW)}, {soff} offen offset:{off} sc1", tag))
        return o

    def gelu_tile_pk(self, t, rg, soff, off, tag=None):
        a = ACC(t, rg)
        g = self.v("g%d" % rg)
        T = self.v("t0")
        kk = self.v("KK", 2)
        p = lambda r: f"v[{r}:{r+1}]"
        o = []
        for st in range(9):
            for q in range(4):
                x, gg, uu = T + 2 * q, a + 2 * q, a + 8 + 2 * q
                if st == 0: o.append(L(f"v_pk_mul_f32 {p(x)}, {p(gg)}, {p(gg)}"))
                if st == 1: o.append(L(f"v_pk_fma_f32 {p(x)}, {p(x)}, {p(kk)}, {p(kk)} op_sel:[0,1,0] op_sel_hi:[1,1,0]"))
                if st == 2: o.append(L(f"v_pk_mul_f32 {p(x)}, {p(x)}, {p(gg)}"))
                if st == 3: o += [L(f"v_exp_f32 v{x}, v{x}"), L(f"v_exp_f32 v{x+1}, v{x+1}")]
                if st == 4: o.append(L(f"v_pk_mul_f32 {p(uu)}, {p(uu)}, {p(gg)}"))
                if st == 5: o.append(L(f"v_pk_fma_f32 {p(x)}, {p(x)}, {p(g)}, {p(g)} op_sel:[0,1,1] op_sel_hi:[1,1,1]"))
                if st == 6: o += [L(f"v_rcp_f32 v{x}, v{x}"), L(f"v_rcp_f32 v{x+1}, v{x+1}")]
                if st == 7: o.append(L(f"v_pk_mul_f32 {p(uu)}, {p(uu)}, {p(x)}"))
                if st == 8: o.append(L(f"v_cvt_pk_bf16_f32 v{a+q}, v{uu}, v{uu+1}"))
        o.append(L(f"buffer_store_dwordx4 {vr(a)}, {self.V('HS%d' % rg)}, {srd(SW)}, {soff} offen offset:{off} sc1", tag))
        return o

    def phi_pack(self, src, dst):
        T = [self.V(f"t{i}") for i in range(8)]
        o = []
        for q in range(4):
            js = range(4 * q, 4 * q + 4)
            for stage in (
                lambda j, x: f"v_mul_f32 {x}, {f32(LOG2E)}, v{src+j}",
                lambda j, x: f"v_exp_f32_e64 {x}, {x} clamp",
                lambda j, x: f"v_max_f32 v{src+j}, {f32(1e-6)}, v{src+j}",
                lambda j, x: f"v_add_f32 {x}, {x}, v{src+j}",
            ):
                o += [L(stage(j, T[j & 3])) for j in js]
            o += [L(f"v_cvt_pk_bf16_f32 v{dst+2*q+d}, {T[2*d]}, {T[2*d+1]}") for d in range(2)]
        return o

    def plain_pack(self, src, dst):
        return [L(f"v_cvt_pk_bf16_f32 v{dst+d}, v{src+2*d}, v{src+2*d+1}") for d in range(8)]

    def build(self):
        A = self.typ == "A"
        opt = self.opt
        V = self.V
        self.prologue()
        self.kvi = opt.get("kvi", 14)
        self.budget_cut = {}
        self.touch2 = lambda k: touch2(self, k)
        self.plan()
        T = [self.v(f"t{i}") for i in range(8)]

        def trs(pat, off, dst, istep):
            r = []
            for i in range(2):
                a, imm = self.lds(pat, off + i * istep)
                r.append(L(f"ds_read_b64_tr_b16 v[{dst+2*i}:{dst+2*i+1}], {a} offset:{imm}"))
            return r

        def mfma(t, rg, wfr, n, swap):
            acc, xfr = vr(ACC(t, rg), 16), ar((n * 2 + rg) * 4)
            a, b = (xfr, wfr) if swap else (wfr, xfr)
            return L(f"v_mfma_f32_32x32x16_bf16 {acc}, {a}, {b}, {acc if n else 0}")

        units = []
        for m in range(16):
            s, half = m >> 1, m & 1
            xb, wbase = self.blk[("X", s)] * 8192, self.blk[("W", s)] * 8192
            wb = 64 if m % 2 == 0 else 80
            rd, mf = [], []
            for kk in range(2):
                k4 = half * 2 + kk
                n = s * 4 + k4
                xr = []
                for rg in range(2):
                    a, imm = self.lds(f"XR{k4}", xb + rg * 4096, True)
                    xr.append(L(f"ds_read_b128 {ar((n*2+rg)*4)}, {a} offset:{imm}"))
                w = [trs("Pl", wbase + t * 8192 + k4 * 2048, wb + kk * 8 + t * 4, 512) if A else
                     trs(f"M{t}", wbase + k4 * 2048, wb + kk * 8 + t * 4, 512) for t in range(2)]
                rd += [xr[0]] + w[0] + [xr[1]] + w[1]
                mf += [mfma(t, rg, vr(wb + kk * 8 + t * 4), n, A) for t in range(2) for rg in range(2)]
            units.append(([f"W{s}"] if half == 0 else None, rd, mf))
        for m in range(24):
            wb = 64 if m % 2 == 0 else 80
            rd, mf = [], []
            def pair(n, dst):
                gb = self.blk[("G", n >> 2)] * 8192 + (n & 3) * 2048
                return trs("M0", gb, dst, 512) + trs("M1", gb, dst + 4, 512), [mfma(t, rg, vr(dst + 4 * i), n, False) for i, t in enumerate((3, 4)) for rg in range(2)]
            def third(n, dst):
                hb = self.blk[("H", n >> 2)] * 8192
                r = trs("Pl", hb + (n & 3) * 2048, dst, 512) if A else trs("Hf", hb + (n & 3) * 1024, dst, 256)
                return r, [mfma(2, rg, vr(dst), n, False) for rg in range(2)]
            if m < 16:
                parts = [third(2 * m, wb), pair(m, wb + 4), third(2 * m + 1, wb + 12)]
                sy = [f"H{2*(m >> 2) + 1}"] if m % 4 == 0 else None
            else:
                n = 16 + 2 * (m - 16)
                parts = [pair(n, wb), pair(n + 1, wb + 8)]
                sy = [f"G{n >> 2}"] if m % 2 == 0 else None
            for r, f in parts: rd += r; mf += f
            units.append((sy, rd, mf))

        gaps, heads, ustart, syncgap = [], [], [], [0]
        for u, (sy, rd, mf) in enumerate(units):
            ustart.append(len(gaps))
            for i, m in enumerate(mf):
                heads.append((L("@lgkm0") if i == 0 and not opt.get("exact", 0) else []) + m)
                gaps.append(Gap())
            g0 = ustart[u]
            if u + 1 < len(units):
                nsy, nrd, _ = units[u + 1]
                if nsy:
                    gaps[g0].pre += L(f"@sync {' '.join(nsy)}\ns_barrier")
                    syncgap.append(g0)
                span = len(mf) - opt.get("rsp", 2)
                for i, r in enumerate(nrd):
                    gaps[g0 + min(span - 1, (i * span) // len(nrd))].ds += r
            else:
                gaps[g0].pre += L("@sync\ns_barrier")
                syncgap.append(g0)
        ustart.append(len(gaps))
        U = lambda n: ustart[16 + n]
        one = lambda ins: [[x] for x in ins]

        def loads_of(iv): return sum((self.item_loads(k, i) for k, i in self.when[iv]), [])
        pro = loads_of(-1)
        pro[8:8] = self.gate_loads()
        self.pro_loads = pro
        pa, pb = self.v("pa"), self.v("pb")
        extra = {iv: [] for iv in range(17)}
        extra[6] += self.gate_fetch()
        for iv in range(16):
            ld = extra[iv] + loads_of(iv)
            if ld: place_mem(gaps, ld, syncgap[iv] + 1, syncgap[iv + 1])
            if self.parks[iv]:
                rd = []
                for n in self.parks[iv]:
                    r = self.v_reads(n)
                    r[0] = L(f"@vm V{n}") + r[0]
                    rd += r
                lo, hi = syncgap[iv] + 1, syncgap[iv + 1]
                cand = sorted(sorted(range(lo, hi), key=lambda g: gaps[g].used())[:len(rd)])
                assert len(cand) == len(rd)
                for g, r in zip(cand, rd): gaps[g].ds += r
            t2 = opt.get("t2", 2)
            assert t2 + opt.get("t2n", 4) - 1 <= 5
            if 0 <= t2 <= iv < t2 + opt.get("t2n", 4):
                if opt.get("ool", 0):
                    body2 = touch2(self, iv - t2, True, 0)
                    go, back = self.lab("t2go"), body2[-1].text[:-1]
                    gaps[syncgap[iv + 1] - 1].va += body2[:1] + L(f"s_cmp_eq_u32 {sT0}, {iv - t2}\ns_cbranch_scc1 {go}") + body2[-1:]
                    self.ool += L(f"{go}:") + body2[3:-1] + L(f"s_branch {back}")
                else:
                    gaps[syncgap[iv + 1] - 1].va += touch2(self, iv - t2, True, 1 if opt.get("t3", -1) >= 0 else 0)
            if iv == opt.get("t3", -1): gaps[syncgap[iv + 1] - 1].va += touch2(self, 0, False, 2)
            if iv == opt.get("t4", -1): gaps[syncgap[iv + 1] - 1].va += touch4(self)

        self.defer_at = (1, ustart[opt.get("defu", 3)])
        place_valu(gaps, self.gate_compute(), ustart[opt.get("gate0", 3 if opt.get("defer", 0) else 1)], ustart[opt.get("gate1", 7 if opt.get("defer", 0) else 5)])
        place_valu(gaps, self.gate_check(), ustart[14] + 1, ustart[16] - 1)

        cap = opt.get("cap", 12) / 2
        G0, G3 = U(0), U(16)
        if not A:
            ep = []
            for t in range(2):
                for rg in range(2): ep += self.gelu_tile(t, rg, sE, t * 1024, tag="Est")
            last, c = place_valu(gaps, ep, G0 + 1, G3, cap)
            gaps[last + opt.get("e_lag", 36)].va += self.flag_store(sFP, 0, ["Est"]) + self.stamp("Efl")
            self.note = f"E epilogue ends in gap {last - G0} cap {c}"
            ep = self.gelu_tile(2, 0, sEh, 0, tag="Lst") + self.gelu_tile(2, 1, sEh, 0, tag="Lst")
            last, c = place_valu(gaps, ep, G3 + 2, U(24) - 1, cap)
            self.note += f"; third tile ends in gap {last - G0} cap {c}"
        else:
            ones, za = self.v("ones", 4), self.V("za")
            ep = [L(f"v_mov_b32 v{ones+i}, 0x3f803f80") for i in range(4)]
            ep += self.phi_pack(ACC(0, 0), 96) + self.plain_pack(ACC(1, 0), 128)
            ep += self.phi_pack(ACC(0, 1), 104) + self.plain_pack(ACC(1, 1), 136)
            last, c = place_valu(gaps, ep, G0 + 1, G3, opt.get("kvcap", 14) / 2)
            for f in range(4):
                gaps[last + 1 + f].va += L(f"v_mfma_f32_32x32x16_bf16 v[112:127], {vr(96+4*f)}, {vr(128+4*f)}, {'v[112:127]' if f else 0}")
                gaps[last + 1 + f].va += L(f"v_mfma_f32_32x32x16_bf16 v[144:159], {vr(ones)}, {vr(96+4*f)}, {'v[144:159]' if f else 0}")
            ep = [L(f"v_cndmask_b32 v{112+i}, v{112+i}, v{120+i}, {sMH}") for i in range(8)]
            ep += [L(f"v_cndmask_b32 v{120+i}, v{112+i}, v{116+i}, {sMR}") for i in range(4)]
            ep += [L(f"v_cndmask_b32 v{124+i}, v{116+i}, v{112+i}, {sMR}") for i in range(4)]
            ep += one(L(f"v_lshrrev_b32 {za}, 2, {V('XW')}\nv_add_u32 {za}, {LDS_MISC + 4096 - LDS_MISC//4}, {za}"))
            ep += [L(f"ds_write_b128 {V('XW')}, v[124:127]"), L(f"ds_write_b32 {za}, v144"), L(f"v_xor_b32 {za}, 0x200, {za}"), L(f"v_xor_b32 v{T[4]}, 0x800, {V('XW')}")]
            last, c = place_valu(gaps, ep, last + 7, G3, cap)
            sg = min(x for x in ustart if x > last)
            if sg not in syncgap: gaps[sg].pre += L("@lgkm0\ns_barrier")
            gaps[sg + 1].ds += L(f"ds_read_b128 v[124:127], v{T[4]}\nds_read_b32 v145, {za}")
            ep = [L(f"v_add_f32 v{120+i}, v{120+i}, v{124+i}") for i in range(4)]
            ep.append(L(f"v_add_f32 v144, v144, v145"))
            ep.append(L(f"buffer_store_dwordx4 v[120:123], {V('KG')}, {srd(SW)}, {sKPP} offen sc1"))
            last, c = place_valu(gaps, ep, sg + 5, G3, cap)
            z = L(f"""
            s_mov_b32 exec_hi, 0
            buffer_store_dword v144, {V('ZG')}, {srd(SW)}, {sZPP} offen sc1
            s_mov_b32 exec_hi, -1
            """)
            z[1].tag = "KVst"
            gaps[last + 1].va += z
            fl = last + opt.get("kv_lag", 28)
            gaps[fl].va += self.flag_store(sKFP, 0, ["KVst"]) + self.stamp("KVfl")
            chk = syncgap[self.kvi]
            assert fl < chk - opt.get("kv_pl", 24)
            gaps[chk - opt.get("kv_pl", 24)].vm += self.poll_issue(pa, V("KF"), 0)
            gaps[chk].va += self.stamp("KVq") + self.poll_check(pa, V("KF"), 0) + self.stamp("KVok")
            self.note = f"kv flag in gap {fl - G0}, check in gap {chk - G0}"
            ad = one(L(f"""
            v_mbcnt_lo_u32_b32 v110, -1, 0
            v_mbcnt_hi_u32_b32 v110, -1, v110
            v_lshrrev_b32 v108, 2, v110
            v_and_b32 v109, 3, v110
            v_lshlrev_b32 v109, 4, v109
            v_lshl_add_u32 v109, v108, 10, v109
            v_lshlrev_b32 v108, 7, v108
            v_lshlrev_b32 v110, 4, v110
            """))
            place_valu(gaps, ad, fl + 1, G3, cap)
            gaps[chk + 1].vm += L(f"buffer_load_dwordx4 v[96:99], v109, {srd(SW)}, {sKB} offen sc1")
            gaps[chk + 2].vm += L(f"buffer_load_dword v100, v108, {srd(SW)}, {sZB} offen sc1")
            dpp = "row_mask:0xf bank_mask:0xf"
            red = [L(f"v_add_f32_dpp v{r}, v{r}, v{r} row_ror:{n} {dpp}") for n in (4, 8) for r in range(96, 101)]
            for sw in ("v_permlane16_swap_b32", "v_permlane32_swap_b32"):
                red += [L(f"v_mov_b32 v{r+6}, v{r}") for r in range(96, 101)]
                red += [L(f"{sw} v{r}, v{r+6}") for r in range(96, 101)]
                red += [L(f"v_add_f32 v{r}, v{r}, v{r+6}") for r in range(96, 101)]
            red += one(L(f"""
            v_cvt_pk_bf16_f32 v96, v96, v97
            v_cvt_pk_bf16_f32 v97, v98, v99
            v_mov_b32 v98, v100
            v_mov_b32 v99, {sTag}
            """))
            pub = L(f"""
            s_lshl4_add_u32 {sOff}, {sRH}, {sR}
            s_lshl_b32 {sOff}, {sOff}, 6
            s_add_u32 {sOff}, {sOff}, {sTB}
            s_mov_b64 exec, 15
            buffer_store_dwordx4 v[96:99], v109, {srd(SW)}, {sOff} offen sc1
            s_mov_b64 exec, -1
            """) + self.stamp("KVt")
            r0 = chk + opt.get("kv_rl", 26)
            self.kv_first = []
            if opt.get("kvin", 1):
                last, c = place_valu(gaps, red, r0, U(24) - 2, cap)
                gaps[last + 1].va += pub
                self.note += f"; totals leave in gap {last + 1 - G0} cap {c}"
            else:
                self.kv_first = red + [pub]
            last, c = place_valu(gaps, self.phi_pack(ACC(2, 0), 160) + self.phi_pack(ACC(2, 1), 168), G3 + 2, U(24) - 1, cap)
            self.note += f"; third tile ends in gap {last - G0} cap {c}"
        gaps[U(24) - opt.get("epoll", 14)].vm += self.poll_issue(pb, V("F"), 0)

        if opt.get("defer", 0):
            for n in range(36): self.v_reads(n)
            nset = len(self.setup)
            place_valu(gaps, one(self.setup + self.second), *self.defer_at)
        body = self.stamp("start")
        ph1 = self.stamp("issued") + L(f"@sync W0\ns_barrier") + self.stamp("sync0")
        for r in units[0][1]: ph1 += r
        for u in range(len(units)):
            for g in range(ustart[u], ustart[u + 1]):
                ph1 += heads[g]
                if g == ustart[u] and u and ((u < 16 and u % (4 if opt.get("fewp1") else 2) == 0) or (u >= 16 and u % 4 == 0)): ph1 += self.stamp(f"s{u//2}" if u < 16 else f"p{(u-16)//4}")
                ph1 += gaps[g].emit()
        ph1 += self.stamp("p1end")

        gt = self.gelu_tile_pk if opt.get("pk", 1) else self.gelu_tile
        main = []
        tiles = []
        for t in range(2):
            for rg in range(2):
                tiles.append(gt(3 + t, rg, sL, t * 1024, tag="Lst"))
                tiles[-1][-1] += self.stamp(f"L{t}{rg}")
        if not A:
            main = sum(tiles, [])
            nL = len(main)
        else:
            kr = opt.get("kvr", 4)
            ld = [f"buffer_load_dwordx4 v[{100+4*h}:{103+4*h}], v110, {srd(SW)}, {sTB} offen offset:{1024*h} sc1" for h in range(2)]
            ok, again = self.lab("ok"), self.lab("again")
            test = f"v_xor_b32 v111, {sTag}, v103\nv_xor_b32 v112, {sTag}, v107\nv_or_b32 v111, v111, v112\nv_cmp_ne_u32 vcc, 0, v111"
            raw = lambda t: "\n".join("@raw " + x for x in t.split("\n"))
            main = self.kv_first + sum(tiles[:kr], []) + [L(ld[0]), L(ld[1])] + sum(tiles[kr:], [])
            nL = len(main)
            self.need_side = 0
            self.burst_at = len(main)
            main.append([])
            main.append(self.stamp("Tq") + self.check(test, ld, ok, again) + self.stamp("Tok"))
            main += one(L(f"""
            v_cvt_pk_bf16_f32 v102, v102, v106
            ds_write_b32 {V('ZW')}, v102
            @lgkm0
            ds_read_b128 v[108:111], {V('ZR')}
            """))
            for i, kvr in enumerate((100, 101, 104, 105)):
                main += [L(f"v_cndmask_b32 v{176+i}, v{kvr}, v{108+i}, {sMH}"), L(f"v_cndmask_b32 v{180+i}, v{108+i}, v{kvr}, {sMH}")]
            for rg in range(2):
                for hh in range(2):
                    main.append(L(f"v_mfma_f32_32x32x16_bf16 {vr(192 + (rg*2+hh)*16, 16)}, {vr(176+4*hh)}, {vr(160 + rg*8 + hh*4)}, 0"))
            dens = []
            for rg in range(2):
                for hh in range(2):
                    b = 192 + (rg * 2 + hh) * 16
                    dens.append((rg, hh, b, b + 8) if hh == 0 else (rg, hh, b + 8, b))
            main += [L(f"v_add_f32 v{d}, {f32(1e-6)}, v{d}") for _, _, _, d in dens]
            main += [L(f"v_rcp_f32 v{d}, v{d}") for _, _, _, d in dens]
            main += [L(f"v_mul_f32 v{d}, v{d}, v{self.v('g%d' % rg)}") for rg, _, _, d in dens]
            osts = []
            for rg, hh, num, den in dens:
                main += [L(f"v_pk_mul_f32 v[{num+j}:{num+j+1}], v[{num+j}:{num+j+1}], v[{den}:{den+1}] op_sel_hi:[1,0]") for j in range(0, 8, 2)]
                d = 160 + (rg * 2 + hh) * 4
                main += [L(f"v_cvt_pk_bf16_f32 v{d+j}, v{num+2*j}, v{num+2*j+1}") for j in range(4)]
                osts.append(L(f"buffer_store_dwordx4 {vr(d)}, {V('HS%d' % rg)}, {srd(SW)}, {sO} offen offset:{hh*1024} sc1", "Ost"))
                if not opt.get("batch", 0): main.append(osts.pop())
            main += osts
            lf = opt.get("lfa", 3)
            lastL = max(j for j, g in enumerate(main) if any(x.tag == "Lst" for x in g))
            main.insert(min(len(main), lastL + 1 + lf), self.flag_store(sFP, 256, ["Lst"]) + self.stamp("Lfl"))
        slots = [list(g) for g in main]
        side = list(extra[16])
        side.append(self.stamp("Eq") + self.poll_check(pb, V("F"), 0) + self.stamp("Eok"))
        for n in range(8): side += self.a_loads(n)
        post = list(self.post)
        seq = []
        for j, (k, n) in enumerate(post):
            if k == "park":
                pos = len(seq) - 1 if seq and seq[-1][0] == "load" and j > 0 else len(seq)
                seq.insert(max(pos, 0), (k, n))
            else:
                seq.append((k, n))
        for k, n in seq:
            if k == "park": side.append(L(f"@vm V{n}") + sum(self.v_reads(n), []))
            else:
                src = [m for m in range(n) if self.blk[("V", m)] == self.blk[("V", n)] and ("park", m) in post]
                if src: side.append(L(f"@rd V{src[-1]}"))
                side += self.v_loads(n)
        every2 = (opt.get("midea2", 30) if A else opt.get("mide2", 60)) / 4.0
        every = (opt.get("midea", 60) if A else opt.get("mide", 45)) / 4.0
        acc, k = opt.get("mid0", 0) / 4.0, 0
        for j, (sl, g) in enumerate(zip(slots, main)):
            if j == nL: every = every2
            if A and j == self.burst_at:
                nb = opt.get("burst", 10)
                while nb > 0 and k < len(side):
                    sl += side[k]
                    if any(x.kind == "vmem" for x in side[k]): nb -= 1
                    k += 1
            if A and j == self.need_side - 1:
                while k < len(extra[16]): sl += side[k]; k += 1
            acc += sum(2 if x.kind == "valu" and x.op.startswith(TRANS) else 1 for x in g)
            if any(x.kind == "vmem" for x in g): acc -= every
            while k < len(side) and acc >= every:
                sl += side[k]
                if any(x.kind == "vmem" for x in side[k]): acc -= every
                k += 1
        rest = side[k:]
        self.note += f"; mid takes {k} of {len(side)} side groups"
        mid = sum(slots, []) + self.stamp("mid")
        nA = max([j + 1 for j, g in enumerate(rest) if any("a[" in x.text and x.kind == "vmem" for x in g)], default=0)
        mid += sum(rest[:nA], [])
        rest = rest[nA:]
        nP = max([j + 1 for j, g in enumerate(rest) if any(x.kind == "ds" and x.tag and int(x.tag[2:]) < 8 for x in g)], default=0)
        pre0 = rest[:nP]
        if not A and opt.get("lflag_at", -20) < 0:
            pre0.insert(min(len(pre0), -opt.get("lflag_at", -20)), self.flag_store(sFP, 128, ["Lst"]) + self.stamp("fl"))
        mid += sum(pre0, [])
        rest = rest[nP:]
        if not self.parked(0):
            mid += L("@vm V0")
            for r in self.v_reads(0): mid += r

        DA = opt.get("da", 5)
        ph2 = []
        for n in range(36):
            mf = []
            for sr in range(2):
                for sn in range(2):
                    k, b = self.vfrag(n, sn)
                    acc = vr(96 + (sr * 2 + sn) * 16, 16)
                    mf.append(L(f"v_mfma_f32_32x32x16_bf16 {acc}, {k}[{b}:{b+3}], {ar(self.areg(n, sr))}, {acc if n else 0}"))
            g = [[] for _ in range(4)]
            ts = opt.get("ts", 1)
            if ts and n >= 28:
                sr, p = (n - 28) >> 2, 28 + 2 * ((n - 28) & 3)
                mf = []
                for st in (p, p + 1):
                    for sn in range(2):
                        k, b = self.vfrag(st, sn)
                        acc = vr(96 + (sr * 2 + sn) * 16, 16)
                        mf.append(L(f"v_mfma_f32_32x32x16_bf16 {acc}, {k}[{b}:{b+3}], {ar(self.areg(st, sr))}, {acc}"))
                if sr and ts == 2 and opt.get("tsb", 1):
                    for i, j in enumerate(range(3 * (n - 32), min(8, 3 * (n - 32) + 3))):
                        g[1 + i] += L(f"ds_write_b128 v{160 + j}, {vr(96 + j*4)}")
                    if n == 35: mf[0] = [I("@half0")] + mf[0]
                elif sr:
                    for i in range(2):
                        j = 2 * (n - 32) + i
                        g[1 + 2 * i] += L(f"ds_write_b128 v{160 + j}, {vr(96 + j*4)}")
            if ts and n >= 27:
                if n < 31:
                    p = 28 + 2 * (n - 27)
                    g[0] += L(f"@vm V{p+1}")
                    rd = self.v_reads(p) + self.v_reads(p + 1)
                    for i, r in enumerate(rd): g[min(2, i // 3)] += r
            elif n + 1 < 36 and not self.parked(n + 1):
                g[0] += L(f"@vm V{n+1}")
                rd = self.v_reads(n + 1)
                g[0] += rd[0] + rd[1]; g[1] += rd[2] + rd[3]
            vl = []
            ru = opt.get("restu", 12)
            if n < ru:
                take = -(-len(rest) // (ru - n))
                due = max([j + 1 for j, gg in enumerate(rest) if any(x.kind == "ds" and x.tag and int(x.tag[2:]) <= n + 2 for x in gg)], default=0)
                take = max(take, due)
                split = take < len(rest) and take and len(rest[take]) == 1 and rest[take][0].kind == "vmem" and rest[take][0].lds
                vl = rest[:take]
                rest = rest[take:]
            for i, x in enumerate(vl): g[min(3, 1 + i * 3 // len(vl))] += x
            if n == (opt.get("oflag_at", 6) if A else opt.get("lflag_at", -20)):
                g[3] += (self.flag_store(sFP, 384, ["Ost"]) if A else self.flag_store(sFP, 128, ["Lst"])) + self.stamp("fl")
            m = n + (DA if n >= 8 else 0)
            for first, off in ((8, 256), (16, 128), (28, 384)):
                at = max(first - DA, 7)
                if n == at - (opt.get("pl8", 4) if first == 8 else opt.get("pl", 4)): g[2] += self.poll_issue(pa, V("F"), off)
                if n == at: g[2] += self.stamp(f"q{first}") + self.poll_check(pa, V("F"), off) + self.stamp(f"k{first}")
            if n == 7:
                for mm in range(8, 8 + DA): g[3] += sum(self.a_loads(mm), [])
            if ts and 28 <= n + DA < 36:
                for i in range(2):
                    j = 2 * (n + DA - 28) + i
                    al = self.a_loads(28 + (j & 7))
                    g[3] += al[0][:-1] + al[j >> 3][-1:]
            elif n >= 8 and n + DA < 36: g[3] += sum(self.a_loads(n + DA), [])
            if not opt.get("exact2", 0) and not (ts and n >= 32): ph2 += L("@lgkm0")
            for i in range(4):
                ph2 += mf[i]
                if i == 0 and n % 4 == 0: ph2 += self.stamp(f"u{n}")
                ph2 += g[i]
        assert not rest
        ph2 += self.stamp("ph2end")

        fin = []
        T = [self.v(f"t{i}") for i in range(8)]
        of = opt.get("oflags", "sc1")
        if opt.get("full", 1):
            AD = 160
            t2x = opt.get("ts", 1) == 2
            rws = L(f"""
            v_mbcnt_lo_u32_b32 v{T[0]}, -1, 0
            v_mbcnt_hi_u32_b32 v{T[0]}, -1, v{T[0]}
            v_and_b32 v{T[1]}, 7, v{T[0]}
            v_lshrrev_b32 v{T[2]}, 5, v{T[0]}
            v_xor_b32 v{T[2]}, v{T[2]}, v{T[1]}
            v_lshlrev_b32 v{T[2]}, 4, v{T[2]}
            v_lshl_add_u32 v{T[2]}, v{T[1]}, 8, v{T[2]}
            v_bfe_u32 v{T[3]}, v{T[0]}, 3, 2
            v_lshl_add_u32 v{T[2]}, v{T[3]}, 13, v{T[2]}
            s_mul_i32 {sT0}, {sRH}, {0 if t2x else 32768}
            s_lshl_b32 {sT1}, {sJ}, 7
            s_add_u32 {sT0}, {sT0}, {sT1}
            s_add_u32 {sT0}, {sT0}, {sL2}
            v_add_u32 v{AD}, {sT0}, v{T[2]}
            """)
            for sg in range(4):
                for q in range(4):
                    if sg or q: rws += L(f"v_xor_b32 v{AD + sg*4 + q}, {q*32 + (sg & 1)*128 + (sg >> 1)*32768}, v{AD}")
            rws += L(f"""
            v_lshrrev_b32 v{T[3]}, 3, v{T[0]}
            v_lshlrev_b32 v{T[4]}, 1, v{T[1]}
            v_xor_b32 v{T[4]}, v{T[4]}, v{T[3]}
            v_lshlrev_b32 v{T[4]}, 4, v{T[4]}
            v_lshl_add_u32 v{T[4]}, v{T[3]}, 8, v{T[4]}
            s_lshl_b32 {sT0}, {sW}, {13 if t2x else 14}
            v_add_u32 v{T[4]}, {sT0}, v{T[4]}
            v_xor_b32 v{T[5]}, 16, v{T[4]}
            v_lshlrev_b32 v{T[1]}, 4, v{T[1]}
            v_lshl_add_u32 v{T[1]}, v{T[3]}, 10, v{T[1]}
            {'s_lshl3_add_u32' if t2x else 's_lshl2_add_u32'} {sT0}, {sR2}, {sW}
            s_lshl_b32 {sT0}, {sT0}, {13 if t2x else 14}
            s_lshl_b32 {sT1}, {sC2}, 7
            s_add_u32 {sT0}, {sT0}, {sT1}
            v_add_u32 v{T[1]}, {sT0}, v{T[1]}
            s_mov_b32 {sT2}, {0x8000 if t2x else 0x2000}
            """)
            k8 = next(i for i, x in enumerate(ph2) if x.kind == "mfma" and "a[160:163]" in x.text and i > 200)
            ph2[k8:k8] = rws
            hstep = 32768 if t2x else 8192
            def rd_half(h, b0):
                return [L(f"ds_read_b128 {vr(b0 + sw*8 + e*4)}, v{T[4+e]} offset:{h*hstep + sw*2048}") for sw in range(4) for e in range(2)]
            def sum_half(h, b0):
                o = []
                for x, y in ((0, 8), (16, 24), (0, 16)):
                    o += [L(f"v_pk_add_f32 v[{b0+x+i}:{b0+x+i+1}], v[{b0+x+i}:{b0+x+i+1}], v[{b0+y+i}:{b0+y+i+1}]") for i in range(0, 8, 2)]
                d = 176 + h * 4
                o += [L(f"v_cvt_pk_bf16_f32 v{d+i}, v{b0+2*i}, v{b0+2*i+1}") for i in range(4)]
                o.append(L(f"buffer_store_dwordx4 {vr(d)}, v{T[1]}, {srd(SOUT)}, {sT2 if h else 0} offen {of}"))
                return o
            wr = [L(f"ds_write_b128 v{AD + sg*4 + q}, {vr(96 + sg*16 + q*4)}") for sg in range(2 if opt.get("ts", 1) else 0, 4) for q in range(4)]
            if t2x:
                first = L("@lgkm0\ns_barrier") + sum(rd_half(0, 192), [])
                sh = sum_half(0, 192)
                if opt.get("tsb", 1):
                    kh = next(i for i, x in enumerate(ph2) if x.text == "@half0")
                    ph2[kh:kh + 1] = first
                    fin += sum(sh[:8], []) + sum(wr, []) + sum(sh[8:], [])
                else:
                    fin += first + sum(wr, []) + sum(sh, [])
                fin += L("@lgkm0\ns_barrier") + self.stamp("redbar") + sum(rd_half(1, 96), []) + sum(sum_half(1, 96), [])
            else:
                fin += sum(wr, []) + L("@lgkm0\ns_barrier") + self.stamp("redbar")
                fin += sum(rd_half(0, 96) + rd_half(1, 128) + sum_half(0, 96) + sum_half(1, 128), [])
        else:
            RW = f"v{T[0]}"
            rws = L(f"v_mbcnt_lo_u32_b32 {RW}, -1, 0\nv_mbcnt_hi_u32_b32 {RW}, -1, {RW}\nv_lshl_add_u32 {RW}, {RW}, 4, {sL2}")
            for sg in range(1, 4): rws += L(f"v_xor_b32 v{T[sg]}, {sg*2048}, {RW}")
            mid += rws
            for sg in range(1, 4):
                for q in range(4):
                    fin += L(f"ds_write_b128 {RW}, {vr(96 + sg*16 + q*4)} offset:{((sg-1)*2 + (q >> 1))*8192 + (q & 1)*1024}")
            fin += L("@lgkm0\ns_barrier") + self.stamp("redbar")
            for q in range(4):
                for sg in range(1, 4):
                    fin += L(f"ds_read_b128 {vr(96 + sg*16 + q*4)}, v{T[sg]} offset:{((sg-1)*2 + (q >> 1))*8192 + (q & 1)*1024}")
            of = opt.get("oflags", "sc1")
            for pr in range(2):
                for q in (2 * pr, 2 * pr + 1):
                    for h in range(2):
                        r = 96 + q * 4 + 2 * h
                        fin += L(f"""
                        v_pk_add_f32 v[{r}:{r+1}], v[{r}:{r+1}], v[{r+16}:{r+17}]
                        v_pk_add_f32 v[{r+32}:{r+33}], v[{r+32}:{r+33}], v[{r+48}:{r+49}]
                        v_pk_add_f32 v[{r}:{r+1}], v[{r}:{r+1}], v[{r+32}:{r+33}]
                        """)
                d = 160 + pr * 4
                for i in range(4):
                    r = 96 + pr * 8 + 2 * i
                    fin += L(f"v_cvt_pk_bf16_f32 v{d+i}, v{r}, v{r+1}")
                fin += L(f"""
                v_permlane32_swap_b32 v{d}, v{d+2}
                v_permlane32_swap_b32 v{d+1}, v{d+3}
                buffer_store_dwordx4 {vr(d)}, {V('OUT')}, {srd(SOUT)}, 0 offen offset:{pr*32} {of}
                """)
        skip = self.lab("noep")
        fin += L(f"""
        s_or_b32 {sT0}, s2, {sW}
        s_cmp_eq_u32 {sT0}, 0
        s_cbranch_scc1 {skip}_go
        {skip}:
        """)
        self.ool += L(f"""
        {skip}_go:
        s_mov_b64 exec, 1
        @raw buffer_store_dword {V('tag')}, off, {srd(SW)}, 0 offset:{WS_EPOCH} sc1
        s_branch {skip}
        """)
        if opt.get("padto"):
            lp = self.lab("pad")
            if "xstamp" in opt:
                fin += L("@lgkm0\ns_mov_b32 s3, s4")
            fin += L(f"""
            {lp}:
            @raw s_memrealtime s[82:83]
            @raw s_waitcnt lgkmcnt(0)
            @raw s_sub_u32 s82, s82, s3
            @raw s_cmp_lt_u32 s82, {opt['padto']}
            @raw s_cbranch_scc1 {lp}
            """)
        if opt.get("stamps"):
            st = V("stamps")
            fin += L("s_mov_b64 exec, -1") + self.stamp("stored") + L("@vm0") + self.stamp("end") + self.stamp("FLUSH")
            fin += L(f"""
            s_memrealtime s[4:5]
            v_writelane_b32 {st}, s6, 60
            v_writelane_b32 {st}, {sSpin}, 61
            v_writelane_b32 {st}, s3, 62
            v_writelane_b32 {st}, s4, 63
            s_lshl_b32 {sT0}, s2, 2
            s_add_u32 {sT0}, {sT0}, {sW}
            s_lshl_b32 {sT0}, {sT0}, 8
            s_add_u32 {sT0}, {sT0}, {WS_STAMP}
            v_mbcnt_lo_u32_b32 v96, -1, 0
            v_mbcnt_hi_u32_b32 v96, -1, v96
            v_lshlrev_b32 v96, 2, v96
            buffer_store_dword {st}, v96, {srd(SW)}, {sT0} offen
            """)
        fin += L("s_endpgm")

        assert not opt.get("defer", 0) or len(self.setup) == nset
        fin += L(f"L_stop{self.typ}:") + [I("; ---- rarely taken: bounded retry loops of the hand-off checks")] + self.ool + L(f"L_end{self.typ}:")
        loads = self.pro_loads
        t1 = []
        hs = opt.get("hstamp")
        if opt.get("early"):
            o2 = dict(opt); o2["t1"] = 0
            t1 = L(T1X.replace("s[44:45]", f"s[{SX}:{SX+1}]").replace("s[46:47]", f"s[{SQ}:{SQ+1}]").replace("s[48:49]", f"s[{SG}:{SG+1}]").replace("s[50:51]", f"s[{SU}:{SU+1}]") + "s_mov_b64 exec, -1")
            k = next(i for i, x in enumerate(t1) if "exec" in x.text)
            common = common_head(o2) + self.first + t1[:k] + L("@lgkm0")
            t1 = t1[k:]
        else:
          common = common_head(opt) + (L("s_memtime s[94:95]") if hs else []) + self.first + (L("s_memtime s[96:97]") if hs else []) + L("@lgkm0") + (L("s_memtime s[98:99]") if hs else [])
        if opt.get("stamps") or opt.get("padto"): common += L("s_mov_b32 s3, s4")
        p1 = opt.get("t1pos", 0)
        nc = opt.get("nc", 8)
        tlb = []
        if opt.get("tlb"):
            tlb = L(f"""
            s_mov_b64 exec, 1
            buffer_load_dword v244, {V('HS0')}, {srd(SW)}, 0 offen sc1
            buffer_load_dword v243, {V('A80')}, {srd(SW)}, 0 offen sc1
            """) + (L(f"buffer_load_dword v242, {V('OUT')}, {srd(SOUT)}, 0 offen sc1") if opt["tlb"] == 2 else []) + L("s_mov_b64 exec, -1")
        warm = []
        wat = opt.get("wat", -1)
        if opt.get("isl", 2):
            X = self.typ
            warm = L(f"""
            s_mov_b64 exec, 0
            s_cmp_eq_u32 {sW}, 0
            s_cbranch_scc1 L_isl{X}1
            s_cmp_eq_u32 {sW}, 1
            s_cbranch_scc1 L_isl{X}2
            s_cmp_eq_u32 {sW}, 2
            s_cbranch_scc1 L_isl{X}3
            s_branch L_isl{X}4
            L_ret{X}:
            s_mov_b64 exec, -1
            """)
        common += sum(loads[:p1], []) + t1 + sum(loads[p1:nc], [])
        common += L("s_bitcmp1_b32 s2, 6\ns_cbranch_scc1 L_pathB")
        if hs: body = L("@lgkm0") + sum((L(f"v_writelane_b32 {V('stamps')}, s{r}, {i}") for i, r in ((56, 100), (57, 94), (58, 96), (59, 98))), []) + body
        head = body + L(f"buffer_load_dword {V('tag')}, off, {srd(SW)}, 0 offset:{WS_EPOCH} sc1") + self.second_a + ([] if opt.get("defer", 0) else self.second + self.setup)
        nd = opt.get("nd", 8)
        head += sum(loads[nc:nd], []) + (warm if wat < 0 else []) + sum(loads[nd:], []) + tlb
        if opt.get("t2", 2) == -3: head += touch2(self, 0, False)
        tagf = L(f"v_add_u32 {V('tag')}, 0x9e3779b9, {V('tag')}\nv_readfirstlane_b32 {sTag}, {V('tag')}")
        k1 = next(i for i, x in enumerate(ph1) if x.kind == "mfma")
        ph1[k1 + 1:k1 + 1] = tagf
        if wat >= 0:
            k2 = [i for i, x in enumerate(ph1) if x.text.startswith("@sync")][wat]
            ph1[k2:k2] = warm
        if opt.get("fake16"):
            def conv(seq):
                out, cnt = [], {}
                for x in seq:
                    if x.kind == "mfma" and "32x32x16" in x.op:
                        m = re.match(r"\S+ v\[(\d+):\d+\], (\S+), (\S+), (\S+)", x.text)
                        b = int(m.group(1)); k = cnt.get(b, 0); cnt[b] = k + 1
                        for h in range(2):
                            q = b + ((k & 1) * 2 + h) * 4
                            out += L(f"v_mfma_f32_16x16x32_bf16 v[{q}:{q+3}], {m.group(2)}, {m.group(3)}, {'0' if k < 2 and m.group(4) == '0' or k == 1 and False else f'v[{q}:{q+3}]'}")
                    else: out.append(x)
                return out
            if opt["fake16"] & 2: ph2 = conv(ph2)
            if opt["fake16"] & 1: ph1 = conv(ph1)
        if opt.get("hflags"):
            for x in ph1 + mid:
                if x.kind == "vmem" and "store_dwordx4" in x.op and x.tag in ("Est", "Lst", "Ost"): x.text = x.text.replace(" sc1", " " + opt["hflags"])
        if opt.get("nosc1"):
            for x in ph1 + mid:
                if x.kind == "vmem" and "store_dwordx4" in x.op: x.text = x.text.replace(" sc1", "")
        if opt.get("nost") == 2:
            for x in ph1 + mid:
                if x.kind == "vmem" and "store_dwordx4" in x.op: x.text = re.sub(r"(s\[\d+:\d+\]), \S+ offen", r"\1, s35 offen", x.text.replace("s[32:35]", "s[40:43]")).replace(" sc1", "")
        if opt.get("novalu"):
            mid = [x for x in mid if not (x.kind == "valu" and x.op.startswith(("v_pk", "v_exp", "v_rcp", "v_mul", "v_max", "v_add_f32", "v_cvt")))]
        if opt.get("novalu") == 2:
            keep = lambda x: not (x.kind == "valu" and x.op.startswith(("v_pk", "v_exp", "v_rcp", "v_mul", "v_max", "v_add_f32", "v_cvt", "v_fma")))
            k0 = next(i for i, x in enumerate(ph1) if "H1" in x.text)
            ph1 = ph1[:k0 + 200] + [x for x in ph1[k0 + 200:] if keep(x)]
        if opt.get("nost") == 1:
            for x in ph1 + mid:
                if x.kind == "vmem" and "store_dwordx4" in x.op: x.text = x.text.replace("_dwordx4", "_dword").replace(" sc1", ""); x.text = re.sub(r"v\[(\d+):\d+\]", r"v\1", x.text, 1)
        if opt.get("nomfma"): ph1 = [x for x in ph1 if x.kind != "mfma"]; ph2 = [x for x in ph2 if x.kind != "mfma"]
        if opt.get("nods"): ph1 = [x for x in ph1 if not x.op.startswith("ds_read")]; ph2 = [x for x in ph2 if not x.op.startswith("ds_read")]
        if opt.get("nobar"): ph1 = [x for x in ph1 if x.op != "s_barrier"]
        if opt.get("nodma"): ph1 = [x for x in ph1 if not (x.kind == "vmem" and x.lds and not x.tag)]
        C = lambda t: [I("; ---- " + t)]
        kind = "attention + gate/up columns" if A else "gate/up columns only"
        return self.expand_stamps(common + C(f"workgroup kind {self.typ} ({kind}): remaining set-up, second k-block") + head
                                  + C("phase 1: x[128 rows] times 320 weight columns, x kept in a0..a255; epilogues run between the MFMAs") + ph1
                                  + C("last epilogue, with the phase-2 loads spread through it") + mid
                                  + C("phase 2: out[64 x 64] = H[64 x 2304] times [w_down; wo], k split over the four waves") + ph2
                                  + C("sum the four partial tiles through LDS, store whole rows") + fin)


def touch(sr, mask, code, dst, raw=False):
    p = "@raw " if raw else ""
    return L(f"{code}\ns_mov_b64 exec, {mask}\n{p}buffer_load_dword v{dst}, v246, {srd(sr)}, {sOff} offen")


def rowhalf(stride, nbytes, c0):
    return (f"s_lshr_b32 {sOff}, {sGW}, 1\ns_mul_i32 {sOff}, {sOff}, {stride}\ns_and_b32 {sT0}, {sGW}, 1\n"
            f"s_mul_i32 {sT0}, {sT0}, {nbytes}\ns_add_u32 {sOff}, {sOff}, {sT0}" + (f"\ns_add_u32 {sOff}, {sOff}, {c0}" if c0 else ""))


def touch2(g, k, cond=True, part=0):
    skip = g.lab("t2") if cond else None
    n = g.opt.get("t2n", 4) if cond else 1
    o = L(f"s_and_b32 {sT0}, {sSel}, {n-1}\ns_cmp_lg_u32 {sT0}, {k}\ns_cbranch_scc1 {skip}") if cond else []
    p = "@raw " if cond else ""
    if g.opt.get("xt", 1):
        t = [0, 0, 0, 0, 239, 240, 241, 242]
        assert g.hi_next <= 239
        x8 = g.opt.get("map2", "8x4").startswith("8x4")
        o += L(f"""
        v_lshrrev_b32 v{t[4]}, 7, v246
        s_and_b32 {sT0}, {sGW}, 127
        s_bfe_u32 {sT1}, s2, 0x10000
        s_lshl_b32 {sT2}, {sT1}, 7
        s_add_u32 {sT2}, {sT2}, {sT0}
        s_lshl_b32 {sT2}, {sT2}, 1
        s_bfe_u32 {sOff}, s2, 0x20001
        """)
        if part in (0, 1):
            o += L(f"""
            v_bfe_u32 v{t[5]}, v{t[4]}, 1, 1
            v_add_u32 v{t[5]}, {sT2}, v{t[5]}
            v_and_b32 v{t[6]}, 1, v{t[4]}
            v_lshl_add_u32 v{t[6]}, {sOff}, 1, v{t[6]}
            v_lshlrev_b32 v{t[6]}, 7, v{t[6]}
            v_mul_u32_u24 v{t[7]}, 3072, v{t[5]}
            v_add_u32 v{t[7]}, v{t[7]}, v{t[6]}
            s_mov_b64 exec, 15
            {p}buffer_load_dword v248, v{t[7]}, {srd(SQ)}, 0 offen
            s_mov_b64 exec, -1
            v_lshrrev_b32 v{t[7]}, 2, v{t[4]}
            v_lshl_add_u32 v{t[6]}, v{t[7]}, 10, v{t[6]}
            v_add_u32 v{t[6]}, 1536, v{t[6]}
            v_lshlrev_b32 v{t[7]}, 7, {sOff}
            v_add_u32 v{t[7]}, 1024, v{t[7]}
            v_cmp_gt_u32 vcc, 8, v{t[4]}
            v_cndmask_b32 v{t[6]}, v{t[7]}, v{t[6]}, vcc
            v_mul_u32_u24 v{t[5]}, 3584, v{t[5]}
            v_add_u32 v{t[6]}, v{t[6]}, v{t[5]}
            s_mov_b64 exec, 0x5ff
            {p}buffer_load_dword v250, v{t[6]}, {srd(SG)}, 0 offen
            {p}buffer_load_dword v249, v{t[6]}, {srd(SU)}, 0 offen
            s_mov_b64 exec, -1
            """)
        if part in (0, 2) and x8:
            o += L(f"""
            v_lshrrev_b32 v{t[5]}, 2, v{t[4]}
            v_and_b32 v{t[6]}, 3, v{t[4]}
            v_lshlrev_b32 v{t[6]}, 7, v{t[6]}
            v_lshl_add_u32 v{t[6]}, v{t[5]}, 10, v{t[6]}
            s_lshl_b32 {sT1}, {sT1}, 9
            s_lshl_b32 {sT2}, {sOff}, 7
            s_add_u32 {sT2}, {sT2}, {sT0}
            s_lshl_b32 {sOff}, {sT2}, 10
            s_add_u32 {sOff}, {sOff}, {sT1}
            s_mov_b64 exec, 15
            {p}buffer_load_dword v247, v{t[6]}, {srd(SO)}, {sOff} offen
            s_lshl_b32 {sOff}, {sT2}, 12
            s_add_u32 {sOff}, {sOff}, {sT1}
            s_mov_b64 exec, 0xffff
            {p}buffer_load_dword v245, v{t[6]}, {srd(SD)}, {sOff} offen
            """)
        elif part in (0, 2):
            o += touch(SO, "15", f"s_lshl_b32 {sOff}, {sGW}, 9", 247, cond)
            o += touch(SD, "0x3fff", f"s_mul_i32 {sOff}, {sGW}, 1792", 245, cond)
        part = 9
    if part in (0, 1):
        o += touch(SG, "0x3ff", rowhalf(3584, 1280, 1024), 250, cond) + L(p + f"buffer_load_dword v249, v246, {srd(SU)}, {sOff} offen")
        o += touch(SQ, "15", rowhalf(3072, 512, 0), 248, cond)
    if part == 0:
        o += touch(SO, "15", f"s_lshl_b32 {sOff}, {sGW}, 9", 247, cond)
        o += touch(SD, "0x3fff", f"s_mul_i32 {sOff}, {sGW}, 1792", 245, cond)
    if part == 2:
        a, d = g.v("t5"), g.v("t6")
        o += L(f"v_mbcnt_lo_u32_b32 v{a}, -1, 0\nv_mbcnt_hi_u32_b32 v{a}, -1, v{a}\nv_lshlrev_b32 v{a}, 7, v{a}")
        o += L(f"s_lshl_b32 {sOff}, {sGW}, 9\ns_mov_b64 exec, 15\nbuffer_load_dword v{d}, v{a}, {srd(SO)}, {sOff} offen")
        o += L(f"s_mul_i32 {sOff}, {sGW}, 1792\ns_mov_b64 exec, 0x3fff\nbuffer_load_dword v{d+1}, v{a}, {srd(SD)}, {sOff} offen")
    o += L("s_mov_b64 exec, -1")
    if cond: o += L(f"{skip}:")
    return o


def touch4(g):
    a, b, d = g.v("t5"), g.v("t4"), g.v("t6")
    return L(f"""
    v_mbcnt_lo_u32_b32 v{a}, -1, 0
    v_mbcnt_hi_u32_b32 v{a}, -1, v{a}
    v_and_b32 v{b}, 3, v{a}
    v_lshrrev_b32 v{a}, 2, v{a}
    v_lshlrev_b32 v{b}, 7, v{b}
    v_lshl_add_u32 v{a}, v{a}, 10, v{b}
    s_and_b32 {sT0}, {sGW}, 127
    s_bfe_u32 {sT1}, s2, 0x10000
    s_lshl_b32 {sT1}, {sT1}, 9
    s_mul_i32 {sOff}, {sT0}, {14*1024}
    s_add_u32 {sOff}, {sOff}, {sT1}
    s_mov_b32 exec_hi, 0xffffff
    buffer_load_dword v{d}, v{a}, {srd(SD)}, {sOff} offen
    s_lshl_b32 {sOff}, {sT0}, 12
    s_add_u32 {sOff}, {sOff}, {sT1}
    s_mov_b64 exec, 0xffff
    buffer_load_dword v{d+1}, v{a}, {srd(SO)}, {sOff} offen
    s_mov_b64 exec, -1
    """)


def codepf(opt):
    o = L(f"""
    s_getpc_b64 s[82:83]
    L_pc:
    s_bitcmp1_b32 s2, 6
    s_cselect_b32 {sT2}, L_pathB-L_pathA, 0
    s_add_u32 {sT2}, {sT2}, L_pathA-L_pc
    """)
    m = opt.get("codepf", 1)
    if m == 1:
        o += L(f"""
        s_bfe_u32 {sT0}, s2, 0x30003
        s_lshr_b32 {sT1}, s2, 7
        s_lshl3_add_u32 {sT0}, {sT1}, {sT0}
        s_mul_i32 {sT0}, {sT0}, 1536
        s_add_u32 {sT2}, {sT2}, {sT0}
        v_min_u32 v1, 11, v0
        v_lshl_add_u32 v1, v1, 7, {sT2}
        v_min_u32 v1, L_endB-L_pc-4, v1
        global_load_dword v255, v1, s[82:83]
        """)
    elif m == 2:
        o += L(f"""
        v_lshl_add_u32 v1, v0, 7, {sT2}
        v_min_u32 v1, L_endB-L_pc-4, v1
        global_load_dword v255, v1, s[82:83]
        """)
    elif m == 3:
        o += L(f"""
        s_bfe_u32 {sT0}, s2, 0x30003
        s_lshr_b32 {sT1}, s2, 7
        s_lshl3_add_u32 {sT0}, {sT1}, {sT0}
        s_mul_i32 {sT0}, {sT0}, 1536
        s_add_u32 {sT0}, {sT2}, {sT0}
        v_and_b32 v1, 63, v0
        v_lshlrev_b32 v1, 7, v1
        s_mov_b64 exec, 0x1ff
        global_load_dword v244, v1, s[82:83]
        v_add_u32 v2, {sT2}, v1
        global_load_dword v243, v2, s[82:83]
        s_mov_b64 exec, -1
        v_min_u32 v1, 11, v0
        v_lshl_add_u32 v1, v1, 7, {sT0}
        v_min_u32 v1, L_endB-L_pc-4, v1
        global_load_dword v255, v1, s[82:83]
        """)
    return o


T1 = """
        v_lshrrev_b32 v2, 6, v0
        v_lshl_add_u32 v2, s2, 2, v2
        v_and_b32 v1, 63, v0
        v_lshlrev_b32 v1, 7, v1
        v_lshl_add_u32 v3, v2, 11, v1
        v_lshrrev_b32 v4, 1, v2
        v_and_b32 v2, 1, v2
        v_mad_u32_u24 v5, v4, 3, v2
        v_mad_u32_u24 v4, v4, 7, v2
        v_lshl_add_u32 v5, v5, 10, v1
        v_lshl_add_u32 v4, v4, 9, v1
        s_mov_b64 exec, 0xffff
        @lgkm0
        global_load_dword v254, v3, s[44:45]
        s_mov_b64 exec, 0xff
        global_load_dword v253, v5, s[46:47] offset:1024
        s_mov_b64 exec, 15
        global_load_dword v252, v4, s[48:49]
        global_load_dword v251, v4, s[50:51]
"""
T1X = """
        v_lshrrev_b32 v2, 6, v0
        s_lshr_b32 s52, s2, 3
        s_and_b32 s53, s2, 1
        s_bfe_u32 s54, s2, 0x20001
        v_lshl_add_u32 v2, s52, 2, v2
        v_and_b32 v1, 63, v0
        s_lshl2_add_u32 s52, s53, s54
        s_lshl_b32 s52, s52, 18
        v_lshlrev_b32 v3, 11, v2
        v_lshl_add_u32 v3, v1, 7, v3
        v_add_u32 v3, s52, v3
        s_lshl_b32 s53, s53, 8
        v_lshl_add_u32 v2, v2, 1, s53
        v_bfe_u32 v4, v1, 1, 1
        v_add_u32 v2, v2, v4
        v_and_b32 v4, 1, v1
        v_lshl_add_u32 v4, s54, 1, v4
        v_lshlrev_b32 v4, 7, v4
        v_lshrrev_b32 v1, 2, v1
        v_lshl_add_u32 v5, v1, 10, v4
        s_movk_i32 s52, 0xc00
        s_movk_i32 s53, 0xe00
        v_mad_u32_u24 v5, v2, s52, v5
        v_mad_u32_u24 v4, v2, s53, v4
        s_mov_b64 exec, 0xffff
        @lgkm0
        global_load_dword v254, v3, s[44:45]
        s_mov_b64 exec, 0xff
        global_load_dword v253, v5, s[46:47] offset:1024
        s_mov_b64 exec, 15
        global_load_dword v252, v4, s[48:49]
        global_load_dword v251, v4, s[50:51]
"""
T1Z = """
        v_lshrrev_b32 v2, 6, v0
        s_lshr_b32 s52, s2, 3
        s_and_b32 s53, s2, 1
        s_bfe_u32 s54, s2, 0x20001
        v_lshl_add_u32 v2, s52, 2, v2
        v_and_b32 v1, 63, v0
        s_lshl2_add_u32 s52, s53, s54
        s_lshl_b32 s52, s52, 18
        v_lshlrev_b32 v3, 11, v2
        v_lshl_add_u32 v3, v1, 7, v3
        v_add_u32 v3, s52, v3
        s_lshl_b32 s53, s53, 8
        v_lshl_add_u32 v2, v2, 1, s53
        v_bfe_u32 v4, v1, 1, 1
        v_add_u32 v2, v2, v4
        v_and_b32 v4, 1, v1
        v_lshl_add_u32 v4, s54, 1, v4
        v_lshlrev_b32 v4, 7, v4
        v_lshrrev_b32 v1, 2, v1
        v_lshl_add_u32 v5, v1, 10, v4
        s_movk_i32 s52, 0xc00
        s_movk_i32 s53, 0xe00
        v_mad_u32_u24 v5, v2, s52, v5
        v_mad_u32_u24 v4, v2, s53, v4
        s_mov_b64 exec, 0xfefe
        @lgkm0
        global_load_dword v254, v3, s[44:45]
        s_mov_b64 exec, 0xff
        global_load_dword v253, v5, s[46:47] offset:1024
        s_mov_b64 exec, 15
        global_load_dword v252, v4, s[48:49]
        global_load_dword v251, v4, s[50:51]
"""
T1V = """
        v_lshrrev_b32 v2, 6, v0
        s_lshr_b32 s52, s2, 3
        s_and_b32 s53, s2, 1
        s_bfe_u32 s54, s2, 0x20001
        v_lshl_add_u32 v2, s52, 2, v2
        v_and_b32 v1, 63, v0
        s_lshl2_add_u32 s52, s53, s54
        s_lshl_b32 s52, s52, 18
        v_lshlrev_b32 v3, 11, v2
        v_lshl_add_u32 v3, v1, 7, v3
        v_add_u32 v3, s52, v3
        s_lshl_b32 s53, s53, 8
        v_lshl_add_u32 v2, v2, 1, s53
        v_bfe_u32 v4, v1, 1, 1
        v_add_u32 v2, v2, v4
        v_and_b32 v4, 1, v1
        v_lshl_add_u32 v4, s54, 1, v4
        v_lshlrev_b32 v4, 7, v4
        v_lshrrev_b32 v1, 2, v1
        v_lshl_add_u32 v5, v1, 10, v4
        s_movk_i32 s52, 0xc00
        s_movk_i32 s53, 0xe00
        v_mad_u32_u24 v5, v2, s52, v5
        v_mad_u32_u24 v4, v2, s53, v4
        s_mov_b64 exec, 0xfcfc
        @lgkm0
        global_load_dword v254, v3, s[44:45]
        s_mov_b64 exec, 0xff
        global_load_dword v253, v5, s[46:47] offset:1024
        s_mov_b64 exec, 15
        global_load_dword v252, v4, s[48:49]
        global_load_dword v251, v4, s[50:51]
"""
T1W = """
        v_lshrrev_b32 v2, 6, v0
        s_lshr_b32 s52, s2, 3
        s_and_b32 s53, s2, 1
        s_bfe_u32 s54, s2, 0x20001
        v_lshl_add_u32 v2, s52, 2, v2
        v_and_b32 v1, 63, v0
        s_lshl2_add_u32 s52, s53, s54
        s_lshl_b32 s52, s52, 18
        v_lshlrev_b32 v3, 11, v2
        v_lshl_add_u32 v3, v1, 7, v3
        v_add_u32 v3, s52, v3
        v_bfe_u32 v4, v1, 1, 2
        v_lshl_add_u32 v2, v2, 2, v4
        v_and_b32 v4, 1, v1
        v_lshl_add_u32 v4, s54, 1, v4
        v_lshlrev_b32 v4, 7, v4
        v_lshrrev_b32 v1, 3, v1
        v_lshl_add_u32 v5, v1, 10, v4
        s_movk_i32 s52, 0xc00
        s_movk_i32 s53, 0xe00
        v_mad_u32_u24 v5, v2, s52, v5
        v_mad_u32_u24 v4, v2, s53, v4
        s_mov_b64 exec, 0xffff
        @lgkm0
        global_load_dword v254, v3, s[44:45]
        global_load_dword v253, v5, s[46:47] offset:1024
        s_mov_b64 exec, 0xff
        global_load_dword v252, v4, s[48:49]
        global_load_dword v251, v4, s[50:51]
"""
T1Y = """
        v_lshrrev_b32 v2, 6, v0
        s_lshr_b32 s52, s2, 3
        s_and_b32 s53, s2, 1
        s_bfe_u32 s54, s2, 0x20001
        v_lshl_add_u32 v2, s52, 2, v2
        v_and_b32 v1, 63, v0
        s_and_b32 s52, s54, 1
        s_lshl1_add_u32 s52, s53, s52
        s_lshl_b32 s52, s52, 19
        v_lshlrev_b32 v3, 12, v2
        v_lshl_add_u32 v3, v1, 7, v3
        v_add_u32 v3, s52, v3
        s_lshl_b32 s53, s53, 8
        v_lshl_add_u32 v2, v2, 1, s53
        v_bfe_u32 v4, v1, 1, 1
        v_add_u32 v2, v2, v4
        v_and_b32 v4, 1, v1
        v_lshl_add_u32 v4, s54, 1, v4
        v_lshlrev_b32 v4, 7, v4
        v_lshrrev_b32 v1, 2, v1
        v_lshl_add_u32 v5, v1, 10, v4
        s_movk_i32 s52, 0xc00
        s_movk_i32 s53, 0xe00
        v_mad_u32_u24 v5, v2, s52, v5
        v_mad_u32_u24 v4, v2, s53, v4
        s_mov_b32 exec_hi, 0
        @lgkm0
        global_load_dword v254, v3, s[44:45]
        s_mov_b64 exec, 0xff
        global_load_dword v253, v5, s[46:47] offset:1024
        s_mov_b64 exec, 15
        global_load_dword v252, v4, s[48:49]
        global_load_dword v251, v4, s[50:51]
"""


def common_head(opt):
    o = L(f"""
    s_cmp_ge_u32 s2, 0x100
    s_cbranch_scc1 L_end
    """)
    if opt.get("stamps") or opt.get("padto"):
        o += L(("s_memrealtime" if opt.get("rt") else "s_memtime") + " s[6:7]\ns_memrealtime s[4:5]")
    if opt.get("t1", 2) == 2:
        o += L("""
        s_load_dwordx4 s[44:47], s[0:1], 0
        s_load_dwordx4 s[48:51], s[0:1], 32
        """)
    if opt.get("pftop", 1) == 1 and not opt.get("early"): o += codepf(opt)
    if opt.get("t1", 2) == 2:
        o += L(f"""
        {(T1, T1X, T1W, T1Y, T1Z, T1V)[opt.get("xt", 1)]}
        {"s_memtime s[100:101]" if opt.get("hstamp") else ""}
        s_mov_b64 exec, -1
        """)
    if opt.get("pftop", 1) == 2: o += codepf(opt)
    o += L(f"""
    s_bitcmp1_b32 s2, 6
    s_cselect_b32 {sT0}, 32, 8
    s_cselect_b32 {sT1}, 40, 8
    s_load_dwordx2 s[{S1}:{S1+1}], s[0:1], {sT0}
    s_load_dwordx2 s[{S2}:{S2+1}], s[0:1], {sT1}
    """)
    for b, slot in ((SX, 0), (SG, 4), (SU, 5), (SQ, 1), (SGW, 7), (SW, 10), (SD, 6), (SO, 2), (SOUT, 8)):
        o += L(f"s_load_dwordx2 s[{b}:{b+1}], s[0:1], {slot*8}")
    if not opt.get("pftop", 1) or opt.get("early"): o += codepf(opt)
    for b, n in ((SX, 2048 * 1024), (SQ, 512 * 3072), (SG, 512 * 3584), (SU, 512 * 3584), (SD, 1792 * 1024),
                 (SO, 512 * 1024), (SW, WS_BYTES), (SOUT, 2048 * 1024), (SGW, 1024)):
        o += L(f"s_mov_b32 s{b+2}, {n}\ns_mov_b32 s{b+3}, 0x20000")
    return o


def assemble_sizes(txt):
    import subprocess, tempfile, os
    d = tempfile.mkdtemp()
    open(d + "/a.s", "w").write('.amdgcn_target "amdgcn-amd-amdhsa--gfx950"\n.text\nk:\n' + txt)
    subprocess.run(["clang", "-x", "assembler", "-target", "amdgcn-amd-amdhsa", "-mcpu=gfx950", "-c", d + "/a.s", "-o", d + "/a.o"], check=True)
    o = subprocess.run(["llvm-objdump", "-d", "--mcpu=gfx950", d + "/a.o"], capture_output=True, text=True).stdout
    sizes = [4 * len(re.match(r".*// [0-9A-F]+: ((?:[0-9A-F]{8} ?)+)", l).group(1).split()) for l in o.split("\n") if re.match(r".*// [0-9A-F]+: [0-9A-F]{8}", l)]
    return sizes


DOC = '''; One persistent launch, 256 workgroups x 4 waves (one per CU, all co-resident).
; Phase 1: workgroup = 128 rows x 320 columns of x @ [wqkv | w_gate | w_up].  Kind A holds q,k,v of 4 heads plus 64
;   gate/up columns, kind B holds 160 gate/up columns.  Results leave as bf16 MFMA operand fragments in d_ws:
; Hand-offs: write-through (sc1) stores, then a flag word (or a tag inside the 8/16-byte record) holding this launch's
;   tag; readers use sc1 loads.  tag = (word 0 of d_ws on entry) + constant; workgroup 0 stores it back at its end.
; Workgroup ids choose tiles for L2 locality only; any placement gives the same result.
; Generated by a script of the author (straight-line schedule, counted waits, padded hazards).
'''


def generate(opt):
    parts = []
    info = []
    names = []
    for typ in "AB":
        g = Gen(typ, opt)
        ins, added = finalize(g.build())
        k = next(i for i, x in enumerate(ins) if x.text.startswith("s_cbranch_scc1 L_pathB"))
        parts.append((ins[:k + 1], ins[k + 1:]))
        info.append((typ, len(ins), added, g.nv, g.hi_next))
        if opt.get("plan"):
            print(typ, g.note)
            for k, v in g.when.items(): print("  ", k, " ".join(f"{a}{b}@{g.blk[(a, b)]}" for a, b in v), "park", g.parks[k])
            print("   post", g.post)
        names.append("; stamps " + typ + ": " + " ".join(g.stamp_names) + "\n" if g.stamp_names else "")
    assert text_of(parts[0][0]) == text_of(parts[1][0])
    isl = opt.get("isl", 2)
    al = ".p2align 12\n" if isl else ""
    txt = text_of(parts[0][0]) + ("    s_branch L_pathA\n" + al if isl == 1 else "") + "L_pathA:\n" + text_of(parts[0][1]) + al + "L_pathB:\n" + text_of(parts[1][1]) + "L_end:\n    s_endpgm\n"
    if opt.get("align", 1):
        stub = "".join(f"L_isl{x}{k}:\n" for x in "AB" for k in range(1, 5)) if isl else ""
        txt, nw, nn, cnt = align8(txt, lambda t: assemble_sizes(t.replace(al, "") + stub) if al else assemble_sizes(t),
                                  {"L_pathA": ("L_stopA", "A"), "L_pathB": ("L_stopB", "B")} if isl == 1 else {"L_pathB": ("L_stopB", "B")} if isl else None,
                                  (0x300, ("L_stopA", "A")) if isl == 2 else None)
        info.append(("align", nw, nn, cnt))
    ref = open("gated_mix__linear_attn_block__geglu_ffn__prompt.s.ref").read()
    hdr = "".join(l + "\n" for l in ref.split("\n") if l.startswith(";") and "@launch" not in l and "Override" not in l and "grid=ceil" not in l)
    out = f"""{hdr}{DOC}{"".join(names)}; @launch grid=(256,1,1) block=(256,1,1) lds=163840
.amdgcn_target "amdgcn-amd-amdhsa--gfx950"
.text
.globl {KNAME}
.p2align 8
.type {KNAME},@function
{KNAME}:
{txt}.section .rodata,"a"
.p2align 6
.amdhsa_kernel {KNAME}
  .amdhsa_next_free_vgpr 512
  .amdhsa_next_free_sgpr 102
  .amdhsa_accum_offset 256
  .amdhsa_group_segment_fixed_size 0
  .amdhsa_kernarg_size 88
  .amdhsa_user_sgpr_count 2
  .amdhsa_user_sgpr_kernarg_segment_ptr 1
  .amdhsa_system_sgpr_workgroup_id_x 1
  .amdhsa_float_denorm_mode_32 3
.end_amdhsa_kernel
"""
    return out, info


def parse_opts(args):
    opt = {}
    for a in args:
        k, v = a.split("=", 1)
        try: v = int(v)
        except ValueError: v = v.replace("+", " ")
        opt[k] = v
    return opt


if __name__ == "__main__":
    out, info = generate(parse_opts(sys.argv[2:]))
    open(sys.argv[1], "w").write(out)
    print(info)
```
